```python
import torch

def _softmax(x, axis=-1):
    return torch.softmax(x, dim=axis)
def _gelu(x):
    return torch.nn.functional.gelu(x, approximate="tanh")
def _silu(x):
    return torch.nn.functional.silu(x)
def _sigmoid(x):
    return torch.sigmoid(x)
def _layernorm(x, axis=-1, eps=1e-5):
    m = x.mean(dim=axis, keepdim=True)
    v = x.var(dim=axis, keepdim=True, unbiased=False)
    return (x - m) / torch.sqrt(v + eps)
def _scatter_add(tgt, idx, src, axis=0):
    return tgt.clone().index_add_(axis, idx, src)
def _segment_sum(src, seg, n):
    out = torch.zeros((n,) + src.shape[1:], dtype=src.dtype)
    return out.index_add_(0, seg, src)
def _pad(x, pw):
    flat = tuple(v for pair in reversed(pw) for v in pair)
    return torch.nn.functional.pad(x, flat)

kernel_name = 'concat_heads__gqa_block_cached__mha_block_cached__near_ridge'

def setup_inputs():

    _w = (lambda a: (lambda t: t.to(torch.bfloat16) if t.is_floating_point() else t)(torch.as_tensor(a)))
    def _A_setup():
        B, Sq, D = 8, 80, 576
        Hq, Hkv, Sk, Dh = 32, 16, 1024, 128
        assert Hq % Hkv == 0, (Hq, Hkv)
        return {
            "x": _w((lambda *s: torch.randn(*s, dtype=torch.bfloat16) * 0.8)(B, Sq, D)),
            "k_cache": _w((lambda *s: torch.randn(*s, dtype=torch.bfloat16) * 0.8)(B, Hkv, Sk, Dh)),
            "v_cache": _w((lambda *s: torch.randn(*s, dtype=torch.bfloat16) * 0.05)(B, Hkv, Sk, Dh)),
            "wq": _w((lambda *s: torch.randn(*s, dtype=torch.bfloat16) * 0.8)(D, Hq * Dh) * (D ** -0.5)),
            "wo": _w((lambda *s: torch.randn(*s, dtype=torch.bfloat16) * 0.05)(Hq * Dh, D) * ((Hq * Dh) ** -0.5)),
        }
    _A_in = _A_setup()

    def _B_setup():
        B, Sq, D = 8, 80, 576
        H, Sk, Dh = 32, 1024, 128
        return {
            "x": _w((lambda *s: torch.randn(*s, dtype=torch.bfloat16) * 0.8)(B, Sq, D)),
            "k_cache": _w((lambda *s: torch.randn(*s, dtype=torch.bfloat16) * 0.8)(B, H, Sk, Dh)),
            "v_cache": _w((lambda *s: torch.randn(*s, dtype=torch.bfloat16) * 0.05)(B, H, Sk, Dh)),
            "wq": _w((lambda *s: torch.randn(*s, dtype=torch.bfloat16) * 0.8)(D, H * Dh) * (D ** -0.5)),
            "wo": _w((lambda *s: torch.randn(*s, dtype=torch.bfloat16) * 0.05)(H * Dh, D) * ((H * Dh) ** -0.5)),
        }
    _B_in = _B_setup()

    return {
        "A_x": _A_in["x"],
        "A_k_cache": _A_in["k_cache"],
        "A_v_cache": _A_in["v_cache"],
        "A_wq": _A_in["wq"],
        "A_wo": _A_in["wo"],
        "B_x": _B_in["x"],
        "B_k_cache": _B_in["k_cache"],
        "B_v_cache": _B_in["v_cache"],
        "B_wq": _B_in["wq"],
        "B_wo": _B_in["wo"],
    }

def reference(A_x, A_k_cache, A_v_cache, A_wq, A_wo, B_x, B_k_cache, B_v_cache, B_wq, B_wo):
    def _A_ref(x, k_cache, v_cache, wq, wo):
        B, Sq, D = x.shape
        Hq, Dh = 32, 128
        Hkv = k_cache.shape[1]
        rep = Hq // Hkv
        q = (lambda x, *d: x.permute(*d))((x @ wq).reshape(B, Sq, Hq, Dh), 0, 2, 1, 3)
        k = (lambda x, n, axis: torch.repeat_interleave(x, n, dim=axis))(k_cache, rep, axis=1)
        v = (lambda x, n, axis: torch.repeat_interleave(x, n, dim=axis))(v_cache, rep, axis=1)
        scores = torch.einsum("bhqd,bhkd->bhqk", q, k) * (Dh ** -0.5)
        p = _softmax(scores, axis=-1)
        o = torch.einsum("bhqk,bhkd->bhqd", p, v)
        return (lambda x, *d: x.permute(*d))(o, 0, 2, 1, 3).reshape(B, Sq, Hq * Dh) @ wo

    def _B_ref(x, k_cache, v_cache, wq, wo):
        B, Sq, D = x.shape
        H, Dh = 32, 128
        q = (lambda x, *d: x.permute(*d))((x @ wq).reshape(B, Sq, H, Dh), 0, 2, 1, 3)
        scores = torch.einsum("bhqd,bhkd->bhqk", q, k_cache) * (Dh ** -0.5)
        p = _softmax(scores, axis=-1)
        o = torch.einsum("bhqk,bhkd->bhqd", p, v_cache)
        return (lambda x, *d: x.permute(*d))(o, 0, 2, 1, 3).reshape(B, Sq, H * Dh) @ wo

    a = _A_ref(A_x, A_k_cache, A_v_cache, A_wq, A_wo)
    b = _B_ref(B_x, B_k_cache, B_v_cache, B_wq, B_wo)
    return torch.concatenate([a, b], axis=-1)
```

```python
import re

REG_RE = re.compile(r'^(-|\|)?([vas])(?:\[(\d+):(\d+)\]|(\d+))\|?$')

def parse_reg(tok):
    tok = tok.strip()
    if tok.startswith('abs(') or tok.startswith('neg('):
        tok = tok[4:-1]
    m = REG_RE.match(tok)
    if m:
        f = m.group(2)
        if m.group(3) is not None:
            return [(f, i) for i in range(int(m.group(3)), int(m.group(4)) + 1)]
        return [(f, int(m.group(5)))]
    if tok == 'vcc':
        return [('x', 'vcc')]
    if tok in ('exec', 'exec_lo', 'exec_hi'):
        return [('x', 'exec')]
    if tok == 'm0':
        return [('x', 'm0')]
    return []

TRANS = ('v_exp_f32', 'v_log_f32', 'v_rcp_f32', 'v_rsq_f32', 'v_sqrt_f32', 'v_sin_f32', 'v_cos_f32')

class Inst:
    __slots__ = ('text', 'op', 'cls', 'dst', 'src', 'ws', 'srcC', 'srcAB', 'wide_store_data', 'label', 'target')
    def __init__(self, text):
        self.text = text
        self.label = None
        self.target = None
        self.srcC = set(); self.srcAB = set(); self.wide_store_data = set()
        t = text.split(';')[0].strip()
        if t.endswith(':'):
            self.op = 'label'; self.cls = 'label'; self.dst = set(); self.src = set(); self.ws = 0
            self.label = t[:-1]
            return
        if t.startswith('.') or t == '':
            self.op = 'dir'; self.cls = 'dir'; self.dst = set(); self.src = set(); self.ws = 0
            return
        parts = t.split(None, 1)
        op = parts[0]
        self.op = op
        rest = parts[1] if len(parts) > 1 else ''
        ops = [o.strip() for o in rest.split(',')] if rest else []
        if ops:
            last = ops[-1].split()
            ops[-1] = last[0] if last else ''
        ops = [o.split()[0] if o else o for o in ops]
        regs = [parse_reg(o) for o in ops]
        self.ws = 1
        dst, src = set(), set()
        base = op.replace('_e32', '').replace('_e64', '')
        if op == 's_nop':
            self.cls = 'nop'; self.ws = int(ops[0], 0) + 1
        elif op.startswith('v_mfma'):
            self.cls = 'mfma'
            dst |= set(regs[0]); self.srcAB = set(regs[1]) | set(regs[2]); self.srcC = set(regs[3]) if len(regs) > 3 else set()
            src |= self.srcAB | self.srcC
        elif op.startswith('v_cmp'):
            self.cls = 'valu'
            dst |= set(regs[0])
            for r in regs[1:]: src |= set(r)
            if op.startswith('v_cmpx'): dst.add(('x', 'exec'))
        elif op.startswith('v_permlane') and 'swap' in op:
            self.cls = 'valu'
            dst |= set(regs[0]) | set(regs[1]); src |= dst
        elif op.startswith('v_readfirstlane') or op.startswith('v_readlane'):
            self.cls = 'valu'
            dst |= set(regs[0])
            for r in regs[1:]: src |= set(r)
        elif op.startswith('v_'):
            self.cls = 'trans' if base in TRANS else 'valu'
            dst |= set(regs[0])
            k = 1
            if '_co_' in op or op.startswith('v_div_scale') or op.startswith('v_mad_u64'):
                dst |= set(regs[1]); k = 2
            for r in regs[k:]: src |= set(r)
            if base.startswith('v_fmac') or base.startswith('v_pk_fmac') or base.startswith('v_mac') or base.startswith('v_dot2c'):
                src |= set(regs[0])
            if base == 'v_cndmask_b32' and len(ops) == 3:
                src.add(('x', 'vcc'))
        elif op.startswith('ds_read') or op.startswith('ds_bpermute') or op.startswith('ds_swizzle') or op.startswith('ds_permute'):
            self.cls = 'ds'
            dst |= set(regs[0])
            for r in regs[1:]: src |= set(r)
        elif op.startswith('ds_'):
            self.cls = 'ds'
            for r in regs: src |= set(r)
        elif op.startswith('buffer_load') or op.startswith('global_load'):
            self.cls = 'vmem'
            if ' lds' in (' ' + t) and re.search(r'\blds\b', t) or '_lds_' in op:
                for r in regs: src |= set(r)
                src.add(('x', 'm0'))
            else:
                dst |= set(regs[0])
                for r in regs[1:]: src |= set(r)
        elif op.startswith('buffer_store') or op.startswith('global_store'):
            self.cls = 'vmem'
            for r in regs: src |= set(r)
            if 'x4' in op or 'x3' in op:
                self.wide_store_data = set(regs[0]) if op.startswith('buffer') else set(regs[1])
        elif op.startswith('buffer_atomic') or op.startswith('global_atomic'):
            self.cls = 'vmem'
            for r in regs: src |= set(r)
            if ' sc0' in t: dst |= set(regs[0])
        elif op.startswith('buffer_') :
            self.cls = 'vmem'
        elif op.startswith('s_load') or op.startswith('s_memtime') or op.startswith('s_memrealtime') or op.startswith('s_buffer_load'):
            self.cls = 'smem'
            dst |= set(regs[0])
            for r in regs[1:]: src |= set(r)
        elif op.startswith('s_cmp') or op.startswith('s_bitcmp'):
            self.cls = 'salu'
            for r in regs: src |= set(r)
            dst.add(('x', 'scc'))
        elif op.startswith('s_cbranch') or op == 's_branch':
            self.cls = 'branch'; self.target = ops[0]
        elif op in ('s_waitcnt', 's_barrier', 's_endpgm', 's_setprio', 's_sleep', 's_sethalt'):
            self.cls = 'other'
        elif op.startswith('s_'):
            self.cls = 'salu'
            dst |= set(regs[0])
            for r in regs[1:]: src |= set(r)
            if 'saveexec' in op:
                dst.add(('x', 'exec')); src.add(('x', 'exec'))
        else:
            raise ValueError('unknown instruction: ' + text)
        self.dst, self.src = dst, src

def is_valu(i): return i.cls in ('valu', 'trans')

def mfma_passes(i):
    if '32x32x16' in i.op or '32x32x8' in i.op: return 8
    if '16x16x32' in i.op or '16x16x16' in i.op: return 4
    raise ValueError(i.op)

def required_ws(p, c):
    n = 0
    vd = {r for r in p.dst if r[0] in 'va'}
    if is_valu(p):
        if c.cls == 'mfma' and vd & c.src: n = max(n, 2)
        if p.cls == 'trans' and is_valu(c) and c.cls != 'trans' and vd & c.src: n = max(n, 1)
        if p.cls == 'trans' and c.cls == 'trans' and vd & c.src: n = max(n, 1)
        if c.op.startswith('v_permlane') and vd & c.src: n = max(n, 2)
        if (c.op.startswith('v_readlane') or c.op.startswith('v_readfirstlane')) and vd & c.src: n = max(n, 1)
        if 'dpp' in c.text and is_valu(c) and vd & c.src: n = max(n, 2)
        sd = {r for r in p.dst if r[0] == 's' or r == ('x', 'vcc')}
        if sd:
            if is_valu(c) and sd & c.src: n = max(n, 2)
            if c.cls == 'vmem' and sd & c.src: n = max(n, 5)
            if c.cls in ('salu', 'smem') and sd & c.src: n = max(n, 2)
            if (c.op.startswith('v_readlane') or c.op.startswith('v_writelane')) and sd & c.src: n = max(n, 4)
        if ('x', 'exec') in p.dst:
            if c.cls == 'mfma': n = max(n, 4)
            if c.op.startswith('v_permlane') or c.op.startswith('v_readlane') or c.op.startswith('v_readfirstlane'): n = max(n, 4)
            if is_valu(c) and ('x', 'exec') in c.src: n = max(n, 2)
    if p.cls == 'mfma':
        ps = mfma_passes(p)
        D = p.dst
        if c.cls == 'mfma':
            if D & c.srcAB: n = max(n, {4: 8, 8: 12}[ps])
            if D & c.srcC:
                if c.srcC == D and mfma_passes(c) == ps: pass
                else: n = max(n, {4: 6, 8: 10}[ps])
            if D & c.dst and not (c.srcC == D and c.dst == D):
                n = max(n, {4: 6, 8: 10}[ps])
        elif is_valu(c):
            if D & (c.src | c.dst): n = max(n, {4: 8, 8: 12}[ps])
            if p.srcC & c.dst: n = max(n, {4: 3, 8: 7}[ps])
        elif c.cls in ('vmem', 'ds'):
            if D & (c.src | c.dst): n = max(n, {4: 8, 8: 12}[ps])
    if p.cls == 'salu' and ('x', 'm0') in p.dst and c.cls == 'vmem' and ('x', 'm0') in c.src: n = max(n, 1)
    if p.cls == 'vmem' and p.wide_store_data:
        if is_valu(c) and p.wide_store_data & c.dst: n = max(n, 2)
        elif c.cls in ('ds', 'vmem') and p.wide_store_data & c.dst: n = max(n, 1)
    if p.cls == 'ds' and p.op in ('ds_write_b128', 'ds_write_b96') and is_valu(c):
        pass
    return n

LOOKBACK = 24

class Emitter:
    def __init__(self):
        self.ins = []
        self.vmq = []
        self.lgq = []
        self.peak_vm = 0
    def raw(self, text):
        for line in text.split('\n'):
            line = line.strip()
            if not line: continue
            self.ins.append(Inst(line))
    def __call__(self, text, tag=None):
        i = Inst(text.strip())
        self.ins.append(i)
        if i.cls == 'vmem' and not i.op.startswith('buffer_inv') and not i.op.startswith('buffer_wbl2'):
            self.vmq.append(tag)
            self.peak_vm = max(self.peak_vm, len(self.vmq))
            assert len(self.vmq) <= 63, 'vmcnt overflow'
        if i.cls == 'ds':
            self.lgq.append(tag)
        return i
    def label(self, name):
        self.ins.append(Inst(name + ':'))
    def comment(self, text):
        self.ins.append(Inst('; ' + text) if False else Inst(''))
        self.ins[-1].text = '; ' + text
    def wait_vm(self, tag):
        tags = tag if isinstance(tag, (set, list, tuple)) and not (isinstance(tag, tuple) and tag and not isinstance(tag[0], tuple) and False) else {tag}
        if not isinstance(tag, (set, list)): tags = {tag}
        last = -1
        for k, t in enumerate(self.vmq):
            if t in tags: last = k
        if last < 0: return
        n = len(self.vmq) - 1 - last
        self('s_waitcnt vmcnt(%d)' % n)
        self.vmq = self.vmq[last + 1:]
    def wait_vm_all(self):
        if self.vmq:
            self('s_waitcnt vmcnt(0)')
        self.vmq = []
    def wait_lg(self, tag=None):
        if tag is None:
            if self.lgq: self('s_waitcnt lgkmcnt(0)')
            self.lgq = []
            return
        tags = tag if isinstance(tag, (set, list)) else {tag}
        last = -1
        for k, t in enumerate(self.lgq):
            if t in tags: last = k
        if last < 0: return
        n = len(self.lgq) - 1 - last
        if n > 15:
            return self.wait_lg_n(15, last)
        self('s_waitcnt lgkmcnt(%d)' % n)
        self.lgq = self.lgq[last + 1:]
    def wait_lg_n(self, n, last):
        self('s_waitcnt lgkmcnt(%d)' % n)
        self.lgq = self.lgq[len(self.lgq) - n:]
    def fix_hazards(self):
        out = []
        def need_before(seq, c):
            dist = 0; need = 0
            for p in reversed(seq):
                if p.cls in ('label', 'dir'): continue
                r = required_ws(p, c)
                if r > dist: need = max(need, r - dist)
                dist += p.ws
                if dist >= LOOKBACK: break
            return need
        for c in self.ins:
            if c.cls not in ('label', 'dir', 'nop'):
                n = need_before(out, c)
                while n > 0:
                    k = min(n, 16)
                    out.append(Inst('s_nop %d' % (k - 1))); n -= k
            out.append(c)
        labels = {i.label: k for k, i in enumerate(out) if i.cls == 'label'}
        k = 0
        while k < len(out):
            b = out[k]
            if b.cls == 'branch' and b.target in labels:
                t = labels[b.target]
                tail = [x for x in out[max(0, k - 3 * LOOKBACK):k + 1]]
                head = []
                need = 0
                seq = list(tail)
                d = 0
                for c in out[t:t + 3 * LOOKBACK]:
                    if c.cls in ('label', 'dir'): continue
                    if c.cls != 'nop':
                        dist = 0
                        for p in reversed(seq):
                            if p.cls in ('label', 'dir'): continue
                            if p in tail:
                                r = required_ws(p, c)
                                if r > dist: need = max(need, r - dist)
                            dist += p.ws
                            if dist >= LOOKBACK: break
                    seq.append(c); d += c.ws
                    if d >= LOOKBACK or c.cls == 'branch' and c.op == 's_branch': break
                if need > 0:
                    n = need
                    while n > 0:
                        kk = min(n, 16)
                        out.insert(k, Inst('s_nop %d' % (kk - 1))); n -= kk; k += 1
                    labels = {i.label: kk for kk, i in enumerate(out) if i.cls == 'label'}
            k += 1
        self.ins = out
    def text(self):
        L = []
        for i in self.ins:
            if i.cls == 'label': L.append(i.text)
            else: L.append('  ' + i.text)
        return '\n'.join(L) + '\n'

def vr(base, n=1):
    return 'v%d' % base if n == 1 else 'v[%d:%d]' % (base, base + n - 1)
def ar(base, n=1):
    return 'a%d' % base if n == 1 else 'a[%d:%d]' % (base, base + n - 1)
def sr(base, n=1):
    return 's%d' % base if n == 1 else 's[%d:%d]' % (base, base + n - 1)
```

```python
from asmgen import *

X_BYTES = 8 * 80 * 1152
W_BYTES = 576 * 8192
KA_BYTES = 8 * 16 * 1024 * 256
KB_BYTES = 8 * 32 * 1024 * 256
O_BR = 40 * 128 * 1024
O_BYTES = 2 * O_BR

QBUF0, QBUFSZ = 34816, 43008
KS, VS = 0, 65536
QIMG = 122880
STATS = 131072
OX = 0

sX, sW, sK, sV, sO = 4, 8, 12, 16, 20
sWv, sJ, sKH, sBr, sC, sT = 24, 25, 26, 27, 28, 29
sKoff, sVoff, sKl, sVl = 30, 31, 32, 33
sXoff, sWoff, sOoff = 34, 35, 36
sT0, sT1, sT2 = 37, 38, 39
sP = 40
sLoop = 60
sXl, sWl = 61, 62
sB, sH = 63, 64
vL, vN, vG = 1, 2, 3
vKd, vVd = 4, 8
vKr, vVr = 10, 14
vM, vLs = 22, 27
vXd, vWd, vXr, vWr = 32, 34, 36, 38
vT = 42
vS = 56
vO = 96
aQ = 0
aK = 80
aV = 112
aXF = [80, 116]
aWF = [100, 136]

def Sreg(rt, kt): return vS + rt * 8 + kt * 4
def Oreg(ts, rt): return vO + (ts * 5 + rt) * 4
def Qacc(tt, rt): return vO + (tt * 5 + rt) * 4
def Qf(rt, s): return aQ + (rt * 4 + s) * 4
def Kf(kt, s): return aK + (kt * 4 + s) * 4
def Vf(ts): return aV + ts * 4

MFMA = 'v_mfma_f32_16x16x32_bf16'

def srd(e, s, lo, hi, nbytes):
    e(f's_mov_b32 s{s}, s{lo}')
    e(f's_mov_b32 s{s+1}, s{hi}')
    e(f's_mov_b32 s{s+2}, {nbytes}')
    e(f's_mov_b32 s{s+3}, 0x00020000')

class AttnGen:
    def __init__(self, e, cfg):
        self.e = e
        self.cfg = cfg
        self.kvfl = cfg.get('kv_flags', ' nt')
        self.xfl = cfg.get('x_flags', '')
        self.wfl = cfg.get('w_flags', ' nt')
        self.ofl = cfg.get('o_flags', '')
        self.name = cfg.get('name', 'attn_kernel')
        self.rare = []
        self.nrare = 0

    def prologue(self):
        e = self.e
        e(f's_cmp_ge_u32 s2, 256')
        e(f's_cbranch_scc1 L_{self.name}_end')
        e(f's_load_dwordx16 s[40:55], s[0:1], 0')
        e(f's_load_dwordx2 s[56:57], s[0:1], 64')
        e(f's_load_dwordx2 s[58:59], s[0:1], 96')
        t0, t1, t2, t3 = vT, vT + 1, vT + 2, vT + 3
        e(f'v_lshrrev_b32 v{t0}, 6, v0')
        e(f'v_and_b32 v{vL}, 63, v0')
        e(f'v_readfirstlane_b32 s{sWv}, v{t0}')
        e(f'v_and_b32 v{vN}, 15, v{vL}')
        e(f'v_lshrrev_b32 v{vG}, 4, v{vL}')
        e(f's_lshr_b32 s{sJ}, s{sWv}, 1')
        e(f's_and_b32 s{sKH}, s{sWv}, 1')
        e(f's_and_b32 s{sT0}, s2, 7')
        e(f's_lshr_b32 s{sT1}, s2, 3')
        e(f's_lshr_b32 s{sBr}, s{sT1}, 4')
        e(f's_and_b32 s{sT1}, s{sT1}, 15')
        e(f's_mov_b32 s{sC}, 0x3e029407')
        import struct, math
        c = (128 ** -0.5) * math.log2(math.e)
        bits = struct.unpack('<I', struct.pack('<f', c))[0]
        e.ins[-1] = Inst(f's_mov_b32 s{sC}, {bits:#010x}')
        e(f's_mov_b32 s{sT}, 0x41000000')
        for j in range(4):
            e(f'v_add_u32 v{t0}, {4*j}, v{vG}')
            e(f'v_xor_b32 v{t0}, v{t0}, v{vN}')
            e(f'v_lshlrev_b32 v{t0}, 4, v{t0}')
            e(f'v_lshl_add_u32 v{vKd+j}, v{vG}, 8, v{t0}')
        for p in range(2):
            e(f'v_add_u32 v{t0}, {4*p}, v{vG}')
            e(f'v_lshlrev_b32 v{t0}, 1, v{t0}')
            e(f'v_xor_b32 v{t0}, v{t0}, v{vN}')
            e(f'v_lshlrev_b32 v{t0}, 4, v{t0}')
            e(f'v_lshl_add_u32 v{vVd+p}, v{vG}, 8, v{t0}')
        for q in range(2):
            e(f'v_or_b32 v{t0}, {q << 2}, v{vG}')
            e(f'v_lshlrev_b32 v{t0}, 1, v{t0}')
            e(f'v_xor_b32 v{t0}, v{t0}, v{vN}')
            e(f'v_lshlrev_b32 v{t0}, 4, v{t0}')
            e(f'v_lshl_add_u32 v{vWd+q}, v{vG}, 13, v{t0}')
        e(f'v_lshrrev_b32 v{t1}, 3, v{vL}')
        e(f's_movk_i32 s{sT2}, 1152')
        e(f'v_mul_lo_u32 v{t1}, v{t1}, s{sT2}')
        e(f'v_and_b32 v{t2}, 7, v{vL}')
        for q in range(2):
            e(f's_add_u32 s{sT2}, s{sKH}, {q}')
            e(f's_and_b32 s{sT2}, s{sT2}, 1')
            e(f's_lshl_b32 s{sT2}, s{sT2}, 2')
            e(f'v_add_u32 v{t0}, s{sT2}, v{vG}')
            e(f'v_and_b32 v{t0}, 7, v{t0}')
            e(f'v_xor_b32 v{t0}, v{t0}, v{t2}')
            e(f'v_lshl_add_u32 v{vXd+q}, v{t0}, 4, v{t1}')
        e(f's_lshl_b32 s{sKl}, s{sWv}, 13')
        e(f's_add_u32 s{sVl}, s{sKl}, {VS}')
        for s in range(4):
            e(f'v_add_u32 v{t0}, {4*s}, v{vG}')
            e(f'v_xor_b32 v{t0}, v{t0}, v{vN}')
            e(f'v_lshlrev_b32 v{t0}, 4, v{t0}')
            e(f'v_lshl_add_u32 v{t0}, v{vN}, 8, v{t0}')
            e(f'v_add_u32 v{vKr+s}, s{sKl}, v{t0}')
        e(f'v_bfe_u32 v{t1}, v{vL}, 2, 2')
        e(f'v_lshl_add_u32 v{t1}, v{vG}, 2, v{t1}')
        e(f'v_and_b32 v{t2}, 7, v{t1}')
        e(f'v_lshlrev_b32 v{t2}, 1, v{t2}')
        e(f'v_bfe_u32 v{t3}, v{vL}, 1, 1')
        e(f'v_xor_b32 v{t2}, v{t2}, v{t3}')
        e(f'v_and_b32 v{t3}, 1, v{vL}')
        e(f'v_lshlrev_b32 v{t3}, 3, v{t3}')
        e(f'v_lshl_add_u32 v{t3}, v{t1}, 8, v{t3}')
        e(f'v_add_u32 v{t3}, s{sVl}, v{t3}')
        for ts in range(8):
            e(f's_lshl_b32 s{sT2}, s{sKH}, 2')
            e(f's_xor_b32 s{sT2}, s{sT2}, {ts}')
            e(f's_lshl_b32 s{sT2}, s{sT2}, 1')
            e(f'v_xor_b32 v{t0}, s{sT2}, v{t2}')
            e(f'v_lshl_add_u32 v{vVr+ts}, v{t0}, 4, v{t3}')
        e('s_waitcnt lgkmcnt(0)')

    def q_setup(self, br):
        e = self.e
        t0, t1, t2, t3 = vT, vT + 1, vT + 2, vT + 3
        if br == 'A':
            e(f's_lshr_b32 s{sB}, s{sT1}, 1')
            e(f's_and_b32 s{sT1}, s{sT1}, 1')
            e(f's_lshl_b32 s{sT0}, s{sT0}, 1')
            e(f's_add_u32 s{sT0}, s{sT0}, s{sT1}')
            e(f's_lshl_b32 s{sH}, s{sT0}, 1')
            e(f's_add_u32 s{sH}, s{sH}, s{sJ}')
            e(f's_lshl_b32 s{sT1}, s{sB}, 4')
            e(f's_add_u32 s{sT1}, s{sT1}, s{sT0}')
            srd(e, sX, 40, 41, X_BYTES); srd(e, sK, 42, 43, KA_BYTES); srd(e, sV, 44, 45, KA_BYTES); srd(e, sW, 46, 47, W_BYTES)
        else:
            e(f's_lshr_b32 s{sB}, s{sT1}, 2')
            e(f's_lshl_b32 s{sT2}, s{sJ}, 2')
            e(f's_add_u32 s{sB}, s{sB}, s{sT2}')
            e(f's_and_b32 s{sT1}, s{sT1}, 3')
            e(f's_lshl_b32 s{sH}, s{sT0}, 2')
            e(f's_add_u32 s{sH}, s{sH}, s{sT1}')
            e(f's_lshl_b32 s{sT1}, s{sB}, 5')
            e(f's_add_u32 s{sT1}, s{sT1}, s{sH}')
            srd(e, sX, 50, 51, X_BYTES); srd(e, sK, 52, 53, KB_BYTES); srd(e, sV, 54, 55, KB_BYTES); srd(e, sW, 56, 57, W_BYTES)
        srd(e, sO, 58, 59, O_BYTES)
        e(f's_lshl_b32 s{sKoff}, s{sT1}, 18')
        e(f's_lshl_b32 s{sT2}, s{sKH}, 13')
        e(f's_add_u32 s{sKoff}, s{sKoff}, s{sT2}')
        e(f's_mov_b32 s{sVoff}, s{sKoff}')
        e(f's_mul_i32 s{sOoff}, s{sB}, {5*128*1024}')
        e(f's_lshl_b32 s{sT2}, s{sH}, 12')
        e(f's_add_u32 s{sOoff}, s{sOoff}, s{sT2}')
        e(f's_lshl_b32 s{sT2}, s{sKH}, 11')
        e(f's_add_u32 s{sOoff}, s{sOoff}, s{sT2}')
        if br == 'B':
            e(f's_add_u32 s{sOoff}, s{sOoff}, {O_BR}')
        if br == 'A':
            e(f's_mul_i32 s{sXoff}, s{sB}, 92160')
            e(f's_mul_i32 s{sT2}, s{sWv}, 9216')
            e(f's_add_u32 s{sXoff}, s{sXoff}, s{sT2}')
            e(f's_lshl_b32 s{sXl}, s{sWv}, 10')
            e(f's_mul_i32 s65, s{sB}, 92160')
            e(f's_add_u32 s{sT2}, s{sKH}, 8')
            e(f's_lshl_b32 s66, s{sT2}, 10')
            e(f's_mul_i32 s{sT2}, s{sT2}, 9216')
            e(f's_add_u32 s65, s65, s{sT2}')
            e(f's_lshl_b32 s{sWoff}, s{sH}, 8')
            e(f's_lshl_b32 s{sT2}, s{sKH}, 18')
            e(f's_add_u32 s{sWoff}, s{sWoff}, s{sT2}')
            e(f's_lshl_b32 s{sWl}, s{sJ}, 14')
            e(f's_lshl_b32 s{sT2}, s{sKH}, 13')
            e(f's_add_u32 s{sWl}, s{sWl}, s{sT2}')
            e(f's_add_u32 s{sWl}, s{sWl}, 10240')
            xoffj, woffj = (0, 0), (10240, 16384)
        else:
            e(f's_mul_i32 s{sXoff}, s{sB}, 92160')
            e(f's_mul_i32 s{sT2}, s{sKH}, {40*1152}')
            e(f's_add_u32 s{sXoff}, s{sXoff}, s{sT2}')
            e(f's_mul_i32 s{sXl}, s{sWv}, 5120')
            e(f's_lshl_b32 s{sWoff}, s{sH}, 8')
            e(f's_lshl_b32 s{sT2}, s{sWv}, 17')
            e(f's_add_u32 s{sWoff}, s{sWoff}, s{sT2}')
            e(f's_lshl_b32 s{sWl}, s{sWv}, 12')
            e(f's_add_u32 s{sWl}, s{sWl}, 20480')
            xoffj, woffj = (0, 10240), (20480, 0)
        e(f's_mul_i32 s{sT2}, s{sJ}, {xoffj[1]}')
        e(f's_add_u32 s{sT2}, s{sT2}, {QBUF0 + xoffj[0]}')
        e(f'v_lshrrev_b32 v{t1}, 1, v{vN}')
        for s2 in range(2):
            e(f'v_add_u32 v{t0}, {4*s2}, v{vG}')
            e(f'v_xor_b32 v{t0}, v{t0}, v{t1}')
            e(f'v_lshlrev_b32 v{t0}, 4, v{t0}')
            e(f'v_lshl_add_u32 v{t0}, v{vN}, 7, v{t0}')
            e(f'v_add_u32 v{vXr+s2}, s{sT2}, v{t0}')
        e(f's_mul_i32 s{sT2}, s{sJ}, {woffj[1]}')
        e(f's_add_u32 s{sT2}, s{sT2}, {QBUF0 + woffj[0]}')
        e(f'v_bfe_u32 v{t1}, v{vL}, 2, 2')
        e(f'v_and_b32 v{t2}, 1, v{vG}')
        e(f'v_lshl_or_b32 v{t2}, v{t2}, 2, v{t1}')
        e(f'v_lshlrev_b32 v{t2}, 1, v{t2}')
        e(f'v_bfe_u32 v{t3}, v{vL}, 1, 1')
        e(f'v_xor_b32 v{t2}, v{t2}, v{t3}')
        e(f'v_lshl_add_u32 v{t1}, v{vG}, 3, v{t1}')
        e(f'v_and_b32 v{t3}, 1, v{vL}')
        e(f'v_lshlrev_b32 v{t3}, 3, v{t3}')
        e(f'v_lshl_add_u32 v{t3}, v{t1}, 8, v{t3}')
        e(f'v_add_u32 v{t3}, s{sT2}, v{t3}')
        for tt in range(4):
            e(f's_lshl_b32 s{sT2}, s{sKH}, 2')
            e(f's_add_u32 s{sT2}, s{sT2}, {tt}')
            e(f's_lshl_b32 s{sT2}, s{sT2}, 1')
            e(f'v_xor_b32 v{t0}, s{sT2}, v{t2}')
            e(f'v_lshl_add_u32 v{vWr+tt}, v{t0}, 4, v{t3}')

    def q_dma(self, br, c):
        e = self.e
        qb = QBUF0 + (c % 3) * QBUFSZ
        tag = ('Q', c)
        def dma(ldsreg, ldsimm, voff, srdr, soffreg, soffimm, fl):
            e(f's_add_u32 m0, s{ldsreg}, {qb + ldsimm}')
            e(f's_add_u32 s{sT2}, s{soffreg}, {soffimm}')
            e(f'buffer_load_dwordx4 v{voff}, s[{srdr}:{srdr+3}], s{sT2} offen{fl} lds', tag)
        if br == 'A':
            dma(sXl, 0, vXd, sX, sXoff, c * 128, self.xfl)
            dma(sXl, 4096, vXd, sX, sXoff, 4 * 9216 + c * 128, self.xfl)
            dma(66, 0, vXd, sX, 65, c * 128, self.xfl)
            for i in range(8):
                dma(sWl, i * 1024, vWd + ((i >> 1) & 1), sW, sWoff, (64 * c + 4 * i) * 8192, self.wfl)
        else:
            for i in range(5):
                dma(sXl, i * 1024, vXd + (i & 1), sX, sXoff, i * 9216 + c * 128, self.xfl)
            for i in range(4):
                dma(sWl, i * 1024, vWd + (i >> 1), sW, sWoff, (64 * c + 4 * i) * 8192, self.wfl)

    def kv_dma(self, kind, par, tag):
        e = self.e
        if kind == 'K': l, off, s, vo = sKl, sKoff, sK, [vKd, vKd + 1, vKd + 2, vKd + 3]
        else: l, off, s, vo = sVl, sVoff, sV, [vVd, vVd + 1, vVd, vVd + 1]
        e(f's_add_u32 m0, s{l}, {par * 32768}')
        e(f's_add_u32 s{sT2}, s{off}, 4096')
        for q in range(4):
            e(f'buffer_load_dwordx4 v{vo[q]}, s[{s}:{s+3}], s{off} offen offset:{q*1024}{self.kvfl} lds', tag)
        e(f's_add_u32 m0, s{l}, {par * 32768 + 4096}')
        e(f's_add_u32 s{off}, s{off}, 16384')
        for q in range(4):
            e(f'buffer_load_dwordx4 v{vo[q]}, s[{s}:{s+3}], s{sT2} offen offset:{q*1024}{self.kvfl} lds', tag)

    def q_phase(self, br):
        e = self.e
        self.q_setup(br)
        self.q_dma(br, 0)
        self.q_dma(br, 1)
        for c in range(9):
            e.wait_vm(('Q', c))
            e('s_barrier')
            if c + 2 <= 8:
                self.q_dma(br, c + 2)
            if c == 6: self.kv_dma('K', 0, ('K', 0))
            if c == 7: self.kv_dma('K', 1, ('K', 1))
            if c == 8: self.kv_dma('V', 0, ('V', 0))
            for s2 in range(2):
                for rt in range(5):
                    e(f'ds_read_b128 {ar(aXF[s2] + 4*rt, 4)}, v{vXr+s2} offset:{rt*2048}', ('q', s2))
                for tt in range(4):
                    for sec in range(2):
                        e(f'ds_read_b64_tr_b16 {ar(aWF[s2] + 4*tt + 2*sec, 2)}, v{vWr+tt} offset:{s2*8192 + sec*1024}', ('q', s2))
            for s2 in range(2):
                e.wait_lg(('q', s2))
                for tt in range(4):
                    for rt in range(5):
                        acc = vr(Qacc(tt, rt), 4)
                        cc = '0' if (c == 0 and s2 == 0) else acc
                        e(f'{MFMA} {acc}, {ar(aWF[s2] + 4*tt, 4)}, {ar(aXF[s2] + 4*rt, 4)}, {cc}')
            if c < 8:
                d = QBUFSZ if (c % 3) != 2 else -2 * QBUFSZ
                for r in (vXr, vXr + 1, vWr, vWr + 1, vWr + 2, vWr + 3):
                    if d > 0: e(f'v_add_u32 v{r}, {d}, v{r}')
                    else: e(f'v_subrev_u32 v{r}, {-d}, v{r}')

    def q_exchange(self):
        e = self.e
        t0, t1, t2, t3 = vT, vT + 1, vT + 2, vT + 3
        e('s_barrier')
        e(f's_mul_i32 s{sT2}, s{sJ}, 20480')
        e(f's_add_u32 s{sT2}, s{sT2}, {QIMG}')
        e(f'v_and_b32 v{t1}, 1, v{vG}')
        e(f'v_lshlrev_b32 v{t1}, 3, v{t1}')
        e(f'v_lshl_add_u32 v{t1}, v{vN}, 8, v{t1}')
        e(f'v_add_u32 v{t1}, s{sT2}, v{t1}')
        e(f'v_lshrrev_b32 v{t2}, 1, v{vG}')
        e(f'v_xor_b32 v{t2}, v{t2}, v{vN}')
        for tt in range(4):
            e(f's_lshl_b32 s{sT1}, s{sKH}, 2')
            e(f's_add_u32 s{sT1}, s{sT1}, {tt}')
            e(f's_lshl_b32 s{sT1}, s{sT1}, 1')
            e(f'v_xor_b32 v{t0}, s{sT1}, v{t2}')
            e(f'v_lshl_add_u32 v{vT+4+tt}, v{t0}, 4, v{t1}')
        for tt in range(4):
            for rt in range(5):
                b = Qacc(tt, rt)
                e(f'v_cvt_pk_bf16_f32 v{b}, v{b}, v{b+1}')
                e(f'v_cvt_pk_bf16_f32 v{b+1}, v{b+2}, v{b+3}')
                e(f'ds_write_b64 v{vT+4+tt}, {vr(b, 2)} offset:{rt*4096}', 'qw')
        e.wait_lg()
        e('s_barrier')
        e(f's_sub_u32 s{sT2}, s{sT2}, s{sKl}')
        for s in range(4):
            e(f'v_add_u32 v{vT+4+s}, s{sT2}, v{vKr+s}')
        for rt in range(5):
            for s in range(4):
                e(f'ds_read_b128 {ar(Qf(rt, s), 4)}, v{vT+4+s} offset:{rt*4096}', 'qr')
        for r in range(vO, vO + 160):
            e(f'v_mov_b32 v{r}, 0')
        for rt in range(5):
            e(f'v_mov_b32 v{vM+rt}, 0xf149f2ca')
            e(f'v_mov_b32 v{vLs+rt}, 0')
        e.wait_lg()
        e('s_barrier')
        self.kv_dma('V', 1, ('V', 1))

    def rare_block(self, lab, back):
        r = Emitter()
        r.label(lab)
        r('s_nop 7')
        mx = [vT + i for i in range(5)]
        t = vT + 5; f = vT + 6
        for rt in range(5):
            r(f'v_mov_b32 v{t}, v{mx[rt]}')
            r(f'v_permlane16_swap_b32 v{mx[rt]}, v{t}')
            r(f'v_max_f32 v{mx[rt]}, v{mx[rt]}, v{t}')
            r(f'v_mov_b32 v{t}, v{mx[rt]}')
            r(f'v_permlane32_swap_b32 v{mx[rt]}, v{t}')
            r(f'v_max_f32 v{mx[rt]}, v{mx[rt]}, v{t}')
            r(f'v_mul_f32 v{t}, s{sC}, v{mx[rt]}')
            r(f'v_max_f32 v{t}, v{t}, v{vM+rt}')
            r(f'v_sub_f32 v{f}, v{vM+rt}, v{t}')
            r(f'v_exp_f32 v{f}, v{f}')
            r(f'v_mov_b32 v{vM+rt}, v{t}')
            r(f'v_mul_f32 v{vLs+rt}, v{vLs+rt}, v{f}')
            for ts in range(8):
                b = Oreg(ts, rt)
                r(f'v_pk_mul_f32 {vr(b,2)}, {vr(b,2)}, {vr(f,2)} op_sel_hi:[1,0]')
                r(f'v_pk_mul_f32 {vr(b+2,2)}, {vr(b+2,2)}, {vr(f,2)} op_sel_hi:[1,0]')
        r('s_nop 7')
        r(f's_branch {back}')
        self.rare.append(r)

    def iteration(self, it, par, issue_next):
        e = self.e
        e.wait_vm(('K', it))
        for kt in range(2):
            for s in range(4):
                e(f'ds_read_b128 {ar(Kf(kt, s), 4)}, v{vKr+s} offset:{par*32768 + kt*4096}', 'k')
        e.wait_lg()
        if issue_next: self.kv_dma('K', par, ('K', it + 2))
        for s in range(4):
            for rt in range(5):
                for kt in range(2):
                    acc = vr(Sreg(rt, kt), 4)
                    cc = '0' if s == 0 else acc
                    e(f'{MFMA} {acc}, {ar(Kf(kt, s), 4)}, {ar(Qf(rt, s), 4)}, {cc}')
        e.wait_vm(('V', it))
        for ts in range(8):
            for sec in range(2):
                e(f'ds_read_b64_tr_b16 {ar(Vf(ts) + 2*sec, 2)}, v{vVr+ts} offset:{par*32768 + sec*4096}', 'v')
        mx = [vT + i for i in range(5)]
        for rt in range(5):
            b = Sreg(rt, 0)
            e(f'v_max3_f32 v{mx[rt]}, v{b}, v{b+1}, v{b+2}')
            e(f'v_max3_f32 v{mx[rt]}, v{mx[rt]}, v{b+3}, v{b+4}')
            e(f'v_max3_f32 v{mx[rt]}, v{mx[rt]}, v{b+5}, v{b+6}')
            e(f'v_max_f32 v{mx[rt]}, v{mx[rt]}, v{b+7}')
        d = [vT + 5 + i for i in range(5)]
        for rt in range(5):
            e(f'v_fma_f32 v{d[rt]}, v{mx[rt]}, s{sC}, -v{vM+rt}')
        e(f'v_max3_f32 v{d[0]}, v{d[0]}, v{d[1]}, v{d[2]}')
        e(f'v_max3_f32 v{d[0]}, v{d[0]}, v{d[3]}, v{d[4]}')
        e(f'v_cmp_lt_f32 vcc, s{sT}, v{d[0]}')
        self.nrare += 1
        lab, back = f'L_{self.name}_rare{self.nrare}', f'L_{self.name}_back{self.nrare}'
        e(f's_cbranch_vccnz {lab}')
        e.label(back)
        self.rare_block(lab, back)
        for rt in range(5):
            b = Sreg(rt, 0)
            for k in range(8):
                e(f'v_fma_f32 v{b+k}, v{b+k}, s{sC}, -v{vM+rt}')
            for k in range(8):
                e(f'v_exp_f32 v{b+k}, v{b+k}')
            for k in range(8):
                e(f'v_add_f32 v{vLs+rt}, v{vLs+rt}, v{b+k}')
            for k in range(4):
                e(f'v_cvt_pk_bf16_f32 v{b+k}, v{b+2*k}, v{b+2*k+1}')
        e.wait_lg()
        if issue_next: self.kv_dma('V', par, ('V', it + 2))
        for ts in range(8):
            for rt in range(5):
                acc = vr(Oreg(ts, rt), 4)
                e(f'{MFMA} {acc}, {ar(Vf(ts), 4)}, {vr(Sreg(rt, 0), 4)}, {acc}')

    def main_loop(self):
        e = self.e
        self.iteration(0, 0, True)
        self.iteration(1, 1, True)
        q0 = [(k, i - 2) for (k, i) in e.vmq]
        e(f's_mov_b32 s{sLoop}, 6')
        e.label(f'L_{self.name}_loop')
        self.iteration(2, 0, True)
        self.iteration(3, 1, True)
        q1 = [(k, i - 4) for (k, i) in e.vmq]
        assert q0 == q1, (q0, q1)
        e(f's_sub_u32 s{sLoop}, s{sLoop}, 1')
        e(f's_cmp_lg_u32 s{sLoop}, 0')
        e(f's_cbranch_scc1 L_{self.name}_loop')
        self.iteration(4, 0, False)
        self.iteration(5, 1, False)

    def epilogue(self):
        e = self.e
        t0, t1 = vT, vT + 1
        for rt in range(5):
            l = vLs + rt
            e(f'v_mov_b32 v{t0}, v{l}')
            e(f'v_permlane16_swap_b32 v{l}, v{t0}')
            e(f'v_add_f32 v{l}, v{l}, v{t0}')
            e(f'v_mov_b32 v{t0}, v{l}')
            e(f'v_permlane32_swap_b32 v{l}, v{t0}')
            e(f'v_add_f32 v{l}, v{l}, v{t0}')
        aw, ap = vT + 2, vT + 3
        e(f's_mul_i32 s{sT0}, s{sWv}, 640')
        e(f's_add_u32 s{sT0}, s{sT0}, {STATS}')
        e(f'v_lshlrev_b32 v{t0}, 3, v{vN}')
        e(f'v_add_u32 v{aw}, s{sT0}, v{t0}')
        e(f's_xor_b32 s{sT1}, s{sWv}, 1')
        e(f's_mul_i32 s{sT1}, s{sT1}, 640')
        e(f's_add_u32 s{sT1}, s{sT1}, {STATS}')
        e(f'v_add_u32 v{ap}, s{sT1}, v{t0}')
        for rt in range(5):
            e(f'v_mov_b32 v{vT+4}, v{vM+rt}')
            e(f'v_mov_b32 v{vT+5}, v{vLs+rt}')
            e(f'ds_write_b64 v{aw}, {vr(vT+4, 2)} offset:{rt*128}', 'sw')
            e.wait_lg()
        e('s_barrier')
        for rt in range(5):
            e(f'ds_read_b64 {vr(vS + 2*rt, 2)}, v{ap} offset:{rt*128}', 'sr')
        e.wait_lg()
        G = vS + 16
        for rt in range(5):
            mp, lp = vS + 2*rt, vS + 2*rt + 1
            M = vT + 4; fo = vT + 5; fp = vT + 6
            e(f'v_max_f32 v{M}, v{vM+rt}, v{mp}')
            e(f'v_sub_f32 v{fo}, v{vM+rt}, v{M}')
            e(f'v_sub_f32 v{fp}, v{mp}, v{M}')
            e(f'v_exp_f32 v{fo}, v{fo}')
            e(f'v_exp_f32 v{fp}, v{fp}')
            e(f'v_mul_f32 v{lp}, v{lp}, v{fp}')
            e(f'v_fma_f32 v{lp}, v{vLs+rt}, v{fo}, v{lp}')
            e(f'v_rcp_f32 v{lp}, v{lp}')
            e(f'v_mul_f32 v{G + 2*rt}, v{fo}, v{lp}')
        xa = vT + 4
        e(f's_mul_i32 s{sT0}, s{sWv}, 20480')
        e(f's_add_u32 s{sT0}, s{sT0}, {OX}')
        e(f'v_lshlrev_b32 v{t0}, 4, v{vL}')
        e(f'v_add_u32 v{xa}, s{sT0}, v{t0}')
        e(f's_xor_b32 s{sT1}, s{sWv}, 1')
        e(f's_mul_i32 s{sT1}, s{sT1}, 20480')
        e(f's_add_u32 s{sT1}, s{sT1}, {OX}')
        e(f'v_add_u32 v{xa+1}, s{sT1}, v{t0}')
        for ts in (4, 5, 6, 7, 0, 1, 2, 3):
            for rt in range(5):
                b = Oreg(ts, rt); g = G + 2*rt
                e(f'v_pk_mul_f32 {vr(b,2)}, {vr(b,2)}, {vr(g,2)} op_sel_hi:[1,0]')
                e(f'v_pk_mul_f32 {vr(b+2,2)}, {vr(b+2,2)}, {vr(g,2)} op_sel_hi:[1,0]')
                if ts >= 4:
                    e(f'ds_write_b128 v{xa}, {vr(b,4)} offset:{((ts-4)*5+rt)*1024}', 'ow')
        e.wait_lg()
        e('s_barrier')
        for ts in range(4):
            for rt in range(5):
                e(f'ds_read_b128 {vr(Oreg(ts+4, rt),4)}, v{xa+1} offset:{(ts*5+rt)*1024}', ('or', ts))
            if ts >= 1:
                self._epi_add(ts - 1)
        self._epi_add(3)
        so = vT + 6
        e(f'v_lshlrev_b32 v{so}, 4, v{vL}')
        for rt in range(5):
            for u in range(2):
                a, b = Oreg(2*u, rt), Oreg(2*u + 1, rt)
                e(f'v_cvt_pk_bf16_f32 v{a}, v{a}, v{a+1}')
                e(f'v_cvt_pk_bf16_f32 v{a+1}, v{a+2}, v{a+3}')
                e(f'v_cvt_pk_bf16_f32 v{a+2}, v{b}, v{b+1}')
                e(f'v_cvt_pk_bf16_f32 v{a+3}, v{b+2}, v{b+3}')
                e(f'buffer_store_dwordx4 {vr(a,4)}, v{so}, s[{sO}:{sO+3}], s{sOoff} offen offset:{u*1024}{self.ofl}', 'ost')
            if rt < 4:
                e(f's_add_u32 s{sOoff}, s{sOoff}, 131072')
        e.wait_vm_all()

    def _epi_add(self, ts):
        e = self.e
        e.wait_lg(('or', ts))
        for rt in range(5):
            a, b = Oreg(ts, rt), Oreg(ts + 4, rt)
            e(f'v_pk_add_f32 {vr(a,2)}, {vr(a,2)}, {vr(b,2)}')
            e(f'v_pk_add_f32 {vr(a+2,2)}, {vr(a+2,2)}, {vr(b+2,2)}')

    def build(self):
        e = self.e
        n = self.name
        e.raw(f'.globl {n}\n.p2align 8\n.type {n},@function')
        e.label(n)
        self.prologue()
        e(f's_cmp_eq_u32 s{sBr}, 0')
        e(f's_cbranch_scc0 L_{n}_qB')
        saved = (list(e.vmq), list(e.lgq))
        self.q_phase('A')
        endA = (list(e.vmq), list(e.lgq))
        e(f's_branch L_{n}_qx')
        e.label(f'L_{n}_qB')
        e.vmq, e.lgq = list(saved[0]), list(saved[1])
        self.q_phase('B')
        assert (e.vmq, e.lgq) == endA, (e.vmq, endA)
        e.label(f'L_{n}_qx')
        self.q_exchange()
        self.main_loop()
        self.epilogue()
        e.label(f'L_{n}_end')
        e('s_endpgm')
        for r in self.rare:
            e.ins.extend(r.ins)
        e('s_endpgm')
        kd = f'''
.amdhsa_kernel {n}
  .amdhsa_next_free_vgpr 512
  .amdhsa_next_free_sgpr 96
  .amdhsa_accum_offset 256
  .amdhsa_group_segment_fixed_size 0
  .amdhsa_kernarg_size 104
  .amdhsa_user_sgpr_count 2
  .amdhsa_user_sgpr_kernarg_segment_ptr 1
  .amdhsa_system_sgpr_workgroup_id_x 1
.end_amdhsa_kernel
'''
        return kd
```

```python
from asmgen import *
from attn import srd, O_BR, O_BYTES, MFMA

WO_BYTES = 4096 * 1152
OUT_BYTES = 640 * 2304

class OprojGen:
    def __init__(self, e, cfg):
        self.e = e
        self.cfg = cfg
        self.name = cfg.get('name', 'oproj_kernel')
        self.ofl = cfg.get('o2_flags', '')
        self.wfl = cfg.get('wo_flags', '')
        self.sfl = cfg.get('out_flags', '')

    def build(self):
        e = self.e
        n = self.name
        MT, NT, RING = 4, 3, 4
        sO, sW, sOut = 4, 8, 12
        sWv, sBr, sMt, sN0, sT0, sT1, sT2 = 16, 17, 18, 19, 20, 21, 22
        sOoff, sWoff, sWl, sLoop = 23, 24, 25, 26
        sOm = 28
        vL, vN, vG, vT = 1, 2, 3, 4
        vWd, vOd, vWr = 10, 13, 14
        vAcc = 16
        vWF = 64
        vOF = 80
        RED = 49152
        e.raw(f'.globl {n}\n.p2align 8\n.type {n},@function')
        e.label(n)
        e('s_cmp_ge_u32 s2, 240')
        e(f's_cbranch_scc1 L_{n}_end')
        e('s_load_dwordx2 s[40:41], s[0:1], 32')
        e('s_load_dwordx2 s[42:43], s[0:1], 72')
        e('s_load_dwordx2 s[44:45], s[0:1], 80')
        e('s_load_dwordx2 s[46:47], s[0:1], 96')
        e(f'v_lshrrev_b32 v{vT}, 6, v0')
        e(f'v_and_b32 v{vL}, 63, v0')
        e(f'v_readfirstlane_b32 s{sWv}, v{vT}')
        e(f'v_and_b32 v{vN}, 15, v{vL}')
        e(f'v_lshrrev_b32 v{vG}, 4, v{vL}')
        e(f's_and_b32 s{sT0}, s2, 7')
        e(f's_lshr_b32 s{sT1}, s2, 3')
        e(f's_lshr_b32 s{sBr}, s{sT0}, 2')
        e(f's_mul_i32 s{sT2}, s{sT1}, 43')
        e(f's_lshr_b32 s{sT2}, s{sT2}, 8')
        e(f's_mul_i32 s{sN0}, s{sT2}, 6')
        e(f's_sub_u32 s{sN0}, s{sT1}, s{sN0}')
        e(f's_mul_i32 s{sN0}, s{sN0}, 48')
        e(f's_and_b32 s{sT1}, s{sT0}, 1')
        e(f's_mul_i32 s{sT1}, s{sT1}, 288')
        e(f's_add_u32 s{sN0}, s{sN0}, s{sT1}')
        e(f's_lshl_b32 s{sMt}, s{sT2}, 2')
        e(f's_bfe_u32 s{sT1}, s{sT0}, 0x10001')
        e(f's_mul_i32 s{sT1}, s{sT1}, 20')
        e(f's_add_u32 s{sMt}, s{sMt}, s{sT1}')
        e(f's_movk_i32 s{sT1}, 1152')
        e(f's_mov_b32 s{sT2}, 10923')
        for i in range(3):
            e(f'v_add_u32 v{vT}, {64*i}, v{vL}')
            e(f'v_mul_lo_u32 v{vT+1}, v{vT}, s{sT2}')
            e(f'v_lshrrev_b32 v{vT+1}, 16, v{vT+1}')
            e(f'v_mul_u32_u24 v{vT+2}, 6, v{vT+1}')
            e(f'v_sub_u32 v{vT+2}, v{vT}, v{vT+2}')
            e(f'v_mul_lo_u32 v{vT+1}, v{vT+1}, s{sT1}')
            e(f'v_lshl_add_u32 v{vT+1}, v{vT+2}, 4, v{vT+1}')
            if i: e(f'v_subrev_u32 v{vWd+i}, {1024*i}, v{vT+1}')
            else: e(f'v_mov_b32 v{vWd}, v{vT+1}')
        e(f'v_lshlrev_b32 v{vOd}, 4, v{vL}')
        e(f's_mul_i32 s{sWl}, s{sWv}, {RING*3072}')
        e(f'v_bfe_u32 v{vT}, v{vL}, 2, 2')
        e(f'v_lshl_add_u32 v{vT}, v{vG}, 2, v{vT}')
        e(f'v_mul_u32_u24 v{vT}, 96, v{vT}')
        e(f'v_and_b32 v{vT+1}, 3, v{vL}')
        e(f'v_lshl_add_u32 v{vT}, v{vT+1}, 3, v{vT}')
        e(f'v_add_u32 v{vWr}, s{sWl}, v{vT}')
        e('s_waitcnt lgkmcnt(0)')
        e(f's_cmp_eq_u32 s{sBr}, 0')
        e(f's_cselect_b32 s48, s40, s42')
        e(f's_cselect_b32 s49, s41, s43')
        srd(e, sW, 48, 49, WO_BYTES)
        srd(e, sO, 46, 47, O_BYTES)
        srd(e, sOut, 44, 45, OUT_BYTES)
        e(f's_mul_i32 s{sWoff}, s{sWv}, {32*32*1152}')
        e(f's_lshl_b32 s{sT0}, s{sN0}, 1')
        e(f's_add_u32 s{sWoff}, s{sWoff}, s{sT0}')
        e(f's_mul_i32 s{sOoff}, s{sBr}, {O_BR}')
        e(f's_lshl_b32 s{sT0}, s{sMt}, 17')
        e(f's_add_u32 s{sOoff}, s{sOoff}, s{sT0}')
        e(f's_lshl_b32 s{sT0}, s{sWv}, 15')
        e(f's_add_u32 s{sOoff}, s{sOoff}, s{sT0}')
        for mi in range(MT):
            e(f's_add_u32 s{sOm+mi}, s{sOoff}, {mi*131072}')

        def issue(slot, tag):
            e(f's_add_u32 m0, s{sWl}, {slot*3072}')
            for mi in range(MT):
                r = vOF + slot*16 + mi*4
                e(f'buffer_load_dwordx4 {vr(r,4)}, v{vOd}, s[{sO}:{sO+3}], s{sOm+mi} offen{self.ofl}', tag)
            for i in range(3):
                e(f'buffer_load_dwordx4 v{vWd+i}, s[{sW}:{sW+3}], s{sWoff} offen offset:{1024*i}{self.wfl} lds', tag)
            for mi in range(MT):
                e(f's_add_u32 s{sOm+mi}, s{sOm+mi}, 1024')
            e(f's_add_u32 s{sWoff}, s{sWoff}, {32*1152}')

        def step(slot, tag, first, nxt):
            e.wait_vm(tag)
            for nt in range(NT):
                for sec in range(2):
                    e(f'ds_read_b64_tr_b16 {vr(vWF + nt*4 + 2*sec, 2)}, v{vWr} offset:{slot*3072 + nt*32 + sec*1536}', 'w')
            e.wait_lg()
            for nt in range(NT):
                for mi in range(MT):
                    acc = vr(vAcc + (nt*MT + mi)*4, 4)
                    cc = '0' if first else acc
                    e(f'{MFMA} {acc}, {vr(vWF + nt*4, 4)}, {vr(vOF + slot*16 + mi*4, 4)}, {cc}')
            if nxt is not None: issue(slot, nxt)

        for s in range(4): issue(s, ('k', s))
        for s in range(4): step(s, ('k', s), s == 0, ('k', s + 4))
        q0 = [(k, i - 4) for (k, i) in e.vmq]
        e(f's_mov_b32 s{sLoop}, 6')
        e.label(f'L_{n}_loop')
        for s in range(4): step(s, ('k', s + 4), False, ('k', s + 8))
        q1 = [(k, i - 8) for (k, i) in e.vmq]
        assert q0 == q1
        e(f's_sub_u32 s{sLoop}, s{sLoop}, 1')
        e(f's_cmp_lg_u32 s{sLoop}, 0')
        e(f's_cbranch_scc1 L_{n}_loop')
        for s in range(4): step(s, ('k', s + 8), False, None)
        e(f's_mul_i32 s{sT0}, s{sWv}, 12288')
        e(f's_add_u32 s{sT0}, s{sT0}, {RED}')
        e(f'v_add_u32 v{vT}, s{sT0}, v{vOd}')
        for t in range(NT*MT):
            e(f'ds_write_b128 v{vT}, {vr(vAcc + t*4, 4)} offset:{t*1024}', 'rw')
        e.wait_lg()
        e('s_barrier')
        e(f's_lshl_b32 s{sT0}, s{sWv}, 10')
        e(f's_add_u32 s{sT0}, s{sT0}, {RED}')
        e(f'v_add_u32 v{vT}, s{sT0}, v{vOd}')
        R = vOF
        for nt in range(NT):
            for v in range(4):
                e(f'ds_read_b128 {vr(R + (nt*4 + v)*4, 4)}, v{vT} offset:{v*12288 + nt*MT*1024}', ('r', nt))
        e(f's_add_u32 s{sT0}, s{sMt}, s{sWv}')
        e(f's_lshl_b32 s{sT0}, s{sT0}, 4')
        e(f'v_add_u32 v{vT+1}, s{sT0}, v{vN}')
        e(f's_movk_i32 s{sT1}, 2304')
        e(f'v_mul_lo_u32 v{vT+1}, v{vT+1}, s{sT1}')
        e(f'v_lshl_add_u32 v{vT+1}, v{vG}, 3, v{vT+1}')
        e(f's_mul_i32 s{sT0}, s{sBr}, 1152')
        e(f's_lshl_b32 s{sT1}, s{sN0}, 1')
        e(f's_add_u32 s{sT0}, s{sT0}, s{sT1}')
        for nt in range(NT):
            e.wait_lg(('r', nt))
            b = R + nt*16
            e(f'v_pk_add_f32 {vr(b,2)}, {vr(b,2)}, {vr(b+4,2)}')
            e(f'v_pk_add_f32 {vr(b+2,2)}, {vr(b+2,2)}, {vr(b+6,2)}')
            e(f'v_pk_add_f32 {vr(b+8,2)}, {vr(b+8,2)}, {vr(b+12,2)}')
            e(f'v_pk_add_f32 {vr(b+10,2)}, {vr(b+10,2)}, {vr(b+14,2)}')
            e(f'v_pk_add_f32 {vr(b,2)}, {vr(b,2)}, {vr(b+8,2)}')
            e(f'v_pk_add_f32 {vr(b+2,2)}, {vr(b+2,2)}, {vr(b+10,2)}')
            e(f'v_cvt_pk_bf16_f32 v{b}, v{b}, v{b+1}')
            e(f'v_cvt_pk_bf16_f32 v{b+1}, v{b+2}, v{b+3}')
            e(f'buffer_store_dwordx2 {vr(b,2)}, v{vT+1}, s[{sOut}:{sOut+3}], s{sT0} offen offset:{nt*32}{self.sfl}', 'st')
        e.wait_vm_all()
        e.label(f'L_{n}_end')
        e('s_endpgm')
        return f'''
.amdhsa_kernel {n}
  .amdhsa_next_free_vgpr 256
  .amdhsa_next_free_sgpr 96
  .amdhsa_accum_offset 256
  .amdhsa_group_segment_fixed_size 0
  .amdhsa_kernarg_size 104
  .amdhsa_user_sgpr_count 2
  .amdhsa_user_sgpr_kernarg_segment_ptr 1
  .amdhsa_system_sgpr_workgroup_id_x 1
.end_amdhsa_kernel
'''
```

```python
import sys, json, os
sys.path.insert(0, os.path.dirname(os.path.abspath(__file__)))
from asmgen import *
from attn import AttnGen
from oproj import OprojGen

REF = 'concat_heads__gqa_block_cached__mha_block_cached__near_ridge.s.ref'
def header():
    L = []
    for line in open(REF):
        if line.startswith(';') and '@launch' not in line and 'Override launch' not in line and 'grid=ceil' not in line:
            L.append(line.rstrip())
        elif not line.startswith(';'):
            break
    return L

def build(cfg):
    L = header()
    L.append('; @launch kernel=attn_kernel grid=(256,1,1) block=(256,1,1) lds=163840')
    L.append('; @launch kernel=oproj_kernel grid=(256,1,1) block=(256,1,1) lds=114688')
    L.append('.amdgcn_target "amdgcn-amd-amdhsa--gfx950"')
    L.append('.text')
    kds = []
    for G in (AttnGen, OprojGen):
        e = Emitter()
        kds.append(G(e, cfg).build())
        e.fix_hazards()
        L.append(e.text())
    L.append('.section .rodata,"a"')
    for kd in kds:
        L.append('.p2align 6')
        L.append(kd.strip())
    return '\n'.join(L) + '\n'

if __name__ == '__main__':
    out = sys.argv[1]
    cfg = json.loads(sys.argv[2]) if len(sys.argv) > 2 else {}
    open(out, 'w').write(build(cfg))
```

```python
from asmgen import *

X_BYTES = 8 * 80 * 1152
W_BYTES = 576 * 8192
KA_BYTES = 8 * 16 * 1024 * 256
KB_BYTES = 8 * 32 * 1024 * 256
O_BR = 40 * 128 * 1024
O_BYTES = 2 * O_BR

QBUF0, QBUFSZ = 34816, 43008
KS, VS = 0, 65536
QIMG = 122880
STATS = 131072
OX = 0

sX, sW, sK, sV, sO = 4, 8, 12, 16, 20
sWv, sJ, sKH, sBr, sC, sT = 24, 25, 26, 27, 28, 29
sKoff, sVoff, sKl, sVl = 30, 31, 32, 33
sXoff, sWoff, sOoff = 34, 35, 36
sT0, sT1, sT2 = 37, 38, 39
sP = 40
sLoop = 60
sXl, sWl = 61, 62
sKt, sVt = 96, 97
sB, sH = 63, 64
sCc, sXc, sWc, sX3c = 67, 68, 69, 3
vL, vN, vG = 1, 2, 3
vKd, vVd = 4, 8
vKr, vVr = 10, 14
vNM = 24
vXr, vWr = 36, 38
vT = 44
vXd, vWd = 56, 60
vS = 56
vO = 96
aQ = 0
aK = 80
aV = 112
aL = 144
aOne = 164
aXF = [168, 204]
aWF = [188, 224]

def Sreg(rt, kt): return vS + rt * 8 + kt * 4
def Oreg(ts, rt): return vO + (ts * 5 + rt) * 4
def Qacc(tt, rt): return vO + (tt * 5 + rt) * 4
def Qf(rt, s): return aQ + (rt * 4 + s) * 4
def Kf(kt, s): return aK + (kt * 4 + s) * 4
def Vf(ts): return aV + ts * 4
def NM(rt): return vNM + rt * 4
def Lf(rt): return aL + rt * 4

MFMA = 'v_mfma_f32_16x16x32_bf16'

def srd(e, s, lo, hi, nbytes):
    e(f's_mov_b32 s{s}, s{lo}')
    e(f's_mov_b32 s{s+1}, s{hi}')
    e(f's_mov_b32 s{s+2}, {nbytes}')
    e(f's_mov_b32 s{s+3}, 0x00020000')

def interleave(e, prim, groups, start=0, every=None, end=None):
    n = len(prim); g = len(groups)
    end = n if end is None else end
    pos = {}
    if g:
        span = max(end - start, 1)
        for k in range(g):
            p = start + (k * span) // g if every is None else start + k * every
            pos.setdefault(min(p, n - 1), []).append(groups[k])
    for i, t in enumerate(prim):
        e(t)
        for grp in pos.get(i, []):
            for (tt, tag) in grp: e(tt, tag)
    if n == 0:
        for grp in groups:
            for (tt, tag) in grp: e(tt, tag)

def emit_groups(e, groups):
    for grp in groups:
        for (tt, tag) in grp: e(tt, tag)

class AttnGen:
    def __init__(self, e, cfg):
        self.e = e
        self.cfg = cfg
        self.kvfl = cfg.get('kv_flags', ' nt')
        self.xfl = cfg.get('x_flags', '')
        self.wfl = cfg.get('w_flags', ' nt')
        self.ofl = cfg.get('o_flags', '')
        self.name = cfg.get('name', 'attn_kernel')
        self.rare = []
        self.nrare = 0

    def stamp(self, i, mode=1):
        if self.cfg.get('stamps') == mode:
            self.e(f's_memrealtime s[{70+2*i}:{71+2*i}]')
    def cstamp(self, i, mode=3):
        if self.cfg.get('stamps') == mode:
            self.e(f's_memtime s[{70+2*i}:{71+2*i}]')
    def write_stamps(self, n, kernel_idx=0):
        if not self.cfg.get('stamps'): return
        e = self.e
        e('s_waitcnt lgkmcnt(0)')
        e(f's_lshl_b32 s{sT0}, s2, 2')
        e(f's_add_u32 s{sT0}, s{sT0}, s{sWv}')
        e(f's_lshl_b32 s{sT0}, s{sT0}, 7')
        e(f's_add_u32 s{sT0}, s{sT0}, {0x1000000 + kernel_idx*0x100000}')
        e(f's_mov_b32 s{sO+2}, 0x2000000')
        e(f'v_mov_b32 v{vT}, 0')
        for i in range(n):
            e(f'v_mov_b32 v{vT+2}, s{70+2*i}')
            e(f'v_mov_b32 v{vT+3}, s{71+2*i}')
            e(f'buffer_store_dwordx2 {vr(vT+2,2)}, v{vT}, s[{sO}:{sO+3}], s{sT0} offen offset:{8*i}')
            e('s_waitcnt vmcnt(0)')
        e.vmq = []
    def prologue(self):
        e = self.e
        e(f's_cmp_ge_u32 s2, 256')
        e(f's_cbranch_scc1 L_{self.name}_end')
        e(f's_load_dwordx16 s[40:55], s[0:1], 0')
        e(f's_load_dwordx2 s[56:57], s[0:1], 64')
        e(f's_load_dwordx2 s[58:59], s[0:1], 96')
        t0, t1, t2, t3 = vT, vT + 1, vT + 2, vT + 3
        e(f'v_lshrrev_b32 v{t0}, 6, v0')
        e(f'v_and_b32 v{vL}, 63, v0')
        e(f'v_readfirstlane_b32 s{sWv}, v{t0}')
        e(f'v_and_b32 v{vN}, 15, v{vL}')
        e(f'v_lshrrev_b32 v{vG}, 4, v{vL}')
        e(f's_lshr_b32 s{sJ}, s{sWv}, 1')
        e(f's_and_b32 s{sKH}, s{sWv}, 1')
        e(f's_and_b32 s{sT0}, s2, 7')
        e(f's_lshr_b32 s{sT1}, s2, 3')
        e(f's_lshr_b32 s{sBr}, s{sT1}, 4')
        e(f's_and_b32 s{sT1}, s{sT1}, 15')
        e(f's_mov_b32 s{sC}, 0x3e029407')
        import struct, math
        c = (128 ** -0.5) * math.log2(math.e)
        bits = struct.unpack('<I', struct.pack('<f', c))[0]
        e.ins[-1] = Inst(f's_mov_b32 s{sC}, {bits:#010x}')
        e(f's_mov_b32 s{sT}, 0x41000000')
        for j in range(4):
            e(f'v_add_u32 v{t0}, {4*j}, v{vG}')
            e(f'v_xor_b32 v{t0}, v{t0}, v{vN}')
            e(f'v_lshlrev_b32 v{t0}, 4, v{t0}')
            e(f'v_lshl_add_u32 v{vKd+j}, v{vG}, 8, v{t0}')
        for p in range(2):
            e(f'v_add_u32 v{t0}, {4*p}, v{vG}')
            e(f'v_lshlrev_b32 v{t0}, 1, v{t0}')
            e(f'v_xor_b32 v{t0}, v{t0}, v{vN}')
            e(f'v_lshlrev_b32 v{t0}, 4, v{t0}')
            e(f'v_lshl_add_u32 v{vVd+p}, v{vG}, 8, v{t0}')
        for i in range(4):
            q = i >> 1
            e(f'v_or_b32 v{t0}, {q << 2}, v{vG}')
            e(f'v_lshlrev_b32 v{t0}, 1, v{t0}')
            e(f'v_xor_b32 v{t0}, v{t0}, v{vN}')
            e(f'v_lshlrev_b32 v{t0}, 4, v{t0}')
            e(f'v_lshl_add_u32 v{vWd+i}, v{vG}, 13, v{t0}')
            if i: e(f'v_add_u32 v{vWd+i}, {(32768-1024)*i}, v{vWd+i}')
        e(f'v_lshrrev_b32 v{t1}, 3, v{vL}')
        e(f's_movk_i32 s{sT2}, 1152')
        e(f'v_mul_lo_u32 v{t1}, v{t1}, s{sT2}')
        e(f'v_and_b32 v{t2}, 7, v{vL}')
        for i in range(4):
            e(f's_add_u32 s{sT2}, s{sKH}, {i}')
            e(f's_and_b32 s{sT2}, s{sT2}, 1')
            e(f's_lshl_b32 s{sT2}, s{sT2}, 2')
            e(f'v_add_u32 v{t0}, s{sT2}, v{vG}')
            e(f'v_and_b32 v{t0}, 7, v{t0}')
            e(f'v_xor_b32 v{t0}, v{t0}, v{t2}')
            e(f'v_lshl_add_u32 v{vXd+i}, v{t0}, 4, v{t1}')
            if i: e(f'v_add_u32 v{vXd+i}, {8192*i}, v{vXd+i}')
        e(f's_lshl_b32 s{sKl}, s{sWv}, 13')
        e(f's_add_u32 s{sVl}, s{sKl}, {VS}')
        for s in range(4):
            e(f'v_add_u32 v{t0}, {4*s}, v{vG}')
            e(f'v_xor_b32 v{t0}, v{t0}, v{vN}')
            e(f'v_lshlrev_b32 v{t0}, 4, v{t0}')
            e(f'v_lshl_add_u32 v{t0}, v{vN}, 8, v{t0}')
            e(f'v_add_u32 v{vKr+s}, s{sKl}, v{t0}')
        e(f'v_bfe_u32 v{t1}, v{vL}, 2, 2')
        e(f'v_lshl_add_u32 v{t1}, v{vG}, 2, v{t1}')
        e(f'v_and_b32 v{t2}, 7, v{t1}')
        e(f'v_lshlrev_b32 v{t2}, 1, v{t2}')
        e(f'v_bfe_u32 v{t3}, v{vL}, 1, 1')
        e(f'v_xor_b32 v{t2}, v{t2}, v{t3}')
        e(f'v_and_b32 v{t3}, 1, v{vL}')
        e(f'v_lshlrev_b32 v{t3}, 3, v{t3}')
        e(f'v_lshl_add_u32 v{t3}, v{t1}, 8, v{t3}')
        e(f'v_add_u32 v{t3}, s{sVl}, v{t3}')
        for ts in range(8):
            e(f's_lshl_b32 s{sT2}, s{sKH}, 2')
            e(f's_xor_b32 s{sT2}, s{sT2}, {ts}')
            e(f's_lshl_b32 s{sT2}, s{sT2}, 1')
            e(f'v_xor_b32 v{t0}, s{sT2}, v{t2}')
            e(f'v_lshl_add_u32 v{vVr+ts}, v{t0}, 4, v{t3}')
        e('s_waitcnt lgkmcnt(0)')

    def q_setup(self, br):
        e = self.e
        t0, t1, t2, t3 = vT, vT + 1, vT + 2, vT + 3
        rot = self.cfg.get('qrot', 1)
        if br == 'A':
            e(f's_lshr_b32 s{sCc}, s{sT1}, 1')
            e(f's_and_b32 s{sT2}, s{sT1}, 1')
            e(f's_lshl_b32 s{sT2}, s{sT2}, 2')
            e(f's_add_u32 s{sCc}, s{sCc}, s{sT2}')
            e(f's_sub_u32 s{sT2}, s{sCc}, 9')
            e(f's_cmp_ge_u32 s{sCc}, 9')
            e(f's_cselect_b32 s{sCc}, s{sT2}, s{sCc}')
        else:
            e(f's_lshr_b32 s{sCc}, s{sT1}, 2')
            e(f's_add_u32 s{sCc}, s{sCc}, s{sT1}')
            e(f's_and_b32 s{sCc}, s{sCc}, 3')
            e(f's_mul_i32 s{sCc}, s{sCc}, 5')
            e(f's_lshr_b32 s{sCc}, s{sCc}, 1')
        if not rot: e(f's_mov_b32 s{sCc}, 0')
        if br == 'A':
            e(f's_lshr_b32 s{sB}, s{sT1}, 1')
            e(f's_and_b32 s{sT1}, s{sT1}, 1')
            e(f's_lshl_b32 s{sT0}, s{sT0}, 1')
            e(f's_add_u32 s{sT0}, s{sT0}, s{sT1}')
            e(f's_lshl_b32 s{sH}, s{sT0}, 1')
            e(f's_add_u32 s{sH}, s{sH}, s{sJ}')
            e(f's_lshl_b32 s{sT1}, s{sB}, 4')
            e(f's_add_u32 s{sT1}, s{sT1}, s{sT0}')
            srd(e, sX, 40, 41, X_BYTES); srd(e, sK, 42, 43, KA_BYTES); srd(e, sV, 44, 45, KA_BYTES); srd(e, sW, 46, 47, W_BYTES)
        else:
            e(f's_lshr_b32 s{sB}, s{sT1}, 2')
            e(f's_lshl_b32 s{sT2}, s{sJ}, 2')
            e(f's_add_u32 s{sB}, s{sB}, s{sT2}')
            e(f's_and_b32 s{sT1}, s{sT1}, 3')
            e(f's_lshl_b32 s{sH}, s{sT0}, 2')
            e(f's_add_u32 s{sH}, s{sH}, s{sT1}')
            e(f's_lshl_b32 s{sT1}, s{sB}, 5')
            e(f's_add_u32 s{sT1}, s{sT1}, s{sH}')
            srd(e, sX, 50, 51, X_BYTES); srd(e, sK, 52, 53, KB_BYTES); srd(e, sV, 54, 55, KB_BYTES); srd(e, sW, 56, 57, W_BYTES)
        srd(e, sO, 58, 59, O_BYTES)
        if self.cfg.get('kvsame'): e(f's_and_b32 s{sT1}, s2, 7')
        e(f's_lshl_b32 s{sKoff}, s{sT1}, 18')
        e(f's_lshl_b32 s{sT2}, s{sKH}, 13')
        e(f's_add_u32 s{sKoff}, s{sKoff}, s{sT2}')
        e(f's_mov_b32 s{sVoff}, s{sKoff}')
        e(f's_mul_i32 s{sOoff}, s{sB}, {5*128*1024}')
        e(f's_lshl_b32 s{sT2}, s{sH}, 12')
        e(f's_add_u32 s{sOoff}, s{sOoff}, s{sT2}')
        e(f's_lshl_b32 s{sT2}, s{sKH}, 11')
        e(f's_add_u32 s{sOoff}, s{sOoff}, s{sT2}')
        if br == 'B':
            e(f's_add_u32 s{sOoff}, s{sOoff}, {O_BR}')
        if br == 'A':
            e(f's_mul_i32 s{sXoff}, s{sB}, 92160')
            e(f's_mul_i32 s{sT2}, s{sWv}, 9216')
            e(f's_add_u32 s{sXoff}, s{sXoff}, s{sT2}')
            e(f's_lshl_b32 s{sXl}, s{sWv}, 10')
            e(f's_mul_i32 s65, s{sB}, 92160')
            e(f's_add_u32 s{sT2}, s{sKH}, 8')
            e(f's_lshl_b32 s66, s{sT2}, 10')
            e(f's_mul_i32 s{sT2}, s{sT2}, 9216')
            e(f's_add_u32 s65, s65, s{sT2}')
            e(f's_lshl_b32 s{sWoff}, s{sH}, 8')
            e(f's_lshl_b32 s{sT2}, s{sKH}, 18')
            e(f's_add_u32 s{sWoff}, s{sWoff}, s{sT2}')
            e(f's_lshl_b32 s{sWl}, s{sJ}, 14')
            e(f's_lshl_b32 s{sT2}, s{sKH}, 13')
            e(f's_add_u32 s{sWl}, s{sWl}, s{sT2}')
            e(f's_add_u32 s{sWl}, s{sWl}, 10240')
            xoffj, woffj = (0, 0), (10240, 16384)
        else:
            e(f's_mul_i32 s{sXoff}, s{sB}, 92160')
            e(f's_mul_i32 s{sT2}, s{sKH}, {40*1152}')
            e(f's_add_u32 s{sXoff}, s{sXoff}, s{sT2}')
            e(f's_mul_i32 s{sXl}, s{sWv}, 5120')
            e(f's_lshl_b32 s{sWoff}, s{sH}, 8')
            e(f's_lshl_b32 s{sT2}, s{sWv}, 17')
            e(f's_add_u32 s{sWoff}, s{sWoff}, s{sT2}')
            e(f's_lshl_b32 s{sWl}, s{sWv}, 12')
            e(f's_add_u32 s{sWl}, s{sWl}, 20480')
            xoffj, woffj = (0, 10240), (20480, 0)
        e(f's_mul_i32 s{sT2}, s{sJ}, {xoffj[1]}')
        e(f's_add_u32 s{sT2}, s{sT2}, {QBUF0 + xoffj[0]}')
        e(f'v_lshrrev_b32 v{t1}, 1, v{vN}')
        for s2 in range(2):
            e(f'v_add_u32 v{t0}, {4*s2}, v{vG}')
            e(f'v_xor_b32 v{t0}, v{t0}, v{t1}')
            e(f'v_lshlrev_b32 v{t0}, 4, v{t0}')
            e(f'v_lshl_add_u32 v{t0}, v{vN}, 7, v{t0}')
            e(f'v_add_u32 v{vXr+s2}, s{sT2}, v{t0}')
        e(f's_mul_i32 s{sT2}, s{sJ}, {woffj[1]}')
        e(f's_add_u32 s{sT2}, s{sT2}, {QBUF0 + woffj[0]}')
        e(f'v_bfe_u32 v{t1}, v{vL}, 2, 2')
        e(f'v_and_b32 v{t2}, 1, v{vG}')
        e(f'v_lshl_or_b32 v{t2}, v{t2}, 2, v{t1}')
        e(f'v_lshlrev_b32 v{t2}, 1, v{t2}')
        e(f'v_bfe_u32 v{t3}, v{vL}, 1, 1')
        e(f'v_xor_b32 v{t2}, v{t2}, v{t3}')
        e(f'v_lshl_add_u32 v{t1}, v{vG}, 3, v{t1}')
        e(f'v_and_b32 v{t3}, 1, v{vL}')
        e(f'v_lshlrev_b32 v{t3}, 3, v{t3}')
        e(f'v_lshl_add_u32 v{t3}, v{t1}, 8, v{t3}')
        e(f'v_add_u32 v{t3}, s{sT2}, v{t3}')
        for tt in range(4):
            e(f's_lshl_b32 s{sT2}, s{sKH}, 2')
            e(f's_add_u32 s{sT2}, s{sT2}, {tt}')
            e(f's_lshl_b32 s{sT2}, s{sT2}, 1')
            e(f'v_xor_b32 v{t0}, s{sT2}, v{t2}')
            e(f'v_lshl_add_u32 v{vWr+tt}, v{t0}, 4, v{t3}')

    def q_dma(self, br, c):
        qb = QBUF0 + (c % 3) * QBUFSZ
        tag = ('Q', c)
        G = []
        g = [(f's_lshl_b32 s{sT2}, s{sCc}, 7', None), (f's_add_u32 s{sXc}, s{sXoff}, s{sT2}', None)]
        if br == 'A': g.append((f's_add_u32 s{sX3c}, s65, s{sT2}', None))
        if self.cfg.get('qsame'):
            g = [(f's_mov_b32 s{sXc}, 0', None), (f's_mov_b32 s{sX3c}, 0', None), (f's_mov_b32 s{sWc}, 0', None)]
        else:
          g += [(f's_lshl_b32 s{sT2}, s{sCc}, 19', None), (f's_add_u32 s{sWc}, s{sWoff}, s{sT2}', None),
              (f's_add_u32 s{sCc}, s{sCc}, 1', None), (f's_cmp_eq_u32 s{sCc}, 9', None), (f's_cselect_b32 s{sCc}, 0, s{sCc}', None)]
        G.append(g)
        def ld(voff, srdr, soff, off, fl, pre=()):
            G.append(list(pre) + [(f'buffer_load_dwordx4 v{voff}, s[{srdr}:{srdr+3}], s{soff} offen offset:{off}{fl} lds', tag)])
        m0 = lambda reg, imm: (f's_add_u32 m0, s{reg}, {qb + imm}', None)
        if br == 'A':
            ld(vXd, sX, sXc, 0, self.xfl, [m0(sXl, 0)])
            ld(vXd, sX, sT2, 0, self.xfl, [m0(sXl, 4096), (f's_add_u32 s{sT2}, s{sXc}, {4*9216}', None)])
            ld(vXd, sX, sX3c, 0, self.xfl, [m0(66, 0), ('s_nop 0', None)])
            for i in range(4):
                ld(vWd + i, sW, sWc, 1024*i, self.wfl, [m0(sWl, 0), ('s_nop 0', None)] if i == 0 else [])
            for i in range(4):
                ld(vWd + i, sW, sWc, 1024*i, self.wfl, [m0(sWl, 4096), (f's_add_u32 s{sWc}, s{sWc}, {4*32768}', None)] if i == 0 else [])
        else:
            for i in range(4):
                ld(vXd + i, sX, sXc, 1024*i, self.xfl, [m0(sXl, 0), ('s_nop 0', None)] if i == 0 else [])
            ld(vXd, sX, sXc, 0, self.xfl, [m0(sXl, 4096), (f's_add_u32 s{sXc}, s{sXc}, {4*9216}', None)])
            for i in range(4):
                ld(vWd + i, sW, sWc, 1024*i, self.wfl, [m0(sWl, 0), ('s_nop 0', None)] if i == 0 else [])
        return G

    def kv_dma(self, kind, par, tag):
        if kind == 'K': l, off, s, vo, tmp = sKl, sKoff, sK, [vKd, vKd + 1, vKd + 2, vKd + 3], sKt
        else: l, off, s, vo, tmp = sVl, sVoff, sV, [vVd, vVd + 1, vVd, vVd + 1], sVt
        G = []
        for half in range(2):
            for q in range(4):
                g = []
                if q == 0:
                    g.append((f's_add_u32 m0, s{l}, {par * 32768 + half * 4096}', None))
                    if half == 0: g.append((f's_add_u32 s{tmp}, s{off}, 4096', None))
                    else: g.append((f's_add_u32 s{off}, s{off}, 16384', None))
                so = off if half == 0 else tmp
                g.append((f'buffer_load_dwordx4 v{vo[q]}, s[{s}:{s+3}], s{so} offen offset:{q*1024}{self.kvfl} lds', tag))
                G.append(g)
        return G

    def q_reads(self, s2):
        G = []
        for tt in range(4):
            for sec in range(2):
                G.append([(f'ds_read_b64_tr_b16 {ar(aWF[s2] + 4*tt + 2*sec, 2)}, v{vWr+tt} offset:{s2*8192 + sec*1024}', ('q', s2))])
            if tt == 0:
                for rt in range(5):
                    G.append([(f'ds_read_b128 {ar(aXF[s2] + 4*rt, 4)}, v{vXr+s2} offset:{rt*2048}', ('q', s2))])
        return G

    def q_mfmas(self, s2, first):
        L = []
        for tt in range(4):
            for rt in range(5):
                acc = vr(Qacc(tt, rt), 4)
                cc = '0' if first else acc
                L.append(f'{MFMA} {acc}, {ar(aWF[s2] + 4*tt, 4)}, {ar(aXF[s2] + 4*rt, 4)}, {cc}')
        return L

    def q_phase(self, br):
        e = self.e
        self.q_setup(br)
        self.stamp(1, 2)
        emit_groups(e, self.q_dma(br, 0))
        emit_groups(e, self.q_dma(br, 1))
        for c in range(9):
            e.wait_vm(('Q', c))
            e.wait_lg()
            e('s_barrier')
            if c == 4: self.cstamp(0, 4)
            if c == 5: self.cstamp(3, 4)
            self.stamp(2 + c, 2)
            G = []
            if c + 2 <= 8: G += self.q_dma(br, c + 2)
            if c == 6: G += self.kv_dma('K', 0, ('K', 0))
            if c == 7: G += self.kv_dma('K', 1, ('K', 1))
            if c == 8: G += self.kv_dma('V', 0, ('V', 0))
            R0 = self.q_reads(0)
            h = (len(G) + 1) // 2
            if c > 0:
                mf = self.q_mfmas(1, False)
                interleave(e, mf[:13], R0, start=0, every=1)
                interleave(e, mf[13:], G[:h], start=0)
            else:
                emit_groups(e, R0); emit_groups(e, G[:h])
            if c == 4: self.cstamp(1, 4)
            e.wait_lg(('q', 0))
            adv = []
            if c < 8:
                d = QBUFSZ if (c % 3) != 2 else -2 * QBUFSZ
                for r in (vXr, vXr + 1, vWr, vWr + 1, vWr + 2, vWr + 3):
                    adv.append([((f'v_add_u32 v{r}, {d}, v{r}' if d > 0 else f'v_subrev_u32 v{r}, {-d}, v{r}'), None)])
            mf = self.q_mfmas(0, c == 0)
            interleave(e, mf[:13], self.q_reads(1), start=0, every=1)
            interleave(e, mf[13:], G[h:] + adv, start=0)
            if c == 4: self.cstamp(2, 4)
        e.wait_lg()
        for t in self.q_mfmas(1, False): e(t)

    def q_exchange(self):
        e = self.e
        t0, t1, t2, t3 = vT, vT + 1, vT + 2, vT + 3
        e('s_barrier')
        e(f's_mul_i32 s{sT2}, s{sJ}, 20480')
        e(f's_add_u32 s{sT2}, s{sT2}, {QIMG}')
        e(f'v_and_b32 v{t1}, 1, v{vG}')
        e(f'v_lshlrev_b32 v{t1}, 3, v{t1}')
        e(f'v_lshl_add_u32 v{t1}, v{vN}, 8, v{t1}')
        e(f'v_add_u32 v{t1}, s{sT2}, v{t1}')
        e(f'v_lshrrev_b32 v{t2}, 1, v{vG}')
        e(f'v_xor_b32 v{t2}, v{t2}, v{vN}')
        for tt in range(4):
            e(f's_lshl_b32 s{sT1}, s{sKH}, 2')
            e(f's_add_u32 s{sT1}, s{sT1}, {tt}')
            e(f's_lshl_b32 s{sT1}, s{sT1}, 1')
            e(f'v_xor_b32 v{t0}, s{sT1}, v{t2}')
            e(f'v_lshl_add_u32 v{vT+4+tt}, v{t0}, 4, v{t1}')
        for tt in range(4):
            for rt in range(5):
                b = Qacc(tt, rt)
                for k in range(4): e(f'v_mul_f32 v{b+k}, s{sC}, v{b+k}')
                e(f'v_cvt_pk_bf16_f32 v{b}, v{b}, v{b+1}')
                e(f'v_cvt_pk_bf16_f32 v{b+1}, v{b+2}, v{b+3}')
                e(f'ds_write_b64 v{vT+4+tt}, {vr(b, 2)} offset:{rt*4096}', 'qw')
        e.wait_lg()
        e('s_barrier')
        e(f's_sub_u32 s{sT2}, s{sT2}, s{sKl}')
        for s in range(4):
            e(f'v_add_u32 v{vT+4+s}, s{sT2}, v{vKr+s}')
        for rt in range(5):
            for s in range(4):
                e(f'ds_read_b128 {ar(Qf(rt, s), 4)}, v{vT+4+s} offset:{rt*4096}', 'qr')
        e(f'v_mov_b32 v{vT}, 0x3f803f80')
        for k in range(4): e(f'v_accvgpr_write_b32 a{aOne+k}, v{vT}')
        e.wait_lg()
        e('s_barrier')
        emit_groups(e, self.kv_dma('V', 1, ('V', 1)))

    def rowmax_xlane(self, r, rt):
        mx, t = vT + rt, vT + 5
        r(f'v_mov_b32 v{t}, v{mx}')
        r(f'v_permlane16_swap_b32 v{mx}, v{t}')
        r(f'v_max_f32 v{mx}, v{mx}, v{t}')
        r(f'v_mov_b32 v{t}, v{mx}')
        r(f'v_permlane32_swap_b32 v{mx}, v{t}')
        r(f'v_max_f32 v{mx}, v{mx}, v{t}')

    def rare_block(self, lab, back):
        r = Emitter()
        r.label(lab)
        r('s_nop 7')
        f = vT + 6
        for rt in range(5):
            mx = vT + rt
            self.rowmax_xlane(r, rt)
            r(f'v_max_f32 v{mx}, 0, v{mx}')
            r(f'v_sub_f32 v{f}, 0, v{mx}')
            r(f'v_exp_f32 v{f}, v{f}')
            for k in range(4): r(f'v_sub_f32 v{NM(rt)+k}, v{NM(rt)+k}, v{mx}')
            for k in range(8): r(f'v_sub_f32 v{Sreg(rt,0)+k}, v{Sreg(rt,0)+k}, v{mx}')
            for k in range(4):
                r(f'v_accvgpr_read_b32 v{vT+8}, a{Lf(rt)+k}')
                r(f'v_mul_f32 v{vT+8}, v{vT+8}, v{f}')
                r(f'v_accvgpr_write_b32 a{Lf(rt)+k}, v{vT+8}')
            for ts in range(8):
                b = Oreg(ts, rt)
                r(f'v_pk_mul_f32 {vr(b,2)}, {vr(b,2)}, {vr(f,2)} op_sel_hi:[1,0]')
                r(f'v_pk_mul_f32 {vr(b+2,2)}, {vr(b+2,2)}, {vr(f,2)} op_sel_hi:[1,0]')
        r('s_nop 7')
        r(f's_branch {back}')
        r.fix_hazards()
        self.rare.append(r)

    def k_reads(self, it, par):
        e = self.e
        e.wait_vm(('K', it))
        for s in range(4):
            for kt in range(2):
                e(f'ds_read_b128 {ar(Kf(kt, s), 4)}, v{vKr+s} offset:{par*32768 + kt*4096}', 'k')

    def iteration(self, it, par, issue_next, next_k=True, first=False):
        e = self.e
        mx = [vT + i for i in range(5)]
        def maxops(rt):
            b = Sreg(rt, 0)
            return [[(f'v_max3_f32 v{mx[rt]}, v{b}, v{b+1}, v{b+2}', None)],
                    [(f'v_max3_f32 v{mx[rt]}, v{mx[rt]}, v{b+3}, v{b+4}', None)],
                    [(f'v_max3_f32 v{mx[rt]}, v{mx[rt]}, v{b+5}, v{b+6}', None)],
                    [(f'v_max_f32 v{mx[rt]}, v{mx[rt]}, v{b+7}', None)]]
        def softmax(rt):
            b = Sreg(rt, 0)
            L = []
            for k in range(4):
                L.append(f'v_exp_f32 v{b+2*k}, v{b+2*k}')
                L.append(f'v_exp_f32 v{b+2*k+1}, v{b+2*k+1}')
            for k in range(4): L.append(f'v_cvt_pk_bf16_f32 v{b+k}, v{b+2*k}, v{b+2*k+1}')
            return [[(t, None)] for t in L]
        def vreads():
            return [[(f'ds_read_b64_tr_b16 {ar(Vf(ts) + 2*sec, 2)}, v{vVr+ts} offset:{par*32768 + sec*4096}', 'v')] for ts in range(8) for sec in range(2)]
        e.wait_lg()
        G = self.kv_dma('K', par, ('K', it + 2)) if issue_next else []
        for rt in range(5):
            mf = []
            for s in range(4):
                for kt in range(2):
                    acc = vr(Sreg(rt, kt), 4)
                    cc = acc if s else ('0' if first else vr(NM(rt), 4))
                    mf.append(f'{MFMA} {acc}, {ar(Kf(kt, s), 4)}, {ar(Qf(rt, s), 4)}, {cc}')
            extra = []
            if rt < 4 and G: extra += G[2*rt:2*rt+2]
            if rt >= 2: extra += maxops(rt - 2)
            if rt == 4:
                e.wait_vm(('V', it))
                R = vreads()
                extra = extra[:2] + R[:4] + extra[2:] + R[4:8]
                interleave(e, mf, extra, start=0)
                emit_groups(e, R[8:])
            else:
                interleave(e, mf, extra, start=1)
        emit_groups(e, maxops(3))
        emit_groups(e, maxops(4))
        if first:
            for rt in range(5):
                self.rowmax_xlane(e, rt)
                for k in range(4): e(f'v_sub_f32 v{NM(rt)+k}, 0, v{mx[rt]}')
                for k in range(8): e(f'v_sub_f32 v{Sreg(rt,0)+k}, v{Sreg(rt,0)+k}, v{mx[rt]}')
        else:
            t = vT + 5
            e(f'v_max3_f32 v{t}, v{mx[0]}, v{mx[1]}, v{mx[2]}')
            e(f'v_max3_f32 v{t}, v{t}, v{mx[3]}, v{mx[4]}')
            e(f'v_cmp_lt_f32 vcc, s{sT}, v{t}')
            self.nrare += 1
            lab, back = f'L_{self.name}_rare{self.nrare}', f'L_{self.name}_back{self.nrare}'
            e(f's_cbranch_vccnz {lab}')
            e.label(back)
            self.rare_block(lab, back)
        emit_groups(e, softmax(0))
        e.wait_lg()
        G = self.kv_dma('V', par, ('V', it + 2)) if issue_next else []
        for rt in range(5):
            mf = []
            P = vr(Sreg(rt, 0), 4)
            for ts in range(8):
                acc = vr(Oreg(ts, rt), 4)
                mf.append(f'{MFMA} {acc}, {ar(Vf(ts), 4)}, {P}, {"0" if first else acc}')
            la = ar(Lf(rt), 4)
            mf.append(f'{MFMA} {la}, {ar(aOne, 4)}, {P}, {"0" if first else la}')
            if rt < 4:
                sm = softmax(rt + 1)
                gg = G[2*rt:2*rt+2] if G else []
                extra = sm[:4] + gg[:1] + sm[4:8] + gg[1:] + sm[8:]
                interleave(e, mf, extra, start=0)
            else:
                if next_k: self.k_reads(it + 1, par ^ 1)
                for t in mf: e(t)

    def main_loop(self):
        e = self.e
        self.k_reads(0, 0)
        self.iteration(0, 0, True, first=True)
        self.iteration(1, 1, True)
        self.stamp(3)
        q0 = [(k, i - 2) for (k, i) in e.vmq]
        l0 = list(e.lgq)
        e(f's_mov_b32 s{sLoop}, 6')
        e.label(f'L_{self.name}_loop')
        self.iteration(2, 0, True)
        self.iteration(3, 1, True)
        q1 = [(k, i - 4) for (k, i) in e.vmq]
        assert q0 == q1, (q0, q1)
        assert l0 == e.lgq
        e(f's_sub_u32 s{sLoop}, s{sLoop}, 1')
        e(f's_cmp_lg_u32 s{sLoop}, 0')
        e(f's_cbranch_scc1 L_{self.name}_loop')
        self.iteration(4, 0, False)
        self.iteration(5, 1, False, next_k=False)

    def epilogue(self):
        e = self.e
        t0, t1 = vT, vT + 1
        vMx, vLx = vS + 30, vS + 35
        for rt in range(5):
            e(f'v_sub_f32 v{vMx+rt}, 0, v{NM(rt)}')
            e(f'v_accvgpr_read_b32 v{vLx+rt}, a{Lf(rt)}')
        aw, ap = vT + 2, vT + 3
        e(f's_mul_i32 s{sT0}, s{sWv}, 640')
        e(f's_add_u32 s{sT0}, s{sT0}, {STATS}')
        e(f'v_lshlrev_b32 v{t0}, 3, v{vN}')
        e(f'v_add_u32 v{aw}, s{sT0}, v{t0}')
        e(f's_xor_b32 s{sT1}, s{sWv}, 1')
        e(f's_mul_i32 s{sT1}, s{sT1}, 640')
        e(f's_add_u32 s{sT1}, s{sT1}, {STATS}')
        e(f'v_add_u32 v{ap}, s{sT1}, v{t0}')
        for rt in range(5):
            e(f'ds_write2_b32 v{aw}, v{vMx+rt}, v{vLx+rt} offset0:{rt*32} offset1:{rt*32+1}', 'sw')
        e.wait_lg()
        e('s_barrier')
        for rt in range(5):
            e(f'ds_read_b64 {vr(vS + 2*rt, 2)}, v{ap} offset:{rt*128}', 'sr')
        e.wait_lg()
        G = vS + 16
        for rt in range(5):
            mp, lp = vS + 2*rt, vS + 2*rt + 1
            M = vT + 4; fo = vT + 5; fp = vT + 6
            e(f'v_max_f32 v{M}, v{vMx+rt}, v{mp}')
            e(f'v_sub_f32 v{fo}, v{vMx+rt}, v{M}')
            e(f'v_sub_f32 v{fp}, v{mp}, v{M}')
            e(f'v_exp_f32 v{fo}, v{fo}')
            e(f'v_exp_f32 v{fp}, v{fp}')
            e(f'v_mul_f32 v{lp}, v{lp}, v{fp}')
            e(f'v_fma_f32 v{lp}, v{vLx+rt}, v{fo}, v{lp}')
            e(f'v_rcp_f32 v{lp}, v{lp}')
            e(f'v_mul_f32 v{G + 2*rt}, v{fo}, v{lp}')
        xa = vT + 4
        e(f's_mul_i32 s{sT0}, s{sWv}, 20480')
        e(f's_add_u32 s{sT0}, s{sT0}, {OX}')
        e(f'v_lshlrev_b32 v{t0}, 4, v{vL}')
        e(f'v_add_u32 v{xa}, s{sT0}, v{t0}')
        e(f's_xor_b32 s{sT1}, s{sWv}, 1')
        e(f's_mul_i32 s{sT1}, s{sT1}, 20480')
        e(f's_add_u32 s{sT1}, s{sT1}, {OX}')
        e(f'v_add_u32 v{xa+1}, s{sT1}, v{t0}')
        for ts in (4, 5, 6, 7):
            for rt in range(5):
                b = Oreg(ts, rt); g = G + 2*rt
                e(f'v_pk_mul_f32 {vr(b,2)}, {vr(b,2)}, {vr(g,2)} op_sel_hi:[1,0]')
                e(f'v_pk_mul_f32 {vr(b+2,2)}, {vr(b+2,2)}, {vr(g,2)} op_sel_hi:[1,0]')
                if ts >= 4:
                    e(f'ds_write_b128 v{xa}, {vr(b,4)} offset:{((ts-4)*5+rt)*1024}', 'ow')
        e.wait_lg()
        e('s_barrier')
        for ts in range(4):
            for rt in range(5):
                e(f'ds_read_b128 {vr(Oreg(ts+4, rt),4)}, v{xa+1} offset:{(ts*5+rt)*1024}', ('or', ts))
            if ts >= 1:
                self._epi_add(ts - 1)
        self._epi_add(3)
        so = vT + 6
        e(f'v_lshlrev_b32 v{so}, 4, v{vL}')
        for rt in range(5):
            for u in range(2):
                a, b = Oreg(2*u, rt), Oreg(2*u + 1, rt)
                e(f'v_cvt_pk_bf16_f32 v{a}, v{a}, v{a+1}')
                e(f'v_cvt_pk_bf16_f32 v{a+1}, v{a+2}, v{a+3}')
                e(f'v_cvt_pk_bf16_f32 v{a+2}, v{b}, v{b+1}')
                e(f'v_cvt_pk_bf16_f32 v{a+3}, v{b+2}, v{b+3}')
                e(f'buffer_store_dwordx4 {vr(a,4)}, v{so}, s[{sO}:{sO+3}], s{sOoff} offen offset:{u*1024}{self.ofl}', 'ost')
            if rt < 4:
                e(f's_add_u32 s{sOoff}, s{sOoff}, 131072')
        if self.cfg.get('stamps'): e.wait_vm_all()

    def _epi_add(self, ts):
        e = self.e
        e.wait_lg(('or', ts))
        for rt in range(5):
            a, b = Oreg(ts, rt), Oreg(ts + 4, rt)
            g = vS + 16 + 2*rt
            e(f'v_pk_fma_f32 {vr(a,2)}, {vr(a,2)}, {vr(g,2)}, {vr(b,2)} op_sel_hi:[1,0,1]')
            e(f'v_pk_fma_f32 {vr(a+2,2)}, {vr(a+2,2)}, {vr(g,2)}, {vr(b+2,2)} op_sel_hi:[1,0,1]')

    def build(self):
        e = self.e
        n = self.name
        e.raw(f'.globl {n}\n.p2align 8\n.type {n},@function')
        e.label(n)
        self.stamp(0); self.stamp(0, 2); self.stamp(0, 3); self.cstamp(4)
        self.prologue()
        e(f's_cmp_eq_u32 s{sBr}, 0')
        e(f's_cbranch_scc0 L_{n}_qB')
        saved = (list(e.vmq), list(e.lgq))
        self.q_phase('A')
        endA = (list(e.vmq), list(e.lgq))
        e(f's_branch L_{n}_qx')
        e.label(f'L_{n}_qB')
        e.vmq, e.lgq = list(saved[0]), list(saved[1])
        self.q_phase('B')
        assert (e.vmq, e.lgq) == endA, (e.vmq, endA)
        e.label(f'L_{n}_qx')
        self.stamp(1); self.stamp(11, 2); self.stamp(1, 3); self.cstamp(5)
        self.q_exchange()
        self.stamp(2); self.stamp(12, 2); self.stamp(2, 3); self.cstamp(6)
        self.main_loop()
        self.stamp(4); self.stamp(3, 3); self.cstamp(7)
        self.epilogue()
        self.stamp(5)
        self.write_stamps(6 if self.cfg.get('stamps') == 1 else 13)
        e.label(f'L_{n}_end')
        e('s_endpgm')
        for r in self.rare:
            e.ins.extend(r.ins)
        e('s_endpgm')
        kd = f'''
.amdhsa_kernel {n}
  .amdhsa_next_free_vgpr 512
  .amdhsa_next_free_sgpr 102
  .amdhsa_accum_offset 256
  .amdhsa_group_segment_fixed_size 0
  .amdhsa_kernarg_size 104
  .amdhsa_user_sgpr_count 2
  .amdhsa_user_sgpr_kernarg_segment_ptr 1
  .amdhsa_system_sgpr_workgroup_id_x 1
.end_amdhsa_kernel
'''
        return kd
```

```python
from asmgen import *
from attn import srd, O_BR, O_BYTES, MFMA

WO_BYTES = 4096 * 1152
OUT_BYTES = 640 * 2304

class OprojGen:
    def __init__(self, e, cfg):
        self.e = e
        self.cfg = cfg
        self.name = cfg.get('name', 'oproj_kernel')
        self.ofl = cfg.get('o2_flags', '')
        self.wfl = cfg.get('wo_flags', '')
        self.sfl = cfg.get('out_flags', '')

    def build(self):
        e = self.e
        n = self.name
        st = self.cfg.get('stamps')
        MT, NT, RING = 3, 4, 4
        sO, sW, sOut = 4, 8, 12
        sWv, sBr, sMt, sN0, sT0, sT1, sT2 = 16, 17, 18, 19, 20, 21, 22
        sOoff, sWoff, sWl, sLoop = 23, 24, 25, 26
        sOm = 28
        sMg, sNg, sRot = 32, 33, 34
        vL, vN, vG, vT = 1, 2, 3, 4
        vWd, vOd, vWr = 10, 14, 15
        vAcc = 20
        vWF = 68
        vOF = 84
        RED = 65536
        e.raw(f'.globl {n}\n.p2align 8\n.type {n},@function')
        e.label(n)
        if st: e('s_memrealtime s[70:71]')
        e('s_cmp_ge_u32 s2, 256')
        e(f's_cbranch_scc1 L_{n}_end')
        e('s_load_dwordx2 s[40:41], s[0:1], 32')
        e('s_load_dwordx2 s[42:43], s[0:1], 72')
        e('s_load_dwordx2 s[44:45], s[0:1], 80')
        e('s_load_dwordx2 s[46:47], s[0:1], 96')
        e(f'v_lshrrev_b32 v{vT}, 6, v0')
        e(f'v_and_b32 v{vL}, 63, v0')
        e(f'v_readfirstlane_b32 s{sWv}, v{vT}')
        e(f'v_and_b32 v{vN}, 15, v{vL}')
        e(f'v_lshrrev_b32 v{vG}, 4, v{vL}')
        e(f's_and_b32 s{sT0}, s2, 7')
        e(f's_lshr_b32 s{sT1}, s2, 3')
        e(f's_lshr_b32 s{sBr}, s{sT0}, 2')
        e(f's_and_b32 s35, s{sT0}, 1')
        e(f's_bfe_u32 s36, s{sT0}, 0x10001')
        e(f's_mul_i32 s35, s35, 7')
        e(f's_cmp_lt_u32 s{sT1}, 28')
        e(f's_cbranch_scc0 L_{n}_extra')
        e(f's_lshr_b32 s{sMg}, s{sT1}, 2')
        e(f's_add_u32 s{sMg}, s{sMg}, s35')
        e(f's_and_b32 s{sNg}, s{sT1}, 3')
        e(f's_mul_i32 s36, s36, 5')
        e(f's_add_u32 s{sNg}, s{sNg}, s36')
        e(f's_branch L_{n}_dec')
        e.label(f'L_{n}_extra')
        e(f's_sub_u32 s{sT1}, s{sT1}, 28')
        e(f's_lshl_b32 s37, s36, 2')
        e(f's_add_u32 s{sMg}, s{sT1}, s37')
        e(f's_cmp_ge_u32 s{sMg}, 7')
        e(f's_cbranch_scc1 L_{n}_end')
        e(f's_add_u32 s{sMg}, s{sMg}, s35')
        e(f's_mov_b32 s{sNg}, 4')
        e.label(f'L_{n}_dec')
        e(f's_lshl_b32 s{sN0}, s{sNg}, 6')
        e(f's_mul_i32 s{sMt}, s{sMg}, 3')
        e(f's_add_u32 s{sRot}, s{sMg}, s{sNg}')
        e(f's_mul_i32 s{sT1}, s{sRot}, 37')
        e(f's_lshr_b32 s{sT1}, s{sT1}, 8')
        e(f's_mul_i32 s{sT1}, s{sT1}, 7')
        e(f's_sub_u32 s{sRot}, s{sRot}, s{sT1}')
        e(f's_mul_i32 s{sRot}, s{sRot}, 37')
        e(f's_lshr_b32 s{sRot}, s{sRot}, 3')
        if not self.cfg.get('orot', 1): e(f's_mov_b32 s{sRot}, 0')
        e(f's_lshl_b32 s{sRot}, s{sRot}, 10')
        e(f's_movk_i32 s{sT1}, 1152')
        e(f'v_lshrrev_b32 v{vT}, 3, v{vL}')
        e(f'v_mul_lo_u32 v{vT}, v{vT}, s{sT1}')
        e(f'v_lshlrev_b32 v{vT+1}, 1, v{vG}')
        e(f'v_and_b32 v{vT+2}, 7, v{vL}')
        e(f'v_xor_b32 v{vT+1}, v{vT+1}, v{vT+2}')
        e(f'v_lshl_add_u32 v{vWd}, v{vT+1}, 4, v{vT}')
        for j in range(1, 4):
            e(f'v_add_u32 v{vWd+j}, {8192*j}, v{vWd}')
        e(f'v_lshlrev_b32 v{vOd}, 4, v{vL}')
        e(f's_mul_i32 s{sWl}, s{sWv}, {RING*4096}')
        e(f'v_bfe_u32 v{vT}, v{vL}, 2, 2')
        e(f'v_lshl_add_u32 v{vT}, v{vG}, 2, v{vT}')
        e(f'v_bfe_u32 v{vT+1}, v{vT}, 1, 2')
        e(f'v_lshlrev_b32 v{vT+1}, 1, v{vT+1}')
        e(f'v_bfe_u32 v{vT+2}, v{vL}, 1, 1')
        e(f'v_xor_b32 v{vT+1}, v{vT+1}, v{vT+2}')
        e(f'v_and_b32 v{vT+2}, 1, v{vL}')
        e(f'v_lshlrev_b32 v{vT+2}, 3, v{vT+2}')
        e(f'v_lshl_add_u32 v{vT+2}, v{vT}, 7, v{vT+2}')
        e(f'v_add_u32 v{vT+2}, s{sWl}, v{vT+2}')
        for nt in range(NT):
            e(f'v_xor_b32 v{vT}, {2*nt}, v{vT+1}')
            e(f'v_lshl_add_u32 v{vWr+nt}, v{vT}, 4, v{vT+2}')
        e('s_waitcnt lgkmcnt(0)')
        e(f's_cmp_eq_u32 s{sBr}, 0')
        e(f's_cselect_b32 s48, s40, s42')
        e(f's_cselect_b32 s49, s41, s43')
        srd(e, sW, 48, 49, WO_BYTES)
        srd(e, sO, 46, 47, O_BYTES)
        srd(e, sOut, 44, 45, OUT_BYTES)
        e(f's_mul_i32 s{sWoff}, s{sWv}, {32*32*1152}')
        e(f's_lshl_b32 s{sT0}, s{sN0}, 1')
        e(f's_add_u32 s{sWoff}, s{sWoff}, s{sT0}')
        e(f's_mul_i32 s{sOoff}, s{sBr}, {O_BR}')
        e(f's_lshl_b32 s{sT0}, s{sMt}, 17')
        e(f's_add_u32 s{sOoff}, s{sOoff}, s{sT0}')
        e(f's_lshl_b32 s{sT0}, s{sWv}, 15')
        e(f's_add_u32 s{sOoff}, s{sOoff}, s{sT0}')
        for mi in range(MT):
            e(f's_add_u32 s{sOm+mi}, s{sOoff}, {mi*131072}')

        def issue_groups(slot, tag):
            G = []
            g = [(f's_add_u32 m0, s{sWl}, {slot*4096}', None),
                 (f's_mul_i32 s52, s{sRot}, 36', None),
                 (f's_add_u32 s52, s52, s{sWoff}', None)]
            for mi in range(MT):
                g.append((f's_add_u32 s{54+mi}, s{sOm+mi}, s{sRot}', None))
            g.append((f's_add_u32 s{sRot}, s{sRot}, 1024', None))
            g.append((f's_and_b32 s{sRot}, s{sRot}, 0x7fff', None))
            G.append(g)
            for j in range(4):
                G.append([(f'buffer_load_dwordx4 v{vWd+j}, s[{sW}:{sW+3}], s52 offen offset:{1024*j}{self.wfl} lds', tag)])
            for mi in range(MT):
                r = vOF + slot*12 + mi*4
                G.append([(f'buffer_load_dwordx4 {vr(r,4)}, v{vOd}, s[{sO}:{sO+3}], s{54+mi} offen{self.ofl}', tag)])
            return G
        def emit_groups(G):
            for g in G:
                for (t, tag) in g: e(t, tag)

        def step(slot, tag, first, nxt):
            e.wait_vm(tag)
            for nt in range(NT):
                for sec in range(2):
                    e(f'ds_read_b64_tr_b16 {vr(vWF + nt*4 + 2*sec, 2)}, v{vWr+nt} offset:{slot*4096 + sec*2048}', ('w', nt))
            mf = []
            for nt in range(NT):
                for mi in range(MT):
                    acc = vr(vAcc + (nt*MT + mi)*4, 4)
                    cc = '0' if first else acc
                    mf.append((nt, f'{MFMA} {acc}, {vr(vWF + nt*4, 4)}, {vr(vOF + slot*12 + mi*4, 4)}, {cc}'))
            G = issue_groups(slot, nxt) if nxt is not None else []
            e.wait_lg()
            k = 0
            for i, (nt, t) in enumerate(mf):
                e(t)
                if G and i in (1, 3, 5, 7, 9) and k < 5:
                    for (tt, tag2) in G[k]: e(tt, tag2)
                    k += 1
            emit_groups(G[k:])

        if st: e('s_memrealtime s[72:73]')
        for s in range(4): emit_groups(issue_groups(s, ('k', s)))
        for s in range(4): step(s, ('k', s), s == 0, ('k', s + 4))
        q0 = [(k, i - 4) for (k, i) in e.vmq]
        e(f's_mov_b32 s{sLoop}, 6')
        e.label(f'L_{n}_loop')
        for s in range(4): step(s, ('k', s + 4), False, ('k', s + 8))
        q1 = [(k, i - 8) for (k, i) in e.vmq]
        assert q0 == q1
        e(f's_sub_u32 s{sLoop}, s{sLoop}, 1')
        e(f's_cmp_lg_u32 s{sLoop}, 0')
        e(f's_cbranch_scc1 L_{n}_loop')
        for s in range(4): step(s, ('k', s + 8), False, None)
        if st: e('s_memrealtime s[74:75]')
        e(f's_mul_i32 s{sT0}, s{sWv}, 12288')
        e(f's_add_u32 s{sT0}, s{sT0}, {RED}')
        e(f'v_add_u32 v{vT}, s{sT0}, v{vOd}')
        for t in range(NT*MT):
            e(f'ds_write_b128 v{vT}, {vr(vAcc + t*4, 4)} offset:{t*1024}', 'rw')
        e.wait_lg()
        e('s_barrier')
        e(f's_mul_i32 s{sT0}, s{sWv}, {MT*1024}')
        e(f's_add_u32 s{sT0}, s{sT0}, {RED}')
        e(f'v_add_u32 v{vT}, s{sT0}, v{vOd}')
        R = vOF
        for mi in range(MT):
            for v in range(4):
                e(f'ds_read_b128 {vr(R + (mi*4 + v)*4, 4)}, v{vT} offset:{v*12288 + mi*1024}', ('r', mi))
        e(f's_lshl_b32 s{sT0}, s{sMt}, 4')
        e(f'v_add_u32 v{vT+1}, s{sT0}, v{vN}')
        e(f's_movk_i32 s{sT1}, 2304')
        e(f'v_mul_lo_u32 v{vT+1}, v{vT+1}, s{sT1}')
        e(f'v_lshl_add_u32 v{vT+1}, v{vG}, 3, v{vT+1}')
        e(f's_mul_i32 s{sT0}, s{sBr}, 1152')
        e(f's_lshl_b32 s{sT1}, s{sN0}, 1')
        e(f's_add_u32 s{sT0}, s{sT0}, s{sT1}')
        e(f's_lshl_b32 s{sT1}, s{sWv}, 5')
        e(f's_add_u32 s{sT0}, s{sT0}, s{sT1}')
        for mi in range(MT):
            e.wait_lg(('r', mi))
            b = R + mi*16
            e(f'v_pk_add_f32 {vr(b,2)}, {vr(b,2)}, {vr(b+4,2)}')
            e(f'v_pk_add_f32 {vr(b+2,2)}, {vr(b+2,2)}, {vr(b+6,2)}')
            e(f'v_pk_add_f32 {vr(b+8,2)}, {vr(b+8,2)}, {vr(b+12,2)}')
            e(f'v_pk_add_f32 {vr(b+10,2)}, {vr(b+10,2)}, {vr(b+14,2)}')
            e(f'v_pk_add_f32 {vr(b,2)}, {vr(b,2)}, {vr(b+8,2)}')
            e(f'v_pk_add_f32 {vr(b+2,2)}, {vr(b+2,2)}, {vr(b+10,2)}')
            e(f'v_cvt_pk_bf16_f32 v{b}, v{b}, v{b+1}')
            e(f'v_cvt_pk_bf16_f32 v{b+1}, v{b+2}, v{b+3}')
            e(f'buffer_store_dwordx2 {vr(b,2)}, v{vT+1}, s[{sOut}:{sOut+3}], s{sT0} offen{self.sfl}', 'st')
            if mi < MT - 1:
                e(f's_add_u32 s{sT0}, s{sT0}, {16*2304}')
        e.wait_vm_all()
        if st:
            e('s_memrealtime s[76:77]')
            e('s_waitcnt lgkmcnt(0)')
            e(f's_lshl_b32 s{sT0}, s2, 2')
            e(f's_add_u32 s{sT0}, s{sT0}, s{sWv}')
            e(f's_lshl_b32 s{sT0}, s{sT0}, 6')
            e(f's_add_u32 s{sT0}, s{sT0}, {0x1100000}')
            e(f's_mov_b32 s{sO+2}, 0x2000000')
            e(f'v_mov_b32 v{vT}, 0')
            for i in range(4):
                e(f'v_mov_b32 v{vT+2}, s{70+2*i}')
                e(f'v_mov_b32 v{vT+3}, s{71+2*i}')
                e(f'buffer_store_dwordx2 {vr(vT+2,2)}, v{vT}, s[{sO}:{sO+3}], s{sT0} offen offset:{8*i}')
                e('s_waitcnt vmcnt(0)')
            e.vmq = []
        e.label(f'L_{n}_end')
        e('s_endpgm')
        return f'''
.amdhsa_kernel {n}
  .amdhsa_next_free_vgpr 256
  .amdhsa_next_free_sgpr 96
  .amdhsa_accum_offset 256
  .amdhsa_group_segment_fixed_size 0
  .amdhsa_kernarg_size 104
  .amdhsa_user_sgpr_count 2
  .amdhsa_user_sgpr_kernarg_segment_ptr 1
  .amdhsa_system_sgpr_workgroup_id_x 1
.end_amdhsa_kernel
'''
```

```python
from asmgen import *

X_BYTES = 8 * 80 * 1152
W_BYTES = 576 * 8192
KA_BYTES = 8 * 16 * 1024 * 256
KB_BYTES = 8 * 32 * 1024 * 256
O_BR = 40 * 128 * 1024
O_BYTES = 2 * O_BR

QBUF0, QBUFSZ = 34816, 43008
KS, VS = 0, 65536
QIMG = 122880
STATS = 131072
OX = 0

sX, sW, sK, sV, sO = 4, 8, 12, 16, 20
sWv, sJ, sKH, sBr, sC, sT = 24, 25, 26, 27, 28, 29
sKoff, sVoff, sKl, sVl = 30, 31, 32, 33
sXoff, sWoff, sOoff = 34, 35, 36
sT0, sT1, sT2 = 37, 38, 39
sP = 40
sLoop = 60
sXl, sWl = 61, 62
sKt, sVt = 96, 97
sB, sH = 63, 64
sCc, sXc, sWc, sX3c = 67, 68, 69, 3
vL, vN, vG = 1, 2, 3
vKd, vVd = 4, 8
vKr, vVr = 10, 14
vNM = 24
vXr, vWr = 36, 38
vT = 44
vXd, vWd = 56, 60
vS = 56
vO = 96
aQ = 0
aK = 80
aV = 112
aL = 144
aOne = 164
aXF = [168, 204]
aWF = [188, 224]

def Sreg(rt, kt): return vS + rt * 8 + kt * 4
def Oreg(ts, rt): return vO + (ts * 5 + rt) * 4
def Qacc(tt, rt): return vO + (tt * 5 + rt) * 4
def Qf(rt, s): return aQ + (rt * 4 + s) * 4
def Kf(kt, s): return aK + (kt * 4 + s) * 4
def Vf(ts): return aV + ts * 4
def NM(rt): return vNM + rt * 4
def Lf(rt): return aL + rt * 4

MFMA = 'v_mfma_f32_16x16x32_bf16'

def srd(e, s, lo, hi, nbytes):
    e(f's_mov_b32 s{s}, s{lo}')
    e(f's_mov_b32 s{s+1}, s{hi}')
    e(f's_mov_b32 s{s+2}, {nbytes}')
    e(f's_mov_b32 s{s+3}, 0x00020000')

def interleave(e, prim, groups, start=0, every=None, end=None):
    n = len(prim); g = len(groups)
    end = n if end is None else end
    pos = {}
    if g:
        span = max(end - start, 1)
        for k in range(g):
            p = start + (k * span) // g if every is None else start + k * every
            pos.setdefault(min(p, n - 1), []).append(groups[k])
    for i, t in enumerate(prim):
        e(t)
        for grp in pos.get(i, []):
            for (tt, tag) in grp: e(tt, tag)
    if n == 0:
        for grp in groups:
            for (tt, tag) in grp: e(tt, tag)

def emit_groups(e, groups):
    for grp in groups:
        for (tt, tag) in grp: e(tt, tag)

class AttnGen:
    def __init__(self, e, cfg):
        self.e = e
        self.cfg = cfg
        self.kvfl = cfg.get('kv_flags', ' nt')
        self.xfl = cfg.get('x_flags', '')
        self.wfl = cfg.get('w_flags', ' nt')
        self.ofl = cfg.get('o_flags', ' sc1' if cfg.get('fused') else '')
        self.name = cfg.get('name', 'attn_kernel')
        self.rare = []
        self.nrare = 0

    def stamp(self, i, mode=1):
        if self.cfg.get('stamps') == mode:
            self.e(f's_memrealtime s[{70+2*i}:{71+2*i}]')
    def cstamp(self, i, mode=3):
        if self.cfg.get('stamps') == mode:
            self.e(f's_memtime s[{70+2*i}:{71+2*i}]')
    def write_stamps(self, n, kernel_idx=0):
        if not self.cfg.get('stamps'): return
        e = self.e
        e('s_waitcnt lgkmcnt(0)')
        e(f's_lshl_b32 s{sT0}, s2, 2')
        e(f's_add_u32 s{sT0}, s{sT0}, s{sWv}')
        e(f's_lshl_b32 s{sT0}, s{sT0}, 7')
        e(f's_add_u32 s{sT0}, s{sT0}, {0x1000000 + kernel_idx*0x100000}')
        e(f's_mov_b32 s{sO+2}, 0x2000000')
        e(f'v_mov_b32 v{vT}, 0')
        for i in range(n):
            e(f'v_mov_b32 v{vT+2}, s{70+2*i}')
            e(f'v_mov_b32 v{vT+3}, s{71+2*i}')
            e(f'buffer_store_dwordx2 {vr(vT+2,2)}, v{vT}, s[{sO}:{sO+3}], s{sT0} offen offset:{8*i}')
            e('s_waitcnt vmcnt(0)')
        e.vmq = []
    def prologue(self):
        e = self.e
        e(f's_cmp_ge_u32 s2, 256')
        e(f's_cbranch_scc1 L_{self.name}_end')
        e(f's_load_dwordx16 s[40:55], s[0:1], 0')
        e(f's_load_dwordx2 s[56:57], s[0:1], 64')
        e(f's_load_dwordx2 s[58:59], s[0:1], 96')
        t0, t1, t2, t3 = vT, vT + 1, vT + 2, vT + 3
        e(f'v_lshrrev_b32 v{t0}, 6, v0')
        e(f'v_and_b32 v{vL}, 63, v0')
        e(f'v_readfirstlane_b32 s{sWv}, v{t0}')
        e(f'v_and_b32 v{vN}, 15, v{vL}')
        e(f'v_lshrrev_b32 v{vG}, 4, v{vL}')
        e(f's_lshr_b32 s{sJ}, s{sWv}, 1')
        e(f's_and_b32 s{sKH}, s{sWv}, 1')
        e(f's_and_b32 s{sT0}, s2, 7')
        e(f's_lshr_b32 s{sT1}, s2, 3')
        e(f's_lshr_b32 s{sBr}, s{sT1}, 4')
        e(f's_and_b32 s{sT1}, s{sT1}, 15')
        e(f's_mov_b32 s{sC}, 0x3e029407')
        import struct, math
        c = (128 ** -0.5) * math.log2(math.e)
        bits = struct.unpack('<I', struct.pack('<f', c))[0]
        e.ins[-1] = Inst(f's_mov_b32 s{sC}, {bits:#010x}')
        e(f's_mov_b32 s{sT}, 0x41000000')
        for j in range(4):
            e(f'v_add_u32 v{t0}, {4*j}, v{vG}')
            e(f'v_xor_b32 v{t0}, v{t0}, v{vN}')
            e(f'v_lshlrev_b32 v{t0}, 4, v{t0}')
            e(f'v_lshl_add_u32 v{vKd+j}, v{vG}, 8, v{t0}')
        for p in range(2):
            e(f'v_add_u32 v{t0}, {4*p}, v{vG}')
            e(f'v_lshlrev_b32 v{t0}, 1, v{t0}')
            e(f'v_xor_b32 v{t0}, v{t0}, v{vN}')
            e(f'v_lshlrev_b32 v{t0}, 4, v{t0}')
            e(f'v_lshl_add_u32 v{vVd+p}, v{vG}, 8, v{t0}')
        for i in range(4):
            q = i >> 1
            e(f'v_or_b32 v{t0}, {q << 2}, v{vG}')
            e(f'v_lshlrev_b32 v{t0}, 1, v{t0}')
            e(f'v_xor_b32 v{t0}, v{t0}, v{vN}')
            e(f'v_lshlrev_b32 v{t0}, 4, v{t0}')
            e(f'v_lshl_add_u32 v{vWd+i}, v{vG}, 13, v{t0}')
            if i: e(f'v_add_u32 v{vWd+i}, {(32768-1024)*i}, v{vWd+i}')
        e(f'v_lshrrev_b32 v{t1}, 3, v{vL}')
        e(f's_movk_i32 s{sT2}, 1152')
        e(f'v_mul_lo_u32 v{t1}, v{t1}, s{sT2}')
        e(f'v_and_b32 v{t2}, 7, v{vL}')
        for i in range(4):
            e(f's_add_u32 s{sT2}, s{sKH}, {i}')
            e(f's_and_b32 s{sT2}, s{sT2}, 1')
            e(f's_lshl_b32 s{sT2}, s{sT2}, 2')
            e(f'v_add_u32 v{t0}, s{sT2}, v{vG}')
            e(f'v_and_b32 v{t0}, 7, v{t0}')
            e(f'v_xor_b32 v{t0}, v{t0}, v{t2}')
            e(f'v_lshl_add_u32 v{vXd+i}, v{t0}, 4, v{t1}')
            if i: e(f'v_add_u32 v{vXd+i}, {8192*i}, v{vXd+i}')
        e(f's_lshl_b32 s{sKl}, s{sWv}, 13')
        e(f's_add_u32 s{sVl}, s{sKl}, {VS}')
        for s in range(4):
            e(f'v_add_u32 v{t0}, {4*s}, v{vG}')
            e(f'v_xor_b32 v{t0}, v{t0}, v{vN}')
            e(f'v_lshlrev_b32 v{t0}, 4, v{t0}')
            e(f'v_lshl_add_u32 v{t0}, v{vN}, 8, v{t0}')
            e(f'v_add_u32 v{vKr+s}, s{sKl}, v{t0}')
        e(f'v_bfe_u32 v{t1}, v{vL}, 2, 2')
        e(f'v_lshl_add_u32 v{t1}, v{vG}, 2, v{t1}')
        e(f'v_and_b32 v{t2}, 7, v{t1}')
        e(f'v_lshlrev_b32 v{t2}, 1, v{t2}')
        e(f'v_bfe_u32 v{t3}, v{vL}, 1, 1')
        e(f'v_xor_b32 v{t2}, v{t2}, v{t3}')
        e(f'v_and_b32 v{t3}, 1, v{vL}')
        e(f'v_lshlrev_b32 v{t3}, 3, v{t3}')
        e(f'v_lshl_add_u32 v{t3}, v{t1}, 8, v{t3}')
        e(f'v_add_u32 v{t3}, s{sVl}, v{t3}')
        for ts in range(8):
            e(f's_lshl_b32 s{sT2}, s{sKH}, 2')
            e(f's_xor_b32 s{sT2}, s{sT2}, {ts}')
            e(f's_lshl_b32 s{sT2}, s{sT2}, 1')
            e(f'v_xor_b32 v{t0}, s{sT2}, v{t2}')
            e(f'v_lshl_add_u32 v{vVr+ts}, v{t0}, 4, v{t3}')
        e('s_waitcnt lgkmcnt(0)')

    def q_setup(self, br):
        e = self.e
        t0, t1, t2, t3 = vT, vT + 1, vT + 2, vT + 3
        rot = self.cfg.get('qrot', 1)
        if br == 'A':
            e(f's_lshr_b32 s{sCc}, s{sT1}, 1')
            e(f's_and_b32 s{sT2}, s{sT1}, 1')
            e(f's_lshl_b32 s{sT2}, s{sT2}, 2')
            e(f's_add_u32 s{sCc}, s{sCc}, s{sT2}')
            e(f's_sub_u32 s{sT2}, s{sCc}, 9')
            e(f's_cmp_ge_u32 s{sCc}, 9')
            e(f's_cselect_b32 s{sCc}, s{sT2}, s{sCc}')
        else:
            e(f's_lshr_b32 s{sCc}, s{sT1}, 2')
            e(f's_add_u32 s{sCc}, s{sCc}, s{sT1}')
            e(f's_and_b32 s{sCc}, s{sCc}, 3')
            e(f's_mul_i32 s{sCc}, s{sCc}, 5')
            e(f's_lshr_b32 s{sCc}, s{sCc}, 1')
        if not rot: e(f's_mov_b32 s{sCc}, 0')
        if br == 'A':
            e(f's_lshr_b32 s{sB}, s{sT1}, 1')
            e(f's_and_b32 s{sT1}, s{sT1}, 1')
            e(f's_lshl_b32 s{sT0}, s{sT0}, 1')
            e(f's_add_u32 s{sT0}, s{sT0}, s{sT1}')
            e(f's_lshl_b32 s{sH}, s{sT0}, 1')
            e(f's_add_u32 s{sH}, s{sH}, s{sJ}')
            e(f's_lshl_b32 s{sT1}, s{sB}, 4')
            e(f's_add_u32 s{sT1}, s{sT1}, s{sT0}')
            srd(e, sX, 40, 41, X_BYTES); srd(e, sK, 42, 43, KA_BYTES); srd(e, sV, 44, 45, KA_BYTES); srd(e, sW, 46, 47, W_BYTES)
        else:
            e(f's_lshr_b32 s{sB}, s{sT1}, 2')
            e(f's_lshl_b32 s{sT2}, s{sJ}, 2')
            e(f's_add_u32 s{sB}, s{sB}, s{sT2}')
            e(f's_and_b32 s{sT1}, s{sT1}, 3')
            e(f's_lshl_b32 s{sH}, s{sT0}, 2')
            e(f's_add_u32 s{sH}, s{sH}, s{sT1}')
            e(f's_lshl_b32 s{sT1}, s{sB}, 5')
            e(f's_add_u32 s{sT1}, s{sT1}, s{sH}')
            srd(e, sX, 50, 51, X_BYTES); srd(e, sK, 52, 53, KB_BYTES); srd(e, sV, 54, 55, KB_BYTES); srd(e, sW, 56, 57, W_BYTES)
        srd(e, sO, 58, 59, O_BYTES)
        if self.cfg.get('kvsame'): e(f's_and_b32 s{sT1}, s2, 7')
        e(f's_lshl_b32 s{sKoff}, s{sT1}, 18')
        e(f's_lshl_b32 s{sT2}, s{sKH}, 13')
        e(f's_add_u32 s{sKoff}, s{sKoff}, s{sT2}')
        e(f's_mov_b32 s{sVoff}, s{sKoff}')
        e(f's_mul_i32 s{sOoff}, s{sB}, {5*128*1024}')
        e(f's_lshl_b32 s{sT2}, s{sH}, 12')
        e(f's_add_u32 s{sOoff}, s{sOoff}, s{sT2}')
        e(f's_lshl_b32 s{sT2}, s{sKH}, 11')
        e(f's_add_u32 s{sOoff}, s{sOoff}, s{sT2}')
        if br == 'B':
            e(f's_add_u32 s{sOoff}, s{sOoff}, {O_BR}')
        if br == 'A':
            e(f's_mul_i32 s{sXoff}, s{sB}, 92160')
            e(f's_mul_i32 s{sT2}, s{sWv}, 9216')
            e(f's_add_u32 s{sXoff}, s{sXoff}, s{sT2}')
            e(f's_lshl_b32 s{sXl}, s{sWv}, 10')
            e(f's_mul_i32 s65, s{sB}, 92160')
            e(f's_add_u32 s{sT2}, s{sKH}, 8')
            e(f's_lshl_b32 s66, s{sT2}, 10')
            e(f's_mul_i32 s{sT2}, s{sT2}, 9216')
            e(f's_add_u32 s65, s65, s{sT2}')
            e(f's_lshl_b32 s{sWoff}, s{sH}, 8')
            e(f's_lshl_b32 s{sT2}, s{sKH}, 18')
            e(f's_add_u32 s{sWoff}, s{sWoff}, s{sT2}')
            e(f's_lshl_b32 s{sWl}, s{sJ}, 14')
            e(f's_lshl_b32 s{sT2}, s{sKH}, 13')
            e(f's_add_u32 s{sWl}, s{sWl}, s{sT2}')
            e(f's_add_u32 s{sWl}, s{sWl}, 10240')
            xoffj, woffj = (0, 0), (10240, 16384)
        else:
            e(f's_mul_i32 s{sXoff}, s{sB}, 92160')
            e(f's_mul_i32 s{sT2}, s{sKH}, {40*1152}')
            e(f's_add_u32 s{sXoff}, s{sXoff}, s{sT2}')
            e(f's_mul_i32 s{sXl}, s{sWv}, 5120')
            e(f's_lshl_b32 s{sWoff}, s{sH}, 8')
            e(f's_lshl_b32 s{sT2}, s{sWv}, 17')
            e(f's_add_u32 s{sWoff}, s{sWoff}, s{sT2}')
            e(f's_lshl_b32 s{sWl}, s{sWv}, 12')
            e(f's_add_u32 s{sWl}, s{sWl}, 20480')
            xoffj, woffj = (0, 10240), (20480, 0)
        e(f's_mul_i32 s{sT2}, s{sJ}, {xoffj[1]}')
        e(f's_add_u32 s{sT2}, s{sT2}, {QBUF0 + xoffj[0]}')
        e(f'v_lshrrev_b32 v{t1}, 1, v{vN}')
        for s2 in range(2):
            e(f'v_add_u32 v{t0}, {4*s2}, v{vG}')
            e(f'v_xor_b32 v{t0}, v{t0}, v{t1}')
            e(f'v_lshlrev_b32 v{t0}, 4, v{t0}')
            e(f'v_lshl_add_u32 v{t0}, v{vN}, 7, v{t0}')
            e(f'v_add_u32 v{vXr+s2}, s{sT2}, v{t0}')
        e(f's_mul_i32 s{sT2}, s{sJ}, {woffj[1]}')
        e(f's_add_u32 s{sT2}, s{sT2}, {QBUF0 + woffj[0]}')
        e(f'v_bfe_u32 v{t1}, v{vL}, 2, 2')
        e(f'v_and_b32 v{t2}, 1, v{vG}')
        e(f'v_lshl_or_b32 v{t2}, v{t2}, 2, v{t1}')
        e(f'v_lshlrev_b32 v{t2}, 1, v{t2}')
        e(f'v_bfe_u32 v{t3}, v{vL}, 1, 1')
        e(f'v_xor_b32 v{t2}, v{t2}, v{t3}')
        e(f'v_lshl_add_u32 v{t1}, v{vG}, 3, v{t1}')
        e(f'v_and_b32 v{t3}, 1, v{vL}')
        e(f'v_lshlrev_b32 v{t3}, 3, v{t3}')
        e(f'v_lshl_add_u32 v{t3}, v{t1}, 8, v{t3}')
        e(f'v_add_u32 v{t3}, s{sT2}, v{t3}')
        for tt in range(4):
            e(f's_lshl_b32 s{sT2}, s{sKH}, 2')
            e(f's_add_u32 s{sT2}, s{sT2}, {tt}')
            e(f's_lshl_b32 s{sT2}, s{sT2}, 1')
            e(f'v_xor_b32 v{t0}, s{sT2}, v{t2}')
            e(f'v_lshl_add_u32 v{vWr+tt}, v{t0}, 4, v{t3}')

    def q_dma(self, br, c):
        qb = QBUF0 + (c % 3) * QBUFSZ
        tag = ('Q', c)
        G = []
        g = [(f's_lshl_b32 s{sT2}, s{sCc}, 7', None), (f's_add_u32 s{sXc}, s{sXoff}, s{sT2}', None)]
        if br == 'A': g.append((f's_add_u32 s{sX3c}, s65, s{sT2}', None))
        if self.cfg.get('qsame'):
            g = [(f's_mov_b32 s{sXc}, 0', None), (f's_mov_b32 s{sX3c}, 0', None), (f's_mov_b32 s{sWc}, 0', None)]
        else:
          g += [(f's_lshl_b32 s{sT2}, s{sCc}, 19', None), (f's_add_u32 s{sWc}, s{sWoff}, s{sT2}', None),
              (f's_add_u32 s{sCc}, s{sCc}, 1', None), (f's_cmp_eq_u32 s{sCc}, 9', None), (f's_cselect_b32 s{sCc}, 0, s{sCc}', None)]
        G.append(g)
        def ld(voff, srdr, soff, off, fl, pre=()):
            G.append(list(pre) + [(f'buffer_load_dwordx4 v{voff}, s[{srdr}:{srdr+3}], s{soff} offen offset:{off}{fl} lds', tag)])
        m0 = lambda reg, imm: (f's_add_u32 m0, s{reg}, {qb + imm}', None)
        if br == 'A':
            ld(vXd, sX, sXc, 0, self.xfl, [m0(sXl, 0)])
            ld(vXd, sX, sT2, 0, self.xfl, [m0(sXl, 4096), (f's_add_u32 s{sT2}, s{sXc}, {4*9216}', None)])
            ld(vXd, sX, sX3c, 0, self.xfl, [m0(66, 0), ('s_nop 0', None)])
            for i in range(4):
                ld(vWd + i, sW, sWc, 1024*i, self.wfl, [m0(sWl, 0), ('s_nop 0', None)] if i == 0 else [])
            for i in range(4):
                ld(vWd + i, sW, sWc, 1024*i, self.wfl, [m0(sWl, 4096), (f's_add_u32 s{sWc}, s{sWc}, {4*32768}', None)] if i == 0 else [])
        else:
            for i in range(4):
                ld(vXd + i, sX, sXc, 1024*i, self.xfl, [m0(sXl, 0), ('s_nop 0', None)] if i == 0 else [])
            ld(vXd, sX, sXc, 0, self.xfl, [m0(sXl, 4096), (f's_add_u32 s{sXc}, s{sXc}, {4*9216}', None)])
            for i in range(4):
                ld(vWd + i, sW, sWc, 1024*i, self.wfl, [m0(sWl, 0), ('s_nop 0', None)] if i == 0 else [])
        return G

    def kv_dma(self, kind, par, tag):
        if kind == 'K': l, off, s, vo, tmp = sKl, sKoff, sK, [vKd, vKd + 1, vKd + 2, vKd + 3], sKt
        else: l, off, s, vo, tmp = sVl, sVoff, sV, [vVd, vVd + 1, vVd, vVd + 1], sVt
        G = []
        for half in range(2):
            for q in range(4):
                g = []
                if q == 0:
                    g.append((f's_add_u32 m0, s{l}, {par * 32768 + half * 4096}', None))
                    if half == 0: g.append((f's_add_u32 s{tmp}, s{off}, 4096', None))
                    else: g.append((f's_add_u32 s{off}, s{off}, 16384', None))
                so = off if half == 0 else tmp
                g.append((f'buffer_load_dwordx4 v{vo[q]}, s[{s}:{s+3}], s{so} offen offset:{q*1024}{self.kvfl} lds', tag))
                G.append(g)
        return G

    def q_reads(self, s2):
        G = []
        for tt in range(4):
            for sec in range(2):
                G.append([(f'ds_read_b64_tr_b16 {ar(aWF[s2] + 4*tt + 2*sec, 2)}, v{vWr+tt} offset:{s2*8192 + sec*1024}', ('q', s2))])
            if tt == 0:
                for rt in range(5):
                    G.append([(f'ds_read_b128 {ar(aXF[s2] + 4*rt, 4)}, v{vXr+s2} offset:{rt*2048}', ('q', s2))])
        return G

    def q_mfmas(self, s2, first):
        L = []
        for tt in range(4):
            for rt in range(5):
                acc = vr(Qacc(tt, rt), 4)
                cc = '0' if first else acc
                L.append(f'{MFMA} {acc}, {ar(aWF[s2] + 4*tt, 4)}, {ar(aXF[s2] + 4*rt, 4)}, {cc}')
        return L

    def q_phase(self, br):
        e = self.e
        self.q_setup(br)
        self.stamp(1, 2)
        emit_groups(e, self.q_dma(br, 0))
        emit_groups(e, self.q_dma(br, 1))
        for c in range(9):
            e.wait_vm(('Q', c))
            e.wait_lg()
            e('s_barrier')
            if c == 4: self.cstamp(0, 4)
            if c == 5: self.cstamp(3, 4)
            self.stamp(2 + c, 2)
            G = []
            if c + 2 <= 8: G += self.q_dma(br, c + 2)
            if c == 6: G += self.kv_dma('K', 0, ('K', 0))
            if c == 7: G += self.kv_dma('K', 1, ('K', 1))
            if c == 8: G += self.kv_dma('V', 0, ('V', 0))
            R0 = self.q_reads(0)
            h = (len(G) + 1) // 2
            if c > 0:
                mf = self.q_mfmas(1, False)
                interleave(e, mf[:13], R0, start=0, every=1)
                interleave(e, mf[13:], G[:h], start=0)
            else:
                emit_groups(e, R0); emit_groups(e, G[:h])
            if c == 4: self.cstamp(1, 4)
            e.wait_lg(('q', 0))
            adv = []
            if c < 8:
                d = QBUFSZ if (c % 3) != 2 else -2 * QBUFSZ
                for r in (vXr, vXr + 1, vWr, vWr + 1, vWr + 2, vWr + 3):
                    adv.append([((f'v_add_u32 v{r}, {d}, v{r}' if d > 0 else f'v_subrev_u32 v{r}, {-d}, v{r}'), None)])
            mf = self.q_mfmas(0, c == 0)
            interleave(e, mf[:13], self.q_reads(1), start=0, every=1)
            interleave(e, mf[13:], G[h:] + adv, start=0)
            if c == 4: self.cstamp(2, 4)
        e.wait_lg()
        for t in self.q_mfmas(1, False): e(t)

    def q_exchange(self):
        e = self.e
        t0, t1, t2, t3 = vT, vT + 1, vT + 2, vT + 3
        e('s_barrier')
        e(f's_mul_i32 s{sT2}, s{sJ}, 20480')
        e(f's_add_u32 s{sT2}, s{sT2}, {QIMG}')
        e(f'v_and_b32 v{t1}, 1, v{vG}')
        e(f'v_lshlrev_b32 v{t1}, 3, v{t1}')
        e(f'v_lshl_add_u32 v{t1}, v{vN}, 8, v{t1}')
        e(f'v_add_u32 v{t1}, s{sT2}, v{t1}')
        e(f'v_lshrrev_b32 v{t2}, 1, v{vG}')
        e(f'v_xor_b32 v{t2}, v{t2}, v{vN}')
        for tt in range(4):
            e(f's_lshl_b32 s{sT1}, s{sKH}, 2')
            e(f's_add_u32 s{sT1}, s{sT1}, {tt}')
            e(f's_lshl_b32 s{sT1}, s{sT1}, 1')
            e(f'v_xor_b32 v{t0}, s{sT1}, v{t2}')
            e(f'v_lshl_add_u32 v{vT+4+tt}, v{t0}, 4, v{t1}')
        for tt in range(4):
            for rt in range(5):
                b = Qacc(tt, rt)
                for k in range(4): e(f'v_mul_f32 v{b+k}, s{sC}, v{b+k}')
                e(f'v_cvt_pk_bf16_f32 v{b}, v{b}, v{b+1}')
                e(f'v_cvt_pk_bf16_f32 v{b+1}, v{b+2}, v{b+3}')
                e(f'ds_write_b64 v{vT+4+tt}, {vr(b, 2)} offset:{rt*4096}', 'qw')
        e.wait_lg()
        e('s_barrier')
        e(f's_sub_u32 s{sT2}, s{sT2}, s{sKl}')
        for s in range(4):
            e(f'v_add_u32 v{vT+4+s}, s{sT2}, v{vKr+s}')
        for rt in range(5):
            for s in range(4):
                e(f'ds_read_b128 {ar(Qf(rt, s), 4)}, v{vT+4+s} offset:{rt*4096}', 'qr')
        e(f'v_mov_b32 v{vT}, 0x3f803f80')
        for k in range(4): e(f'v_accvgpr_write_b32 a{aOne+k}, v{vT}')
        e.wait_lg()
        e('s_barrier')
        emit_groups(e, self.kv_dma('V', 1, ('V', 1)))

    def rowmax_xlane(self, r, rt):
        mx, t = vT + rt, vT + 5
        r(f'v_mov_b32 v{t}, v{mx}')
        r(f'v_permlane16_swap_b32 v{mx}, v{t}')
        r(f'v_max_f32 v{mx}, v{mx}, v{t}')
        r(f'v_mov_b32 v{t}, v{mx}')
        r(f'v_permlane32_swap_b32 v{mx}, v{t}')
        r(f'v_max_f32 v{mx}, v{mx}, v{t}')

    def rare_block(self, lab, back):
        r = Emitter()
        r.label(lab)
        r('s_nop 7')
        f = vT + 6
        for rt in range(5):
            mx = vT + rt
            self.rowmax_xlane(r, rt)
            r(f'v_max_f32 v{mx}, 0, v{mx}')
            r(f'v_sub_f32 v{f}, 0, v{mx}')
            r(f'v_exp_f32 v{f}, v{f}')
            for k in range(4): r(f'v_sub_f32 v{NM(rt)+k}, v{NM(rt)+k}, v{mx}')
            for k in range(8): r(f'v_sub_f32 v{Sreg(rt,0)+k}, v{Sreg(rt,0)+k}, v{mx}')
            for k in range(4):
                r(f'v_accvgpr_read_b32 v{vT+8}, a{Lf(rt)+k}')
                r(f'v_mul_f32 v{vT+8}, v{vT+8}, v{f}')
                r(f'v_accvgpr_write_b32 a{Lf(rt)+k}, v{vT+8}')
            for ts in range(8):
                b = Oreg(ts, rt)
                r(f'v_pk_mul_f32 {vr(b,2)}, {vr(b,2)}, {vr(f,2)} op_sel_hi:[1,0]')
                r(f'v_pk_mul_f32 {vr(b+2,2)}, {vr(b+2,2)}, {vr(f,2)} op_sel_hi:[1,0]')
        r('s_nop 7')
        r(f's_branch {back}')
        r.fix_hazards()
        self.rare.append(r)

    def k_reads(self, it, par):
        e = self.e
        e.wait_vm(('K', it))
        for s in range(4):
            for kt in range(2):
                e(f'ds_read_b128 {ar(Kf(kt, s), 4)}, v{vKr+s} offset:{par*32768 + kt*4096}', 'k')

    def iteration(self, it, par, issue_next, next_k=True, first=False):
        e = self.e
        mx = [vT + i for i in range(5)]
        def maxops(rt):
            b = Sreg(rt, 0)
            return [[(f'v_max3_f32 v{mx[rt]}, v{b}, v{b+1}, v{b+2}', None)],
                    [(f'v_max3_f32 v{mx[rt]}, v{mx[rt]}, v{b+3}, v{b+4}', None)],
                    [(f'v_max3_f32 v{mx[rt]}, v{mx[rt]}, v{b+5}, v{b+6}', None)],
                    [(f'v_max_f32 v{mx[rt]}, v{mx[rt]}, v{b+7}', None)]]
        def softmax(rt):
            b = Sreg(rt, 0)
            L = []
            for k in range(4):
                L.append(f'v_exp_f32 v{b+2*k}, v{b+2*k}')
                L.append(f'v_exp_f32 v{b+2*k+1}, v{b+2*k+1}')
            for k in range(4): L.append(f'v_cvt_pk_bf16_f32 v{b+k}, v{b+2*k}, v{b+2*k+1}')
            return [[(t, None)] for t in L]
        def vreads():
            return [[(f'ds_read_b64_tr_b16 {ar(Vf(ts) + 2*sec, 2)}, v{vVr+ts} offset:{par*32768 + sec*4096}', 'v')] for ts in range(8) for sec in range(2)]
        e.wait_lg()
        G = self.kv_dma('K', par, ('K', it + 2)) if issue_next else []
        for rt in range(5):
            mf = []
            for s in range(4):
                for kt in range(2):
                    acc = vr(Sreg(rt, kt), 4)
                    cc = acc if s else ('0' if first else vr(NM(rt), 4))
                    mf.append(f'{MFMA} {acc}, {ar(Kf(kt, s), 4)}, {ar(Qf(rt, s), 4)}, {cc}')
            extra = []
            if rt < 4 and G: extra += G[2*rt:2*rt+2]
            if rt >= 2: extra += maxops(rt - 2)
            if rt == 4:
                e.wait_vm(('V', it))
                R = vreads()
                extra = extra[:2] + R[:4] + extra[2:] + R[4:8]
                interleave(e, mf, extra, start=0)
                emit_groups(e, R[8:])
            else:
                interleave(e, mf, extra, start=1)
        emit_groups(e, maxops(3))
        emit_groups(e, maxops(4))
        if first:
            for rt in range(5):
                self.rowmax_xlane(e, rt)
                for k in range(4): e(f'v_sub_f32 v{NM(rt)+k}, 0, v{mx[rt]}')
                for k in range(8): e(f'v_sub_f32 v{Sreg(rt,0)+k}, v{Sreg(rt,0)+k}, v{mx[rt]}')
        else:
            t = vT + 5
            e(f'v_max3_f32 v{t}, v{mx[0]}, v{mx[1]}, v{mx[2]}')
            e(f'v_max3_f32 v{t}, v{t}, v{mx[3]}, v{mx[4]}')
            e(f'v_cmp_lt_f32 vcc, s{sT}, v{t}')
            self.nrare += 1
            lab, back = f'L_{self.name}_rare{self.nrare}', f'L_{self.name}_back{self.nrare}'
            e(f's_cbranch_vccnz {lab}')
            e.label(back)
            self.rare_block(lab, back)
        emit_groups(e, softmax(0))
        e.wait_lg()
        G = self.kv_dma('V', par, ('V', it + 2)) if issue_next else []
        for rt in range(5):
            mf = []
            P = vr(Sreg(rt, 0), 4)
            for ts in range(8):
                acc = vr(Oreg(ts, rt), 4)
                mf.append(f'{MFMA} {acc}, {ar(Vf(ts), 4)}, {P}, {"0" if first else acc}')
            la = ar(Lf(rt), 4)
            mf.append(f'{MFMA} {la}, {ar(aOne, 4)}, {P}, {"0" if first else la}')
            if rt < 4:
                sm = softmax(rt + 1)
                gg = G[2*rt:2*rt+2] if G else []
                extra = sm[:4] + gg[:1] + sm[4:8] + gg[1:] + sm[8:]
                interleave(e, mf, extra, start=0)
            else:
                if next_k: self.k_reads(it + 1, par ^ 1)
                for t in mf: e(t)

    def main_loop(self):
        e = self.e
        self.k_reads(0, 0)
        self.iteration(0, 0, True, first=True)
        self.iteration(1, 1, True)
        self.stamp(3)
        q0 = [(k, i - 2) for (k, i) in e.vmq]
        l0 = list(e.lgq)
        e(f's_mov_b32 s{sLoop}, 6')
        e.label(f'L_{self.name}_loop')
        self.iteration(2, 0, True)
        self.iteration(3, 1, True)
        q1 = [(k, i - 4) for (k, i) in e.vmq]
        assert q0 == q1, (q0, q1)
        assert l0 == e.lgq
        e(f's_sub_u32 s{sLoop}, s{sLoop}, 1')
        e(f's_cmp_lg_u32 s{sLoop}, 0')
        e(f's_cbranch_scc1 L_{self.name}_loop')
        self.iteration(4, 0, False)
        self.iteration(5, 1, False, next_k=False)

    def epilogue(self):
        e = self.e
        t0, t1 = vT, vT + 1
        vMx, vLx = vS + 30, vS + 35
        for rt in range(5):
            e(f'v_sub_f32 v{vMx+rt}, 0, v{NM(rt)}')
            e(f'v_accvgpr_read_b32 v{vLx+rt}, a{Lf(rt)}')
        aw, ap = vT + 2, vT + 3
        e(f's_mul_i32 s{sT0}, s{sWv}, 640')
        e(f's_add_u32 s{sT0}, s{sT0}, {STATS}')
        e(f'v_lshlrev_b32 v{t0}, 3, v{vN}')
        e(f'v_add_u32 v{aw}, s{sT0}, v{t0}')
        e(f's_xor_b32 s{sT1}, s{sWv}, 1')
        e(f's_mul_i32 s{sT1}, s{sT1}, 640')
        e(f's_add_u32 s{sT1}, s{sT1}, {STATS}')
        e(f'v_add_u32 v{ap}, s{sT1}, v{t0}')
        for rt in range(5):
            e(f'ds_write2_b32 v{aw}, v{vMx+rt}, v{vLx+rt} offset0:{rt*32} offset1:{rt*32+1}', 'sw')
        e.wait_lg()
        e('s_barrier')
        for rt in range(5):
            e(f'ds_read_b64 {vr(vS + 2*rt, 2)}, v{ap} offset:{rt*128}', 'sr')
        e.wait_lg()
        G = vS + 16
        for rt in range(5):
            mp, lp = vS + 2*rt, vS + 2*rt + 1
            M = vT + 4; fo = vT + 5; fp = vT + 6
            e(f'v_max_f32 v{M}, v{vMx+rt}, v{mp}')
            e(f'v_sub_f32 v{fo}, v{vMx+rt}, v{M}')
            e(f'v_sub_f32 v{fp}, v{mp}, v{M}')
            e(f'v_exp_f32 v{fo}, v{fo}')
            e(f'v_exp_f32 v{fp}, v{fp}')
            e(f'v_mul_f32 v{lp}, v{lp}, v{fp}')
            e(f'v_fma_f32 v{lp}, v{vLx+rt}, v{fo}, v{lp}')
            e(f'v_rcp_f32 v{lp}, v{lp}')
            e(f'v_mul_f32 v{G + 2*rt}, v{fo}, v{lp}')
        xa = vT + 4
        e(f's_mul_i32 s{sT0}, s{sWv}, 20480')
        e(f's_add_u32 s{sT0}, s{sT0}, {OX}')
        e(f'v_lshlrev_b32 v{t0}, 4, v{vL}')
        e(f'v_add_u32 v{xa}, s{sT0}, v{t0}')
        e(f's_xor_b32 s{sT1}, s{sWv}, 1')
        e(f's_mul_i32 s{sT1}, s{sT1}, 20480')
        e(f's_add_u32 s{sT1}, s{sT1}, {OX}')
        e(f'v_add_u32 v{xa+1}, s{sT1}, v{t0}')
        for ts in (4, 5, 6, 7):
            for rt in range(5):
                b = Oreg(ts, rt); g = G + 2*rt
                e(f'v_pk_mul_f32 {vr(b,2)}, {vr(b,2)}, {vr(g,2)} op_sel_hi:[1,0]')
                e(f'v_pk_mul_f32 {vr(b+2,2)}, {vr(b+2,2)}, {vr(g,2)} op_sel_hi:[1,0]')
                if ts >= 4:
                    e(f'ds_write_b128 v{xa}, {vr(b,4)} offset:{((ts-4)*5+rt)*1024}', 'ow')
        e.wait_lg()
        e('s_barrier')
        for ts in range(4):
            for rt in range(5):
                e(f'ds_read_b128 {vr(Oreg(ts+4, rt),4)}, v{xa+1} offset:{(ts*5+rt)*1024}', ('or', ts))
            if ts >= 1:
                self._epi_add(ts - 1)
        self._epi_add(3)
        so = vT + 6
        e(f'v_lshlrev_b32 v{so}, 4, v{vL}')
        for rt in range(5):
            for u in range(2):
                a, b = Oreg(2*u, rt), Oreg(2*u + 1, rt)
                e(f'v_cvt_pk_bf16_f32 v{a}, v{a}, v{a+1}')
                e(f'v_cvt_pk_bf16_f32 v{a+1}, v{a+2}, v{a+3}')
                e(f'v_cvt_pk_bf16_f32 v{a+2}, v{b}, v{b+1}')
                e(f'v_cvt_pk_bf16_f32 v{a+3}, v{b+2}, v{b+3}')
                e(f'buffer_store_dwordx4 {vr(a,4)}, v{so}, s[{sO}:{sO+3}], s{sOoff} offen offset:{u*1024}{self.ofl}', 'ost')
            if rt < 4:
                e(f's_add_u32 s{sOoff}, s{sOoff}, 131072')
        if self.cfg.get('stamps'): e.wait_vm_all()

    def _epi_add(self, ts):
        e = self.e
        e.wait_lg(('or', ts))
        for rt in range(5):
            a, b = Oreg(ts, rt), Oreg(ts + 4, rt)
            g = vS + 16 + 2*rt
            e(f'v_pk_fma_f32 {vr(a,2)}, {vr(a,2)}, {vr(g,2)}, {vr(b,2)} op_sel_hi:[1,0,1]')
            e(f'v_pk_fma_f32 {vr(a+2,2)}, {vr(a+2,2)}, {vr(g,2)}, {vr(b+2,2)} op_sel_hi:[1,0,1]')

    def build(self):
        e = self.e
        n = self.name
        e.raw(f'.globl {n}\n.p2align 8\n.type {n},@function')
        e.label(n)
        self.stamp(0); self.stamp(0, 2); self.stamp(0, 3); self.cstamp(4)
        self.prologue()
        e(f's_cmp_eq_u32 s{sBr}, 0')
        e(f's_cbranch_scc0 L_{n}_qB')
        saved = (list(e.vmq), list(e.lgq))
        self.q_phase('A')
        endA = (list(e.vmq), list(e.lgq))
        e(f's_branch L_{n}_qx')
        e.label(f'L_{n}_qB')
        e.vmq, e.lgq = list(saved[0]), list(saved[1])
        self.q_phase('B')
        assert (e.vmq, e.lgq) == endA, (e.vmq, endA)
        e.label(f'L_{n}_qx')
        self.stamp(1); self.stamp(11, 2); self.stamp(1, 3); self.cstamp(5)
        self.q_exchange()
        self.stamp(2); self.stamp(12, 2); self.stamp(2, 3); self.cstamp(6)
        self.main_loop()
        self.stamp(4); self.stamp(3, 3); self.cstamp(7)
        self.epilogue()
        self.stamp(5)
        if self.cfg.get('fused'):
            from tail import fused_tail
            fused_tail(self)
            self.stamp(9)
            self.write_stamps(10 if self.cfg.get('stamps') == 1 else 13)
        else:
            self.write_stamps(6 if self.cfg.get('stamps') == 1 else 13)
        e.label(f'L_{n}_end')
        e('s_endpgm')
        for r in self.rare:
            e.ins.extend(r.ins)
        e('s_endpgm')
        kd = f'''
.amdhsa_kernel {n}
  .amdhsa_next_free_vgpr 512
  .amdhsa_next_free_sgpr 102
  .amdhsa_accum_offset 256
  .amdhsa_group_segment_fixed_size 0
  .amdhsa_kernarg_size 104
  .amdhsa_user_sgpr_count 2
  .amdhsa_user_sgpr_kernarg_segment_ptr 1
  .amdhsa_system_sgpr_workgroup_id_x 1
.end_amdhsa_kernel
'''
        return kd
```

```python
from asmgen import *
import attn as A
from attn import srd, O_BR, O_BYTES, MFMA, interleave, emit_groups

WO_BYTES = 4096 * 1152
OUT_BYTES = 640 * 2304

def fused_tail(gen):
    e, cfg, n = gen.e, gen.cfg, gen.name
    ofl = cfg.get('o2_flags', ' sc1')
    wfl = cfg.get('wo_flags', '')
    sfl = cfg.get('out_flags', '')
    MT, NT = 3, 4
    RW = cfg.get('tail_rw', 8)
    RO = 4
    sWv, sBrA = A.sWv, A.sBr
    sBatt = A.sB
    sO, sW, sOut, sD = A.sO, 8, 12, 16
    sBr, sMt, sN0, sT0, sT1, sT2 = 4, 5, 6, 37, 38, 39
    sOoff, sWoff, sWl, sLoop = 7, 30, 31, 32
    sOm = 33
    sMg, sNg, sRot = 61, 62, 65
    sWo, sOo = 66, 67
    sRotO = 3
    vL, vN, vG, vT = A.vL, A.vN, A.vG, 4
    vWd, vOd, vWr = 10, 14, 16
    vAcc, vWF, vOF = 20, 68, 84
    RED = 0
    e('s_load_dwordx2 s[42:43], s[0:1], 72')
    e('s_load_dwordx4 s[44:47], s[0:1], 80')
    e.wait_vm_all()
    e('s_barrier')
    e('s_waitcnt lgkmcnt(0)')
    e.lgq = []
    srd(e, sD, 46, 47, 256)
    e(f's_cmp_lg_u32 s{sWv}, 0')
    e(f's_cbranch_scc1 L_{n}_nosig')
    e(f's_add_u32 s{sT0}, s{sBatt}, 8')
    e(f's_cmp_eq_u32 s{sBrA}, 0')
    e(f's_cselect_b32 s{sT0}, s{sBatt}, s{sT0}')
    e(f's_lshl_b32 s{sT0}, s{sT0}, 2')
    e(f'v_mov_b32 v{vT}, s{sT0}')
    e(f'v_mov_b32 v{vT+1}, 1')
    e('s_mov_b64 exec, 1')
    e(f'buffer_atomic_add v{vT+1}, v{vT}, s[{sD}:{sD+3}], 0 offen sc1', 'sig')
    e('s_mov_b64 exec, -1')
    e.vmq = []
    e.label(f'L_{n}_nosig')
    e(f's_and_b32 s{sT0}, s2, 7')
    e(f's_lshr_b32 s{sT1}, s2, 3')
    e(f's_lshr_b32 s{sBr}, s{sT0}, 2')
    e(f's_and_b32 s{sOm}, s{sT0}, 1')
    e(f's_bfe_u32 s{sOm+1}, s{sT0}, 0x10001')
    e(f's_mul_i32 s{sOm}, s{sOm}, 7')
    e(f's_cmp_lt_u32 s{sT1}, 28')
    e(f's_cbranch_scc0 L_{n}_extra')
    e(f's_lshr_b32 s{sMg}, s{sT1}, 2')
    e(f's_add_u32 s{sMg}, s{sMg}, s{sOm}')
    e(f's_and_b32 s{sNg}, s{sT1}, 3')
    e(f's_mul_i32 s{sOm+1}, s{sOm+1}, 5')
    e(f's_add_u32 s{sNg}, s{sNg}, s{sOm+1}')
    e(f's_branch L_{n}_dec')
    e.label(f'L_{n}_extra')
    e(f's_sub_u32 s{sT1}, s{sT1}, 28')
    e(f's_lshl_b32 s{sOm+2}, s{sOm+1}, 2')
    e(f's_add_u32 s{sMg}, s{sT1}, s{sOm+2}')
    e(f's_cmp_ge_u32 s{sMg}, 7')
    e(f's_cbranch_scc1 L_{n}_end')
    e(f's_add_u32 s{sMg}, s{sMg}, s{sOm}')
    e(f's_mov_b32 s{sNg}, 4')
    e.label(f'L_{n}_dec')
    e(f's_lshl_b32 s{sN0}, s{sNg}, 6')
    e(f's_mul_i32 s{sMt}, s{sMg}, 3')
    e(f's_add_u32 s{sRot}, s{sMg}, s{sNg}')
    e(f's_mul_i32 s{sT1}, s{sRot}, 37')
    e(f's_lshr_b32 s{sT1}, s{sT1}, 8')
    e(f's_mul_i32 s{sT1}, s{sT1}, 7')
    e(f's_sub_u32 s{sRot}, s{sRot}, s{sT1}')
    e(f's_mul_i32 s{sRot}, s{sRot}, 37')
    e(f's_lshr_b32 s{sRot}, s{sRot}, 3')
    if not cfg.get('orot', 1): e(f's_mov_b32 s{sRot}, 0')
    e(f's_lshl_b32 s{sRot}, s{sRot}, 10')
    e(f's_mov_b32 s{sRotO}, s{sRot}')
    e(f's_movk_i32 s{sT1}, 1152')
    e(f'v_lshrrev_b32 v{vT}, 3, v{vL}')
    e(f'v_mul_lo_u32 v{vT}, v{vT}, s{sT1}')
    e(f'v_lshlrev_b32 v{vT+1}, 1, v{vG}')
    e(f'v_and_b32 v{vT+2}, 7, v{vL}')
    e(f'v_xor_b32 v{vT+1}, v{vT+1}, v{vT+2}')
    e(f'v_lshl_add_u32 v{vWd}, v{vT+1}, 4, v{vT}')
    for j in range(1, 4):
        e(f'v_add_u32 v{vWd+j}, {8192*j}, v{vWd}')
    e(f'v_lshlrev_b32 v{vOd}, 4, v{vL}')
    e(f's_mul_i32 s{sWl}, s{sWv}, {RW*4096}')
    e(f'v_bfe_u32 v{vT}, v{vL}, 2, 2')
    e(f'v_lshl_add_u32 v{vT}, v{vG}, 2, v{vT}')
    e(f'v_bfe_u32 v{vT+1}, v{vT}, 1, 2')
    e(f'v_lshlrev_b32 v{vT+1}, 1, v{vT+1}')
    e(f'v_bfe_u32 v{vT+2}, v{vL}, 1, 1')
    e(f'v_xor_b32 v{vT+1}, v{vT+1}, v{vT+2}')
    e(f'v_and_b32 v{vT+2}, 1, v{vL}')
    e(f'v_lshlrev_b32 v{vT+2}, 3, v{vT+2}')
    e(f'v_lshl_add_u32 v{vT+2}, v{vT}, 7, v{vT+2}')
    e(f'v_add_u32 v{vT+2}, s{sWl}, v{vT+2}')
    for nt in range(NT):
        e(f'v_xor_b32 v{vT}, {2*nt}, v{vT+1}')
        e(f'v_lshl_add_u32 v{vWr+nt}, v{vT}, 4, v{vT+2}')
    e(f's_cmp_eq_u32 s{sBr}, 0')
    e(f's_cselect_b32 s40, s48, s42')
    e(f's_cselect_b32 s41, s49, s43')
    srd(e, sW, 40, 41, WO_BYTES)
    srd(e, sOut, 44, 45, OUT_BYTES)
    e(f's_mul_i32 s{sWoff}, s{sWv}, {32*32*1152}')
    e(f's_lshl_b32 s{sT0}, s{sN0}, 1')
    e(f's_add_u32 s{sWoff}, s{sWoff}, s{sT0}')
    e(f's_mul_i32 s{sOoff}, s{sBr}, {O_BR}')
    e(f's_lshl_b32 s{sT0}, s{sMt}, 17')
    e(f's_add_u32 s{sOoff}, s{sOoff}, s{sT0}')
    e(f's_lshl_b32 s{sT0}, s{sWv}, 15')
    e(f's_add_u32 s{sOoff}, s{sOoff}, s{sT0}')
    for mi in range(MT):
        e(f's_add_u32 s{sOm+mi}, s{sOoff}, {mi*131072}')

    def w_groups(slot, tag):
        G = [[(f's_add_u32 m0, s{sWl}, {slot*4096}', None),
              (f's_mul_i32 s{sWo}, s{sRot}, 36', None),
              (f's_add_u32 s{sWo}, s{sWo}, s{sWoff}', None),
              (f's_add_u32 s{sRot}, s{sRot}, 1024', None),
              (f's_and_b32 s{sRot}, s{sRot}, 0x7fff', None)]]
        for j in range(4):
            G.append([(f'buffer_load_dwordx4 v{vWd+j}, s[{sW}:{sW+3}], s{sWo} offen offset:{1024*j}{wfl} lds', tag)])
        return G
    def o_groups(slot, tag):
        g = [(f's_add_u32 s{sOo+mi}, s{sOm+mi}, s{sRotO}', None) for mi in range(MT)]
        g += [(f's_add_u32 s{sRotO}, s{sRotO}, 1024', None), (f's_and_b32 s{sRotO}, s{sRotO}, 0x7fff', None)]
        G = [g]
        for mi in range(MT):
            r = vOF + slot*12 + mi*4
            G.append([(f'buffer_load_dwordx4 {vr(r,4)}, v{vOd}, s[{sO}:{sO+3}], s{sOo+mi} offen{ofl}', tag)])
        return G

    for t in range(RW): emit_groups(e, w_groups(t, ('w', t)))
    gen.stamp(6)
    e(f's_cmp_lg_u32 s{sWv}, 0')
    e(f's_cbranch_scc1 L_{n}_nopoll')
    e(f's_mul_i32 s{sT0}, s{sMg}, 48')
    e(f's_add_u32 s{sT1}, s{sT0}, 47')
    e(f's_mul_i32 s{sT0}, s{sT0}, 0x334')
    e(f's_lshr_b32 s{sT0}, s{sT0}, 16')
    e(f's_mul_i32 s{sT1}, s{sT1}, 0x334')
    e(f's_lshr_b32 s{sT1}, s{sT1}, 16')
    e(f's_min_u32 s{sT1}, s{sT1}, 7')
    e(f's_cmp_eq_u32 s{sBr}, 0')
    e(f's_cbranch_scc1 L_{n}_pa')
    e(f's_and_b32 s{sT0}, s{sT0}, 3')
    e(f's_add_u32 s{sT0}, s{sT0}, 8')
    e(f's_and_b32 s{sT1}, s{sT1}, 3')
    e(f's_add_u32 s{sT1}, s{sT1}, 8')
    e.label(f'L_{n}_pa')
    e(f's_lshl_b32 s{sT2}, s{sBr}, 4')
    e(f's_add_u32 s{sT2}, s{sT2}, 16')
    e(f's_lshl_b32 s{sT0}, s{sT0}, 2')
    e(f's_lshl_b32 s{sT1}, s{sT1}, 2')
    e(f'v_mov_b32 v{vT}, s{sT0}')
    e(f'v_mov_b32 v{vT+1}, s{sT1}')
    e(f's_mov_b32 s{sLoop}, 0')
    e.label(f'L_{n}_poll')
    e(f'buffer_load_dword v{vT+2}, v{vT}, s[{sD}:{sD+3}], 0 offen sc1')
    e(f'buffer_load_dword v{vT+3}, v{vT+1}, s[{sD}:{sD+3}], 0 offen sc1')
    e('s_waitcnt vmcnt(0)')
    e(f'v_min_u32 v{vT+2}, v{vT+2}, v{vT+3}')
    e(f'v_readfirstlane_b32 s{sT0}, v{vT+2}')
    e(f's_cmp_ge_u32 s{sT0}, s{sT2}')
    e(f's_cbranch_scc1 L_{n}_nopoll')
    e(f's_add_u32 s{sLoop}, s{sLoop}, 1')
    e(f's_cmp_lt_u32 s{sLoop}, 0x20000')
    e(f's_cbranch_scc0 L_{n}_nopoll')
    e('s_sleep 2')
    e(f's_branch L_{n}_poll')
    e.label(f'L_{n}_nopoll')
    e.vmq = [('w', t) for t in range(RW) for _ in range(4)]
    e('s_barrier')
    gen.stamp(7)
    for t in range(RO): emit_groups(e, o_groups(t, ('o', t)))

    def step(t, first, nxt_w, nxt_o):
        ws, os_ = t % RW, t % RO
        e.wait_vm([('w', t), ('o', t)])
        for nt in range(NT):
            for sec in range(2):
                e(f'ds_read_b64_tr_b16 {vr(vWF + nt*4 + 2*sec, 2)}, v{vWr+nt} offset:{ws*4096 + sec*2048}', ('wf', nt))
        mf = []
        for nt in range(NT):
            for mi in range(MT):
                acc = vr(vAcc + (nt*MT + mi)*4, 4)
                mf.append(f'{MFMA} {acc}, {vr(vWF + nt*4, 4)}, {vr(vOF + os_*12 + mi*4, 4)}, {"0" if first else acc}')
        Gw = w_groups(ws, ('w', t + RW)) if nxt_w else []
        Go = o_groups(os_, ('o', t + RO)) if nxt_o else []
        e.wait_lg()
        interleave(e, mf, Gw + Go[:1], start=1, end=11)
        emit_groups(e, Go[1:])

    for t in range(RW): step(t, t == 0, True, True)
    nmid = (32 - 2*RW) // RW
    if nmid > 0:
        q0 = [(k, i - RW) for (k, i) in e.vmq]
        e(f's_mov_b32 s{sLoop}, {nmid}')
        e.label(f'L_{n}_oloop')
        for t in range(RW, 2*RW): step(t, False, True, True)
        q1 = [(k, i - 2*RW) for (k, i) in e.vmq]
        assert q0 == q1, (q0, q1)
        e(f's_sub_u32 s{sLoop}, s{sLoop}, 1')
        e(f's_cmp_lg_u32 s{sLoop}, 0')
        e(f's_cbranch_scc1 L_{n}_oloop')
    base = 2*RW if nmid > 0 else RW
    for t in range(base, base + RW): step(t, False, False, t + RO < base + RW)
    gen.stamp(8)
    e('s_barrier')
    e(f's_mul_i32 s{sT0}, s{sWv}, 12288')
    e(f'v_add_u32 v{vT}, s{sT0}, v{vOd}')
    for t in range(NT*MT):
        e(f'ds_write_b128 v{vT}, {vr(vAcc + t*4, 4)} offset:{RED + t*1024}', 'rw')
    e.wait_lg()
    e('s_barrier')
    e(f's_mul_i32 s{sT0}, s{sWv}, {MT*1024}')
    e(f'v_add_u32 v{vT}, s{sT0}, v{vOd}')
    R = vOF
    for mi in range(MT):
        for v in range(4):
            e(f'ds_read_b128 {vr(R + (mi*4 + v)*4, 4)}, v{vT} offset:{RED + v*12288 + mi*1024}', ('r', mi))
    e(f's_lshl_b32 s{sT0}, s{sMt}, 4')
    e(f'v_add_u32 v{vT+1}, s{sT0}, v{vN}')
    e(f's_movk_i32 s{sT1}, 2304')
    e(f'v_mul_lo_u32 v{vT+1}, v{vT+1}, s{sT1}')
    e(f'v_lshl_add_u32 v{vT+1}, v{vG}, 3, v{vT+1}')
    e(f's_mul_i32 s{sT0}, s{sBr}, 1152')
    e(f's_lshl_b32 s{sT1}, s{sN0}, 1')
    e(f's_add_u32 s{sT0}, s{sT0}, s{sT1}')
    e(f's_lshl_b32 s{sT1}, s{sWv}, 5')
    e(f's_add_u32 s{sT0}, s{sT0}, s{sT1}')
    for mi in range(MT):
        e.wait_lg(('r', mi))
        b = R + mi*16
        e(f'v_pk_add_f32 {vr(b,2)}, {vr(b,2)}, {vr(b+4,2)}')
        e(f'v_pk_add_f32 {vr(b+2,2)}, {vr(b+2,2)}, {vr(b+6,2)}')
        e(f'v_pk_add_f32 {vr(b+8,2)}, {vr(b+8,2)}, {vr(b+12,2)}')
        e(f'v_pk_add_f32 {vr(b+10,2)}, {vr(b+10,2)}, {vr(b+14,2)}')
        e(f'v_pk_add_f32 {vr(b,2)}, {vr(b,2)}, {vr(b+8,2)}')
        e(f'v_pk_add_f32 {vr(b+2,2)}, {vr(b+2,2)}, {vr(b+10,2)}')
        e(f'v_cvt_pk_bf16_f32 v{b}, v{b}, v{b+1}')
        e(f'v_cvt_pk_bf16_f32 v{b+1}, v{b+2}, v{b+3}')
        e(f'buffer_store_dwordx2 {vr(b,2)}, v{vT+1}, s[{sOut}:{sOut+3}], s{sT0} offen{sfl}', 'st')
        if mi < MT - 1:
            e(f's_add_u32 s{sT0}, s{sT0}, {16*2304}')
    if cfg.get('stamps'): e.wait_vm_all()
```

```python
import sys, json, os
sys.path.insert(0, os.path.dirname(os.path.abspath(__file__)))
from asmgen import *
from attn import AttnGen
from oproj import OprojGen

REF = 'concat_heads__gqa_block_cached__mha_block_cached__near_ridge.s.ref'
def header():
    L = []
    for line in open(REF):
        if line.startswith(';') and '@launch' not in line and 'Override launch' not in line and 'grid=ceil' not in line:
            L.append(line.rstrip())
        elif not line.startswith(';'):
            break
    return L

def build(cfg):
    L = header()
    fused = cfg.get('fused')
    KN = 'concat_heads__gqa_block_cached__mha_block_cached__near_ridge_kernel'
    if fused:
        cfg = dict(cfg, name=KN)
        L.append('; @launch grid=(256,1,1) block=(256,1,1) lds=163840')
    else:
        L.append('; @launch kernel=attn_kernel grid=(256,1,1) block=(256,1,1) lds=163840')
        L.append('; @launch kernel=oproj_kernel grid=(256,1,1) block=(256,1,1) lds=114688')
    L.append('.amdgcn_target "amdgcn-amd-amdhsa--gfx950"')
    L.append('.text')
    kds = []
    for G in ((AttnGen,) if fused else (AttnGen, OprojGen)):
        e = Emitter()
        kds.append(G(e, cfg).build())
        e.fix_hazards()
        L.append(e.text())
    L.append('.section .rodata,"a"')
    for kd in kds:
        L.append('.p2align 6')
        L.append(kd.strip())
    return '\n'.join(L) + '\n'

if __name__ == '__main__':
    out = sys.argv[1]
    cfg = json.loads(sys.argv[2]) if len(sys.argv) > 2 else {}
    open(out, 'w').write(build(cfg))
```

```python
from asmgen import *

X_BYTES = 8 * 80 * 1152
W_BYTES = 576 * 8192
KA_BYTES = 8 * 16 * 1024 * 256
KB_BYTES = 8 * 32 * 1024 * 256
O_BR = 40 * 128 * 1024
O_BYTES = 2 * O_BR

QBUF0, QBUFSZ = 34816, 43008
KS, VS = 0, 65536
QIMG = 122880
STATS = 131072
OX = 0

sX, sW, sK, sV, sO = 4, 8, 12, 16, 20
sWv, sJ, sKH, sBr, sC, sT = 24, 25, 26, 27, 28, 29
sKoff, sVoff, sKl, sVl = 30, 31, 32, 33
sXoff, sWoff, sOoff = 34, 35, 36
sT0, sT1, sT2 = 37, 38, 39
sP = 40
sLoop = 60
sXl, sWl = 61, 62
sKt, sVt = 96, 97
sB, sH = 63, 64
sCc, sXc, sWc, sX3c = 67, 68, 69, 3
vL, vN, vG = 1, 2, 3
vKd, vVd = 4, 8
vKr, vVr = 10, 14
vNM = 24
vXr, vWr = 36, 38
vT = 44
vXd, vWd = 56, 60
vS = 56
vO = 96
aQ = 0
aK = 80
aV = 112
aL = 144
aOne = 164
aXF = [168, 204]
aWF = [188, 224]

def Sreg(rt, kt): return vS + rt * 8 + kt * 4
def Oreg(ts, rt): return vO + (ts * 5 + rt) * 4
def Qacc(tt, rt): return vO + (tt * 5 + rt) * 4
def Qf(rt, s): return aQ + (rt * 4 + s) * 4
def Kf(kt, s): return aK + (kt * 4 + s) * 4
def Vf(ts): return aV + ts * 4
def NM(rt): return vNM + rt * 4
def Lf(rt): return aL + rt * 4

MFMA = 'v_mfma_f32_16x16x32_bf16'

def srd(e, s, lo, hi, nbytes):
    e(f's_mov_b32 s{s}, s{lo}')
    e(f's_mov_b32 s{s+1}, s{hi}')
    e(f's_mov_b32 s{s+2}, {nbytes}')
    e(f's_mov_b32 s{s+3}, 0x00020000')

def interleave(e, prim, groups, start=0, every=None, end=None):
    n = len(prim); g = len(groups)
    end = n if end is None else end
    pos = {}
    if g:
        span = max(end - start, 1)
        for k in range(g):
            p = start + (k * span) // g if every is None else start + k * every
            pos.setdefault(min(p, n - 1), []).append(groups[k])
    for i, t in enumerate(prim):
        e(t)
        for grp in pos.get(i, []):
            for (tt, tag) in grp: e(tt, tag)
    if n == 0:
        for grp in groups:
            for (tt, tag) in grp: e(tt, tag)

def emit_groups(e, groups):
    for grp in groups:
        for (tt, tag) in grp: e(tt, tag)

class AttnGen:
    def __init__(self, e, cfg):
        self.e = e
        self.cfg = cfg
        self.kvfl = cfg.get('kv_flags', ' nt')
        self.xfl = cfg.get('x_flags', '')
        self.wfl = cfg.get('w_flags', ' nt')
        self.ofl = cfg.get('o_flags', ' sc1' if cfg.get('fused') else '')
        self.name = cfg.get('name', 'attn_kernel')
        self.rare = []
        self.nrare = 0

    def stamp(self, i, mode=1):
        if self.cfg.get('stamps') == mode:
            self.e(f's_memrealtime s[{70+2*i}:{71+2*i}]')
    def cstamp(self, i, mode=3):
        if self.cfg.get('stamps') == mode:
            self.e(f's_memtime s[{70+2*i}:{71+2*i}]')
    def write_stamps(self, n, kernel_idx=0):
        if not self.cfg.get('stamps'): return
        e = self.e
        e('s_waitcnt lgkmcnt(0)')
        e(f's_lshl_b32 s{sT0}, s2, 2')
        e(f's_add_u32 s{sT0}, s{sT0}, s{sWv}')
        e(f's_lshl_b32 s{sT0}, s{sT0}, 7')
        e(f's_add_u32 s{sT0}, s{sT0}, {0x1000000 + kernel_idx*0x100000}')
        e(f's_mov_b32 s{sO+2}, 0x2000000')
        e(f'v_mov_b32 v{vT}, 0')
        for i in range(n):
            e(f'v_mov_b32 v{vT+2}, s{70+2*i}')
            e(f'v_mov_b32 v{vT+3}, s{71+2*i}')
            e(f'buffer_store_dwordx2 {vr(vT+2,2)}, v{vT}, s[{sO}:{sO+3}], s{sT0} offen offset:{8*i}')
            e('s_waitcnt vmcnt(0)')
        e.vmq = []
    def prologue(self):
        e = self.e
        e(f's_cmp_ge_u32 s2, 256')
        e(f's_cbranch_scc1 L_{self.name}_end')
        e(f's_load_dwordx16 s[40:55], s[0:1], 0')
        e(f's_load_dwordx2 s[56:57], s[0:1], 64')
        e(f's_load_dwordx2 s[58:59], s[0:1], 96')
        t0, t1, t2, t3 = vT, vT + 1, vT + 2, vT + 3
        e(f'v_lshrrev_b32 v{t0}, 6, v0')
        e(f'v_and_b32 v{vL}, 63, v0')
        e(f'v_readfirstlane_b32 s{sWv}, v{t0}')
        e(f'v_and_b32 v{vN}, 15, v{vL}')
        e(f'v_lshrrev_b32 v{vG}, 4, v{vL}')
        e(f's_lshr_b32 s{sJ}, s{sWv}, 1')
        e(f's_and_b32 s{sKH}, s{sWv}, 1')
        e(f's_and_b32 s{sT0}, s2, 7')
        e(f's_lshr_b32 s{sT1}, s2, 3')
        e(f's_lshr_b32 s{sBr}, s{sT1}, 4')
        e(f's_and_b32 s{sT1}, s{sT1}, 15')
        e(f's_mov_b32 s{sC}, 0x3e029407')
        import struct, math
        c = (128 ** -0.5) * math.log2(math.e)
        bits = struct.unpack('<I', struct.pack('<f', c))[0]
        e.ins[-1] = Inst(f's_mov_b32 s{sC}, {bits:#010x}')
        e(f's_mov_b32 s{sT}, 0x41000000')
        for j in range(4):
            e(f'v_add_u32 v{t0}, {4*j}, v{vG}')
            e(f'v_xor_b32 v{t0}, v{t0}, v{vN}')
            e(f'v_lshlrev_b32 v{t0}, 4, v{t0}')
            e(f'v_lshl_add_u32 v{vKd+j}, v{vG}, 8, v{t0}')
        for p in range(2):
            e(f'v_add_u32 v{t0}, {4*p}, v{vG}')
            e(f'v_lshlrev_b32 v{t0}, 1, v{t0}')
            e(f'v_xor_b32 v{t0}, v{t0}, v{vN}')
            e(f'v_lshlrev_b32 v{t0}, 4, v{t0}')
            e(f'v_lshl_add_u32 v{vVd+p}, v{vG}, 8, v{t0}')
        for i in range(4):
            q = i >> 1
            e(f'v_or_b32 v{t0}, {q << 2}, v{vG}')
            e(f'v_lshlrev_b32 v{t0}, 1, v{t0}')
            e(f'v_xor_b32 v{t0}, v{t0}, v{vN}')
            e(f'v_lshlrev_b32 v{t0}, 4, v{t0}')
            e(f'v_lshl_add_u32 v{vWd+i}, v{vG}, 13, v{t0}')
            if i: e(f'v_add_u32 v{vWd+i}, {(32768-1024)*i}, v{vWd+i}')
        e(f'v_lshrrev_b32 v{t1}, 3, v{vL}')
        e(f's_movk_i32 s{sT2}, 1152')
        e(f'v_mul_lo_u32 v{t1}, v{t1}, s{sT2}')
        e(f'v_and_b32 v{t2}, 7, v{vL}')
        for i in range(4):
            e(f's_add_u32 s{sT2}, s{sKH}, {i}')
            e(f's_and_b32 s{sT2}, s{sT2}, 1')
            e(f's_lshl_b32 s{sT2}, s{sT2}, 2')
            e(f'v_add_u32 v{t0}, s{sT2}, v{vG}')
            e(f'v_and_b32 v{t0}, 7, v{t0}')
            e(f'v_xor_b32 v{t0}, v{t0}, v{t2}')
            e(f'v_lshl_add_u32 v{vXd+i}, v{t0}, 4, v{t1}')
            if i: e(f'v_add_u32 v{vXd+i}, {8192*i}, v{vXd+i}')
        e(f's_lshl_b32 s{sKl}, s{sWv}, 13')
        e(f's_add_u32 s{sVl}, s{sKl}, {VS}')
        for s in range(4):
            e(f'v_add_u32 v{t0}, {4*s}, v{vG}')
            e(f'v_xor_b32 v{t0}, v{t0}, v{vN}')
            e(f'v_lshlrev_b32 v{t0}, 4, v{t0}')
            e(f'v_lshl_add_u32 v{t0}, v{vN}, 8, v{t0}')
            e(f'v_add_u32 v{vKr+s}, s{sKl}, v{t0}')
        e(f'v_bfe_u32 v{t1}, v{vL}, 2, 2')
        e(f'v_lshl_add_u32 v{t1}, v{vG}, 2, v{t1}')
        e(f'v_and_b32 v{t2}, 7, v{t1}')
        e(f'v_lshlrev_b32 v{t2}, 1, v{t2}')
        e(f'v_bfe_u32 v{t3}, v{vL}, 1, 1')
        e(f'v_xor_b32 v{t2}, v{t2}, v{t3}')
        e(f'v_and_b32 v{t3}, 1, v{vL}')
        e(f'v_lshlrev_b32 v{t3}, 3, v{t3}')
        e(f'v_lshl_add_u32 v{t3}, v{t1}, 8, v{t3}')
        e(f'v_add_u32 v{t3}, s{sVl}, v{t3}')
        for ts in range(8):
            e(f's_lshl_b32 s{sT2}, s{sKH}, 2')
            e(f's_xor_b32 s{sT2}, s{sT2}, {ts}')
            e(f's_lshl_b32 s{sT2}, s{sT2}, 1')
            e(f'v_xor_b32 v{t0}, s{sT2}, v{t2}')
            e(f'v_lshl_add_u32 v{vVr+ts}, v{t0}, 4, v{t3}')
        e('s_waitcnt lgkmcnt(0)')

    def q_setup(self, br):
        e = self.e
        t0, t1, t2, t3 = vT, vT + 1, vT + 2, vT + 3
        rot = self.cfg.get('qrot', 1)
        if br == 'A':
            e(f's_lshr_b32 s{sCc}, s{sT1}, 1')
            e(f's_and_b32 s{sT2}, s{sT1}, 1')
            e(f's_lshl_b32 s{sT2}, s{sT2}, 2')
            e(f's_add_u32 s{sCc}, s{sCc}, s{sT2}')
            e(f's_sub_u32 s{sT2}, s{sCc}, 9')
            e(f's_cmp_ge_u32 s{sCc}, 9')
            e(f's_cselect_b32 s{sCc}, s{sT2}, s{sCc}')
        else:
            e(f's_lshr_b32 s{sCc}, s{sT1}, 2')
            e(f's_add_u32 s{sCc}, s{sCc}, s{sT1}')
            e(f's_and_b32 s{sCc}, s{sCc}, 3')
            e(f's_mul_i32 s{sCc}, s{sCc}, 5')
            e(f's_lshr_b32 s{sCc}, s{sCc}, 1')
        if not rot: e(f's_mov_b32 s{sCc}, 0')
        if br == 'A':
            e(f's_lshr_b32 s{sB}, s{sT1}, 1')
            e(f's_and_b32 s{sT1}, s{sT1}, 1')
            e(f's_lshl_b32 s{sT0}, s{sT0}, 1')
            e(f's_add_u32 s{sT0}, s{sT0}, s{sT1}')
            e(f's_lshl_b32 s{sH}, s{sT0}, 1')
            e(f's_add_u32 s{sH}, s{sH}, s{sJ}')
            e(f's_lshl_b32 s{sT1}, s{sB}, 4')
            e(f's_add_u32 s{sT1}, s{sT1}, s{sT0}')
            srd(e, sX, 40, 41, X_BYTES); srd(e, sK, 42, 43, KA_BYTES); srd(e, sV, 44, 45, KA_BYTES); srd(e, sW, 46, 47, W_BYTES)
        else:
            e(f's_lshr_b32 s{sB}, s{sT1}, 2')
            e(f's_lshl_b32 s{sT2}, s{sJ}, 2')
            e(f's_add_u32 s{sB}, s{sB}, s{sT2}')
            e(f's_and_b32 s{sT1}, s{sT1}, 3')
            e(f's_lshl_b32 s{sH}, s{sT0}, 2')
            e(f's_add_u32 s{sH}, s{sH}, s{sT1}')
            e(f's_lshl_b32 s{sT1}, s{sB}, 5')
            e(f's_add_u32 s{sT1}, s{sT1}, s{sH}')
            srd(e, sX, 50, 51, X_BYTES); srd(e, sK, 52, 53, KB_BYTES); srd(e, sV, 54, 55, KB_BYTES); srd(e, sW, 56, 57, W_BYTES)
        srd(e, sO, 58, 59, O_BYTES)
        if self.cfg.get('kvsame'): e(f's_and_b32 s{sT1}, s2, 7')
        e(f's_lshl_b32 s{sKoff}, s{sT1}, 18')
        e(f's_lshl_b32 s{sT2}, s{sKH}, 13')
        e(f's_add_u32 s{sKoff}, s{sKoff}, s{sT2}')
        e(f's_mov_b32 s{sVoff}, s{sKoff}')
        e(f's_mul_i32 s{sOoff}, s{sB}, {5*128*1024}')
        e(f's_lshl_b32 s{sT2}, s{sH}, 12')
        e(f's_add_u32 s{sOoff}, s{sOoff}, s{sT2}')
        e(f's_lshl_b32 s{sT2}, s{sKH}, 11')
        e(f's_add_u32 s{sOoff}, s{sOoff}, s{sT2}')
        if br == 'B':
            e(f's_add_u32 s{sOoff}, s{sOoff}, {O_BR}')
        if br == 'A':
            e(f's_mul_i32 s{sXoff}, s{sB}, 92160')
            e(f's_mul_i32 s{sT2}, s{sWv}, 9216')
            e(f's_add_u32 s{sXoff}, s{sXoff}, s{sT2}')
            e(f's_lshl_b32 s{sXl}, s{sWv}, 10')
            e(f's_mul_i32 s65, s{sB}, 92160')
            e(f's_add_u32 s{sT2}, s{sKH}, 8')
            e(f's_lshl_b32 s66, s{sT2}, 10')
            e(f's_mul_i32 s{sT2}, s{sT2}, 9216')
            e(f's_add_u32 s65, s65, s{sT2}')
            e(f's_lshl_b32 s{sWoff}, s{sH}, 8')
            e(f's_lshl_b32 s{sT2}, s{sKH}, 18')
            e(f's_add_u32 s{sWoff}, s{sWoff}, s{sT2}')
            e(f's_lshl_b32 s{sWl}, s{sJ}, 14')
            e(f's_lshl_b32 s{sT2}, s{sKH}, 13')
            e(f's_add_u32 s{sWl}, s{sWl}, s{sT2}')
            e(f's_add_u32 s{sWl}, s{sWl}, 10240')
            xoffj, woffj = (0, 0), (10240, 16384)
        else:
            e(f's_mul_i32 s{sXoff}, s{sB}, 92160')
            e(f's_mul_i32 s{sT2}, s{sKH}, {40*1152}')
            e(f's_add_u32 s{sXoff}, s{sXoff}, s{sT2}')
            e(f's_mul_i32 s{sXl}, s{sWv}, 5120')
            e(f's_lshl_b32 s{sWoff}, s{sH}, 8')
            e(f's_lshl_b32 s{sT2}, s{sWv}, 17')
            e(f's_add_u32 s{sWoff}, s{sWoff}, s{sT2}')
            e(f's_lshl_b32 s{sWl}, s{sWv}, 12')
            e(f's_add_u32 s{sWl}, s{sWl}, 20480')
            xoffj, woffj = (0, 10240), (20480, 0)
        e(f's_mul_i32 s{sT2}, s{sJ}, {xoffj[1]}')
        e(f's_add_u32 s{sT2}, s{sT2}, {QBUF0 + xoffj[0]}')
        e(f'v_lshrrev_b32 v{t1}, 1, v{vN}')
        for s2 in range(2):
            e(f'v_add_u32 v{t0}, {4*s2}, v{vG}')
            e(f'v_xor_b32 v{t0}, v{t0}, v{t1}')
            e(f'v_lshlrev_b32 v{t0}, 4, v{t0}')
            e(f'v_lshl_add_u32 v{t0}, v{vN}, 7, v{t0}')
            e(f'v_add_u32 v{vXr+s2}, s{sT2}, v{t0}')
        e(f's_mul_i32 s{sT2}, s{sJ}, {woffj[1]}')
        e(f's_add_u32 s{sT2}, s{sT2}, {QBUF0 + woffj[0]}')
        e(f'v_bfe_u32 v{t1}, v{vL}, 2, 2')
        e(f'v_and_b32 v{t2}, 1, v{vG}')
        e(f'v_lshl_or_b32 v{t2}, v{t2}, 2, v{t1}')
        e(f'v_lshlrev_b32 v{t2}, 1, v{t2}')
        e(f'v_bfe_u32 v{t3}, v{vL}, 1, 1')
        e(f'v_xor_b32 v{t2}, v{t2}, v{t3}')
        e(f'v_lshl_add_u32 v{t1}, v{vG}, 3, v{t1}')
        e(f'v_and_b32 v{t3}, 1, v{vL}')
        e(f'v_lshlrev_b32 v{t3}, 3, v{t3}')
        e(f'v_lshl_add_u32 v{t3}, v{t1}, 8, v{t3}')
        e(f'v_add_u32 v{t3}, s{sT2}, v{t3}')
        for tt in range(4):
            e(f's_lshl_b32 s{sT2}, s{sKH}, 2')
            e(f's_add_u32 s{sT2}, s{sT2}, {tt}')
            e(f's_lshl_b32 s{sT2}, s{sT2}, 1')
            e(f'v_xor_b32 v{t0}, s{sT2}, v{t2}')
            e(f'v_lshl_add_u32 v{vWr+tt}, v{t0}, 4, v{t3}')

    def q_dma(self, br, c):
        qb = QBUF0 + (c % 3) * QBUFSZ
        tag = ('Q', c)
        G = []
        g = [(f's_lshl_b32 s{sT2}, s{sCc}, 7', None), (f's_add_u32 s{sXc}, s{sXoff}, s{sT2}', None)]
        if br == 'A': g.append((f's_add_u32 s{sX3c}, s65, s{sT2}', None))
        if self.cfg.get('qsame'):
            g = [(f's_mov_b32 s{sXc}, 0', None), (f's_mov_b32 s{sX3c}, 0', None), (f's_mov_b32 s{sWc}, 0', None)]
        else:
          g += [(f's_lshl_b32 s{sT2}, s{sCc}, 19', None), (f's_add_u32 s{sWc}, s{sWoff}, s{sT2}', None),
              (f's_add_u32 s{sCc}, s{sCc}, 1', None), (f's_cmp_eq_u32 s{sCc}, 9', None), (f's_cselect_b32 s{sCc}, 0, s{sCc}', None)]
        G.append(g)
        def ld(voff, srdr, soff, off, fl, pre=()):
            G.append(list(pre) + [(f'buffer_load_dwordx4 v{voff}, s[{srdr}:{srdr+3}], s{soff} offen offset:{off}{fl} lds', tag)])
        m0 = lambda reg, imm: (f's_add_u32 m0, s{reg}, {qb + imm}', None)
        if br == 'A':
            ld(vXd, sX, sXc, 0, self.xfl, [m0(sXl, 0)])
            ld(vXd, sX, sT2, 0, self.xfl, [m0(sXl, 4096), (f's_add_u32 s{sT2}, s{sXc}, {4*9216}', None)])
            ld(vXd, sX, sX3c, 0, self.xfl, [m0(66, 0), ('s_nop 0', None)])
            for i in range(4):
                ld(vWd + i, sW, sWc, 1024*i, self.wfl, [m0(sWl, 0), ('s_nop 0', None)] if i == 0 else [])
            for i in range(4):
                ld(vWd + i, sW, sWc, 1024*i, self.wfl, [m0(sWl, 4096), (f's_add_u32 s{sWc}, s{sWc}, {4*32768}', None)] if i == 0 else [])
        else:
            for i in range(4):
                ld(vXd + i, sX, sXc, 1024*i, self.xfl, [m0(sXl, 0), ('s_nop 0', None)] if i == 0 else [])
            ld(vXd, sX, sXc, 0, self.xfl, [m0(sXl, 4096), (f's_add_u32 s{sXc}, s{sXc}, {4*9216}', None)])
            for i in range(4):
                ld(vWd + i, sW, sWc, 1024*i, self.wfl, [m0(sWl, 0), ('s_nop 0', None)] if i == 0 else [])
        return G

    def kv_dma(self, kind, par, tag):
        if kind == 'K': l, off, s, vo, tmp = sKl, sKoff, sK, [vKd, vKd + 1, vKd + 2, vKd + 3], sKt
        else: l, off, s, vo, tmp = sVl, sVoff, sV, [vVd, vVd + 1, vVd, vVd + 1], sVt
        G = []
        for half in range(2):
            for q in range(4):
                g = []
                if q == 0:
                    g.append((f's_add_u32 m0, s{l}, {par * 32768 + half * 4096}', None))
                    if half == 0: g.append((f's_add_u32 s{tmp}, s{off}, 4096', None))
                    else: g.append((f's_add_u32 s{off}, s{off}, 16384', None))
                so = off if half == 0 else tmp
                g.append((f'buffer_load_dwordx4 v{vo[q]}, s[{s}:{s+3}], s{so} offen offset:{q*1024}{self.kvfl} lds', tag))
                G.append(g)
        return G

    def q_reads(self, s2):
        G = []
        for tt in range(4):
            for sec in range(2):
                G.append([(f'ds_read_b64_tr_b16 {ar(aWF[s2] + 4*tt + 2*sec, 2)}, v{vWr+tt} offset:{s2*8192 + sec*1024}', ('q', s2))])
            if tt == 0:
                for rt in range(5):
                    G.append([(f'ds_read_b128 {ar(aXF[s2] + 4*rt, 4)}, v{vXr+s2} offset:{rt*2048}', ('q', s2))])
        return G

    def q_mfmas(self, s2, first):
        L = []
        for tt in range(4):
            for rt in range(5):
                acc = vr(Qacc(tt, rt), 4)
                cc = '0' if first else acc
                L.append(f'{MFMA} {acc}, {ar(aWF[s2] + 4*tt, 4)}, {ar(aXF[s2] + 4*rt, 4)}, {cc}')
        return L

    def q_phase(self, br):
        e = self.e
        self.q_setup(br)
        self.stamp(1, 2)
        emit_groups(e, self.q_dma(br, 0))
        emit_groups(e, self.q_dma(br, 1))
        for c in range(9):
            e.wait_vm(('Q', c))
            e.wait_lg()
            e('s_barrier')
            if c == 4: self.cstamp(0, 4)
            if c == 5: self.cstamp(3, 4)
            self.stamp(2 + c, 2)
            G = []
            if c + 2 <= 8: G += self.q_dma(br, c + 2)
            if c == 6: G += self.kv_dma('K', 0, ('K', 0))
            if c == 7: G += self.kv_dma('K', 1, ('K', 1))
            if c == 8: G += self.kv_dma('V', 0, ('V', 0))
            R0 = self.q_reads(0)
            h = (len(G) + 1) // 2
            if c > 0:
                mf = self.q_mfmas(1, False)
                interleave(e, mf[:13], R0, start=0, every=1)
                interleave(e, mf[13:], G[:h], start=0)
            else:
                emit_groups(e, R0); emit_groups(e, G[:h])
            if c == 4: self.cstamp(1, 4)
            e.wait_lg(('q', 0))
            adv = []
            if c < 8:
                d = QBUFSZ if (c % 3) != 2 else -2 * QBUFSZ
                for r in (vXr, vXr + 1, vWr, vWr + 1, vWr + 2, vWr + 3):
                    adv.append([((f'v_add_u32 v{r}, {d}, v{r}' if d > 0 else f'v_subrev_u32 v{r}, {-d}, v{r}'), None)])
            mf = self.q_mfmas(0, c == 0)
            interleave(e, mf[:13], self.q_reads(1), start=0, every=1)
            interleave(e, mf[13:], G[h:] + adv, start=0)
            if c == 4: self.cstamp(2, 4)
        e.wait_lg()
        for t in self.q_mfmas(1, False): e(t)

    def q_exchange(self):
        e = self.e
        t0, t1, t2, t3 = vT, vT + 1, vT + 2, vT + 3
        e('s_barrier')
        e(f's_mul_i32 s{sT2}, s{sJ}, 20480')
        e(f's_add_u32 s{sT2}, s{sT2}, {QIMG}')
        e(f'v_and_b32 v{t1}, 1, v{vG}')
        e(f'v_lshlrev_b32 v{t1}, 3, v{t1}')
        e(f'v_lshl_add_u32 v{t1}, v{vN}, 8, v{t1}')
        e(f'v_add_u32 v{t1}, s{sT2}, v{t1}')
        e(f'v_lshrrev_b32 v{t2}, 1, v{vG}')
        e(f'v_xor_b32 v{t2}, v{t2}, v{vN}')
        for tt in range(4):
            e(f's_lshl_b32 s{sT1}, s{sKH}, 2')
            e(f's_add_u32 s{sT1}, s{sT1}, {tt}')
            e(f's_lshl_b32 s{sT1}, s{sT1}, 1')
            e(f'v_xor_b32 v{t0}, s{sT1}, v{t2}')
            e(f'v_lshl_add_u32 v{vT+4+tt}, v{t0}, 4, v{t1}')
        for tt in range(4):
            for rt in range(5):
                b = Qacc(tt, rt)
                for k in range(4): e(f'v_mul_f32 v{b+k}, s{sC}, v{b+k}')
                e(f'v_cvt_pk_bf16_f32 v{b}, v{b}, v{b+1}')
                e(f'v_cvt_pk_bf16_f32 v{b+1}, v{b+2}, v{b+3}')
                e(f'ds_write_b64 v{vT+4+tt}, {vr(b, 2)} offset:{rt*4096}', 'qw')
        e.wait_lg()
        e('s_barrier')
        e(f's_sub_u32 s{sT2}, s{sT2}, s{sKl}')
        for s in range(4):
            e(f'v_add_u32 v{vT+4+s}, s{sT2}, v{vKr+s}')
        for rt in range(5):
            for s in range(4):
                e(f'ds_read_b128 {ar(Qf(rt, s), 4)}, v{vT+4+s} offset:{rt*4096}', 'qr')
        e(f'v_mov_b32 v{vT}, 0x3f803f80')
        for k in range(4): e(f'v_accvgpr_write_b32 a{aOne+k}, v{vT}')
        e.wait_lg()
        e('s_barrier')
        emit_groups(e, self.kv_dma('V', 1, ('V', 1)))

    def rowmax_xlane(self, r, rt):
        mx, t = vT + rt, vT + 5
        r(f'v_mov_b32 v{t}, v{mx}')
        r(f'v_permlane16_swap_b32 v{mx}, v{t}')
        r(f'v_max_f32 v{mx}, v{mx}, v{t}')
        r(f'v_mov_b32 v{t}, v{mx}')
        r(f'v_permlane32_swap_b32 v{mx}, v{t}')
        r(f'v_max_f32 v{mx}, v{mx}, v{t}')

    def rare_block(self, lab, back):
        r = Emitter()
        r.label(lab)
        r('s_nop 7')
        f = vT + 6
        for rt in range(5):
            mx = vT + rt
            self.rowmax_xlane(r, rt)
            r(f'v_max_f32 v{mx}, 0, v{mx}')
            r(f'v_sub_f32 v{f}, 0, v{mx}')
            r(f'v_exp_f32 v{f}, v{f}')
            for k in range(4): r(f'v_sub_f32 v{NM(rt)+k}, v{NM(rt)+k}, v{mx}')
            for k in range(8): r(f'v_sub_f32 v{Sreg(rt,0)+k}, v{Sreg(rt,0)+k}, v{mx}')
            for k in range(4):
                r(f'v_accvgpr_read_b32 v{vT+8}, a{Lf(rt)+k}')
                r(f'v_mul_f32 v{vT+8}, v{vT+8}, v{f}')
                r(f'v_accvgpr_write_b32 a{Lf(rt)+k}, v{vT+8}')
            for ts in range(8):
                b = Oreg(ts, rt)
                r(f'v_pk_mul_f32 {vr(b,2)}, {vr(b,2)}, {vr(f,2)} op_sel_hi:[1,0]')
                r(f'v_pk_mul_f32 {vr(b+2,2)}, {vr(b+2,2)}, {vr(f,2)} op_sel_hi:[1,0]')
        r('s_nop 7')
        r(f's_branch {back}')
        r.fix_hazards()
        self.rare.append(r)

    def k_reads(self, it, par):
        e = self.e
        e.wait_vm(('K', it))
        for s in range(4):
            for kt in range(2):
                e(f'ds_read_b128 {ar(Kf(kt, s), 4)}, v{vKr+s} offset:{par*32768 + kt*4096}', 'k')

    def iteration(self, it, par, issue_next, next_k=True, first=False):
        e = self.e
        mx = [vT + i for i in range(5)]
        def maxops(rt):
            b = Sreg(rt, 0)
            return [[(f'v_max3_f32 v{mx[rt]}, v{b}, v{b+1}, v{b+2}', None)],
                    [(f'v_max3_f32 v{mx[rt]}, v{mx[rt]}, v{b+3}, v{b+4}', None)],
                    [(f'v_max3_f32 v{mx[rt]}, v{mx[rt]}, v{b+5}, v{b+6}', None)],
                    [(f'v_max_f32 v{mx[rt]}, v{mx[rt]}, v{b+7}', None)]]
        def softmax(rt):
            b = Sreg(rt, 0)
            L = []
            for k in range(4):
                L.append(f'v_exp_f32 v{b+2*k}, v{b+2*k}')
                L.append(f'v_exp_f32 v{b+2*k+1}, v{b+2*k+1}')
            for k in range(4): L.append(f'v_cvt_pk_bf16_f32 v{b+k}, v{b+2*k}, v{b+2*k+1}')
            return [[(t, None)] for t in L]
        def vreads():
            return [[(f'ds_read_b64_tr_b16 {ar(Vf(ts) + 2*sec, 2)}, v{vVr+ts} offset:{par*32768 + sec*4096}', 'v')] for ts in range(8) for sec in range(2)]
        e.wait_lg()
        G = self.kv_dma('K', par, ('K', it + 2)) if issue_next else []
        for rt in range(5):
            mf = []
            for s in range(4):
                for kt in range(2):
                    acc = vr(Sreg(rt, kt), 4)
                    cc = acc if s else ('0' if first else vr(NM(rt), 4))
                    mf.append(f'{MFMA} {acc}, {ar(Kf(kt, s), 4)}, {ar(Qf(rt, s), 4)}, {cc}')
            extra = []
            if rt < 4 and G: extra += G[2*rt:2*rt+2]
            if rt >= 2: extra += maxops(rt - 2)
            if rt == 4:
                e.wait_vm(('V', it))
                R = vreads()
                extra = extra[:2] + R[:4] + extra[2:] + R[4:8]
                interleave(e, mf, extra, start=0)
                emit_groups(e, R[8:])
            else:
                interleave(e, mf, extra, start=1)
        emit_groups(e, maxops(3))
        emit_groups(e, maxops(4))
        if first:
            for rt in range(5):
                self.rowmax_xlane(e, rt)
                for k in range(4): e(f'v_sub_f32 v{NM(rt)+k}, 0, v{mx[rt]}')
                for k in range(8): e(f'v_sub_f32 v{Sreg(rt,0)+k}, v{Sreg(rt,0)+k}, v{mx[rt]}')
        else:
            t = vT + 5
            e(f'v_max3_f32 v{t}, v{mx[0]}, v{mx[1]}, v{mx[2]}')
            e(f'v_max3_f32 v{t}, v{t}, v{mx[3]}, v{mx[4]}')
            e(f'v_cmp_lt_f32 vcc, s{sT}, v{t}')
            self.nrare += 1
            lab, back = f'L_{self.name}_rare{self.nrare}', f'L_{self.name}_back{self.nrare}'
            e(f's_cbranch_vccnz {lab}')
            e.label(back)
            self.rare_block(lab, back)
        emit_groups(e, softmax(0))
        e.wait_lg()
        G = self.kv_dma('V', par, ('V', it + 2)) if issue_next else []
        for rt in range(5):
            mf = []
            P = vr(Sreg(rt, 0), 4)
            for ts in range(8):
                acc = vr(Oreg(ts, rt), 4)
                mf.append(f'{MFMA} {acc}, {ar(Vf(ts), 4)}, {P}, {"0" if first else acc}')
            la = ar(Lf(rt), 4)
            mf.append(f'{MFMA} {la}, {ar(aOne, 4)}, {P}, {"0" if first else la}')
            if rt < 4:
                sm = softmax(rt + 1)
                gg = G[2*rt:2*rt+2] if G else []
                extra = sm[:4] + gg[:1] + sm[4:8] + gg[1:] + sm[8:]
                interleave(e, mf, extra, start=0)
            else:
                if next_k: self.k_reads(it + 1, par ^ 1)
                for t in mf: e(t)

    def main_loop(self):
        e = self.e
        self.k_reads(0, 0)
        self.iteration(0, 0, True, first=True)
        self.iteration(1, 1, True)
        self.stamp(3)
        q0 = [(k, i - 2) for (k, i) in e.vmq]
        l0 = list(e.lgq)
        e(f's_mov_b32 s{sLoop}, 6')
        e.label(f'L_{self.name}_loop')
        self.iteration(2, 0, True)
        self.iteration(3, 1, True)
        q1 = [(k, i - 4) for (k, i) in e.vmq]
        assert q0 == q1, (q0, q1)
        assert l0 == e.lgq
        e(f's_sub_u32 s{sLoop}, s{sLoop}, 1')
        e(f's_cmp_lg_u32 s{sLoop}, 0')
        e(f's_cbranch_scc1 L_{self.name}_loop')
        self.iteration(4, 0, False)
        self.iteration(5, 1, False, next_k=False)

    def epilogue(self):
        e = self.e
        t0, t1 = vT, vT + 1
        vMx, vLx = vS + 30, vS + 35
        for rt in range(5):
            e(f'v_sub_f32 v{vMx+rt}, 0, v{NM(rt)}')
            e(f'v_accvgpr_read_b32 v{vLx+rt}, a{Lf(rt)}')
        aw, ap = vT + 2, vT + 3
        e(f's_mul_i32 s{sT0}, s{sWv}, 640')
        e(f's_add_u32 s{sT0}, s{sT0}, {STATS}')
        e(f'v_lshlrev_b32 v{t0}, 3, v{vN}')
        e(f'v_add_u32 v{aw}, s{sT0}, v{t0}')
        e(f's_xor_b32 s{sT1}, s{sWv}, 1')
        e(f's_mul_i32 s{sT1}, s{sT1}, 640')
        e(f's_add_u32 s{sT1}, s{sT1}, {STATS}')
        e(f'v_add_u32 v{ap}, s{sT1}, v{t0}')
        for rt in range(5):
            e(f'ds_write2_b32 v{aw}, v{vMx+rt}, v{vLx+rt} offset0:{rt*32} offset1:{rt*32+1}', 'sw')
        e.wait_lg()
        e('s_barrier')
        for rt in range(5):
            e(f'ds_read_b64 {vr(vS + 2*rt, 2)}, v{ap} offset:{rt*128}', 'sr')
        e.wait_lg()
        G = vS + 16
        for rt in range(5):
            mp, lp = vS + 2*rt, vS + 2*rt + 1
            M = vT + 4; fo = vT + 5; fp = vT + 6
            e(f'v_max_f32 v{M}, v{vMx+rt}, v{mp}')
            e(f'v_sub_f32 v{fo}, v{vMx+rt}, v{M}')
            e(f'v_sub_f32 v{fp}, v{mp}, v{M}')
            e(f'v_exp_f32 v{fo}, v{fo}')
            e(f'v_exp_f32 v{fp}, v{fp}')
            e(f'v_mul_f32 v{lp}, v{lp}, v{fp}')
            e(f'v_fma_f32 v{lp}, v{vLx+rt}, v{fo}, v{lp}')
            e(f'v_rcp_f32 v{lp}, v{lp}')
            e(f'v_mul_f32 v{G + 2*rt}, v{fo}, v{lp}')
        xa = vT + 4
        e(f's_mul_i32 s{sT0}, s{sWv}, 20480')
        e(f's_add_u32 s{sT0}, s{sT0}, {OX}')
        e(f'v_lshlrev_b32 v{t0}, 4, v{vL}')
        e(f'v_add_u32 v{xa}, s{sT0}, v{t0}')
        e(f's_xor_b32 s{sT1}, s{sWv}, 1')
        e(f's_mul_i32 s{sT1}, s{sT1}, 20480')
        e(f's_add_u32 s{sT1}, s{sT1}, {OX}')
        e(f'v_add_u32 v{xa+1}, s{sT1}, v{t0}')
        for ts in (4, 5, 6, 7):
            for rt in range(5):
                b = Oreg(ts, rt); g = G + 2*rt
                e(f'v_pk_mul_f32 {vr(b,2)}, {vr(b,2)}, {vr(g,2)} op_sel_hi:[1,0]')
                e(f'v_pk_mul_f32 {vr(b+2,2)}, {vr(b+2,2)}, {vr(g,2)} op_sel_hi:[1,0]')
                if ts >= 4:
                    e(f'ds_write_b128 v{xa}, {vr(b,4)} offset:{((ts-4)*5+rt)*1024}', 'ow')
        e.wait_lg()
        e('s_barrier')
        for ts in range(4):
            for rt in range(5):
                e(f'ds_read_b128 {vr(Oreg(ts+4, rt),4)}, v{xa+1} offset:{(ts*5+rt)*1024}', ('or', ts))
            if ts >= 1:
                self._epi_add(ts - 1)
        self._epi_add(3)
        so = vT + 6
        e(f'v_lshlrev_b32 v{so}, 4, v{vL}')
        for rt in range(5):
            for u in range(2):
                a, b = Oreg(2*u, rt), Oreg(2*u + 1, rt)
                e(f'v_cvt_pk_bf16_f32 v{a}, v{a}, v{a+1}')
                e(f'v_cvt_pk_bf16_f32 v{a+1}, v{a+2}, v{a+3}')
                e(f'v_cvt_pk_bf16_f32 v{a+2}, v{b}, v{b+1}')
                e(f'v_cvt_pk_bf16_f32 v{a+3}, v{b+2}, v{b+3}')
                e(f'buffer_store_dwordx4 {vr(a,4)}, v{so}, s[{sO}:{sO+3}], s{sOoff} offen offset:{u*1024}{self.ofl}', 'ost')
            if rt < 4:
                e(f's_add_u32 s{sOoff}, s{sOoff}, 131072')
        if self.cfg.get('stamps'): e.wait_vm_all()

    def _epi_add(self, ts):
        e = self.e
        e.wait_lg(('or', ts))
        for rt in range(5):
            a, b = Oreg(ts, rt), Oreg(ts + 4, rt)
            g = vS + 16 + 2*rt
            e(f'v_pk_fma_f32 {vr(a,2)}, {vr(a,2)}, {vr(g,2)}, {vr(b,2)} op_sel_hi:[1,0,1]')
            e(f'v_pk_fma_f32 {vr(a+2,2)}, {vr(a+2,2)}, {vr(g,2)}, {vr(b+2,2)} op_sel_hi:[1,0,1]')

    def build(self):
        e = self.e
        n = self.name
        e.raw(f'.globl {n}\n.p2align 8\n.type {n},@function')
        e.label(n)
        self.stamp(0); self.stamp(0, 2); self.stamp(0, 3); self.cstamp(4); self.stamp(0, 5); self.cstamp(1, 5)
        self.prologue()
        e(f's_cmp_eq_u32 s{sBr}, 0')
        e(f's_cbranch_scc0 L_{n}_qB')
        saved = (list(e.vmq), list(e.lgq))
        self.q_phase('A')
        endA = (list(e.vmq), list(e.lgq))
        e(f's_branch L_{n}_qx')
        e.label(f'L_{n}_qB')
        e.vmq, e.lgq = list(saved[0]), list(saved[1])
        self.q_phase('B')
        assert (e.vmq, e.lgq) == endA, (e.vmq, endA)
        e.label(f'L_{n}_qx')
        self.stamp(1); self.stamp(11, 2); self.stamp(1, 3); self.cstamp(5)
        self.q_exchange()
        self.stamp(2); self.stamp(12, 2); self.stamp(2, 3); self.cstamp(6); self.stamp(2, 5)
        self.main_loop()
        self.stamp(4); self.stamp(3, 3); self.cstamp(7); self.stamp(3, 5)
        self.epilogue()
        self.stamp(5)
        if self.cfg.get('fused'):
            from tail import fused_tail
            fused_tail(self)
            self.stamp(9)
            if self.cfg.get('stamps') == 5:
                self.stamp(4, 5); self.cstamp(5, 5)
                e('s_waitcnt lgkmcnt(0)')
                e(f's_cmp_lg_u32 s2, {self.cfg.get("dbgwg", 0)}')
                e(f's_cbranch_scc1 L_{n}_end')
                e(f's_cmp_lg_u32 s{sWv}, 0')
                e(f's_cbranch_scc1 L_{n}_end')
                e('s_sub_u32 s78, s78, s70')
                e('s_sub_u32 s80, s80, s72')
                e('s_sub_u32 s76, s76, s70')
                e('s_sub_u32 s74, s74, s70')
                e('v_mov_b32 v4, s78'); e('v_mov_b32 v5, s80'); e('v_mov_b32 v6, s76'); e('v_mov_b32 v7, s74')
                e('v_mov_b32 v8, 48')
                e('s_mov_b64 exec, 1')
                e('buffer_store_dwordx4 v[4:7], v8, s[16:19], 0 offen')
                e('s_waitcnt vmcnt(0)')
                e.vmq = []
            else:
                self.write_stamps(10 if self.cfg.get('stamps') == 1 else 13)
        else:
            self.write_stamps(6 if self.cfg.get('stamps') == 1 else 13)
        e.label(f'L_{n}_end')
        e('s_endpgm')
        for r in self.rare:
            e.ins.extend(r.ins)
        e('s_endpgm')
        kd = f'''
.amdhsa_kernel {n}
  .amdhsa_next_free_vgpr 512
  .amdhsa_next_free_sgpr 102
  .amdhsa_accum_offset 256
  .amdhsa_group_segment_fixed_size 0
  .amdhsa_kernarg_size 104
  .amdhsa_user_sgpr_count 2
  .amdhsa_user_sgpr_kernarg_segment_ptr 1
  .amdhsa_system_sgpr_workgroup_id_x 1
.end_amdhsa_kernel
'''
        return kd
```

```python
from asmgen import *

X_BYTES = 8 * 80 * 1152
W_BYTES = 576 * 8192
KA_BYTES = 8 * 16 * 1024 * 256
KB_BYTES = 8 * 32 * 1024 * 256
O_BR = 40 * 128 * 1024
O_BYTES = 2 * O_BR

QBUF0, QBUFSZ = 34816, 43008
KS, VS = 0, 65536
QIMG = 122880
STATS = 131072
OX = 0

sX, sW, sK, sV, sO = 4, 8, 12, 16, 20
sWv, sJ, sKH, sBr, sC, sT = 24, 25, 26, 27, 28, 29
sKoff, sVoff, sKl, sVl = 30, 31, 32, 33
sXoff, sWoff, sOoff = 34, 35, 36
sT0, sT1, sT2 = 37, 38, 39
sP = 40
sLoop = 60
sXl, sWl = 61, 62
sKt, sVt = 96, 97
sB, sH = 63, 64
sCc, sXc, sWc, sX3c = 67, 68, 69, 3
vL, vN, vG = 1, 2, 3
vKd, vVd = 4, 8
vKr, vVr = 10, 14
vNM = 24
vXr, vWr = 36, 38
vT = 44
vXd, vWd = 56, 60
vS = 56
vO = 96
aQ = 0
aK = 80
aV = 112
aL = 144
aOne = 164
aXF = [168, 204]
aWF = [188, 224]

def Sreg(rt, kt): return vS + rt * 8 + kt * 4
def Oreg(ts, rt): return vO + (ts * 5 + rt) * 4
def Qacc(tt, rt): return vO + (tt * 5 + rt) * 4
def Qf(rt, s): return aQ + (rt * 4 + s) * 4
def Kf(kt, s): return aK + (kt * 4 + s) * 4
def Vf(ts): return aV + ts * 4
def NM(rt): return vNM + rt * 4
def Lf(rt): return aL + rt * 4

MFMA = 'v_mfma_f32_16x16x32_bf16'

def srd(e, s, lo, hi, nbytes):
    e(f's_mov_b32 s{s}, s{lo}')
    e(f's_mov_b32 s{s+1}, s{hi}')
    e(f's_mov_b32 s{s+2}, {nbytes}')
    e(f's_mov_b32 s{s+3}, 0x00020000')

def interleave(e, prim, groups, start=0, every=None, end=None):
    n = len(prim); g = len(groups)
    end = n if end is None else end
    pos = {}
    if g:
        span = max(end - start, 1)
        for k in range(g):
            p = start + (k * span) // g if every is None else start + k * every
            pos.setdefault(min(p, n - 1), []).append(groups[k])
    for i, t in enumerate(prim):
        e(t)
        for grp in pos.get(i, []):
            for (tt, tag) in grp: e(tt, tag)
    if n == 0:
        for grp in groups:
            for (tt, tag) in grp: e(tt, tag)

def emit_groups(e, groups):
    for grp in groups:
        for (tt, tag) in grp: e(tt, tag)

class AttnGen:
    def __init__(self, e, cfg):
        self.e = e
        self.cfg = cfg
        self.kvfl = cfg.get('kv_flags', ' nt')
        self.xfl = cfg.get('x_flags', '')
        self.wfl = cfg.get('w_flags', ' nt')
        self.ofl = cfg.get('o_flags', ' sc1' if cfg.get('fused') else '')
        self.name = cfg.get('name', 'attn_kernel')
        self.rare = []
        self.nrare = 0

    def stamp(self, i, mode=1):
        if self.cfg.get('stamps') == mode:
            self.e(f's_memrealtime s[{70+2*i}:{71+2*i}]')
    def cstamp(self, i, mode=3):
        if self.cfg.get('stamps') == mode:
            self.e(f's_memtime s[{70+2*i}:{71+2*i}]')
    def write_stamps(self, n, kernel_idx=0):
        if not self.cfg.get('stamps'): return
        e = self.e
        e('s_waitcnt lgkmcnt(0)')
        e(f's_lshl_b32 s{sT0}, s2, 2')
        e(f's_add_u32 s{sT0}, s{sT0}, s{sWv}')
        e(f's_lshl_b32 s{sT0}, s{sT0}, 7')
        e(f's_add_u32 s{sT0}, s{sT0}, {0x1000000 + kernel_idx*0x100000}')
        e(f's_mov_b32 s{sO+2}, 0x2000000')
        e(f'v_mov_b32 v{vT}, 0')
        for i in range(n):
            e(f'v_mov_b32 v{vT+2}, s{70+2*i}')
            e(f'v_mov_b32 v{vT+3}, s{71+2*i}')
            e(f'buffer_store_dwordx2 {vr(vT+2,2)}, v{vT}, s[{sO}:{sO+3}], s{sT0} offen offset:{8*i}')
            e('s_waitcnt vmcnt(0)')
        e.vmq = []
    def prologue(self):
        e = self.e
        e(f's_cmp_ge_u32 s2, 256')
        e(f's_cbranch_scc1 L_{self.name}_end')
        e(f's_load_dwordx16 s[40:55], s[0:1], 0')
        e(f's_load_dwordx2 s[56:57], s[0:1], 64')
        e(f's_load_dwordx2 s[58:59], s[0:1], 96')
        e(f's_load_dwordx2 s[100:101], s[0:1], 72')
        t0, t1, t2, t3 = vT, vT + 1, vT + 2, vT + 3
        e(f'v_lshrrev_b32 v{t0}, 6, v0')
        e(f'v_and_b32 v{vL}, 63, v0')
        e(f'v_readfirstlane_b32 s{sWv}, v{t0}')
        e(f'v_and_b32 v{vN}, 15, v{vL}')
        e(f'v_lshrrev_b32 v{vG}, 4, v{vL}')
        e(f's_lshr_b32 s{sJ}, s{sWv}, 1')
        e(f's_and_b32 s{sKH}, s{sWv}, 1')
        e(f's_and_b32 s{sT0}, s2, 7')
        e(f's_lshr_b32 s{sT1}, s2, 3')
        e(f's_lshr_b32 s{sBr}, s{sT1}, 4')
        e(f's_and_b32 s{sT1}, s{sT1}, 15')
        e(f's_mov_b32 s{sC}, 0x3e029407')
        import struct, math
        c = (128 ** -0.5) * math.log2(math.e)
        bits = struct.unpack('<I', struct.pack('<f', c))[0]
        e.ins[-1] = Inst(f's_mov_b32 s{sC}, {bits:#010x}')
        e(f's_mov_b32 s{sT}, 0x41000000')
        for j in range(4):
            e(f'v_add_u32 v{t0}, {4*j}, v{vG}')
            e(f'v_xor_b32 v{t0}, v{t0}, v{vN}')
            e(f'v_lshlrev_b32 v{t0}, 4, v{t0}')
            e(f'v_lshl_add_u32 v{vKd+j}, v{vG}, 8, v{t0}')
        for p in range(2):
            e(f'v_add_u32 v{t0}, {4*p}, v{vG}')
            e(f'v_lshlrev_b32 v{t0}, 1, v{t0}')
            e(f'v_xor_b32 v{t0}, v{t0}, v{vN}')
            e(f'v_lshlrev_b32 v{t0}, 4, v{t0}')
            e(f'v_lshl_add_u32 v{vVd+p}, v{vG}, 8, v{t0}')
        for i in range(4):
            q = i >> 1
            e(f'v_or_b32 v{t0}, {q << 2}, v{vG}')
            e(f'v_lshlrev_b32 v{t0}, 1, v{t0}')
            e(f'v_xor_b32 v{t0}, v{t0}, v{vN}')
            e(f'v_lshlrev_b32 v{t0}, 4, v{t0}')
            e(f'v_lshl_add_u32 v{vWd+i}, v{vG}, 13, v{t0}')
            if i: e(f'v_add_u32 v{vWd+i}, {(32768-1024)*i}, v{vWd+i}')
        e(f'v_lshrrev_b32 v{t1}, 3, v{vL}')
        e(f's_movk_i32 s{sT2}, 1152')
        e(f'v_mul_lo_u32 v{t1}, v{t1}, s{sT2}')
        e(f'v_and_b32 v{t2}, 7, v{vL}')
        for i in range(4):
            e(f's_add_u32 s{sT2}, s{sKH}, {i}')
            e(f's_and_b32 s{sT2}, s{sT2}, 1')
            e(f's_lshl_b32 s{sT2}, s{sT2}, 2')
            e(f'v_add_u32 v{t0}, s{sT2}, v{vG}')
            e(f'v_and_b32 v{t0}, 7, v{t0}')
            e(f'v_xor_b32 v{t0}, v{t0}, v{t2}')
            e(f'v_lshl_add_u32 v{vXd+i}, v{t0}, 4, v{t1}')
            if i: e(f'v_add_u32 v{vXd+i}, {8192*i}, v{vXd+i}')
        e(f's_lshl_b32 s{sKl}, s{sWv}, 13')
        e(f's_add_u32 s{sVl}, s{sKl}, {VS}')
        for s in range(4):
            e(f'v_add_u32 v{t0}, {4*s}, v{vG}')
            e(f'v_xor_b32 v{t0}, v{t0}, v{vN}')
            e(f'v_lshlrev_b32 v{t0}, 4, v{t0}')
            e(f'v_lshl_add_u32 v{t0}, v{vN}, 8, v{t0}')
            e(f'v_add_u32 v{vKr+s}, s{sKl}, v{t0}')
        e(f'v_bfe_u32 v{t1}, v{vL}, 2, 2')
        e(f'v_lshl_add_u32 v{t1}, v{vG}, 2, v{t1}')
        e(f'v_and_b32 v{t2}, 7, v{t1}')
        e(f'v_lshlrev_b32 v{t2}, 1, v{t2}')
        e(f'v_bfe_u32 v{t3}, v{vL}, 1, 1')
        e(f'v_xor_b32 v{t2}, v{t2}, v{t3}')
        e(f'v_and_b32 v{t3}, 1, v{vL}')
        e(f'v_lshlrev_b32 v{t3}, 3, v{t3}')
        e(f'v_lshl_add_u32 v{t3}, v{t1}, 8, v{t3}')
        e(f'v_add_u32 v{t3}, s{sVl}, v{t3}')
        for ts in range(8):
            e(f's_lshl_b32 s{sT2}, s{sKH}, 2')
            e(f's_xor_b32 s{sT2}, s{sT2}, {ts}')
            e(f's_lshl_b32 s{sT2}, s{sT2}, 1')
            e(f'v_xor_b32 v{t0}, s{sT2}, v{t2}')
            e(f'v_lshl_add_u32 v{vVr+ts}, v{t0}, 4, v{t3}')
        e('s_waitcnt lgkmcnt(0)')

    def q_setup(self, br):
        e = self.e
        t0, t1, t2, t3 = vT, vT + 1, vT + 2, vT + 3
        rot = self.cfg.get('qrot', 1)
        if br == 'A':
            e(f's_lshr_b32 s{sCc}, s{sT1}, 1')
            e(f's_and_b32 s{sT2}, s{sT1}, 1')
            e(f's_lshl_b32 s{sT2}, s{sT2}, 2')
            e(f's_add_u32 s{sCc}, s{sCc}, s{sT2}')
            e(f's_sub_u32 s{sT2}, s{sCc}, 9')
            e(f's_cmp_ge_u32 s{sCc}, 9')
            e(f's_cselect_b32 s{sCc}, s{sT2}, s{sCc}')
        else:
            e(f's_lshr_b32 s{sCc}, s{sT1}, 2')
            e(f's_add_u32 s{sCc}, s{sCc}, s{sT1}')
            e(f's_and_b32 s{sCc}, s{sCc}, 3')
            e(f's_mul_i32 s{sCc}, s{sCc}, 5')
            e(f's_lshr_b32 s{sCc}, s{sCc}, 1')
        if not rot: e(f's_mov_b32 s{sCc}, 0')
        if br == 'A':
            e(f's_lshr_b32 s{sB}, s{sT1}, 1')
            e(f's_and_b32 s{sT1}, s{sT1}, 1')
            e(f's_lshl_b32 s{sT0}, s{sT0}, 1')
            e(f's_add_u32 s{sT0}, s{sT0}, s{sT1}')
            e(f's_lshl_b32 s{sH}, s{sT0}, 1')
            e(f's_add_u32 s{sH}, s{sH}, s{sJ}')
            e(f's_lshl_b32 s{sT1}, s{sB}, 4')
            e(f's_add_u32 s{sT1}, s{sT1}, s{sT0}')
            srd(e, sX, 40, 41, X_BYTES); srd(e, sK, 42, 43, KA_BYTES); srd(e, sV, 44, 45, KA_BYTES); srd(e, sW, 46, 47, W_BYTES)
        else:
            e(f's_lshr_b32 s{sB}, s{sT1}, 2')
            e(f's_lshl_b32 s{sT2}, s{sJ}, 2')
            e(f's_add_u32 s{sB}, s{sB}, s{sT2}')
            e(f's_and_b32 s{sT1}, s{sT1}, 3')
            e(f's_lshl_b32 s{sH}, s{sT0}, 2')
            e(f's_add_u32 s{sH}, s{sH}, s{sT1}')
            e(f's_lshl_b32 s{sT1}, s{sB}, 5')
            e(f's_add_u32 s{sT1}, s{sT1}, s{sH}')
            srd(e, sX, 50, 51, X_BYTES); srd(e, sK, 52, 53, KB_BYTES); srd(e, sV, 54, 55, KB_BYTES); srd(e, sW, 56, 57, W_BYTES)
        srd(e, sO, 58, 59, O_BYTES)
        if self.cfg.get('kvsame'): e(f's_and_b32 s{sT1}, s2, 7')
        e(f's_lshl_b32 s{sKoff}, s{sT1}, 18')
        e(f's_lshl_b32 s{sT2}, s{sKH}, 13')
        e(f's_add_u32 s{sKoff}, s{sKoff}, s{sT2}')
        e(f's_mov_b32 s{sVoff}, s{sKoff}')
        e(f's_mul_i32 s{sOoff}, s{sB}, {5*128*1024}')
        e(f's_lshl_b32 s{sT2}, s{sH}, 12')
        e(f's_add_u32 s{sOoff}, s{sOoff}, s{sT2}')
        e(f's_lshl_b32 s{sT2}, s{sKH}, 11')
        e(f's_add_u32 s{sOoff}, s{sOoff}, s{sT2}')
        if br == 'B':
            e(f's_add_u32 s{sOoff}, s{sOoff}, {O_BR}')
        if br == 'A':
            e(f's_mul_i32 s{sXoff}, s{sB}, 92160')
            e(f's_mul_i32 s{sT2}, s{sWv}, 9216')
            e(f's_add_u32 s{sXoff}, s{sXoff}, s{sT2}')
            e(f's_lshl_b32 s{sXl}, s{sWv}, 10')
            e(f's_mul_i32 s65, s{sB}, 92160')
            e(f's_add_u32 s{sT2}, s{sKH}, 8')
            e(f's_lshl_b32 s66, s{sT2}, 10')
            e(f's_mul_i32 s{sT2}, s{sT2}, 9216')
            e(f's_add_u32 s65, s65, s{sT2}')
            e(f's_lshl_b32 s{sWoff}, s{sH}, 8')
            e(f's_lshl_b32 s{sT2}, s{sKH}, 18')
            e(f's_add_u32 s{sWoff}, s{sWoff}, s{sT2}')
            e(f's_lshl_b32 s{sWl}, s{sJ}, 14')
            e(f's_lshl_b32 s{sT2}, s{sKH}, 13')
            e(f's_add_u32 s{sWl}, s{sWl}, s{sT2}')
            e(f's_add_u32 s{sWl}, s{sWl}, 10240')
            xoffj, woffj = (0, 0), (10240, 16384)
        else:
            e(f's_mul_i32 s{sXoff}, s{sB}, 92160')
            e(f's_mul_i32 s{sT2}, s{sKH}, {40*1152}')
            e(f's_add_u32 s{sXoff}, s{sXoff}, s{sT2}')
            e(f's_mul_i32 s{sXl}, s{sWv}, 5120')
            e(f's_lshl_b32 s{sWoff}, s{sH}, 8')
            e(f's_lshl_b32 s{sT2}, s{sWv}, 17')
            e(f's_add_u32 s{sWoff}, s{sWoff}, s{sT2}')
            e(f's_lshl_b32 s{sWl}, s{sWv}, 12')
            e(f's_add_u32 s{sWl}, s{sWl}, 20480')
            xoffj, woffj = (0, 10240), (20480, 0)
        e(f's_mul_i32 s{sT2}, s{sJ}, {xoffj[1]}')
        e(f's_add_u32 s{sT2}, s{sT2}, {QBUF0 + xoffj[0]}')
        e(f'v_lshrrev_b32 v{t1}, 1, v{vN}')
        for s2 in range(2):
            e(f'v_add_u32 v{t0}, {4*s2}, v{vG}')
            e(f'v_xor_b32 v{t0}, v{t0}, v{t1}')
            e(f'v_lshlrev_b32 v{t0}, 4, v{t0}')
            e(f'v_lshl_add_u32 v{t0}, v{vN}, 7, v{t0}')
            e(f'v_add_u32 v{vXr+s2}, s{sT2}, v{t0}')
        e(f's_mul_i32 s{sT2}, s{sJ}, {woffj[1]}')
        e(f's_add_u32 s{sT2}, s{sT2}, {QBUF0 + woffj[0]}')
        e(f'v_bfe_u32 v{t1}, v{vL}, 2, 2')
        e(f'v_and_b32 v{t2}, 1, v{vG}')
        e(f'v_lshl_or_b32 v{t2}, v{t2}, 2, v{t1}')
        e(f'v_lshlrev_b32 v{t2}, 1, v{t2}')
        e(f'v_bfe_u32 v{t3}, v{vL}, 1, 1')
        e(f'v_xor_b32 v{t2}, v{t2}, v{t3}')
        e(f'v_lshl_add_u32 v{t1}, v{vG}, 3, v{t1}')
        e(f'v_and_b32 v{t3}, 1, v{vL}')
        e(f'v_lshlrev_b32 v{t3}, 3, v{t3}')
        e(f'v_lshl_add_u32 v{t3}, v{t1}, 8, v{t3}')
        e(f'v_add_u32 v{t3}, s{sT2}, v{t3}')
        for tt in range(4):
            e(f's_lshl_b32 s{sT2}, s{sKH}, 2')
            e(f's_add_u32 s{sT2}, s{sT2}, {tt}')
            e(f's_lshl_b32 s{sT2}, s{sT2}, 1')
            e(f'v_xor_b32 v{t0}, s{sT2}, v{t2}')
            e(f'v_lshl_add_u32 v{vWr+tt}, v{t0}, 4, v{t3}')

    def q_dma(self, br, c):
        qb = QBUF0 + (c % 3) * QBUFSZ
        tag = ('Q', c)
        G = []
        g = [(f's_lshl_b32 s{sT2}, s{sCc}, 7', None), (f's_add_u32 s{sXc}, s{sXoff}, s{sT2}', None)]
        if br == 'A': g.append((f's_add_u32 s{sX3c}, s65, s{sT2}', None))
        if self.cfg.get('qsame'):
            g = [(f's_mov_b32 s{sXc}, 0', None), (f's_mov_b32 s{sX3c}, 0', None), (f's_mov_b32 s{sWc}, 0', None)]
        else:
          g += [(f's_lshl_b32 s{sT2}, s{sCc}, 19', None), (f's_add_u32 s{sWc}, s{sWoff}, s{sT2}', None),
              (f's_add_u32 s{sCc}, s{sCc}, 1', None), (f's_cmp_eq_u32 s{sCc}, 9', None), (f's_cselect_b32 s{sCc}, 0, s{sCc}', None)]
        G.append(g)
        def ld(voff, srdr, soff, off, fl, pre=()):
            G.append(list(pre) + [(f'buffer_load_dwordx4 v{voff}, s[{srdr}:{srdr+3}], s{soff} offen offset:{off}{fl} lds', tag)])
        m0 = lambda reg, imm: (f's_add_u32 m0, s{reg}, {qb + imm}', None)
        if br == 'A':
            ld(vXd, sX, sXc, 0, self.xfl, [m0(sXl, 0)])
            ld(vXd, sX, sT2, 0, self.xfl, [m0(sXl, 4096), (f's_add_u32 s{sT2}, s{sXc}, {4*9216}', None)])
            ld(vXd, sX, sX3c, 0, self.xfl, [m0(66, 0), ('s_nop 0', None)])
            for i in range(4):
                ld(vWd + i, sW, sWc, 1024*i, self.wfl, [m0(sWl, 0), ('s_nop 0', None)] if i == 0 else [])
            for i in range(4):
                ld(vWd + i, sW, sWc, 1024*i, self.wfl, [m0(sWl, 4096), (f's_add_u32 s{sWc}, s{sWc}, {4*32768}', None)] if i == 0 else [])
        else:
            for i in range(4):
                ld(vXd + i, sX, sXc, 1024*i, self.xfl, [m0(sXl, 0), ('s_nop 0', None)] if i == 0 else [])
            ld(vXd, sX, sXc, 0, self.xfl, [m0(sXl, 4096), (f's_add_u32 s{sXc}, s{sXc}, {4*9216}', None)])
            for i in range(4):
                ld(vWd + i, sW, sWc, 1024*i, self.wfl, [m0(sWl, 0), ('s_nop 0', None)] if i == 0 else [])
        return G

    def kv_dma(self, kind, par, tag):
        if kind == 'K': l, off, s, vo, tmp = sKl, sKoff, sK, [vKd, vKd + 1, vKd + 2, vKd + 3], sKt
        else: l, off, s, vo, tmp = sVl, sVoff, sV, [vVd, vVd + 1, vVd, vVd + 1], sVt
        G = []
        for half in range(2):
            for q in range(4):
                g = []
                if q == 0:
                    g.append((f's_add_u32 m0, s{l}, {par * 32768 + half * 4096}', None))
                    if half == 0: g.append((f's_add_u32 s{tmp}, s{off}, 4096', None))
                    else: g.append((f's_add_u32 s{off}, s{off}, 16384', None))
                so = off if half == 0 else tmp
                g.append((f'buffer_load_dwordx4 v{vo[q]}, s[{s}:{s+3}], s{so} offen offset:{q*1024}{self.kvfl} lds', tag))
                G.append(g)
        return G

    def q_reads(self, s2):
        G = []
        for tt in range(4):
            for sec in range(2):
                G.append([(f'ds_read_b64_tr_b16 {ar(aWF[s2] + 4*tt + 2*sec, 2)}, v{vWr+tt} offset:{s2*8192 + sec*1024}', ('q', s2))])
            if tt == 0:
                for rt in range(5):
                    G.append([(f'ds_read_b128 {ar(aXF[s2] + 4*rt, 4)}, v{vXr+s2} offset:{rt*2048}', ('q', s2))])
        return G

    def q_mfmas(self, s2, first):
        L = []
        for tt in range(4):
            for rt in range(5):
                acc = vr(Qacc(tt, rt), 4)
                cc = '0' if first else acc
                L.append(f'{MFMA} {acc}, {ar(aWF[s2] + 4*tt, 4)}, {ar(aXF[s2] + 4*rt, 4)}, {cc}')
        return L

    def q_phase(self, br):
        e = self.e
        self.q_setup(br)
        self.stamp(1, 2)
        emit_groups(e, self.q_dma(br, 0))
        emit_groups(e, self.q_dma(br, 1))
        for c in range(9):
            e.wait_vm(('Q', c))
            e.wait_lg()
            e('s_barrier')
            if c == 4: self.cstamp(0, 4)
            if c == 5: self.cstamp(3, 4)
            self.stamp(2 + c, 2)
            G = []
            if c + 2 <= 8: G += self.q_dma(br, c + 2)
            if c == 6: G += self.kv_dma('K', 0, ('K', 0))
            if c == 7: G += self.kv_dma('K', 1, ('K', 1))
            if c == 8: G += self.kv_dma('V', 0, ('V', 0))
            R0 = self.q_reads(0)
            h = (len(G) + 1) // 2
            if c > 0:
                mf = self.q_mfmas(1, False)
                interleave(e, mf[:13], R0, start=0, every=1)
                interleave(e, mf[13:], G[:h], start=0)
            else:
                emit_groups(e, R0); emit_groups(e, G[:h])
            if c == 4: self.cstamp(1, 4)
            e.wait_lg(('q', 0))
            adv = []
            if c < 8:
                d = QBUFSZ if (c % 3) != 2 else -2 * QBUFSZ
                for r in (vXr, vXr + 1, vWr, vWr + 1, vWr + 2, vWr + 3):
                    adv.append([((f'v_add_u32 v{r}, {d}, v{r}' if d > 0 else f'v_subrev_u32 v{r}, {-d}, v{r}'), None)])
            mf = self.q_mfmas(0, c == 0)
            interleave(e, mf[:13], self.q_reads(1), start=0, every=1)
            interleave(e, mf[13:], G[h:] + adv, start=0)
            if c == 4: self.cstamp(2, 4)
        e.wait_lg()
        for t in self.q_mfmas(1, False): e(t)

    def q_exchange(self):
        e = self.e
        t0, t1, t2, t3 = vT, vT + 1, vT + 2, vT + 3
        e('s_barrier')
        e(f's_mul_i32 s{sT2}, s{sJ}, 20480')
        e(f's_add_u32 s{sT2}, s{sT2}, {QIMG}')
        e(f'v_and_b32 v{t1}, 1, v{vG}')
        e(f'v_lshlrev_b32 v{t1}, 3, v{t1}')
        e(f'v_lshl_add_u32 v{t1}, v{vN}, 8, v{t1}')
        e(f'v_add_u32 v{t1}, s{sT2}, v{t1}')
        e(f'v_lshrrev_b32 v{t2}, 1, v{vG}')
        e(f'v_xor_b32 v{t2}, v{t2}, v{vN}')
        for tt in range(4):
            e(f's_lshl_b32 s{sT1}, s{sKH}, 2')
            e(f's_add_u32 s{sT1}, s{sT1}, {tt}')
            e(f's_lshl_b32 s{sT1}, s{sT1}, 1')
            e(f'v_xor_b32 v{t0}, s{sT1}, v{t2}')
            e(f'v_lshl_add_u32 v{vT+4+tt}, v{t0}, 4, v{t1}')
        e(f'v_mov_b32 v{vT+8}, s{sC}')
        e(f'v_mov_b32 v{vT+9}, s{sC}')
        for tt in range(4):
            for rt in range(5):
                b = Qacc(tt, rt)
                e(f'v_pk_mul_f32 {vr(b,2)}, {vr(b,2)}, {vr(vT+8,2)}')
                e(f'v_pk_mul_f32 {vr(b+2,2)}, {vr(b+2,2)}, {vr(vT+8,2)}')
                e(f'v_cvt_pk_bf16_f32 v{b}, v{b}, v{b+1}')
                e(f'v_cvt_pk_bf16_f32 v{b+1}, v{b+2}, v{b+3}')
                e(f'ds_write_b64 v{vT+4+tt}, {vr(b, 2)} offset:{rt*4096}', 'qw')
        e.wait_lg()
        e('s_barrier')
        e(f's_sub_u32 s{sT2}, s{sT2}, s{sKl}')
        for s in range(4):
            e(f'v_add_u32 v{vT+4+s}, s{sT2}, v{vKr+s}')
        for rt in range(5):
            for s in range(4):
                e(f'ds_read_b128 {ar(Qf(rt, s), 4)}, v{vT+4+s} offset:{rt*4096}', 'qr')
        e(f'v_mov_b32 v{vT}, 0x3f803f80')
        for k in range(4): e(f'v_accvgpr_write_b32 a{aOne+k}, v{vT}')
        e.wait_lg()
        e('s_barrier')
        emit_groups(e, self.kv_dma('V', 1, ('V', 1)))

    def rowmax_xlane(self, r, rt):
        mx, t = vT + rt, vT + 5
        r(f'v_mov_b32 v{t}, v{mx}')
        r(f'v_permlane16_swap_b32 v{mx}, v{t}')
        r(f'v_max_f32 v{mx}, v{mx}, v{t}')
        r(f'v_mov_b32 v{t}, v{mx}')
        r(f'v_permlane32_swap_b32 v{mx}, v{t}')
        r(f'v_max_f32 v{mx}, v{mx}, v{t}')

    def rare_block(self, lab, back):
        r = Emitter()
        r.label(lab)
        r('s_nop 7')
        f = vT + 6
        for rt in range(5):
            mx = vT + rt
            self.rowmax_xlane(r, rt)
            r(f'v_max_f32 v{mx}, 0, v{mx}')
            r(f'v_sub_f32 v{f}, 0, v{mx}')
            r(f'v_exp_f32 v{f}, v{f}')
            for k in range(4): r(f'v_sub_f32 v{NM(rt)+k}, v{NM(rt)+k}, v{mx}')
            for k in range(8): r(f'v_sub_f32 v{Sreg(rt,0)+k}, v{Sreg(rt,0)+k}, v{mx}')
            for k in range(4):
                r(f'v_accvgpr_read_b32 v{vT+8}, a{Lf(rt)+k}')
                r(f'v_mul_f32 v{vT+8}, v{vT+8}, v{f}')
                r(f'v_accvgpr_write_b32 a{Lf(rt)+k}, v{vT+8}')
            for ts in range(8):
                b = Oreg(ts, rt)
                r(f'v_pk_mul_f32 {vr(b,2)}, {vr(b,2)}, {vr(f,2)} op_sel_hi:[1,0]')
                r(f'v_pk_mul_f32 {vr(b+2,2)}, {vr(b+2,2)}, {vr(f,2)} op_sel_hi:[1,0]')
        r('s_nop 7')
        r(f's_branch {back}')
        r.fix_hazards()
        self.rare.append(r)

    def k_reads(self, it, par):
        e = self.e
        e.wait_vm(('K', it))
        for s in range(4):
            for kt in range(2):
                e(f'ds_read_b128 {ar(Kf(kt, s), 4)}, v{vKr+s} offset:{par*32768 + kt*4096}', 'k')

    def iteration(self, it, par, issue_next, next_k=True, first=False):
        e = self.e
        mx = [vT + i for i in range(5)]
        def maxops(rt):
            b = Sreg(rt, 0)
            return [[(f'v_max3_f32 v{mx[rt]}, v{b}, v{b+1}, v{b+2}', None)],
                    [(f'v_max3_f32 v{mx[rt]}, v{mx[rt]}, v{b+3}, v{b+4}', None)],
                    [(f'v_max3_f32 v{mx[rt]}, v{mx[rt]}, v{b+5}, v{b+6}', None)],
                    [(f'v_max_f32 v{mx[rt]}, v{mx[rt]}, v{b+7}', None)]]
        def softmax(rt):
            b = Sreg(rt, 0)
            L = []
            for k in range(4):
                L.append(f'v_exp_f32 v{b+2*k}, v{b+2*k}')
                L.append(f'v_exp_f32 v{b+2*k+1}, v{b+2*k+1}')
            for k in range(4): L.append(f'v_cvt_pk_bf16_f32 v{b+k}, v{b+2*k}, v{b+2*k+1}')
            return [[(t, None)] for t in L]
        def vreads():
            return [[(f'ds_read_b64_tr_b16 {ar(Vf(ts) + 2*sec, 2)}, v{vVr+ts} offset:{par*32768 + sec*4096}', 'v')] for ts in range(8) for sec in range(2)]
        e.wait_lg()
        mb = self.cfg.get('mainbar', 1)
        if mb and issue_next:
            self.nbar = getattr(self, 'nbar', 0) + 1
            if mb == 1:
                e(f's_cmp_lg_u32 s{sBr}, 0')
                e(f's_cbranch_scc1 L_{self.name}_nb{self.nbar}')
                e('s_barrier')
                e.label(f'L_{self.name}_nb{self.nbar}')
            else:
                e('s_barrier')
        G = self.kv_dma('K', par, ('K', it + 2)) if issue_next else []
        for rt in range(5):
            mf = []
            for s in range(4):
                for kt in range(2):
                    acc = vr(Sreg(rt, kt), 4)
                    cc = acc if s else ('0' if first else vr(NM(rt), 4))
                    mf.append(f'{MFMA} {acc}, {ar(Kf(kt, s), 4)}, {ar(Qf(rt, s), 4)}, {cc}')
            extra = []
            if rt < 4 and G: extra += G[2*rt:2*rt+2]
            if rt >= 2: extra += maxops(rt - 2)
            if rt == 4:
                e.wait_vm(('V', it))
                R = vreads()
                extra = extra[:2] + R[:4] + extra[2:] + R[4:8]
                interleave(e, mf, extra, start=0)
                emit_groups(e, R[8:])
            else:
                interleave(e, mf, extra, start=1)
        emit_groups(e, maxops(3))
        emit_groups(e, maxops(4))
        if first:
            for rt in range(5):
                self.rowmax_xlane(e, rt)
                for k in range(4): e(f'v_sub_f32 v{NM(rt)+k}, 0, v{mx[rt]}')
                for k in range(8): e(f'v_sub_f32 v{Sreg(rt,0)+k}, v{Sreg(rt,0)+k}, v{mx[rt]}')
        else:
            t = vT + 5
            e(f'v_max3_f32 v{t}, v{mx[0]}, v{mx[1]}, v{mx[2]}')
            e(f'v_max3_f32 v{t}, v{t}, v{mx[3]}, v{mx[4]}')
            e(f'v_cmp_lt_f32 vcc, s{sT}, v{t}')
            self.nrare += 1
            lab, back = f'L_{self.name}_rare{self.nrare}', f'L_{self.name}_back{self.nrare}'
            e(f's_cbranch_vccnz {lab}')
            e.label(back)
            self.rare_block(lab, back)
        emit_groups(e, softmax(0))
        e.wait_lg()
        G = self.kv_dma('V', par, ('V', it + 2)) if issue_next else []
        for rt in range(5):
            mf = []
            P = vr(Sreg(rt, 0), 4)
            for ts in range(8):
                acc = vr(Oreg(ts, rt), 4)
                mf.append(f'{MFMA} {acc}, {ar(Vf(ts), 4)}, {P}, {"0" if first else acc}')
            la = ar(Lf(rt), 4)
            mf.append(f'{MFMA} {la}, {ar(aOne, 4)}, {P}, {"0" if first else la}')
            if rt < 4:
                sm = softmax(rt + 1)
                gg = G[2*rt:2*rt+2] if G else []
                extra = sm[:4] + gg[:1] + sm[4:8] + gg[1:] + sm[8:]
                interleave(e, mf, extra, start=0)
            else:
                if next_k: self.k_reads(it + 1, par ^ 1)
                for t in mf: e(t)

    def main_loop(self):
        e = self.e
        self.k_reads(0, 0)
        self.iteration(0, 0, True, first=True)
        self.iteration(1, 1, True)
        self.stamp(3)
        q0 = [(k, i - 2) for (k, i) in e.vmq]
        l0 = list(e.lgq)
        e(f's_mov_b32 s{sLoop}, 6')
        e.label(f'L_{self.name}_loop')
        self.iteration(2, 0, True)
        self.iteration(3, 1, True)
        q1 = [(k, i - 4) for (k, i) in e.vmq]
        assert q0 == q1, (q0, q1)
        assert l0 == e.lgq
        e(f's_sub_u32 s{sLoop}, s{sLoop}, 1')
        e(f's_cmp_lg_u32 s{sLoop}, 0')
        e(f's_cbranch_scc1 L_{self.name}_loop')
        self.iteration(4, 0, False)
        self.iteration(5, 1, False, next_k=False)

    def wo_warm(self):
        e = self.e
        q, r, t = vT + 7, vT + 8, vT + 11
        e(f's_bfe_u32 s{sT0}, s2, 0x10002')
        e(f's_cmp_eq_u32 s{sT0}, 0')
        e(f's_cselect_b32 s8, s48, s100')
        e(f's_cselect_b32 s9, s49, s101')
        e(f's_mov_b32 s10, {4096*1152}')
        e(f's_mov_b32 s11, 0x00020000')
        e(f's_bfe_u32 s{sT1}, s2, 0x10001')
        e(f's_lshl_b32 s{sT1}, s{sT1}, 9')
        e(f's_lshr_b32 s{sT0}, s2, 3')
        e(f's_lshl_b32 s{sT0}, s{sT0}, 2')
        e(f's_add_u32 s{sT0}, s{sT0}, s{sWv}')
        e(f's_mul_i32 s{sT0}, s{sT0}, 192')
        e(f's_mov_b32 s{sT2}, 52429')
        for i in range(3):
            e(f'v_add_u32 v{q}, s{sT0}, v{vL}')
            if i: e(f'v_add_u32 v{q}, {64*i}, v{q}')
            e(f'v_mul_lo_u32 v{r}, v{q}, s{sT2}')
            e(f'v_lshrrev_b32 v{r}, 18, v{r}')
            e(f'v_mul_u32_u24 v{t}, 5, v{r}')
            e(f'v_sub_u32 v{q}, v{q}, v{t}')
            e(f'v_mul_u32_u24 v{r}, 1152, v{r}')
            e(f'v_lshl_add_u32 v{q}, v{q}, 7, v{r}')
            e(f'buffer_load_dword v22, v{q}, s[8:11], s{sT1} offen', 'warm')

    def epilogue(self):
        e = self.e
        t0, t1 = vT, vT + 1
        self.cstamp(0, 6)
        if self.cfg.get('fused') and self.cfg.get('wwarm', 1): self.wo_warm()
        vMx, vLx = vS + 30, vS + 35
        for rt in range(5):
            e(f'v_sub_f32 v{vMx+rt}, 0, v{NM(rt)}')
            e(f'v_accvgpr_read_b32 v{vLx+rt}, a{Lf(rt)}')
        aw, ap = vT + 2, vT + 3
        e(f's_mul_i32 s{sT0}, s{sWv}, 640')
        e(f's_add_u32 s{sT0}, s{sT0}, {STATS}')
        e(f'v_lshlrev_b32 v{t0}, 3, v{vN}')
        e(f'v_add_u32 v{aw}, s{sT0}, v{t0}')
        e(f's_xor_b32 s{sT1}, s{sWv}, 1')
        e(f's_mul_i32 s{sT1}, s{sT1}, 640')
        e(f's_add_u32 s{sT1}, s{sT1}, {STATS}')
        e(f'v_add_u32 v{ap}, s{sT1}, v{t0}')
        for rt in range(5):
            e(f'ds_write2_b32 v{aw}, v{vMx+rt}, v{vLx+rt} offset0:{rt*32} offset1:{rt*32+1}', 'sw')
        e.wait_lg()
        self.cstamp(1, 6)
        e('s_barrier')
        self.cstamp(2, 6)
        for rt in range(5):
            e(f'ds_read_b64 {vr(vS + 2*rt, 2)}, v{ap} offset:{rt*128}', 'sr')
        e.wait_lg()
        G = vS + 16
        Mv = [vS + 10 + rt for rt in range(5)]
        Fo = [vT + 4 + rt for rt in range(5)]
        for rt in range(5): e(f'v_max_f32 v{Mv[rt]}, v{vMx+rt}, v{vS + 2*rt}')
        for rt in range(5):
            e(f'v_sub_f32 v{Fo[rt]}, v{vMx+rt}, v{Mv[rt]}')
            e(f'v_sub_f32 v{vS + 2*rt}, v{vS + 2*rt}, v{Mv[rt]}')
        for rt in range(5):
            e(f'v_exp_f32 v{Fo[rt]}, v{Fo[rt]}')
            e(f'v_exp_f32 v{vS + 2*rt}, v{vS + 2*rt}')
        for rt in range(5): e(f'v_mul_f32 v{vS + 2*rt + 1}, v{vS + 2*rt + 1}, v{vS + 2*rt}')
        for rt in range(5): e(f'v_fma_f32 v{vS + 2*rt + 1}, v{vLx+rt}, v{Fo[rt]}, v{vS + 2*rt + 1}')
        for rt in range(5): e(f'v_rcp_f32 v{vS + 2*rt + 1}, v{vS + 2*rt + 1}')
        for rt in range(5): e(f'v_mul_f32 v{G + 2*rt}, v{Fo[rt]}, v{vS + 2*rt + 1}')
        self.cstamp(3, 6)
        xa = vT + 9
        e(f's_mul_i32 s{sT0}, s{sWv}, 20480')
        e(f's_add_u32 s{sT0}, s{sT0}, {OX}')
        e(f'v_lshlrev_b32 v{t0}, 4, v{vL}')
        e(f'v_add_u32 v{xa}, s{sT0}, v{t0}')
        e(f's_xor_b32 s{sT1}, s{sWv}, 1')
        e(f's_mul_i32 s{sT1}, s{sT1}, 20480')
        e(f's_add_u32 s{sT1}, s{sT1}, {OX}')
        e(f'v_add_u32 v{xa+1}, s{sT1}, v{t0}')
        for ts in (4, 5, 6, 7):
            for rt in range(5):
                b = Oreg(ts, rt); g = G + 2*rt
                e(f'v_pk_mul_f32 {vr(b,2)}, {vr(b,2)}, {vr(g,2)} op_sel_hi:[1,0]')
                e(f'v_pk_mul_f32 {vr(b+2,2)}, {vr(b+2,2)}, {vr(g,2)} op_sel_hi:[1,0]')
                if ts >= 4:
                    e(f'ds_write_b128 v{xa}, {vr(b,4)} offset:{((ts-4)*5+rt)*1024}', 'ow')
        e.wait_lg()
        self.cstamp(4, 6)
        e('s_barrier')
        self.cstamp(5, 6)
        so = vT + 6
        e(f'v_lshlrev_b32 v{so}, 4, v{vL}')
        def reads(rt):
            for ts in range(4):
                e(f'ds_read_b128 {vr(Oreg(ts+4, rt),4)}, v{xa+1} offset:{(ts*5+rt)*1024}', ('or', rt))
        reads(0); reads(1)
        for rt in range(5):
            if rt + 2 < 5: reads(rt + 2)
            e.wait_lg(('or', rt))
            g = vS + 16 + 2*rt
            for ts in range(4):
                a, b = Oreg(ts, rt), Oreg(ts + 4, rt)
                e(f'v_pk_fma_f32 {vr(a,2)}, {vr(a,2)}, {vr(g,2)}, {vr(b,2)} op_sel_hi:[1,0,1]')
                e(f'v_pk_fma_f32 {vr(a+2,2)}, {vr(a+2,2)}, {vr(g,2)}, {vr(b+2,2)} op_sel_hi:[1,0,1]')
            for u in range(2):
                a, b = Oreg(2*u, rt), Oreg(2*u + 1, rt)
                e(f'v_cvt_pk_bf16_f32 v{a}, v{a}, v{a+1}')
                e(f'v_cvt_pk_bf16_f32 v{a+1}, v{a+2}, v{a+3}')
                e(f'v_cvt_pk_bf16_f32 v{a+2}, v{b}, v{b+1}')
                e(f'v_cvt_pk_bf16_f32 v{a+3}, v{b+2}, v{b+3}')
                e(f'buffer_store_dwordx4 {vr(a,4)}, v{so}, s[{sO}:{sO+3}], s{sOoff} offen offset:{u*1024}{self.ofl}', 'ost')
            if rt < 4:
                e(f's_add_u32 s{sOoff}, s{sOoff}, 131072')
        self.cstamp(7, 6)
        if self.cfg.get('stamps') and not self.cfg.get('fused'): e.wait_vm_all()
        self.cstamp(8, 6)

    def _epi_add(self, ts):
        e = self.e
        e.wait_lg(('or', ts))
        for rt in range(5):
            a, b = Oreg(ts, rt), Oreg(ts + 4, rt)
            g = vS + 16 + 2*rt
            e(f'v_pk_fma_f32 {vr(a,2)}, {vr(a,2)}, {vr(g,2)}, {vr(b,2)} op_sel_hi:[1,0,1]')
            e(f'v_pk_fma_f32 {vr(a+2,2)}, {vr(a+2,2)}, {vr(g,2)}, {vr(b+2,2)} op_sel_hi:[1,0,1]')

    def build(self):
        e = self.e
        n = self.name
        e.raw(f'.globl {n}\n.p2align 8\n.type {n},@function')
        e.label(n)
        self.stamp(0); self.stamp(0, 2); self.stamp(0, 3); self.cstamp(4); self.stamp(0, 5); self.cstamp(1, 5)
        self.prologue()
        e(f's_cmp_eq_u32 s{sBr}, 0')
        e(f's_cbranch_scc0 L_{n}_qB')
        saved = (list(e.vmq), list(e.lgq))
        self.q_phase('A')
        endA = (list(e.vmq), list(e.lgq))
        e(f's_branch L_{n}_qx')
        e.label(f'L_{n}_qB')
        e.vmq, e.lgq = list(saved[0]), list(saved[1])
        self.q_phase('B')
        assert (e.vmq, e.lgq) == endA, (e.vmq, endA)
        e.label(f'L_{n}_qx')
        self.stamp(1); self.stamp(11, 2); self.stamp(1, 3); self.cstamp(5)
        self.q_exchange()
        self.stamp(2); self.stamp(12, 2); self.stamp(2, 3); self.cstamp(6); self.stamp(2, 5)
        self.main_loop()
        self.stamp(4); self.stamp(3, 3); self.cstamp(7); self.stamp(3, 5)
        self.epilogue()
        self.stamp(5)
        if self.cfg.get('fused'):
            from tail import fused_tail
            fused_tail(self)
            self.stamp(9)
            if self.cfg.get('stamps') == 5:
                self.stamp(4, 5); self.cstamp(5, 5)
                e('s_waitcnt lgkmcnt(0)')
                e(f's_cmp_lg_u32 s2, {self.cfg.get("dbgwg", 0)}')
                e(f's_cbranch_scc1 L_{n}_end')
                e(f's_cmp_lg_u32 s{sWv}, 0')
                e(f's_cbranch_scc1 L_{n}_end')
                e('s_sub_u32 s78, s78, s70')
                e('s_sub_u32 s80, s80, s72')
                e('s_sub_u32 s76, s76, s70')
                e('s_sub_u32 s74, s74, s70')
                e('v_mov_b32 v4, s78'); e('v_mov_b32 v5, s80'); e('v_mov_b32 v6, s76'); e('v_mov_b32 v7, s74')
                e('v_mov_b32 v8, 48')
                e('s_mov_b64 exec, 1')
                e('buffer_store_dwordx4 v[4:7], v8, s[16:19], 0 offen')
                e('s_waitcnt vmcnt(0)')
                e.vmq = []
            else:
                self.write_stamps(10 if self.cfg.get('stamps') == 1 else 13)
        else:
            self.write_stamps(6 if self.cfg.get('stamps') == 1 else 13)
        e.label(f'L_{n}_end')
        e('s_endpgm')
        for r in self.rare:
            e.ins.extend(r.ins)
        e('s_endpgm')
        kd = f'''
.amdhsa_kernel {n}
  .amdhsa_next_free_vgpr 512
  .amdhsa_next_free_sgpr 102
  .amdhsa_accum_offset 256
  .amdhsa_group_segment_fixed_size 0
  .amdhsa_kernarg_size 104
  .amdhsa_user_sgpr_count 2
  .amdhsa_user_sgpr_kernarg_segment_ptr 1
  .amdhsa_system_sgpr_workgroup_id_x 1
.end_amdhsa_kernel
'''
        return kd
```

```python
from asmgen import *

X_BYTES = 8 * 80 * 1152
W_BYTES = 576 * 8192
KA_BYTES = 8 * 16 * 1024 * 256
KB_BYTES = 8 * 32 * 1024 * 256
O_BR = 40 * 128 * 1024
O_BYTES = 2 * O_BR

QBUF0, QBUFSZ = 34816, 43008
KS, VS = 0, 65536
QIMG = 122880
STATS = 131072
OX = 0

sX, sW, sK, sV, sO = 4, 8, 12, 16, 20
sWv, sJ, sKH, sBr, sC, sT = 24, 25, 26, 27, 28, 29
sKoff, sVoff, sKl, sVl = 30, 31, 32, 33
sXoff, sWoff, sOoff = 34, 35, 36
sT0, sT1, sT2 = 37, 38, 39
sP = 40
sLoop = 60
sXl, sWl = 61, 62
sKt, sVt = 96, 97
sB, sH = 63, 64
sCc, sXc, sWc, sX3c = 67, 68, 69, 3
vL, vN, vG = 1, 2, 3
vKd, vVd = 4, 8
vKr, vVr = 10, 14
vNM = 24
vXr, vWr = 36, 38
vT = 44
vXd, vWd = 56, 60
vS = 56
vO = 96
aQ = 0
aK = 80
aV = 112
aL = 144
aOne = 164
aXF = [168, 204]
aWF = [188, 224]

def Sreg(rt, kt): return vS + rt * 8 + kt * 4
def Oreg(ts, rt): return vO + (ts * 5 + rt) * 4
def Qacc(tt, rt): return vO + (tt * 5 + rt) * 4
def Qf(rt, s): return aQ + (rt * 4 + s) * 4
def Kf(kt, s): return aK + (kt * 4 + s) * 4
def Vf(ts): return aV + ts * 4
def NM(rt): return vNM + rt * 4
def Lf(rt): return aL + rt * 4

MFMA = 'v_mfma_f32_16x16x32_bf16'

def srd(e, s, lo, hi, nbytes):
    e(f's_mov_b32 s{s}, s{lo}')
    e(f's_mov_b32 s{s+1}, s{hi}')
    e(f's_mov_b32 s{s+2}, {nbytes}')
    e(f's_mov_b32 s{s+3}, 0x00020000')

def interleave(e, prim, groups, start=0, every=None, end=None):
    n = len(prim); g = len(groups)
    end = n if end is None else end
    pos = {}
    if g:
        span = max(end - start, 1)
        for k in range(g):
            p = start + (k * span) // g if every is None else start + k * every
            pos.setdefault(min(p, n - 1), []).append(groups[k])
    for i, t in enumerate(prim):
        e(t)
        for grp in pos.get(i, []):
            for (tt, tag) in grp: e(tt, tag)
    if n == 0:
        for grp in groups:
            for (tt, tag) in grp: e(tt, tag)

def emit_groups(e, groups):
    for grp in groups:
        for (tt, tag) in grp: e(tt, tag)

class AttnGen:
    def __init__(self, e, cfg):
        self.e = e
        self.cfg = cfg
        self.kvfl = cfg.get('kv_flags', ' nt')
        self.xfl = cfg.get('x_flags', '')
        self.wfl = cfg.get('w_flags', ' nt')
        self.ofl = cfg.get('o_flags', ' sc1' if cfg.get('fused') else '')
        self.name = cfg.get('name', 'attn_kernel')
        self.rare = []
        self.nrare = 0

    def stamp(self, i, mode=1):
        if self.cfg.get('stamps') == mode:
            self.e(f's_memrealtime s[{70+2*i}:{71+2*i}]')
    def cstamp(self, i, mode=3):
        if self.cfg.get('stamps') == mode:
            self.e(f's_memtime s[{70+2*i}:{71+2*i}]')
    def write_stamps(self, n, kernel_idx=0):
        if not self.cfg.get('stamps'): return
        e = self.e
        e('s_waitcnt lgkmcnt(0)')
        e(f's_lshl_b32 s{sT0}, s2, 2')
        e(f's_add_u32 s{sT0}, s{sT0}, s{sWv}')
        e(f's_lshl_b32 s{sT0}, s{sT0}, 7')
        e(f's_add_u32 s{sT0}, s{sT0}, {0x1000000 + kernel_idx*0x100000}')
        e(f's_mov_b32 s{sO+2}, 0x2000000')
        e(f'v_mov_b32 v{vT}, 0')
        for i in range(n):
            e(f'v_mov_b32 v{vT+2}, s{70+2*i}')
            e(f'v_mov_b32 v{vT+3}, s{71+2*i}')
            e(f'buffer_store_dwordx2 {vr(vT+2,2)}, v{vT}, s[{sO}:{sO+3}], s{sT0} offen offset:{8*i}')
            e('s_waitcnt vmcnt(0)')
        e.vmq = []
    def prologue(self):
        e = self.e
        e(f's_cmp_ge_u32 s2, 256')
        e(f's_cbranch_scc1 L_{self.name}_end')
        e(f's_load_dwordx16 s[40:55], s[0:1], 0')
        e(f's_load_dwordx2 s[56:57], s[0:1], 64')
        e(f's_load_dwordx2 s[58:59], s[0:1], 96')
        t0, t1, t2, t3 = vT, vT + 1, vT + 2, vT + 3
        e(f'v_lshrrev_b32 v{t0}, 6, v0')
        e(f'v_and_b32 v{vL}, 63, v0')
        e(f'v_readfirstlane_b32 s{sWv}, v{t0}')
        e(f'v_and_b32 v{vN}, 15, v{vL}')
        e(f'v_lshrrev_b32 v{vG}, 4, v{vL}')
        e(f's_lshr_b32 s{sJ}, s{sWv}, 1')
        e(f's_and_b32 s{sKH}, s{sWv}, 1')
        e(f's_and_b32 s{sT0}, s2, 7')
        e(f's_lshr_b32 s{sT1}, s2, 3')
        e(f's_lshr_b32 s{sBr}, s{sT1}, 4')
        e(f's_and_b32 s{sT1}, s{sT1}, 15')
        e(f's_mov_b32 s{sC}, 0x3e029407')
        import struct, math
        c = (128 ** -0.5) * math.log2(math.e)
        bits = struct.unpack('<I', struct.pack('<f', c))[0]
        e.ins[-1] = Inst(f's_mov_b32 s{sC}, {bits:#010x}')
        e(f's_mov_b32 s{sT}, 0x41000000')
        for j in range(4):
            e(f'v_add_u32 v{t0}, {4*j}, v{vG}')
            e(f'v_xor_b32 v{t0}, v{t0}, v{vN}')
            e(f'v_lshlrev_b32 v{t0}, 4, v{t0}')
            e(f'v_lshl_add_u32 v{vKd+j}, v{vG}, 8, v{t0}')
        for p in range(2):
            e(f'v_add_u32 v{t0}, {4*p}, v{vG}')
            e(f'v_lshlrev_b32 v{t0}, 1, v{t0}')
            e(f'v_xor_b32 v{t0}, v{t0}, v{vN}')
            e(f'v_lshlrev_b32 v{t0}, 4, v{t0}')
            e(f'v_lshl_add_u32 v{vVd+p}, v{vG}, 8, v{t0}')
        for i in range(4):
            q = i >> 1
            e(f'v_or_b32 v{t0}, {q << 2}, v{vG}')
            e(f'v_lshlrev_b32 v{t0}, 1, v{t0}')
            e(f'v_xor_b32 v{t0}, v{t0}, v{vN}')
            e(f'v_lshlrev_b32 v{t0}, 4, v{t0}')
            e(f'v_lshl_add_u32 v{vWd+i}, v{vG}, 13, v{t0}')
            if i: e(f'v_add_u32 v{vWd+i}, {(32768-1024)*i}, v{vWd+i}')
        e(f'v_lshrrev_b32 v{t1}, 3, v{vL}')
        e(f's_movk_i32 s{sT2}, 1152')
        e(f'v_mul_lo_u32 v{t1}, v{t1}, s{sT2}')
        e(f'v_and_b32 v{t2}, 7, v{vL}')
        for i in range(4):
            e(f's_add_u32 s{sT2}, s{sKH}, {i}')
            e(f's_and_b32 s{sT2}, s{sT2}, 1')
            e(f's_lshl_b32 s{sT2}, s{sT2}, 2')
            e(f'v_add_u32 v{t0}, s{sT2}, v{vG}')
            e(f'v_and_b32 v{t0}, 7, v{t0}')
            e(f'v_xor_b32 v{t0}, v{t0}, v{t2}')
            e(f'v_lshl_add_u32 v{vXd+i}, v{t0}, 4, v{t1}')
            if i: e(f'v_add_u32 v{vXd+i}, {8192*i}, v{vXd+i}')
        e(f's_lshl_b32 s{sKl}, s{sWv}, 13')
        e(f's_add_u32 s{sVl}, s{sKl}, {VS}')
        for s in range(4):
            e(f'v_add_u32 v{t0}, {4*s}, v{vG}')
            e(f'v_xor_b32 v{t0}, v{t0}, v{vN}')
            e(f'v_lshlrev_b32 v{t0}, 4, v{t0}')
            e(f'v_lshl_add_u32 v{t0}, v{vN}, 8, v{t0}')
            e(f'v_add_u32 v{vKr+s}, s{sKl}, v{t0}')
        e(f'v_bfe_u32 v{t1}, v{vL}, 2, 2')
        e(f'v_lshl_add_u32 v{t1}, v{vG}, 2, v{t1}')
        e(f'v_and_b32 v{t2}, 7, v{t1}')
        e(f'v_lshlrev_b32 v{t2}, 1, v{t2}')
        e(f'v_bfe_u32 v{t3}, v{vL}, 1, 1')
        e(f'v_xor_b32 v{t2}, v{t2}, v{t3}')
        e(f'v_and_b32 v{t3}, 1, v{vL}')
        e(f'v_lshlrev_b32 v{t3}, 3, v{t3}')
        e(f'v_lshl_add_u32 v{t3}, v{t1}, 8, v{t3}')
        e(f'v_add_u32 v{t3}, s{sVl}, v{t3}')
        for ts in range(8):
            e(f's_lshl_b32 s{sT2}, s{sKH}, 2')
            e(f's_xor_b32 s{sT2}, s{sT2}, {ts}')
            e(f's_lshl_b32 s{sT2}, s{sT2}, 1')
            e(f'v_xor_b32 v{t0}, s{sT2}, v{t2}')
            e(f'v_lshl_add_u32 v{vVr+ts}, v{t0}, 4, v{t3}')
        e('s_waitcnt lgkmcnt(0)')

    def q_setup(self, br):
        e = self.e
        t0, t1, t2, t3 = vT, vT + 1, vT + 2, vT + 3
        rot = self.cfg.get('qrot', 1)
        if br == 'A':
            e(f's_lshr_b32 s{sCc}, s{sT1}, 1')
            e(f's_and_b32 s{sT2}, s{sT1}, 1')
            e(f's_lshl_b32 s{sT2}, s{sT2}, 2')
            e(f's_add_u32 s{sCc}, s{sCc}, s{sT2}')
            e(f's_sub_u32 s{sT2}, s{sCc}, 9')
            e(f's_cmp_ge_u32 s{sCc}, 9')
            e(f's_cselect_b32 s{sCc}, s{sT2}, s{sCc}')
        else:
            e(f's_lshr_b32 s{sCc}, s{sT1}, 2')
            e(f's_add_u32 s{sCc}, s{sCc}, s{sT1}')
            e(f's_and_b32 s{sCc}, s{sCc}, 3')
            e(f's_mul_i32 s{sCc}, s{sCc}, 5')
            e(f's_lshr_b32 s{sCc}, s{sCc}, 1')
        if not rot: e(f's_mov_b32 s{sCc}, 0')
        if br == 'A':
            e(f's_lshr_b32 s{sB}, s{sT1}, 1')
            e(f's_and_b32 s{sT1}, s{sT1}, 1')
            e(f's_lshl_b32 s{sT0}, s{sT0}, 1')
            e(f's_add_u32 s{sT0}, s{sT0}, s{sT1}')
            e(f's_lshl_b32 s{sH}, s{sT0}, 1')
            e(f's_add_u32 s{sH}, s{sH}, s{sJ}')
            e(f's_lshl_b32 s{sT1}, s{sB}, 4')
            e(f's_add_u32 s{sT1}, s{sT1}, s{sT0}')
            srd(e, sX, 40, 41, X_BYTES); srd(e, sK, 42, 43, KA_BYTES); srd(e, sV, 44, 45, KA_BYTES); srd(e, sW, 46, 47, W_BYTES)
        else:
            e(f's_lshr_b32 s{sB}, s{sT1}, 2')
            e(f's_lshl_b32 s{sT2}, s{sJ}, 2')
            e(f's_add_u32 s{sB}, s{sB}, s{sT2}')
            e(f's_and_b32 s{sT1}, s{sT1}, 3')
            e(f's_lshl_b32 s{sH}, s{sT0}, 2')
            e(f's_add_u32 s{sH}, s{sH}, s{sT1}')
            e(f's_lshl_b32 s{sT1}, s{sB}, 5')
            e(f's_add_u32 s{sT1}, s{sT1}, s{sH}')
            srd(e, sX, 50, 51, X_BYTES); srd(e, sK, 52, 53, KB_BYTES); srd(e, sV, 54, 55, KB_BYTES); srd(e, sW, 56, 57, W_BYTES)
        srd(e, sO, 58, 59, O_BYTES)
        if self.cfg.get('kvsame'): e(f's_and_b32 s{sT1}, s2, 7')
        e(f's_lshl_b32 s{sKoff}, s{sT1}, 18')
        e(f's_lshl_b32 s{sT2}, s{sKH}, 13')
        e(f's_add_u32 s{sKoff}, s{sKoff}, s{sT2}')
        e(f's_mov_b32 s{sVoff}, s{sKoff}')
        e(f's_mul_i32 s{sOoff}, s{sB}, {5*128*1024}')
        e(f's_lshl_b32 s{sT2}, s{sH}, 12')
        e(f's_add_u32 s{sOoff}, s{sOoff}, s{sT2}')
        e(f's_lshl_b32 s{sT2}, s{sKH}, 11')
        e(f's_add_u32 s{sOoff}, s{sOoff}, s{sT2}')
        if br == 'B':
            e(f's_add_u32 s{sOoff}, s{sOoff}, {O_BR}')
        if br == 'A':
            e(f's_mul_i32 s{sXoff}, s{sB}, 92160')
            e(f's_mul_i32 s{sT2}, s{sWv}, 9216')
            e(f's_add_u32 s{sXoff}, s{sXoff}, s{sT2}')
            e(f's_lshl_b32 s{sXl}, s{sWv}, 10')
            e(f's_mul_i32 s65, s{sB}, 92160')
            e(f's_add_u32 s{sT2}, s{sKH}, 8')
            e(f's_lshl_b32 s66, s{sT2}, 10')
            e(f's_mul_i32 s{sT2}, s{sT2}, 9216')
            e(f's_add_u32 s65, s65, s{sT2}')
            e(f's_lshl_b32 s{sWoff}, s{sH}, 8')
            e(f's_lshl_b32 s{sT2}, s{sKH}, 18')
            e(f's_add_u32 s{sWoff}, s{sWoff}, s{sT2}')
            e(f's_lshl_b32 s{sWl}, s{sJ}, 14')
            e(f's_lshl_b32 s{sT2}, s{sKH}, 13')
            e(f's_add_u32 s{sWl}, s{sWl}, s{sT2}')
            e(f's_add_u32 s{sWl}, s{sWl}, 10240')
            xoffj, woffj = (0, 0), (10240, 16384)
        else:
            e(f's_mul_i32 s{sXoff}, s{sB}, 92160')
            e(f's_mul_i32 s{sT2}, s{sKH}, {40*1152}')
            e(f's_add_u32 s{sXoff}, s{sXoff}, s{sT2}')
            e(f's_mul_i32 s{sXl}, s{sWv}, 5120')
            e(f's_lshl_b32 s{sWoff}, s{sH}, 8')
            e(f's_lshl_b32 s{sT2}, s{sWv}, 17')
            e(f's_add_u32 s{sWoff}, s{sWoff}, s{sT2}')
            e(f's_lshl_b32 s{sWl}, s{sWv}, 12')
            e(f's_add_u32 s{sWl}, s{sWl}, 20480')
            xoffj, woffj = (0, 10240), (20480, 0)
        e(f's_mul_i32 s{sT2}, s{sJ}, {xoffj[1]}')
        e(f's_add_u32 s{sT2}, s{sT2}, {QBUF0 + xoffj[0]}')
        e(f'v_lshrrev_b32 v{t1}, 1, v{vN}')
        for s2 in range(2):
            e(f'v_add_u32 v{t0}, {4*s2}, v{vG}')
            e(f'v_xor_b32 v{t0}, v{t0}, v{t1}')
            e(f'v_lshlrev_b32 v{t0}, 4, v{t0}')
            e(f'v_lshl_add_u32 v{t0}, v{vN}, 7, v{t0}')
            e(f'v_add_u32 v{vXr+s2}, s{sT2}, v{t0}')
        e(f's_mul_i32 s{sT2}, s{sJ}, {woffj[1]}')
        e(f's_add_u32 s{sT2}, s{sT2}, {QBUF0 + woffj[0]}')
        e(f'v_bfe_u32 v{t1}, v{vL}, 2, 2')
        e(f'v_and_b32 v{t2}, 1, v{vG}')
        e(f'v_lshl_or_b32 v{t2}, v{t2}, 2, v{t1}')
        e(f'v_lshlrev_b32 v{t2}, 1, v{t2}')
        e(f'v_bfe_u32 v{t3}, v{vL}, 1, 1')
        e(f'v_xor_b32 v{t2}, v{t2}, v{t3}')
        e(f'v_lshl_add_u32 v{t1}, v{vG}, 3, v{t1}')
        e(f'v_and_b32 v{t3}, 1, v{vL}')
        e(f'v_lshlrev_b32 v{t3}, 3, v{t3}')
        e(f'v_lshl_add_u32 v{t3}, v{t1}, 8, v{t3}')
        e(f'v_add_u32 v{t3}, s{sT2}, v{t3}')
        for tt in range(4):
            e(f's_lshl_b32 s{sT2}, s{sKH}, 2')
            e(f's_add_u32 s{sT2}, s{sT2}, {tt}')
            e(f's_lshl_b32 s{sT2}, s{sT2}, 1')
            e(f'v_xor_b32 v{t0}, s{sT2}, v{t2}')
            e(f'v_lshl_add_u32 v{vWr+tt}, v{t0}, 4, v{t3}')

    def q_dma(self, br, c):
        qb = QBUF0 + (c % 3) * QBUFSZ
        tag = ('Q', c)
        G = []
        g = [(f's_lshl_b32 s{sT2}, s{sCc}, 7', None), (f's_add_u32 s{sXc}, s{sXoff}, s{sT2}', None)]
        if br == 'A': g.append((f's_add_u32 s{sX3c}, s65, s{sT2}', None))
        if self.cfg.get('qsame'):
            g = [(f's_mov_b32 s{sXc}, 0', None), (f's_mov_b32 s{sX3c}, 0', None), (f's_mov_b32 s{sWc}, 0', None)]
        else:
          g += [(f's_lshl_b32 s{sT2}, s{sCc}, 19', None), (f's_add_u32 s{sWc}, s{sWoff}, s{sT2}', None),
              (f's_add_u32 s{sCc}, s{sCc}, 1', None), (f's_cmp_eq_u32 s{sCc}, 9', None), (f's_cselect_b32 s{sCc}, 0, s{sCc}', None)]
        G.append(g)
        def ld(voff, srdr, soff, off, fl, pre=()):
            G.append(list(pre) + [(f'buffer_load_dwordx4 v{voff}, s[{srdr}:{srdr+3}], s{soff} offen offset:{off}{fl} lds', tag)])
        m0 = lambda reg, imm: (f's_add_u32 m0, s{reg}, {qb + imm}', None)
        if br == 'A':
            ld(vXd, sX, sXc, 0, self.xfl, [m0(sXl, 0)])
            ld(vXd, sX, sT2, 0, self.xfl, [m0(sXl, 4096), (f's_add_u32 s{sT2}, s{sXc}, {4*9216}', None)])
            ld(vXd, sX, sX3c, 0, self.xfl, [m0(66, 0), ('s_nop 0', None)])
            for i in range(4):
                ld(vWd + i, sW, sWc, 1024*i, self.wfl, [m0(sWl, 0), ('s_nop 0', None)] if i == 0 else [])
            for i in range(4):
                ld(vWd + i, sW, sWc, 1024*i, self.wfl, [m0(sWl, 4096), (f's_add_u32 s{sWc}, s{sWc}, {4*32768}', None)] if i == 0 else [])
        else:
            for i in range(4):
                ld(vXd + i, sX, sXc, 1024*i, self.xfl, [m0(sXl, 0), ('s_nop 0', None)] if i == 0 else [])
            ld(vXd, sX, sXc, 0, self.xfl, [m0(sXl, 4096), (f's_add_u32 s{sXc}, s{sXc}, {4*9216}', None)])
            for i in range(4):
                ld(vWd + i, sW, sWc, 1024*i, self.wfl, [m0(sWl, 0), ('s_nop 0', None)] if i == 0 else [])
        return G

    def kv_dma(self, kind, par, tag):
        if kind == 'K': l, off, s, vo, tmp = sKl, sKoff, sK, [vKd, vKd + 1, vKd + 2, vKd + 3], sKt
        else: l, off, s, vo, tmp = sVl, sVoff, sV, [vVd, vVd + 1, vVd, vVd + 1], sVt
        G = []
        for half in range(2):
            for q in range(4):
                g = []
                if q == 0:
                    g.append((f's_add_u32 m0, s{l}, {par * 32768 + half * 4096}', None))
                    if half == 0: g.append((f's_add_u32 s{tmp}, s{off}, 4096', None))
                    else: g.append((f's_add_u32 s{off}, s{off}, 16384', None))
                so = off if half == 0 else tmp
                g.append((f'buffer_load_dwordx4 v{vo[q]}, s[{s}:{s+3}], s{so} offen offset:{q*1024}{self.kvfl} lds', tag))
                G.append(g)
        return G

    def q_reads(self, s2):
        G = []
        for tt in range(4):
            for sec in range(2):
                G.append([(f'ds_read_b64_tr_b16 {ar(aWF[s2] + 4*tt + 2*sec, 2)}, v{vWr+tt} offset:{s2*8192 + sec*1024}', ('q', s2))])
            if tt == 0:
                for rt in range(5):
                    G.append([(f'ds_read_b128 {ar(aXF[s2] + 4*rt, 4)}, v{vXr+s2} offset:{rt*2048}', ('q', s2))])
        return G

    def q_mfmas(self, s2, first):
        L = []
        for tt in range(4):
            for rt in range(5):
                acc = vr(Qacc(tt, rt), 4)
                cc = '0' if first else acc
                L.append(f'{MFMA} {acc}, {ar(aWF[s2] + 4*tt, 4)}, {ar(aXF[s2] + 4*rt, 4)}, {cc}')
        return L

    def q_phase(self, br):
        e = self.e
        self.q_setup(br)
        self.stamp(1, 2)
        emit_groups(e, self.q_dma(br, 0))
        emit_groups(e, self.q_dma(br, 1))
        for c in range(9):
            e.wait_vm(('Q', c))
            e.wait_lg()
            e('s_barrier')
            if c == 4: self.cstamp(0, 4)
            if c == 5: self.cstamp(3, 4)
            self.stamp(2 + c, 2)
            G = []
            if c + 2 <= 8: G += self.q_dma(br, c + 2)
            if c == 6: G += self.kv_dma('K', 0, ('K', 0))
            if c == 7: G += self.kv_dma('K', 1, ('K', 1))
            if c == 8: G += self.kv_dma('V', 0, ('V', 0))
            R0 = self.q_reads(0)
            h = (len(G) + 1) // 2
            if c > 0:
                mf = self.q_mfmas(1, False)
                interleave(e, mf[:13], R0, start=0, every=1)
                interleave(e, mf[13:], G[:h], start=0)
            else:
                emit_groups(e, R0); emit_groups(e, G[:h])
            if c == 4: self.cstamp(1, 4)
            e.wait_lg(('q', 0))
            adv = []
            if c < 8:
                d = QBUFSZ if (c % 3) != 2 else -2 * QBUFSZ
                for r in (vXr, vXr + 1, vWr, vWr + 1, vWr + 2, vWr + 3):
                    adv.append([((f'v_add_u32 v{r}, {d}, v{r}' if d > 0 else f'v_subrev_u32 v{r}, {-d}, v{r}'), None)])
            mf = self.q_mfmas(0, c == 0)
            interleave(e, mf[:13], self.q_reads(1), start=0, every=1)
            interleave(e, mf[13:], G[h:] + adv, start=0)
            if c == 4: self.cstamp(2, 4)
        e.wait_lg()
        for t in self.q_mfmas(1, False): e(t)

    def q_exchange(self):
        e = self.e
        t0, t1, t2, t3 = vT, vT + 1, vT + 2, vT + 3
        e('s_barrier')
        e(f's_mul_i32 s{sT2}, s{sJ}, 20480')
        e(f's_add_u32 s{sT2}, s{sT2}, {QIMG}')
        e(f'v_and_b32 v{t1}, 1, v{vG}')
        e(f'v_lshlrev_b32 v{t1}, 3, v{t1}')
        e(f'v_lshl_add_u32 v{t1}, v{vN}, 8, v{t1}')
        e(f'v_add_u32 v{t1}, s{sT2}, v{t1}')
        e(f'v_lshrrev_b32 v{t2}, 1, v{vG}')
        e(f'v_xor_b32 v{t2}, v{t2}, v{vN}')
        for tt in range(4):
            e(f's_lshl_b32 s{sT1}, s{sKH}, 2')
            e(f's_add_u32 s{sT1}, s{sT1}, {tt}')
            e(f's_lshl_b32 s{sT1}, s{sT1}, 1')
            e(f'v_xor_b32 v{t0}, s{sT1}, v{t2}')
            e(f'v_lshl_add_u32 v{vT+4+tt}, v{t0}, 4, v{t1}')
        for tt in range(4):
            for rt in range(5):
                b = Qacc(tt, rt)
                for k in range(4): e(f'v_mul_f32 v{b+k}, s{sC}, v{b+k}')
                e(f'v_cvt_pk_bf16_f32 v{b}, v{b}, v{b+1}')
                e(f'v_cvt_pk_bf16_f32 v{b+1}, v{b+2}, v{b+3}')
                e(f'ds_write_b64 v{vT+4+tt}, {vr(b, 2)} offset:{rt*4096}', 'qw')
        e.wait_lg()
        e('s_barrier')
        e(f's_sub_u32 s{sT2}, s{sT2}, s{sKl}')
        for s in range(4):
            e(f'v_add_u32 v{vT+4+s}, s{sT2}, v{vKr+s}')
        for rt in range(5):
            for s in range(4):
                e(f'ds_read_b128 {ar(Qf(rt, s), 4)}, v{vT+4+s} offset:{rt*4096}', 'qr')
        e(f'v_mov_b32 v{vT}, 0x3f803f80')
        for k in range(4): e(f'v_accvgpr_write_b32 a{aOne+k}, v{vT}')
        e.wait_lg()
        e('s_barrier')
        emit_groups(e, self.kv_dma('V', 1, ('V', 1)))

    def rowmax_xlane(self, r, rt):
        mx, t = vT + rt, vT + 5
        r(f'v_mov_b32 v{t}, v{mx}')
        r(f'v_permlane16_swap_b32 v{mx}, v{t}')
        r(f'v_max_f32 v{mx}, v{mx}, v{t}')
        r(f'v_mov_b32 v{t}, v{mx}')
        r(f'v_permlane32_swap_b32 v{mx}, v{t}')
        r(f'v_max_f32 v{mx}, v{mx}, v{t}')

    def rare_block(self, lab, back):
        r = Emitter()
        r.label(lab)
        r('s_nop 7')
        f = vT + 6
        for rt in range(5):
            mx = vT + rt
            self.rowmax_xlane(r, rt)
            r(f'v_max_f32 v{mx}, 0, v{mx}')
            r(f'v_sub_f32 v{f}, 0, v{mx}')
            r(f'v_exp_f32 v{f}, v{f}')
            for k in range(4): r(f'v_sub_f32 v{NM(rt)+k}, v{NM(rt)+k}, v{mx}')
            for k in range(8): r(f'v_sub_f32 v{Sreg(rt,0)+k}, v{Sreg(rt,0)+k}, v{mx}')
            for k in range(4):
                r(f'v_accvgpr_read_b32 v{vT+8}, a{Lf(rt)+k}')
                r(f'v_mul_f32 v{vT+8}, v{vT+8}, v{f}')
                r(f'v_accvgpr_write_b32 a{Lf(rt)+k}, v{vT+8}')
            for ts in range(8):
                b = Oreg(ts, rt)
                r(f'v_pk_mul_f32 {vr(b,2)}, {vr(b,2)}, {vr(f,2)} op_sel_hi:[1,0]')
                r(f'v_pk_mul_f32 {vr(b+2,2)}, {vr(b+2,2)}, {vr(f,2)} op_sel_hi:[1,0]')
        r('s_nop 7')
        r(f's_branch {back}')
        r.fix_hazards()
        self.rare.append(r)

    def k_reads(self, it, par):
        e = self.e
        e.wait_vm(('K', it))
        for s in range(4):
            for kt in range(2):
                e(f'ds_read_b128 {ar(Kf(kt, s), 4)}, v{vKr+s} offset:{par*32768 + kt*4096}', 'k')

    def iteration(self, it, par, issue_next, next_k=True, first=False):
        e = self.e
        mx = [vT + i for i in range(5)]
        def maxops(rt):
            b = Sreg(rt, 0)
            return [[(f'v_max3_f32 v{mx[rt]}, v{b}, v{b+1}, v{b+2}', None)],
                    [(f'v_max3_f32 v{mx[rt]}, v{mx[rt]}, v{b+3}, v{b+4}', None)],
                    [(f'v_max3_f32 v{mx[rt]}, v{mx[rt]}, v{b+5}, v{b+6}', None)],
                    [(f'v_max_f32 v{mx[rt]}, v{mx[rt]}, v{b+7}', None)]]
        def softmax(rt):
            b = Sreg(rt, 0)
            L = []
            for k in range(4):
                L.append(f'v_exp_f32 v{b+2*k}, v{b+2*k}')
                L.append(f'v_exp_f32 v{b+2*k+1}, v{b+2*k+1}')
            for k in range(4): L.append(f'v_cvt_pk_bf16_f32 v{b+k}, v{b+2*k}, v{b+2*k+1}')
            return [[(t, None)] for t in L]
        def vreads():
            return [[(f'ds_read_b64_tr_b16 {ar(Vf(ts) + 2*sec, 2)}, v{vVr+ts} offset:{par*32768 + sec*4096}', 'v')] for ts in range(8) for sec in range(2)]
        e.wait_lg()
        mb = self.cfg.get('mainbar', 0)
        if mb and issue_next:
            self.nbar = getattr(self, 'nbar', 0) + 1
            if mb == 1:
                e(f's_cmp_lg_u32 s{sBr}, 0')
                e(f's_cbranch_scc1 L_{self.name}_nb{self.nbar}')
                e('s_barrier')
                e.label(f'L_{self.name}_nb{self.nbar}')
            else:
                e('s_barrier')
        G = self.kv_dma('K', par, ('K', it + 2)) if issue_next else []
        for rt in range(5):
            mf = []
            for s in range(4):
                for kt in range(2):
                    acc = vr(Sreg(rt, kt), 4)
                    cc = acc if s else ('0' if first else vr(NM(rt), 4))
                    mf.append(f'{MFMA} {acc}, {ar(Kf(kt, s), 4)}, {ar(Qf(rt, s), 4)}, {cc}')
            extra = []
            if rt < 4 and G: extra += G[2*rt:2*rt+2]
            if rt >= 2: extra += maxops(rt - 2)
            if rt == 4:
                e.wait_vm(('V', it))
                R = vreads()
                extra = extra[:2] + R[:4] + extra[2:] + R[4:8]
                interleave(e, mf, extra, start=0)
                emit_groups(e, R[8:])
            else:
                interleave(e, mf, extra, start=1)
        emit_groups(e, maxops(3))
        emit_groups(e, maxops(4))
        if first:
            for rt in range(5):
                self.rowmax_xlane(e, rt)
                for k in range(4): e(f'v_sub_f32 v{NM(rt)+k}, 0, v{mx[rt]}')
                for k in range(8): e(f'v_sub_f32 v{Sreg(rt,0)+k}, v{Sreg(rt,0)+k}, v{mx[rt]}')
        else:
            t = vT + 5
            e(f'v_max3_f32 v{t}, v{mx[0]}, v{mx[1]}, v{mx[2]}')
            e(f'v_max3_f32 v{t}, v{t}, v{mx[3]}, v{mx[4]}')
            e(f'v_cmp_lt_f32 vcc, s{sT}, v{t}')
            self.nrare += 1
            lab, back = f'L_{self.name}_rare{self.nrare}', f'L_{self.name}_back{self.nrare}'
            e(f's_cbranch_vccnz {lab}')
            e.label(back)
            self.rare_block(lab, back)
        emit_groups(e, softmax(0))
        e.wait_lg()
        G = self.kv_dma('V', par, ('V', it + 2)) if issue_next else []
        for rt in range(5):
            mf = []
            P = vr(Sreg(rt, 0), 4)
            for ts in range(8):
                acc = vr(Oreg(ts, rt), 4)
                mf.append(f'{MFMA} {acc}, {ar(Vf(ts), 4)}, {P}, {"0" if first else acc}')
            la = ar(Lf(rt), 4)
            mf.append(f'{MFMA} {la}, {ar(aOne, 4)}, {P}, {"0" if first else la}')
            if rt < 4:
                sm = softmax(rt + 1)
                gg = G[2*rt:2*rt+2] if G else []
                extra = sm[:4] + gg[:1] + sm[4:8] + gg[1:] + sm[8:]
                interleave(e, mf, extra, start=0)
            else:
                if next_k: self.k_reads(it + 1, par ^ 1)
                for t in mf: e(t)

    def main_loop(self):
        e = self.e
        self.k_reads(0, 0)
        self.iteration(0, 0, True, first=True)
        self.iteration(1, 1, True)
        self.stamp(3)
        q0 = [(k, i - 2) for (k, i) in e.vmq]
        l0 = list(e.lgq)
        e(f's_mov_b32 s{sLoop}, 6')
        e.label(f'L_{self.name}_loop')
        self.iteration(2, 0, True)
        self.iteration(3, 1, True)
        q1 = [(k, i - 4) for (k, i) in e.vmq]
        assert q0 == q1, (q0, q1)
        assert l0 == e.lgq
        e(f's_sub_u32 s{sLoop}, s{sLoop}, 1')
        e(f's_cmp_lg_u32 s{sLoop}, 0')
        e(f's_cbranch_scc1 L_{self.name}_loop')
        self.iteration(4, 0, False)
        self.iteration(5, 1, False, next_k=False)

    def epilogue(self):
        e = self.e
        t0, t1 = vT, vT + 1
        self.cstamp(0, 6)
        vMx, vLx = vS + 30, vS + 35
        for rt in range(5):
            e(f'v_sub_f32 v{vMx+rt}, 0, v{NM(rt)}')
            e(f'v_accvgpr_read_b32 v{vLx+rt}, a{Lf(rt)}')
        aw, ap = vT + 2, vT + 3
        e(f's_mul_i32 s{sT0}, s{sWv}, 640')
        e(f's_add_u32 s{sT0}, s{sT0}, {STATS}')
        e(f'v_lshlrev_b32 v{t0}, 3, v{vN}')
        e(f'v_add_u32 v{aw}, s{sT0}, v{t0}')
        e(f's_xor_b32 s{sT1}, s{sWv}, 1')
        e(f's_mul_i32 s{sT1}, s{sT1}, 640')
        e(f's_add_u32 s{sT1}, s{sT1}, {STATS}')
        e(f'v_add_u32 v{ap}, s{sT1}, v{t0}')
        for rt in range(5):
            e(f'ds_write2_b32 v{aw}, v{vMx+rt}, v{vLx+rt} offset0:{rt*32} offset1:{rt*32+1}', 'sw')
        e.wait_lg()
        self.cstamp(1, 6)
        e('s_barrier')
        self.cstamp(2, 6)
        for rt in range(5):
            e(f'ds_read_b64 {vr(vS + 2*rt, 2)}, v{ap} offset:{rt*128}', 'sr')
        e.wait_lg()
        G = vS + 16
        for rt in range(5):
            mp, lp = vS + 2*rt, vS + 2*rt + 1
            M = vT + 4; fo = vT + 5; fp = vT + 6
            e(f'v_max_f32 v{M}, v{vMx+rt}, v{mp}')
            e(f'v_sub_f32 v{fo}, v{vMx+rt}, v{M}')
            e(f'v_sub_f32 v{fp}, v{mp}, v{M}')
            e(f'v_exp_f32 v{fo}, v{fo}')
            e(f'v_exp_f32 v{fp}, v{fp}')
            e(f'v_mul_f32 v{lp}, v{lp}, v{fp}')
            e(f'v_fma_f32 v{lp}, v{vLx+rt}, v{fo}, v{lp}')
            e(f'v_rcp_f32 v{lp}, v{lp}')
            e(f'v_mul_f32 v{G + 2*rt}, v{fo}, v{lp}')
        self.cstamp(3, 6)
        xa = vT + 4
        e(f's_mul_i32 s{sT0}, s{sWv}, 20480')
        e(f's_add_u32 s{sT0}, s{sT0}, {OX}')
        e(f'v_lshlrev_b32 v{t0}, 4, v{vL}')
        e(f'v_add_u32 v{xa}, s{sT0}, v{t0}')
        e(f's_xor_b32 s{sT1}, s{sWv}, 1')
        e(f's_mul_i32 s{sT1}, s{sT1}, 20480')
        e(f's_add_u32 s{sT1}, s{sT1}, {OX}')
        e(f'v_add_u32 v{xa+1}, s{sT1}, v{t0}')
        for ts in (4, 5, 6, 7):
            for rt in range(5):
                b = Oreg(ts, rt); g = G + 2*rt
                e(f'v_pk_mul_f32 {vr(b,2)}, {vr(b,2)}, {vr(g,2)} op_sel_hi:[1,0]')
                e(f'v_pk_mul_f32 {vr(b+2,2)}, {vr(b+2,2)}, {vr(g,2)} op_sel_hi:[1,0]')
                if ts >= 4:
                    e(f'ds_write_b128 v{xa}, {vr(b,4)} offset:{((ts-4)*5+rt)*1024}', 'ow')
        e.wait_lg()
        self.cstamp(4, 6)
        e('s_barrier')
        self.cstamp(5, 6)
        for ts in range(4):
            for rt in range(5):
                e(f'ds_read_b128 {vr(Oreg(ts+4, rt),4)}, v{xa+1} offset:{(ts*5+rt)*1024}', ('or', ts))
            if ts >= 1:
                self._epi_add(ts - 1)
        self._epi_add(3)
        self.cstamp(6, 6)
        so = vT + 6
        e(f'v_lshlrev_b32 v{so}, 4, v{vL}')
        for rt in range(5):
            for u in range(2):
                a, b = Oreg(2*u, rt), Oreg(2*u + 1, rt)
                e(f'v_cvt_pk_bf16_f32 v{a}, v{a}, v{a+1}')
                e(f'v_cvt_pk_bf16_f32 v{a+1}, v{a+2}, v{a+3}')
                e(f'v_cvt_pk_bf16_f32 v{a+2}, v{b}, v{b+1}')
                e(f'v_cvt_pk_bf16_f32 v{a+3}, v{b+2}, v{b+3}')
                e(f'buffer_store_dwordx4 {vr(a,4)}, v{so}, s[{sO}:{sO+3}], s{sOoff} offen offset:{u*1024}{self.ofl}', 'ost')
            if rt < 4:
                e(f's_add_u32 s{sOoff}, s{sOoff}, 131072')
        self.cstamp(7, 6)
        if self.cfg.get('stamps'): e.wait_vm_all()
        self.cstamp(8, 6)

    def _epi_add(self, ts):
        e = self.e
        e.wait_lg(('or', ts))
        for rt in range(5):
            a, b = Oreg(ts, rt), Oreg(ts + 4, rt)
            g = vS + 16 + 2*rt
            e(f'v_pk_fma_f32 {vr(a,2)}, {vr(a,2)}, {vr(g,2)}, {vr(b,2)} op_sel_hi:[1,0,1]')
            e(f'v_pk_fma_f32 {vr(a+2,2)}, {vr(a+2,2)}, {vr(g,2)}, {vr(b+2,2)} op_sel_hi:[1,0,1]')

    def build(self):
        e = self.e
        n = self.name
        e.raw(f'.globl {n}\n.p2align 8\n.type {n},@function')
        e.label(n)
        self.stamp(0); self.stamp(0, 2); self.stamp(0, 3); self.cstamp(4); self.stamp(0, 5); self.cstamp(1, 5)
        self.prologue()
        e(f's_cmp_eq_u32 s{sBr}, 0')
        e(f's_cbranch_scc0 L_{n}_qB')
        saved = (list(e.vmq), list(e.lgq))
        self.q_phase('A')
        endA = (list(e.vmq), list(e.lgq))
        e(f's_branch L_{n}_qx')
        e.label(f'L_{n}_qB')
        e.vmq, e.lgq = list(saved[0]), list(saved[1])
        self.q_phase('B')
        assert (e.vmq, e.lgq) == endA, (e.vmq, endA)
        e.label(f'L_{n}_qx')
        self.stamp(1); self.stamp(11, 2); self.stamp(1, 3); self.cstamp(5)
        self.q_exchange()
        self.stamp(2); self.stamp(12, 2); self.stamp(2, 3); self.cstamp(6); self.stamp(2, 5)
        self.main_loop()
        self.stamp(4); self.stamp(3, 3); self.cstamp(7); self.stamp(3, 5)
        self.epilogue()
        self.stamp(5)
        if self.cfg.get('fused'):
            from tail import fused_tail
            fused_tail(self)
            self.stamp(9)
            if self.cfg.get('stamps') == 5:
                self.stamp(4, 5); self.cstamp(5, 5)
                e('s_waitcnt lgkmcnt(0)')
                e(f's_cmp_lg_u32 s2, {self.cfg.get("dbgwg", 0)}')
                e(f's_cbranch_scc1 L_{n}_end')
                e(f's_cmp_lg_u32 s{sWv}, 0')
                e(f's_cbranch_scc1 L_{n}_end')
                e('s_sub_u32 s78, s78, s70')
                e('s_sub_u32 s80, s80, s72')
                e('s_sub_u32 s76, s76, s70')
                e('s_sub_u32 s74, s74, s70')
                e('v_mov_b32 v4, s78'); e('v_mov_b32 v5, s80'); e('v_mov_b32 v6, s76'); e('v_mov_b32 v7, s74')
                e('v_mov_b32 v8, 48')
                e('s_mov_b64 exec, 1')
                e('buffer_store_dwordx4 v[4:7], v8, s[16:19], 0 offen')
                e('s_waitcnt vmcnt(0)')
                e.vmq = []
            else:
                self.write_stamps(10 if self.cfg.get('stamps') == 1 else 13)
        else:
            self.write_stamps(6 if self.cfg.get('stamps') == 1 else 13)
        e.label(f'L_{n}_end')
        e('s_endpgm')
        for r in self.rare:
            e.ins.extend(r.ins)
        e('s_endpgm')
        kd = f'''
.amdhsa_kernel {n}
  .amdhsa_next_free_vgpr 512
  .amdhsa_next_free_sgpr 102
  .amdhsa_accum_offset 256
  .amdhsa_group_segment_fixed_size 0
  .amdhsa_kernarg_size 104
  .amdhsa_user_sgpr_count 2
  .amdhsa_user_sgpr_kernarg_segment_ptr 1
  .amdhsa_system_sgpr_workgroup_id_x 1
.end_amdhsa_kernel
'''
        return kd
```

```python
from asmgen import *
import attn as A
from attn import srd, O_BR, O_BYTES, MFMA, interleave, emit_groups

WO_BYTES = 4096 * 1152
OUT_BYTES = 640 * 2304

def fused_tail(gen):
    e, cfg, n = gen.e, gen.cfg, gen.name
    ofl = cfg.get('o2_flags', ' sc1')
    wfl = cfg.get('wo_flags', '')
    sfl = cfg.get('out_flags', '')
    MT, NT = 3, 4
    RW = cfg.get('tail_rw', 8)
    RO = 4
    sWv, sBrA = A.sWv, A.sBr
    sBatt = A.sB
    sO, sW, sOut, sD = A.sO, 8, 12, 16
    sBr, sMt, sN0, sT0, sT1, sT2 = 4, 5, 6, 37, 38, 39
    sOoff, sWoff, sWl, sLoop = 7, 30, 31, 32
    sOm = 33
    sMg, sNg, sRot = 61, 62, 65
    sWo, sOo = 66, 67
    sRotO = 3
    vL, vN, vG, vT = A.vL, A.vN, A.vG, 4
    vWd, vOd, vWr = 10, 14, 16
    vAcc, vWF, vOF = 20, 68, 84
    RED = 0
    e('s_load_dwordx2 s[42:43], s[0:1], 72')
    e('s_load_dwordx4 s[44:47], s[0:1], 80')
    e.wait_vm_all()
    e('s_barrier')
    e('s_waitcnt lgkmcnt(0)')
    e.lgq = []
    srd(e, sD, 46, 47, 256)
    e(f's_cmp_lg_u32 s{sWv}, 0')
    e(f's_cbranch_scc1 L_{n}_nosig')
    e(f's_add_u32 s{sT0}, s{sBatt}, 8')
    e(f's_cmp_eq_u32 s{sBrA}, 0')
    e(f's_cselect_b32 s{sT0}, s{sBatt}, s{sT0}')
    e(f's_lshl_b32 s{sT0}, s{sT0}, 2')
    e(f'v_mov_b32 v{vT}, s{sT0}')
    e(f'v_mov_b32 v{vT+1}, 1')
    e('s_mov_b64 exec, 1')
    e(f'buffer_atomic_add v{vT+1}, v{vT}, s[{sD}:{sD+3}], 0 offen sc1', 'sig')
    e('s_mov_b64 exec, -1')
    e.vmq = []
    e.label(f'L_{n}_nosig')
    e(f's_and_b32 s{sT0}, s2, 7')
    e(f's_lshr_b32 s{sT1}, s2, 3')
    e(f's_lshr_b32 s{sBr}, s{sT0}, 2')
    e(f's_and_b32 s{sOm}, s{sT0}, 1')
    e(f's_bfe_u32 s{sOm+1}, s{sT0}, 0x10001')
    e(f's_mul_i32 s{sOm}, s{sOm}, 7')
    e(f's_cmp_lt_u32 s{sT1}, 28')
    e(f's_cbranch_scc0 L_{n}_extra')
    e(f's_lshr_b32 s{sMg}, s{sT1}, 2')
    e(f's_add_u32 s{sMg}, s{sMg}, s{sOm}')
    e(f's_and_b32 s{sNg}, s{sT1}, 3')
    e(f's_mul_i32 s{sOm+1}, s{sOm+1}, 5')
    e(f's_add_u32 s{sNg}, s{sNg}, s{sOm+1}')
    e(f's_branch L_{n}_dec')
    e.label(f'L_{n}_extra')
    e(f's_sub_u32 s{sT1}, s{sT1}, 28')
    e(f's_lshl_b32 s{sOm+2}, s{sOm+1}, 2')
    e(f's_add_u32 s{sMg}, s{sT1}, s{sOm+2}')
    e(f's_cmp_ge_u32 s{sMg}, 7')
    e(f's_cbranch_scc1 L_{n}_end')
    e(f's_add_u32 s{sMg}, s{sMg}, s{sOm}')
    e(f's_mov_b32 s{sNg}, 4')
    e.label(f'L_{n}_dec')
    e(f's_lshl_b32 s{sN0}, s{sNg}, 6')
    e(f's_mul_i32 s{sMt}, s{sMg}, 3')
    e(f's_add_u32 s{sRot}, s{sMg}, s{sNg}')
    e(f's_mul_i32 s{sT1}, s{sRot}, 37')
    e(f's_lshr_b32 s{sT1}, s{sT1}, 8')
    e(f's_mul_i32 s{sT1}, s{sT1}, 7')
    e(f's_sub_u32 s{sRot}, s{sRot}, s{sT1}')
    SEG = cfg.get('oseg', 16)
    e(f's_mul_i32 s{sRot}, s{sRot}, {(SEG*64 + 6)//7}')
    e(f's_lshr_b32 s{sRot}, s{sRot}, 6')
    if not cfg.get('orot', 1): e(f's_mov_b32 s{sRot}, 0')
    sCw, sCo = 70 - 0, 0
    sCw, sCo = 98, 99
    e(f's_mov_b32 s{sCw}, 0')
    e(f's_mov_b32 s{sCo}, 0')
    def kstep(cnt, dst, tmp):
        return [(f's_add_u32 s{dst}, s{cnt}, s{sRot}', None), (f's_and_b32 s{dst}, s{dst}, {SEG-1}', None),
                (f's_and_b32 s{tmp}, s{cnt}, {32-SEG}', None), (f's_or_b32 s{dst}, s{dst}, s{tmp}', None),
                (f's_lshl_b32 s{dst}, s{dst}, 10', None), (f's_add_u32 s{cnt}, s{cnt}, 1', None)]
    e(f's_movk_i32 s{sT1}, 1152')
    e(f'v_lshrrev_b32 v{vT}, 3, v{vL}')
    e(f'v_mul_lo_u32 v{vT}, v{vT}, s{sT1}')
    e(f'v_lshlrev_b32 v{vT+1}, 1, v{vG}')
    e(f'v_and_b32 v{vT+2}, 7, v{vL}')
    e(f'v_xor_b32 v{vT+1}, v{vT+1}, v{vT+2}')
    e(f'v_lshl_add_u32 v{vWd}, v{vT+1}, 4, v{vT}')
    for j in range(1, 4):
        e(f'v_add_u32 v{vWd+j}, {8192*j}, v{vWd}')
    e(f'v_lshlrev_b32 v{vOd}, 4, v{vL}')
    e(f's_mul_i32 s{sWl}, s{sWv}, {RW*4096}')
    e(f'v_bfe_u32 v{vT}, v{vL}, 2, 2')
    e(f'v_lshl_add_u32 v{vT}, v{vG}, 2, v{vT}')
    e(f'v_bfe_u32 v{vT+1}, v{vT}, 1, 2')
    e(f'v_lshlrev_b32 v{vT+1}, 1, v{vT+1}')
    e(f'v_bfe_u32 v{vT+2}, v{vL}, 1, 1')
    e(f'v_xor_b32 v{vT+1}, v{vT+1}, v{vT+2}')
    e(f'v_and_b32 v{vT+2}, 1, v{vL}')
    e(f'v_lshlrev_b32 v{vT+2}, 3, v{vT+2}')
    e(f'v_lshl_add_u32 v{vT+2}, v{vT}, 7, v{vT+2}')
    e(f'v_add_u32 v{vT+2}, s{sWl}, v{vT+2}')
    for nt in range(NT):
        e(f'v_xor_b32 v{vT}, {2*nt}, v{vT+1}')
        e(f'v_lshl_add_u32 v{vWr+nt}, v{vT}, 4, v{vT+2}')
    e(f's_cmp_eq_u32 s{sBr}, 0')
    e(f's_cselect_b32 s40, s48, s42')
    e(f's_cselect_b32 s41, s49, s43')
    srd(e, sW, 40, 41, WO_BYTES)
    srd(e, sOut, 44, 45, OUT_BYTES)
    e(f's_mul_i32 s{sWoff}, s{sWv}, {32*32*1152}')
    e(f's_lshl_b32 s{sT0}, s{sN0}, 1')
    e(f's_add_u32 s{sWoff}, s{sWoff}, s{sT0}')
    e(f's_mul_i32 s{sOoff}, s{sBr}, {O_BR}')
    e(f's_lshl_b32 s{sT0}, s{sMt}, 17')
    e(f's_add_u32 s{sOoff}, s{sOoff}, s{sT0}')
    e(f's_lshl_b32 s{sT0}, s{sWv}, 15')
    e(f's_add_u32 s{sOoff}, s{sOoff}, s{sT0}')
    for mi in range(MT):
        e(f's_add_u32 s{sOm+mi}, s{sOoff}, {mi*131072}')

    def w_groups(slot, tag):
        G = [kstep(sCw, sWo, sT0) + [(f's_add_u32 m0, s{sWl}, {slot*4096}', None),
              (f's_mul_i32 s{sWo}, s{sWo}, 36', None),
              (f's_add_u32 s{sWo}, s{sWo}, s{sWoff}', None)]]
        for j in range(4):
            G.append([(f'buffer_load_dwordx4 v{vWd+j}, s[{sW}:{sW+3}], s{sWo} offen offset:{1024*j}{wfl} lds', tag)])
        return G
    def o_groups(slot, tag):
        g = kstep(sCo, sRotO, sT1) + [(f's_add_u32 s{sOo+mi}, s{sOm+mi}, s{sRotO}', None) for mi in range(MT)]
        G = [g]
        for mi in range(MT):
            r = vOF + slot*12 + mi*4
            G.append([(f'buffer_load_dwordx4 {vr(r,4)}, v{vOd}, s[{sO}:{sO+3}], s{sOo+mi} offen{ofl}', tag)])
        return G

    for t in range(RW): emit_groups(e, w_groups(t, ('w', t)))
    gen.stamp(6)
    e(f's_cmp_lg_u32 s{sWv}, 0')
    e(f's_cbranch_scc1 L_{n}_nopoll')
    e(f's_mul_i32 s{sT0}, s{sMg}, 48')
    e(f's_add_u32 s{sT1}, s{sT0}, 47')
    e(f's_mul_i32 s{sT0}, s{sT0}, 0x334')
    e(f's_lshr_b32 s{sT0}, s{sT0}, 16')
    e(f's_mul_i32 s{sT1}, s{sT1}, 0x334')
    e(f's_lshr_b32 s{sT1}, s{sT1}, 16')
    e(f's_min_u32 s{sT1}, s{sT1}, 7')
    e(f's_cmp_eq_u32 s{sBr}, 0')
    e(f's_cbranch_scc1 L_{n}_pa')
    e(f's_and_b32 s{sT0}, s{sT0}, 3')
    e(f's_add_u32 s{sT0}, s{sT0}, 8')
    e(f's_and_b32 s{sT1}, s{sT1}, 3')
    e(f's_add_u32 s{sT1}, s{sT1}, 8')
    e.label(f'L_{n}_pa')
    e(f's_lshl_b32 s{sT2}, s{sBr}, 4')
    e(f's_add_u32 s{sT2}, s{sT2}, 16')
    e(f's_lshl_b32 s{sT0}, s{sT0}, 2')
    e(f's_lshl_b32 s{sT1}, s{sT1}, 2')
    e(f'v_mov_b32 v{vT}, s{sT0}')
    e(f'v_mov_b32 v{vT+1}, s{sT1}')
    e(f's_mov_b32 s{sLoop}, 0')
    e.label(f'L_{n}_poll')
    e(f'buffer_load_dword v{vT+2}, v{vT}, s[{sD}:{sD+3}], 0 offen sc1')
    e(f'buffer_load_dword v{vT+3}, v{vT+1}, s[{sD}:{sD+3}], 0 offen sc1')
    e('s_waitcnt vmcnt(0)')
    e(f'v_min_u32 v{vT+2}, v{vT+2}, v{vT+3}')
    e(f'v_readfirstlane_b32 s{sT0}, v{vT+2}')
    e(f's_cmp_ge_u32 s{sT0}, s{sT2}')
    e(f's_cbranch_scc1 L_{n}_nopoll')
    e(f's_add_u32 s{sLoop}, s{sLoop}, 1')
    e(f's_cmp_lt_u32 s{sLoop}, 0x20000')
    e(f's_cbranch_scc0 L_{n}_nopoll')
    e('s_sleep 2')
    e(f's_branch L_{n}_poll')
    e.label(f'L_{n}_nopoll')
    e.vmq = [('w', t) for t in range(RW) for _ in range(4)]
    e('s_barrier')
    gen.stamp(7)
    for t in range(RO): emit_groups(e, o_groups(t, ('o', t)))

    vWF2 = [vWF, 140]
    def w_reads(t):
        ws, b = t % RW, vWF2[t & 1]
        return [[(f'ds_read_b64_tr_b16 {vr(b + nt*4 + 2*sec, 2)}, v{vWr+nt} offset:{ws*4096 + sec*2048}', 'wf')] for nt in range(NT) for sec in range(2)]
    def step(t, first, nxt_w, nxt_o, last=False):
        ws, os_ = t % RW, t % RO
        e.wait_lg()
        e.wait_vm([('o', t)] + ([] if last else [('w', t + 1)]))
        b = vWF2[t & 1]
        mf = []
        for nt in range(NT):
            for mi in range(MT):
                acc = vr(vAcc + (nt*MT + mi)*4, 4)
                mf.append(f'{MFMA} {acc}, {vr(b + nt*4, 4)}, {vr(vOF + os_*12 + mi*4, 4)}, {"0" if first else acc}')
        R = [] if last else w_reads(t + 1)
        Gw = w_groups(ws, ('w', t + RW)) if nxt_w else []
        Go = o_groups(os_, ('o', t + RO)) if nxt_o else []
        interleave(e, mf[:4], R, start=0)
        interleave(e, mf[4:], Gw + Go[:1], start=0)
        emit_groups(e, Go[1:])

    e.wait_vm([('w', 0)])
    emit_groups(e, w_reads(0))
    for t in range(RW): step(t, t == 0, True, True)
    nmid = (32 - 2*RW) // RW
    if nmid > 0:
        q0 = [(k, i - RW) for (k, i) in e.vmq]
        l0 = list(e.lgq)
        e(f's_mov_b32 s{sLoop}, {nmid}')
        e.label(f'L_{n}_oloop')
        for t in range(RW, 2*RW): step(t, False, True, True)
        q1 = [(k, i - 2*RW) for (k, i) in e.vmq]
        assert q0 == q1, (q0, q1)
        assert l0 == e.lgq
        e(f's_sub_u32 s{sLoop}, s{sLoop}, 1')
        e(f's_cmp_lg_u32 s{sLoop}, 0')
        e(f's_cbranch_scc1 L_{n}_oloop')
    base = 2*RW if nmid > 0 else RW
    for t in range(base, base + RW): step(t, False, False, t + RO < base + RW, last=(t == base + RW - 1))
    gen.stamp(8)
    e('s_barrier')
    e(f's_mul_i32 s{sT0}, s{sWv}, 12288')
    e(f'v_add_u32 v{vT}, s{sT0}, v{vOd}')
    for t in range(NT*MT):
        e(f'ds_write_b128 v{vT}, {vr(vAcc + t*4, 4)} offset:{RED + t*1024}', 'rw')
    e.wait_lg()
    e('s_barrier')
    e(f's_mul_i32 s{sT0}, s{sWv}, {MT*1024}')
    e(f'v_add_u32 v{vT}, s{sT0}, v{vOd}')
    R = vOF
    for mi in range(MT):
        for v in range(4):
            e(f'ds_read_b128 {vr(R + (mi*4 + v)*4, 4)}, v{vT} offset:{RED + v*12288 + mi*1024}', ('r', mi))
    e(f's_lshl_b32 s{sT0}, s{sMt}, 4')
    e(f'v_add_u32 v{vT+1}, s{sT0}, v{vN}')
    e(f's_movk_i32 s{sT1}, 2304')
    e(f'v_mul_lo_u32 v{vT+1}, v{vT+1}, s{sT1}')
    e(f'v_lshl_add_u32 v{vT+1}, v{vG}, 3, v{vT+1}')
    e(f's_mul_i32 s{sT0}, s{sBr}, 1152')
    e(f's_lshl_b32 s{sT1}, s{sN0}, 1')
    e(f's_add_u32 s{sT0}, s{sT0}, s{sT1}')
    e(f's_lshl_b32 s{sT1}, s{sWv}, 5')
    e(f's_add_u32 s{sT0}, s{sT0}, s{sT1}')
    for mi in range(MT):
        e.wait_lg(('r', mi))
        b = R + mi*16
        e(f'v_pk_add_f32 {vr(b,2)}, {vr(b,2)}, {vr(b+4,2)}')
        e(f'v_pk_add_f32 {vr(b+2,2)}, {vr(b+2,2)}, {vr(b+6,2)}')
        e(f'v_pk_add_f32 {vr(b+8,2)}, {vr(b+8,2)}, {vr(b+12,2)}')
        e(f'v_pk_add_f32 {vr(b+10,2)}, {vr(b+10,2)}, {vr(b+14,2)}')
        e(f'v_pk_add_f32 {vr(b,2)}, {vr(b,2)}, {vr(b+8,2)}')
        e(f'v_pk_add_f32 {vr(b+2,2)}, {vr(b+2,2)}, {vr(b+10,2)}')
        e(f'v_cvt_pk_bf16_f32 v{b}, v{b}, v{b+1}')
        e(f'v_cvt_pk_bf16_f32 v{b+1}, v{b+2}, v{b+3}')
        e(f'buffer_store_dwordx2 {vr(b,2)}, v{vT+1}, s[{sOut}:{sOut+3}], s{sT0} offen{sfl}', 'st')
        if mi < MT - 1:
            e(f's_add_u32 s{sT0}, s{sT0}, {16*2304}')
    if cfg.get('stamps'): e.wait_vm_all()
```

```python
from asmgen import *
import attn as A
from attn import srd, O_BR, O_BYTES, MFMA, interleave, emit_groups

WO_BYTES = 4096 * 1152
OUT_BYTES = 640 * 2304

def fused_tail(gen):
    e, cfg, n = gen.e, gen.cfg, gen.name
    ofl = cfg.get('o2_flags', ' sc1')
    wfl = cfg.get('wo_flags', '')
    sfl = cfg.get('out_flags', '')
    MT, NT = 3, 4
    RW = cfg.get('tail_rw', 8)
    RO = 4
    sWv, sBrA = A.sWv, A.sBr
    sBatt = A.sB
    sO, sW, sOut, sD = A.sO, 8, 12, 16
    sBr, sMt, sN0, sT0, sT1, sT2 = 4, 5, 6, 37, 38, 39
    sOoff, sWoff, sWl, sLoop = 7, 30, 31, 32
    sOm = 33
    sMg, sNg, sRot = 61, 62, 65
    sWo, sOo = 66, 67
    sRotO = 3
    vL, vN, vG, vT = A.vL, A.vN, A.vG, 4
    vWd, vOd, vWr = 10, 14, 16
    vAcc, vWF, vOF = 20, 68, 84
    RED = 0
    e('s_load_dwordx2 s[42:43], s[0:1], 72')
    e('s_load_dwordx4 s[44:47], s[0:1], 80')
    e.wait_vm_all()
    e('s_barrier')
    e('s_waitcnt lgkmcnt(0)')
    e.lgq = []
    srd(e, sD, 46, 47, 256)
    e(f's_cmp_lg_u32 s{sWv}, 0')
    e(f's_cbranch_scc1 L_{n}_nosig')
    e(f'v_mov_b32 v{vT}, 0')
    e(f'v_mov_b32 v{vT+1}, 1')
    e('s_mov_b64 exec, 1')
    e(f'buffer_atomic_add v{vT+1}, v{vT}, s[{sD}:{sD+3}], 0 offen sc0 sc1', 'sig')
    e('s_waitcnt vmcnt(0)')
    e(f'v_readfirstlane_b32 s{sT0}, v{vT+1}')
    e(f's_cmp_lg_u32 s{sT0}, 255')
    e(f's_cbranch_scc1 L_{n}_notlast')
    e(f'v_mov_b32 v{vT+1}, 1')
    e(f'buffer_store_dword v{vT+1}, v{vT}, s[{sD}:{sD+3}], 0 offen offset:128 sc1', 'go')
    e.label(f'L_{n}_notlast')
    e('s_mov_b64 exec, -1')
    e.vmq = []
    e.label(f'L_{n}_nosig')
    e(f's_and_b32 s{sT0}, s2, 7')
    e(f's_lshr_b32 s{sT1}, s2, 3')
    e(f's_lshr_b32 s{sBr}, s{sT0}, 2')
    e(f's_and_b32 s{sOm}, s{sT0}, 1')
    e(f's_bfe_u32 s{sOm+1}, s{sT0}, 0x10001')
    e(f's_mul_i32 s{sOm}, s{sOm}, 7')
    e(f's_cmp_lt_u32 s{sT1}, 28')
    e(f's_cbranch_scc0 L_{n}_extra')
    e(f's_lshr_b32 s{sMg}, s{sT1}, 2')
    e(f's_add_u32 s{sMg}, s{sMg}, s{sOm}')
    e(f's_and_b32 s{sNg}, s{sT1}, 3')
    e(f's_mul_i32 s{sOm+1}, s{sOm+1}, 5')
    e(f's_add_u32 s{sNg}, s{sNg}, s{sOm+1}')
    e(f's_branch L_{n}_dec')
    e.label(f'L_{n}_extra')
    e(f's_sub_u32 s{sT1}, s{sT1}, 28')
    e(f's_lshl_b32 s{sOm+2}, s{sOm+1}, 2')
    e(f's_add_u32 s{sMg}, s{sT1}, s{sOm+2}')
    e(f's_cmp_ge_u32 s{sMg}, 7')
    e(f's_cbranch_scc1 L_{n}_end')
    e(f's_add_u32 s{sMg}, s{sMg}, s{sOm}')
    e(f's_mov_b32 s{sNg}, 4')
    e.label(f'L_{n}_dec')
    e(f's_lshl_b32 s{sN0}, s{sNg}, 6')
    e(f's_mul_i32 s{sMt}, s{sMg}, 3')
    e(f's_add_u32 s{sRot}, s{sMg}, s{sNg}')
    e(f's_mul_i32 s{sT1}, s{sRot}, 37')
    e(f's_lshr_b32 s{sT1}, s{sT1}, 8')
    e(f's_mul_i32 s{sT1}, s{sT1}, 7')
    e(f's_sub_u32 s{sRot}, s{sRot}, s{sT1}')
    SEG = cfg.get('oseg', 8)
    e(f's_mul_i32 s{sRot}, s{sRot}, {(SEG*64 + 6)//7}')
    e(f's_lshr_b32 s{sRot}, s{sRot}, 6')
    if not cfg.get('orot', 1): e(f's_mov_b32 s{sRot}, 0')
    sCw, sCo = 70 - 0, 0
    sCw, sCo = 98, 99
    e(f's_mov_b32 s{sCw}, 0')
    e(f's_mov_b32 s{sCo}, 0')
    def kstep(cnt, dst, tmp):
        return [(f's_add_u32 s{dst}, s{cnt}, s{sRot}', None), (f's_and_b32 s{dst}, s{dst}, {SEG-1}', None),
                (f's_and_b32 s{tmp}, s{cnt}, {32-SEG}', None), (f's_or_b32 s{dst}, s{dst}, s{tmp}', None),
                (f's_lshl_b32 s{dst}, s{dst}, 10', None), (f's_add_u32 s{cnt}, s{cnt}, 1', None)]
    e(f's_movk_i32 s{sT1}, 1152')
    e(f'v_lshrrev_b32 v{vT}, 3, v{vL}')
    e(f'v_mul_lo_u32 v{vT}, v{vT}, s{sT1}')
    e(f'v_lshlrev_b32 v{vT+1}, 1, v{vG}')
    e(f'v_and_b32 v{vT+2}, 7, v{vL}')
    e(f'v_xor_b32 v{vT+1}, v{vT+1}, v{vT+2}')
    e(f'v_lshl_add_u32 v{vWd}, v{vT+1}, 4, v{vT}')
    for j in range(1, 4):
        e(f'v_add_u32 v{vWd+j}, {8192*j}, v{vWd}')
    e(f'v_lshlrev_b32 v{vOd}, 4, v{vL}')
    e(f's_mul_i32 s{sWl}, s{sWv}, {RW*4096}')
    e(f'v_bfe_u32 v{vT}, v{vL}, 2, 2')
    e(f'v_lshl_add_u32 v{vT}, v{vG}, 2, v{vT}')
    e(f'v_bfe_u32 v{vT+1}, v{vT}, 1, 2')
    e(f'v_lshlrev_b32 v{vT+1}, 1, v{vT+1}')
    e(f'v_bfe_u32 v{vT+2}, v{vL}, 1, 1')
    e(f'v_xor_b32 v{vT+1}, v{vT+1}, v{vT+2}')
    e(f'v_and_b32 v{vT+2}, 1, v{vL}')
    e(f'v_lshlrev_b32 v{vT+2}, 3, v{vT+2}')
    e(f'v_lshl_add_u32 v{vT+2}, v{vT}, 7, v{vT+2}')
    e(f'v_add_u32 v{vT+2}, s{sWl}, v{vT+2}')
    for nt in range(NT):
        e(f'v_xor_b32 v{vT}, {2*nt}, v{vT+1}')
        e(f'v_lshl_add_u32 v{vWr+nt}, v{vT}, 4, v{vT+2}')
    e(f's_cmp_eq_u32 s{sBr}, 0')
    e(f's_cselect_b32 s40, s48, s42')
    e(f's_cselect_b32 s41, s49, s43')
    srd(e, sW, 40, 41, WO_BYTES)
    srd(e, sOut, 44, 45, OUT_BYTES)
    e(f's_mul_i32 s{sWoff}, s{sWv}, {32*32*1152}')
    e(f's_lshl_b32 s{sT0}, s{sN0}, 1')
    e(f's_add_u32 s{sWoff}, s{sWoff}, s{sT0}')
    e(f's_mul_i32 s{sOoff}, s{sBr}, {O_BR}')
    e(f's_lshl_b32 s{sT0}, s{sMt}, 17')
    e(f's_add_u32 s{sOoff}, s{sOoff}, s{sT0}')
    e(f's_lshl_b32 s{sT0}, s{sWv}, 15')
    e(f's_add_u32 s{sOoff}, s{sOoff}, s{sT0}')
    for mi in range(MT):
        e(f's_add_u32 s{sOm+mi}, s{sOoff}, {mi*131072}')

    def w_groups(slot, tag):
        G = [kstep(sCw, sWo, sT0) + [(f's_add_u32 m0, s{sWl}, {slot*4096}', None),
              (f's_mul_i32 s{sWo}, s{sWo}, 36', None),
              (f's_add_u32 s{sWo}, s{sWo}, s{sWoff}', None)]]
        for j in range(4):
            G.append([(f'buffer_load_dwordx4 v{vWd+j}, s[{sW}:{sW+3}], s{sWo} offen offset:{1024*j}{wfl} lds', tag)])
        return G
    def o_groups(slot, tag):
        g = kstep(sCo, sRotO, sT1) + [(f's_add_u32 s{sOo+mi}, s{sOm+mi}, s{sRotO}', None) for mi in range(MT)]
        G = [g]
        for mi in range(MT):
            r = vOF + slot*12 + mi*4
            G.append([(f'buffer_load_dwordx4 {vr(r,4)}, v{vOd}, s[{sO}:{sO+3}], s{sOo+mi} offen{ofl}', tag)])
        return G

    for t in range(RW): emit_groups(e, w_groups(t, ('w', t)))
    gen.stamp(6)
    e(f's_cmp_lg_u32 s{sWv}, 0')
    e(f's_cbranch_scc1 L_{n}_nopoll')
    e(f'v_mov_b32 v{vT}, 128')
    e(f's_mov_b32 s{sLoop}, 0')
    e.label(f'L_{n}_poll')
    e(f'buffer_load_dword v{vT+2}, v{vT}, s[{sD}:{sD+3}], 0 offen sc1')
    e('s_waitcnt vmcnt(0)')
    e(f'v_readfirstlane_b32 s{sT0}, v{vT+2}')
    e(f's_cmp_lg_u32 s{sT0}, 0')
    e(f's_cbranch_scc1 L_{n}_nopoll')
    e(f's_add_u32 s{sLoop}, s{sLoop}, 1')
    e(f's_cmp_lt_u32 s{sLoop}, 0x20000')
    e(f's_cbranch_scc0 L_{n}_nopoll')
    e(f's_sleep {cfg.get("psleep", 4)}')
    e(f's_branch L_{n}_poll')
    e.label(f'L_{n}_nopoll')
    e.vmq = [('w', t) for t in range(RW) for _ in range(4)]
    e('s_barrier')
    gen.stamp(7)
    for t in range(RO): emit_groups(e, o_groups(t, ('o', t)))

    vWF2 = [vWF, 140]
    def w_reads(t):
        ws, b = t % RW, vWF2[t & 1]
        return [[(f'ds_read_b64_tr_b16 {vr(b + nt*4 + 2*sec, 2)}, v{vWr+nt} offset:{ws*4096 + sec*2048}', 'wf')] for nt in range(NT) for sec in range(2)]
    def step(t, first, nxt_w, nxt_o, last=False):
        ws, os_ = t % RW, t % RO
        e.wait_lg()
        e.wait_vm([('o', t)] + ([] if last else [('w', t + 1)]))
        b = vWF2[t & 1]
        mf = []
        for nt in range(NT):
            for mi in range(MT):
                acc = vr(vAcc + (nt*MT + mi)*4, 4)
                mf.append(f'{MFMA} {acc}, {vr(b + nt*4, 4)}, {vr(vOF + os_*12 + mi*4, 4)}, {"0" if first else acc}')
        R = [] if last else w_reads(t + 1)
        Gw = w_groups(ws, ('w', t + RW)) if nxt_w else []
        Go = o_groups(os_, ('o', t + RO)) if nxt_o else []
        interleave(e, mf[:4], R, start=0)
        interleave(e, mf[4:], Gw + Go[:1], start=0)
        emit_groups(e, Go[1:])

    e.wait_vm([('w', 0)])
    emit_groups(e, w_reads(0))
    for t in range(RW): step(t, t == 0, True, True)
    nmid = (32 - 2*RW) // RW
    if nmid > 0:
        q0 = [(k, i - RW) for (k, i) in e.vmq]
        l0 = list(e.lgq)
        e(f's_mov_b32 s{sLoop}, {nmid}')
        e.label(f'L_{n}_oloop')
        for t in range(RW, 2*RW): step(t, False, True, True)
        q1 = [(k, i - 2*RW) for (k, i) in e.vmq]
        assert q0 == q1, (q0, q1)
        assert l0 == e.lgq
        e(f's_sub_u32 s{sLoop}, s{sLoop}, 1')
        e(f's_cmp_lg_u32 s{sLoop}, 0')
        e(f's_cbranch_scc1 L_{n}_oloop')
    base = 2*RW if nmid > 0 else RW
    for t in range(base, base + RW): step(t, False, False, t + RO < base + RW, last=(t == base + RW - 1))
    gen.stamp(8)
    e('s_barrier')
    e(f's_mul_i32 s{sT0}, s{sWv}, 12288')
    e(f'v_add_u32 v{vT}, s{sT0}, v{vOd}')
    for t in range(NT*MT):
        e(f'ds_write_b128 v{vT}, {vr(vAcc + t*4, 4)} offset:{RED + t*1024}', 'rw')
    e.wait_lg()
    e('s_barrier')
    e(f's_mul_i32 s{sT0}, s{sWv}, {MT*1024}')
    e(f'v_add_u32 v{vT}, s{sT0}, v{vOd}')
    R = vOF
    for mi in range(MT):
        for v in range(4):
            e(f'ds_read_b128 {vr(R + (mi*4 + v)*4, 4)}, v{vT} offset:{RED + v*12288 + mi*1024}', ('r', mi))
    e(f's_lshl_b32 s{sT0}, s{sMt}, 4')
    e(f'v_add_u32 v{vT+1}, s{sT0}, v{vN}')
    e(f's_movk_i32 s{sT1}, 2304')
    e(f'v_mul_lo_u32 v{vT+1}, v{vT+1}, s{sT1}')
    e(f'v_lshl_add_u32 v{vT+1}, v{vG}, 3, v{vT+1}')
    e(f's_mul_i32 s{sT0}, s{sBr}, 1152')
    e(f's_lshl_b32 s{sT1}, s{sN0}, 1')
    e(f's_add_u32 s{sT0}, s{sT0}, s{sT1}')
    e(f's_lshl_b32 s{sT1}, s{sWv}, 5')
    e(f's_add_u32 s{sT0}, s{sT0}, s{sT1}')
    for mi in range(MT):
        e.wait_lg(('r', mi))
        b = R + mi*16
        e(f'v_pk_add_f32 {vr(b,2)}, {vr(b,2)}, {vr(b+4,2)}')
        e(f'v_pk_add_f32 {vr(b+2,2)}, {vr(b+2,2)}, {vr(b+6,2)}')
        e(f'v_pk_add_f32 {vr(b+8,2)}, {vr(b+8,2)}, {vr(b+12,2)}')
        e(f'v_pk_add_f32 {vr(b+10,2)}, {vr(b+10,2)}, {vr(b+14,2)}')
        e(f'v_pk_add_f32 {vr(b,2)}, {vr(b,2)}, {vr(b+8,2)}')
        e(f'v_pk_add_f32 {vr(b+2,2)}, {vr(b+2,2)}, {vr(b+10,2)}')
        e(f'v_cvt_pk_bf16_f32 v{b}, v{b}, v{b+1}')
        e(f'v_cvt_pk_bf16_f32 v{b+1}, v{b+2}, v{b+3}')
        e(f'buffer_store_dwordx2 {vr(b,2)}, v{vT+1}, s[{sOut}:{sOut+3}], s{sT0} offen{sfl}', 'st')
        if mi < MT - 1:
            e(f's_add_u32 s{sT0}, s{sT0}, {16*2304}')
    if cfg.get('stamps'): e.wait_vm_all()
```

```python
from asmgen import *

X_BYTES = 8 * 80 * 1152
W_BYTES = 576 * 8192
KA_BYTES = 8 * 16 * 1024 * 256
KB_BYTES = 8 * 32 * 1024 * 256
O_BR = 40 * 128 * 1024
O_BYTES = 2 * O_BR

QBUF0, QBUFSZ = 34816, 43008
KS, VS = 0, 65536
QIMG = 122880
STATS = 131072
OX = 0

sX, sW, sK, sV, sO = 4, 8, 12, 16, 20
sWv, sJ, sKH, sBr, sC, sT = 24, 25, 26, 27, 28, 29
sKoff, sVoff, sKl, sVl = 30, 31, 32, 33
sXoff, sWoff, sOoff = 34, 35, 36
sT0, sT1, sT2 = 37, 38, 39
sP = 40
sLoop = 60
sXl, sWl = 61, 62
sKt, sVt = 96, 97
sB, sH = 63, 64
sCc, sXc, sWc, sX3c = 67, 68, 69, 3
vL, vN, vG = 1, 2, 3
vKd, vVd = 4, 8
vKr, vVr = 10, 14
vNM = 24
vXr, vWr = 36, 38
vT = 44
vXd, vWd = 56, 60
vQA = 64
vS = 56
vO = 96
aQ = 0
aK = 80
aV = 112
aL = 144
aOne = 164
aXF = [168, 204]
aWF = [188, 224]

def Sreg(rt, kt): return vS + rt * 8 + kt * 4
def Oreg(ts, rt): return vO + (ts * 5 + rt) * 4
def Qacc(tt, rt): return vO + (tt * 5 + rt) * 4
def Qf(rt, s): return aQ + (rt * 4 + s) * 4
def Kf(kt, s): return aK + (kt * 4 + s) * 4
def Vf(ts): return aV + ts * 4
def NM(rt): return vNM + rt * 4
def Lf(rt): return aL + rt * 4

MFMA = 'v_mfma_f32_16x16x32_bf16'

def srd(e, s, lo, hi, nbytes):
    e(f's_mov_b32 s{s}, s{lo}')
    e(f's_mov_b32 s{s+1}, s{hi}')
    e(f's_mov_b32 s{s+2}, {nbytes}')
    e(f's_mov_b32 s{s+3}, 0x00020000')

def interleave(e, prim, groups, start=0, every=None, end=None):
    n = len(prim); g = len(groups)
    end = n if end is None else end
    pos = {}
    if g:
        span = max(end - start, 1)
        for k in range(g):
            p = start + (k * span) // g if every is None else start + k * every
            pos.setdefault(min(p, n - 1), []).append(groups[k])
    for i, t in enumerate(prim):
        e(t)
        for grp in pos.get(i, []):
            for (tt, tag) in grp: e(tt, tag)
    if n == 0:
        for grp in groups:
            for (tt, tag) in grp: e(tt, tag)

def emit_groups(e, groups):
    for grp in groups:
        for (tt, tag) in grp: e(tt, tag)

class AttnGen:
    def __init__(self, e, cfg):
        self.e = e
        self.cfg = cfg
        self.kvfl = cfg.get('kv_flags', ' nt')
        self.xfl = cfg.get('x_flags', '')
        self.wfl = cfg.get('w_flags', ' nt')
        self.ofl = cfg.get('o_flags', ' sc1' if cfg.get('fused') else '')
        self.name = cfg.get('name', 'attn_kernel')
        self.rare = []
        self.nrare = 0

    def stamp(self, i, mode=1):
        if self.cfg.get('stamps') == mode:
            self.e(f's_memrealtime s[{70+2*i}:{71+2*i}]')
    def cstamp(self, i, mode=3):
        if self.cfg.get('stamps') == mode:
            self.e(f's_memtime s[{70+2*i}:{71+2*i}]')
    def write_stamps(self, n, kernel_idx=0):
        if not self.cfg.get('stamps'): return
        e = self.e
        e('s_waitcnt lgkmcnt(0)')
        e(f's_lshl_b32 s{sT0}, s2, 2')
        e(f's_add_u32 s{sT0}, s{sT0}, s{sWv}')
        e(f's_lshl_b32 s{sT0}, s{sT0}, 7')
        e(f's_add_u32 s{sT0}, s{sT0}, {0x1000000 + kernel_idx*0x100000}')
        e(f's_mov_b32 s{sO+2}, 0x2000000')
        e(f'v_mov_b32 v{vT}, 0')
        for i in range(n):
            e(f'v_mov_b32 v{vT+2}, s{70+2*i}')
            e(f'v_mov_b32 v{vT+3}, s{71+2*i}')
            e(f'buffer_store_dwordx2 {vr(vT+2,2)}, v{vT}, s[{sO}:{sO+3}], s{sT0} offen offset:{8*i}')
            e('s_waitcnt vmcnt(0)')
        e.vmq = []
    def prologue(self):
        e = self.e
        e(f's_cmp_ge_u32 s2, 256')
        e(f's_cbranch_scc1 L_{self.name}_end')
        e(f's_load_dwordx16 s[40:55], s[0:1], 0')
        e(f's_load_dwordx2 s[56:57], s[0:1], 64')
        e(f's_load_dwordx2 s[58:59], s[0:1], 96')
        e(f's_load_dwordx2 s[100:101], s[0:1], 72')
        e(f's_load_dwordx2 s[90:91], s[0:1], 88')
        t0, t1, t2, t3 = vT, vT + 1, vT + 2, vT + 3
        e(f'v_lshrrev_b32 v{t0}, 6, v0')
        e(f'v_and_b32 v{vL}, 63, v0')
        e(f'v_readfirstlane_b32 s{sWv}, v{t0}')
        e(f'v_and_b32 v{vN}, 15, v{vL}')
        e(f'v_lshrrev_b32 v{vG}, 4, v{vL}')
        e(f's_lshr_b32 s{sJ}, s{sWv}, 1')
        e(f's_and_b32 s{sKH}, s{sWv}, 1')
        e(f's_and_b32 s{sT0}, s2, 7')
        e(f's_lshr_b32 s{sT1}, s2, 3')
        e(f's_lshr_b32 s{sBr}, s{sT1}, 4')
        e(f's_and_b32 s{sT1}, s{sT1}, 15')
        e(f's_mov_b32 s{sC}, 0x3e029407')
        import struct, math
        c = (128 ** -0.5) * math.log2(math.e)
        bits = struct.unpack('<I', struct.pack('<f', c))[0]
        e.ins[-1] = Inst(f's_mov_b32 s{sC}, {bits:#010x}')
        e(f's_mov_b32 s{sT}, 0x41000000')
        for j in range(4):
            e(f'v_add_u32 v{t0}, {4*j}, v{vG}')
            e(f'v_xor_b32 v{t0}, v{t0}, v{vN}')
            e(f'v_lshlrev_b32 v{t0}, 4, v{t0}')
            e(f'v_lshl_add_u32 v{vKd+j}, v{vG}, 8, v{t0}')
        for p in range(2):
            e(f'v_add_u32 v{t0}, {4*p}, v{vG}')
            e(f'v_lshlrev_b32 v{t0}, 1, v{t0}')
            e(f'v_xor_b32 v{t0}, v{t0}, v{vN}')
            e(f'v_lshlrev_b32 v{t0}, 4, v{t0}')
            e(f'v_lshl_add_u32 v{vVd+p}, v{vG}, 8, v{t0}')
        for i in range(4):
            q = i >> 1
            e(f'v_or_b32 v{t0}, {q << 2}, v{vG}')
            e(f'v_lshlrev_b32 v{t0}, 1, v{t0}')
            e(f'v_xor_b32 v{t0}, v{t0}, v{vN}')
            e(f'v_lshlrev_b32 v{t0}, 4, v{t0}')
            e(f'v_lshl_add_u32 v{vWd+i}, v{vG}, 13, v{t0}')
            if i: e(f'v_add_u32 v{vWd+i}, {(32768-1024)*i}, v{vWd+i}')
        e(f'v_lshrrev_b32 v{t1}, 3, v{vL}')
        e(f's_movk_i32 s{sT2}, 1152')
        e(f'v_mul_lo_u32 v{t1}, v{t1}, s{sT2}')
        e(f'v_and_b32 v{t2}, 7, v{vL}')
        for i in range(4):
            e(f's_add_u32 s{sT2}, s{sKH}, {i}')
            e(f's_and_b32 s{sT2}, s{sT2}, 1')
            e(f's_lshl_b32 s{sT2}, s{sT2}, 2')
            e(f'v_add_u32 v{t0}, s{sT2}, v{vG}')
            e(f'v_and_b32 v{t0}, 7, v{t0}')
            e(f'v_xor_b32 v{t0}, v{t0}, v{t2}')
            e(f'v_lshl_add_u32 v{vXd+i}, v{t0}, 4, v{t1}')
            if i: e(f'v_add_u32 v{vXd+i}, {8192*i}, v{vXd+i}')
        e(f's_lshl_b32 s{sKl}, s{sWv}, 13')
        e(f's_add_u32 s{sVl}, s{sKl}, {VS}')
        for s in range(4):
            e(f'v_add_u32 v{t0}, {4*s}, v{vG}')
            e(f'v_xor_b32 v{t0}, v{t0}, v{vN}')
            e(f'v_lshlrev_b32 v{t0}, 4, v{t0}')
            e(f'v_lshl_add_u32 v{t0}, v{vN}, 8, v{t0}')
            e(f'v_add_u32 v{vKr+s}, s{sKl}, v{t0}')
        e(f'v_bfe_u32 v{t1}, v{vL}, 2, 2')
        e(f'v_lshl_add_u32 v{t1}, v{vG}, 2, v{t1}')
        e(f'v_and_b32 v{t2}, 7, v{t1}')
        e(f'v_lshlrev_b32 v{t2}, 1, v{t2}')
        e(f'v_bfe_u32 v{t3}, v{vL}, 1, 1')
        e(f'v_xor_b32 v{t2}, v{t2}, v{t3}')
        e(f'v_and_b32 v{t3}, 1, v{vL}')
        e(f'v_lshlrev_b32 v{t3}, 3, v{t3}')
        e(f'v_lshl_add_u32 v{t3}, v{t1}, 8, v{t3}')
        e(f'v_add_u32 v{t3}, s{sVl}, v{t3}')
        for ts in range(8):
            e(f's_lshl_b32 s{sT2}, s{sKH}, 2')
            e(f's_xor_b32 s{sT2}, s{sT2}, {ts}')
            e(f's_lshl_b32 s{sT2}, s{sT2}, 1')
            e(f'v_xor_b32 v{t0}, s{sT2}, v{t2}')
            e(f'v_lshl_add_u32 v{vVr+ts}, v{t0}, 4, v{t3}')
        e('s_waitcnt lgkmcnt(0)')

    def q_setup(self, br):
        e = self.e
        t0, t1, t2, t3 = vT, vT + 1, vT + 2, vT + 3
        rot = self.cfg.get('qrot', 1)
        if br == 'A':
            e(f's_lshr_b32 s{sCc}, s{sT1}, 1')
            e(f's_and_b32 s{sT2}, s{sT1}, 1')
            e(f's_lshl_b32 s{sT2}, s{sT2}, 2')
            e(f's_add_u32 s{sCc}, s{sCc}, s{sT2}')
            e(f's_sub_u32 s{sT2}, s{sCc}, 9')
            e(f's_cmp_ge_u32 s{sCc}, 9')
            e(f's_cselect_b32 s{sCc}, s{sT2}, s{sCc}')
        else:
            e(f's_lshr_b32 s{sCc}, s{sT1}, 2')
            e(f's_add_u32 s{sCc}, s{sCc}, s{sT1}')
            e(f's_and_b32 s{sCc}, s{sCc}, 3')
            e(f's_mul_i32 s{sCc}, s{sCc}, 5')
            e(f's_lshr_b32 s{sCc}, s{sCc}, 1')
        if not rot: e(f's_mov_b32 s{sCc}, 0')
        if br == 'A':
            e(f's_lshr_b32 s{sB}, s{sT1}, 1')
            e(f's_and_b32 s{sT1}, s{sT1}, 1')
            e(f's_lshl_b32 s{sT0}, s{sT0}, 1')
            e(f's_add_u32 s{sT0}, s{sT0}, s{sT1}')
            e(f's_lshl_b32 s{sH}, s{sT0}, 1')
            e(f's_add_u32 s{sH}, s{sH}, s{sJ}')
            e(f's_lshl_b32 s{sT1}, s{sB}, 4')
            e(f's_add_u32 s{sT1}, s{sT1}, s{sT0}')
            srd(e, sX, 40, 41, X_BYTES); srd(e, sK, 42, 43, KA_BYTES); srd(e, sV, 44, 45, KA_BYTES); srd(e, sW, 46, 47, W_BYTES)
        else:
            e(f's_lshr_b32 s{sB}, s{sT1}, 2')
            e(f's_lshl_b32 s{sT2}, s{sJ}, 2')
            e(f's_add_u32 s{sB}, s{sB}, s{sT2}')
            e(f's_and_b32 s{sT1}, s{sT1}, 3')
            e(f's_lshl_b32 s{sH}, s{sT0}, 2')
            e(f's_add_u32 s{sH}, s{sH}, s{sT1}')
            e(f's_lshl_b32 s{sT1}, s{sB}, 5')
            e(f's_add_u32 s{sT1}, s{sT1}, s{sH}')
            srd(e, sX, 50, 51, X_BYTES); srd(e, sK, 52, 53, KB_BYTES); srd(e, sV, 54, 55, KB_BYTES); srd(e, sW, 56, 57, W_BYTES)
        srd(e, sO, 58, 59, O_BYTES)
        if self.cfg.get('kvsame'): e(f's_and_b32 s{sT1}, s2, 7')
        e(f's_lshl_b32 s{sKoff}, s{sT1}, 18')
        e(f's_lshl_b32 s{sT2}, s{sKH}, 13')
        e(f's_add_u32 s{sKoff}, s{sKoff}, s{sT2}')
        e(f's_mov_b32 s{sVoff}, s{sKoff}')
        e(f's_mul_i32 s{sOoff}, s{sB}, {5*128*1024}')
        e(f's_lshl_b32 s{sT2}, s{sH}, 12')
        e(f's_add_u32 s{sOoff}, s{sOoff}, s{sT2}')
        e(f's_lshl_b32 s{sT2}, s{sKH}, 11')
        e(f's_add_u32 s{sOoff}, s{sOoff}, s{sT2}')
        if br == 'B':
            e(f's_add_u32 s{sOoff}, s{sOoff}, {O_BR}')
        if br == 'A':
            e(f's_mul_i32 s{sXoff}, s{sB}, 92160')
            e(f's_mul_i32 s{sT2}, s{sWv}, 9216')
            e(f's_add_u32 s{sXoff}, s{sXoff}, s{sT2}')
            e(f's_lshl_b32 s{sXl}, s{sWv}, 10')
            e(f's_mul_i32 s65, s{sB}, 92160')
            e(f's_add_u32 s{sT2}, s{sKH}, 8')
            e(f's_lshl_b32 s66, s{sT2}, 10')
            e(f's_mul_i32 s{sT2}, s{sT2}, 9216')
            e(f's_add_u32 s65, s65, s{sT2}')
            e(f's_lshl_b32 s{sWoff}, s{sH}, 8')
            e(f's_lshl_b32 s{sT2}, s{sKH}, 18')
            e(f's_add_u32 s{sWoff}, s{sWoff}, s{sT2}')
            e(f's_lshl_b32 s{sWl}, s{sJ}, 14')
            e(f's_lshl_b32 s{sT2}, s{sKH}, 13')
            e(f's_add_u32 s{sWl}, s{sWl}, s{sT2}')
            e(f's_add_u32 s{sWl}, s{sWl}, 10240')
            xoffj, woffj = (0, 0), (10240, 16384)
        else:
            e(f's_mul_i32 s{sXoff}, s{sB}, 92160')
            e(f's_mul_i32 s{sT2}, s{sKH}, {40*1152}')
            e(f's_add_u32 s{sXoff}, s{sXoff}, s{sT2}')
            e(f's_mul_i32 s{sXl}, s{sWv}, 5120')
            e(f's_lshl_b32 s{sWoff}, s{sH}, 8')
            e(f's_lshl_b32 s{sT2}, s{sWv}, 17')
            e(f's_add_u32 s{sWoff}, s{sWoff}, s{sT2}')
            e(f's_lshl_b32 s{sWl}, s{sWv}, 12')
            e(f's_add_u32 s{sWl}, s{sWl}, 20480')
            xoffj, woffj = (0, 10240), (20480, 0)
        e(f's_mul_i32 s{sT2}, s{sJ}, {xoffj[1]}')
        e(f's_add_u32 s{sT2}, s{sT2}, {QBUF0 + xoffj[0]}')
        e(f'v_lshrrev_b32 v{t1}, 1, v{vN}')
        for s2 in range(2):
            e(f'v_add_u32 v{t0}, {4*s2}, v{vG}')
            e(f'v_xor_b32 v{t0}, v{t0}, v{t1}')
            e(f'v_lshlrev_b32 v{t0}, 4, v{t0}')
            e(f'v_lshl_add_u32 v{t0}, v{vN}, 7, v{t0}')
            e(f'v_add_u32 v{vXr+s2}, s{sT2}, v{t0}')
        e(f's_mul_i32 s{sT2}, s{sJ}, {woffj[1]}')
        e(f's_add_u32 s{sT2}, s{sT2}, {QBUF0 + woffj[0]}')
        e(f'v_bfe_u32 v{t1}, v{vL}, 2, 2')
        e(f'v_and_b32 v{t2}, 1, v{vG}')
        e(f'v_lshl_or_b32 v{t2}, v{t2}, 2, v{t1}')
        e(f'v_lshlrev_b32 v{t2}, 1, v{t2}')
        e(f'v_bfe_u32 v{t3}, v{vL}, 1, 1')
        e(f'v_xor_b32 v{t2}, v{t2}, v{t3}')
        e(f'v_lshl_add_u32 v{t1}, v{vG}, 3, v{t1}')
        e(f'v_and_b32 v{t3}, 1, v{vL}')
        e(f'v_lshlrev_b32 v{t3}, 3, v{t3}')
        e(f'v_lshl_add_u32 v{t3}, v{t1}, 8, v{t3}')
        e(f'v_add_u32 v{t3}, s{sT2}, v{t3}')
        for tt in range(4):
            e(f's_lshl_b32 s{sT2}, s{sKH}, 2')
            e(f's_add_u32 s{sT2}, s{sT2}, {tt}')
            e(f's_lshl_b32 s{sT2}, s{sT2}, 1')
            e(f'v_xor_b32 v{t0}, s{sT2}, v{t2}')
            e(f'v_lshl_add_u32 v{vWr+tt}, v{t0}, 4, v{t3}')

    def q_addr_copies(self):
        e = self.e
        for b in range(3):
            for k, r in enumerate((vXr, vXr + 1, vWr, vWr + 1, vWr + 2, vWr + 3)):
                if b == 0: e(f'v_mov_b32 v{vQA + k}, v{r}')
                else: e(f'v_add_u32 v{vQA + 6*b + k}, {b*QBUFSZ}, v{r}')

    def q_dma(self, br, c):
        qb = QBUF0 + (c % 3) * QBUFSZ
        tag = ('Q', c)
        G = []
        g = [(f's_lshl_b32 s{sT2}, s{sCc}, 7', None), (f's_add_u32 s{sXc}, s{sXoff}, s{sT2}', None)]
        if br == 'A': g.append((f's_add_u32 s{sX3c}, s65, s{sT2}', None))
        if self.cfg.get('qsame'):
            g = [(f's_mov_b32 s{sXc}, 0', None), (f's_mov_b32 s{sX3c}, 0', None), (f's_mov_b32 s{sWc}, 0', None)]
        else:
          g += [(f's_lshl_b32 s{sT2}, s{sCc}, 19', None), (f's_add_u32 s{sWc}, s{sWoff}, s{sT2}', None),
              (f's_add_u32 s{sCc}, s{sCc}, 1', None), (f's_cmp_eq_u32 s{sCc}, 9', None), (f's_cselect_b32 s{sCc}, 0, s{sCc}', None)]
        G.append(g)
        def ld(voff, srdr, soff, off, fl, pre=()):
            G.append(list(pre) + [(f'buffer_load_dwordx4 v{voff}, s[{srdr}:{srdr+3}], s{soff} offen offset:{off}{fl} lds', tag)])
        m0 = lambda reg, imm: (f's_add_u32 m0, s{reg}, {qb + imm}', None)
        if br == 'A':
            ld(vXd, sX, sXc, 0, self.xfl, [m0(sXl, 0)])
            ld(vXd, sX, sT2, 0, self.xfl, [m0(sXl, 4096), (f's_add_u32 s{sT2}, s{sXc}, {4*9216}', None)])
            ld(vXd, sX, sX3c, 0, self.xfl, [m0(66, 0), ('s_nop 0', None)])
            for i in range(4):
                ld(vWd + i, sW, sWc, 1024*i, self.wfl, [m0(sWl, 0), ('s_nop 0', None)] if i == 0 else [])
            for i in range(4):
                ld(vWd + i, sW, sWc, 1024*i, self.wfl, [m0(sWl, 4096), (f's_add_u32 s{sWc}, s{sWc}, {4*32768}', None)] if i == 0 else [])
        else:
            for i in range(4):
                ld(vXd + i, sX, sXc, 1024*i, self.xfl, [m0(sXl, 0), ('s_nop 0', None)] if i == 0 else [])
            ld(vXd, sX, sXc, 0, self.xfl, [m0(sXl, 4096), (f's_add_u32 s{sXc}, s{sXc}, {4*9216}', None)])
            for i in range(4):
                ld(vWd + i, sW, sWc, 1024*i, self.wfl, [m0(sWl, 0), ('s_nop 0', None)] if i == 0 else [])
        return G

    def kv_dma(self, kind, par, tag):
        if kind == 'K': l, off, s, vo, tmp = sKl, sKoff, sK, [vKd, vKd + 1, vKd + 2, vKd + 3], sKt
        else: l, off, s, vo, tmp = sVl, sVoff, sV, [vVd, vVd + 1, vVd, vVd + 1], sVt
        G = []
        for half in range(2):
            for q in range(4):
                g = []
                if q == 0:
                    g.append((f's_add_u32 m0, s{l}, {par * 32768 + half * 4096}', None))
                    if half == 0: g.append((f's_add_u32 s{tmp}, s{off}, 4096', None))
                    else: g.append((f's_add_u32 s{off}, s{off}, 16384', None))
                so = off if half == 0 else tmp
                g.append((f'buffer_load_dwordx4 v{vo[q]}, s[{s}:{s+3}], s{so} offen offset:{q*1024}{self.kvfl} lds', tag))
                G.append(g)
        return G

    def q_reads(self, s2, c):
        G = []
        base = vQA + 6 * (c % 3)
        for tt in range(4):
            for sec in range(2):
                G.append([(f'ds_read_b64_tr_b16 {ar(aWF[s2] + 4*tt + 2*sec, 2)}, v{base+2+tt} offset:{s2*8192 + sec*1024}', ('q', s2))])
            if tt == 0:
                for rt in range(5):
                    G.append([(f'ds_read_b128 {ar(aXF[s2] + 4*rt, 4)}, v{base+s2} offset:{rt*2048}', ('q', s2))])
        return G

    def q_mfmas(self, s2, first):
        L = []
        for tt in range(4):
            for rt in range(5):
                acc = vr(Qacc(tt, rt), 4)
                cc = '0' if first else acc
                L.append(f'{MFMA} {acc}, {ar(aWF[s2] + 4*tt, 4)}, {ar(aXF[s2] + 4*rt, 4)}, {cc}')
        return L

    def poison(self):
        e = self.e
        for k in range(4): e(f'v_mov_b32 v{252+k}, -1')
        e(f'v_lshlrev_b32 v{vT+4}, 4, v{vL}')
        e(f's_mov_b32 s92, s90')
        e(f's_mov_b32 s93, s91')
        e(f's_mov_b32 s94, 256')
        e(f's_mov_b32 s95, 0x00020000')
        for rt in range(5):
            e(f's_add_u32 s{sT2}, s{sOoff}, {rt*131072}')
            for u in range(2):
                e(f'buffer_store_dwordx4 v[252:255], v{vT+4}, s[{sO}:{sO+3}], s{sT2} offen offset:{u*1024} sc1', ('P', 0))

    def arrive(self, br):
        e = self.e
        n = self.name
        e(f's_cmp_lg_u32 s{sWv}, 0')
        e(f's_cbranch_scc1 L_{n}_na{br}')
        e('v_mov_b32 v54, 0')
        e('v_mov_b32 v55, 1')
        e('s_mov_b64 exec, 1')
        e('buffer_atomic_add v55, v54, s[92:95], 0 offen sc0 sc1', 'sig')
        e.vmq.pop()
        e('s_mov_b64 exec, -1')
        e.label(f'L_{n}_na{br}')

    def arrive_check(self, br):
        e = self.e
        n = self.name
        e(f's_cmp_lg_u32 s{sWv}, 0')
        e(f's_cbranch_scc1 L_{n}_nc{br}')
        e(f'v_readfirstlane_b32 s{sT2}, v55')
        e(f's_cmp_lg_u32 s{sT2}, 255')
        e(f's_cbranch_scc1 L_{n}_nc{br}')
        e('s_mov_b64 exec, 1')
        e('v_mov_b32 v55, 1')
        e('buffer_store_dword v55, v54, s[92:95], 0 offen offset:128 sc1', 'go')
        e.vmq.pop()
        e('s_mov_b64 exec, -1')
        e.label(f'L_{n}_nc{br}')

    def flag_load(self):
        e = self.e
        e('v_mov_b32 v54, 128')
        e('buffer_load_dword v55, v54, s[92:95], 0 offen sc1', 'f2')

    def flag_check(self):
        e = self.e
        n = self.name
        e.wait_vm('f2')
        e(f's_mov_b32 s{sT1}, 0')
        e.label(f'L_{n}_fchk')
        e(f'v_readfirstlane_b32 s{sT0}, v55')
        e(f's_cmp_lg_u32 s{sT0}, 0')
        e(f's_cbranch_scc1 L_{n}_fok')
        e(f's_add_u32 s{sT1}, s{sT1}, 1')
        e(f's_cmp_lt_u32 s{sT1}, 0x20000')
        e(f's_cbranch_scc0 L_{n}_fok')
        e('s_sleep 8')
        e('buffer_load_dword v55, v54, s[92:95], 0 offen sc1', 'f2')
        e('s_waitcnt vmcnt(0)')
        e.vmq.pop()
        e(f's_branch L_{n}_fchk')
        e.label(f'L_{n}_fok')

    def q_phase(self, br):
        e = self.e
        self.q_setup(br)
        self.stamp(1, 2)
        emit_groups(e, self.q_dma(br, 0))
        emit_groups(e, self.q_dma(br, 1))
        self.q_addr_copies()
        flow = self.cfg.get('flow')
        if flow: self.poison()
        for c in range(9):
            e.wait_vm(('Q', c))
            e.wait_lg()
            e('s_barrier')
            if flow and c == 2: self.arrive(br)
            if flow and c == 4: self.arrive_check(br)
            if c == 4: self.cstamp(0, 4)
            if c == 5: self.cstamp(3, 4)
            self.stamp(2 + c, 2)
            G = []
            if c + 2 <= 8: G += self.q_dma(br, c + 2)
            if c == self.cfg.get('k0at', 6): G += self.kv_dma('K', 0, ('K', 0))
            if c == 7: G += self.kv_dma('K', 1, ('K', 1))
            if c == 8: G += self.kv_dma('V', 0, ('V', 0))
            R0 = self.q_reads(0, c)
            h = (len(G) + 1) // 2
            def mix(mf, R, D):
                n = len(mf)
                slots = [[] for _ in range(n)]
                for k, g in enumerate(R): slots[k].append(g)
                for k, g in enumerate(D): slots[min(n - 1, 1 + (k * (n - 2)) // max(len(D), 1))].append(g)
                for k in range(n):
                    e(mf[k])
                    for g in slots[k]:
                        for (tt, tag) in g: e(tt, tag)
            if c > 0: mix(self.q_mfmas(1, False), R0, G[:h])
            else:
                emit_groups(e, R0); emit_groups(e, G[:h])
            if c == 4: self.cstamp(1, 4)
            e.wait_lg(('q', 0))
            mix(self.q_mfmas(0, c == 0), self.q_reads(1, c), G[h:])
            if c == 4: self.cstamp(2, 4)
        e.wait_lg()
        for t in self.q_mfmas(1, False): e(t)

    def q_exchange(self):
        e = self.e
        t0, t1, t2, t3 = vT, vT + 1, vT + 2, vT + 3
        e('s_barrier')
        e(f's_mul_i32 s{sT2}, s{sJ}, 20480')
        e(f's_add_u32 s{sT2}, s{sT2}, {QIMG}')
        e(f'v_and_b32 v{t1}, 1, v{vG}')
        e(f'v_lshlrev_b32 v{t1}, 3, v{t1}')
        e(f'v_lshl_add_u32 v{t1}, v{vN}, 8, v{t1}')
        e(f'v_add_u32 v{t1}, s{sT2}, v{t1}')
        e(f'v_lshrrev_b32 v{t2}, 1, v{vG}')
        e(f'v_xor_b32 v{t2}, v{t2}, v{vN}')
        for tt in range(4):
            e(f's_lshl_b32 s{sT1}, s{sKH}, 2')
            e(f's_add_u32 s{sT1}, s{sT1}, {tt}')
            e(f's_lshl_b32 s{sT1}, s{sT1}, 1')
            e(f'v_xor_b32 v{t0}, s{sT1}, v{t2}')
            e(f'v_lshl_add_u32 v{vT+4+tt}, v{t0}, 4, v{t1}')
        e(f'v_mov_b32 v{vT+8}, s{sC}')
        e(f'v_mov_b32 v{vT+9}, s{sC}')
        for tt in range(4):
            for rt in range(5):
                b = Qacc(tt, rt)
                e(f'v_pk_mul_f32 {vr(b,2)}, {vr(b,2)}, {vr(vT+8,2)}')
                e(f'v_pk_mul_f32 {vr(b+2,2)}, {vr(b+2,2)}, {vr(vT+8,2)}')
                e(f'v_cvt_pk_bf16_f32 v{b}, v{b}, v{b+1}')
                e(f'v_cvt_pk_bf16_f32 v{b+1}, v{b+2}, v{b+3}')
                e(f'ds_write_b64 v{vT+4+tt}, {vr(b, 2)} offset:{rt*4096}', 'qw')
        e.wait_lg()
        e('s_barrier')
        e(f's_sub_u32 s{sT2}, s{sT2}, s{sKl}')
        for s in range(4):
            e(f'v_add_u32 v{vT+4+s}, s{sT2}, v{vKr+s}')
        for rt in range(5):
            for s in range(4):
                e(f'ds_read_b128 {ar(Qf(rt, s), 4)}, v{vT+4+s} offset:{rt*4096}', 'qr')
        e(f'v_mov_b32 v{vT}, 0x3f803f80')
        for k in range(4): e(f'v_accvgpr_write_b32 a{aOne+k}, v{vT}')
        e.wait_lg()
        e('s_barrier')
        emit_groups(e, self.kv_dma('V', 1, ('V', 1)))

    def rowmax_xlane(self, r, rt):
        mx, t = vT + rt, vT + 5
        r(f'v_mov_b32 v{t}, v{mx}')
        r(f'v_permlane16_swap_b32 v{mx}, v{t}')
        r(f'v_max_f32 v{mx}, v{mx}, v{t}')
        r(f'v_mov_b32 v{t}, v{mx}')
        r(f'v_permlane32_swap_b32 v{mx}, v{t}')
        r(f'v_max_f32 v{mx}, v{mx}, v{t}')

    def rare_block(self, lab, back):
        r = Emitter()
        r.label(lab)
        r('s_nop 7')
        f = vT + 6
        for rt in range(5):
            mx = vT + rt
            self.rowmax_xlane(r, rt)
            r(f'v_max_f32 v{mx}, 0, v{mx}')
            r(f'v_sub_f32 v{f}, 0, v{mx}')
            r(f'v_exp_f32 v{f}, v{f}')
            for k in range(4): r(f'v_sub_f32 v{NM(rt)+k}, v{NM(rt)+k}, v{mx}')
            for k in range(8): r(f'v_sub_f32 v{Sreg(rt,0)+k}, v{Sreg(rt,0)+k}, v{mx}')
            for k in range(4):
                r(f'v_accvgpr_read_b32 v{vT+8}, a{Lf(rt)+k}')
                r(f'v_mul_f32 v{vT+8}, v{vT+8}, v{f}')
                r(f'v_accvgpr_write_b32 a{Lf(rt)+k}, v{vT+8}')
            for ts in range(8):
                b = Oreg(ts, rt)
                r(f'v_pk_mul_f32 {vr(b,2)}, {vr(b,2)}, {vr(f,2)} op_sel_hi:[1,0]')
                r(f'v_pk_mul_f32 {vr(b+2,2)}, {vr(b+2,2)}, {vr(f,2)} op_sel_hi:[1,0]')
        r('s_nop 7')
        r(f's_branch {back}')
        r.fix_hazards()
        self.rare.append(r)

    def k_reads(self, it, par):
        e = self.e
        e.wait_vm(('K', it))
        for s in range(4):
            for kt in range(2):
                e(f'ds_read_b128 {ar(Kf(kt, s), 4)}, v{vKr+s} offset:{par*32768 + kt*4096}', 'k')

    def iteration(self, it, par, issue_next, next_k=True, first=False):
        e = self.e
        mx = [vT + i for i in range(5)]
        def maxops(rt):
            b = Sreg(rt, 0)
            return [[(f'v_max3_f32 v{mx[rt]}, v{b}, v{b+1}, v{b+2}', None)],
                    [(f'v_max3_f32 v{mx[rt]}, v{mx[rt]}, v{b+3}, v{b+4}', None)],
                    [(f'v_max3_f32 v{mx[rt]}, v{mx[rt]}, v{b+5}, v{b+6}', None)],
                    [(f'v_max_f32 v{mx[rt]}, v{mx[rt]}, v{b+7}', None)]]
        def softmax(rt):
            b = Sreg(rt, 0)
            L = []
            for k in range(4):
                L.append(f'v_exp_f32 v{b+2*k}, v{b+2*k}')
                L.append(f'v_exp_f32 v{b+2*k+1}, v{b+2*k+1}')
            for k in range(4): L.append(f'v_cvt_pk_bf16_f32 v{b+k}, v{b+2*k}, v{b+2*k+1}')
            return [[(t, None)] for t in L]
        def vreads():
            return [[(f'ds_read_b64_tr_b16 {ar(Vf(ts) + 2*sec, 2)}, v{vVr+ts} offset:{par*32768 + sec*4096}', 'v')] for ts in range(8) for sec in range(2)]
        e.wait_lg()
        mb = self.cfg.get('mainbar', 1)
        if mb and issue_next:
            self.nbar = getattr(self, 'nbar', 0) + 1
            if mb == 1:
                e(f's_cmp_lg_u32 s{sBr}, 0')
                e(f's_cbranch_scc1 L_{self.name}_nb{self.nbar}')
                e('s_barrier')
                e.label(f'L_{self.name}_nb{self.nbar}')
            else:
                e('s_barrier')
        G = self.kv_dma('K', par, ('K', it + 2)) if issue_next else []
        for rt in range(5):
            mf = []
            for s in range(4):
                for kt in range(2):
                    acc = vr(Sreg(rt, kt), 4)
                    cc = acc if s else ('0' if first else vr(NM(rt), 4))
                    mf.append(f'{MFMA} {acc}, {ar(Kf(kt, s), 4)}, {ar(Qf(rt, s), 4)}, {cc}')
            extra = []
            if rt < 4 and G: extra += G[2*rt:2*rt+2]
            if rt >= 2: extra += maxops(rt - 2)
            if rt == 4:
                e.wait_vm(('V', it))
                R = vreads()
                extra = extra[:2] + R[:4] + extra[2:] + R[4:8]
                interleave(e, mf, extra, start=0)
                emit_groups(e, R[8:])
            else:
                interleave(e, mf, extra, start=1)
        emit_groups(e, maxops(3))
        emit_groups(e, maxops(4))
        if first:
            for rt in range(5):
                self.rowmax_xlane(e, rt)
                for k in range(4): e(f'v_sub_f32 v{NM(rt)+k}, 0, v{mx[rt]}')
                for k in range(8): e(f'v_sub_f32 v{Sreg(rt,0)+k}, v{Sreg(rt,0)+k}, v{mx[rt]}')
        else:
            t = vT + 5
            e(f'v_max3_f32 v{t}, v{mx[0]}, v{mx[1]}, v{mx[2]}')
            e(f'v_max3_f32 v{t}, v{t}, v{mx[3]}, v{mx[4]}')
            e(f'v_cmp_lt_f32 vcc, s{sT}, v{t}')
            self.nrare += 1
            lab, back = f'L_{self.name}_rare{self.nrare}', f'L_{self.name}_back{self.nrare}'
            e(f's_cbranch_vccnz {lab}')
            e.label(back)
            self.rare_block(lab, back)
        emit_groups(e, softmax(0))
        e.wait_lg()
        G = self.kv_dma('V', par, ('V', it + 2)) if issue_next else []
        for rt in range(5):
            mf = []
            P = vr(Sreg(rt, 0), 4)
            for ts in range(8):
                acc = vr(Oreg(ts, rt), 4)
                mf.append(f'{MFMA} {acc}, {ar(Vf(ts), 4)}, {P}, {"0" if first else acc}')
            la = ar(Lf(rt), 4)
            mf.append(f'{MFMA} {la}, {ar(aOne, 4)}, {P}, {"0" if first else la}')
            if rt < 4:
                sm = softmax(rt + 1)
                gg = G[2*rt:2*rt+2] if G else []
                extra = sm[:4] + gg[:1] + sm[4:8] + gg[1:] + sm[8:]
                interleave(e, mf, extra, start=0)
            else:
                if next_k: self.k_reads(it + 1, par ^ 1)
                for t in mf: e(t)

    def main_loop(self):
        e = self.e
        self.k_reads(0, 0)
        self.iteration(0, 0, True, first=True)
        self.iteration(1, 1, True)
        self.stamp(3)
        q0 = [(k, i - 2) for (k, i) in e.vmq]
        l0 = list(e.lgq)
        e(f's_mov_b32 s{sLoop}, 6')
        e.label(f'L_{self.name}_loop')
        self.iteration(2, 0, True)
        self.iteration(3, 1, True)
        q1 = [(k, i - 4) for (k, i) in e.vmq]
        assert q0 == q1, (q0, q1)
        assert l0 == e.lgq
        e(f's_sub_u32 s{sLoop}, s{sLoop}, 1')
        e(f's_cmp_lg_u32 s{sLoop}, 0')
        e(f's_cbranch_scc1 L_{self.name}_loop')
        if self.cfg.get('flow'): self.flag_load()
        if self.cfg.get('fused') and self.cfg.get('wwarm', 1) == 3: self.wo_warm()
        self.iteration(4, 0, False)
        if self.cfg.get('fused') and self.cfg.get('wwarm', 1) == 4: self.wo_warm()
        self.iteration(5, 1, False, next_k=False)

    def wo_warm(self):
        e = self.e
        q, r, t = vT + 7, vT + 8, vT + 11
        e(f's_bfe_u32 s{sT0}, s2, 0x10002')
        e(f's_cmp_eq_u32 s{sT0}, 0')
        e(f's_cselect_b32 s8, s48, s100')
        e(f's_cselect_b32 s9, s49, s101')
        e(f's_mov_b32 s10, {4096*1152}')
        e(f's_mov_b32 s11, 0x00020000')
        e(f's_bfe_u32 s{sT1}, s2, 0x10001')
        e(f's_lshl_b32 s{sT1}, s{sT1}, 9')
        e(f's_lshr_b32 s{sT0}, s2, 3')
        e(f's_lshl_b32 s{sT0}, s{sT0}, 2')
        e(f's_add_u32 s{sT0}, s{sT0}, s{sWv}')
        e(f's_mul_i32 s{sT0}, s{sT0}, 192')
        e(f's_mov_b32 s{sT2}, 52429')
        for i in range(3):
            e(f'v_add_u32 v{q}, s{sT0}, v{vL}')
            if i: e(f'v_add_u32 v{q}, {64*i}, v{q}')
            e(f'v_mul_lo_u32 v{r}, v{q}, s{sT2}')
            e(f'v_lshrrev_b32 v{r}, 18, v{r}')
            e(f'v_mul_u32_u24 v{t}, 5, v{r}')
            e(f'v_sub_u32 v{q}, v{q}, v{t}')
            e(f'v_mul_u32_u24 v{r}, 1152, v{r}')
            e(f'v_lshl_add_u32 v{q}, v{q}, 7, v{r}')
            e(f'buffer_load_dword v22, v{q}, s[8:11], s{sT1} offen', 'warm')

    def wo_warm2(self):
        e = self.e
        n = self.name
        q, r, t = vT + 7, vT + 8, vT + 11
        e(f's_cmp_eq_u32 s{sWv}, 0')
        e(f's_cbranch_scc1 L_{n}_nowarm')
        e(f's_bfe_u32 s{sT0}, s2, 0x10002')
        e(f's_cmp_eq_u32 s{sT0}, 0')
        e(f's_cselect_b32 s8, s48, s100')
        e(f's_cselect_b32 s9, s49, s101')
        e(f's_mov_b32 s10, {4096*1152}')
        e(f's_mov_b32 s11, 0x00020000')
        e(f's_bfe_u32 s{sT1}, s2, 0x10001')
        e(f's_lshl_b32 s{sT1}, s{sT1}, 9')
        e(f's_lshr_b32 s{sT0}, s2, 3')
        e(f's_mul_i32 s{sT0}, s{sT0}, 3')
        e(f's_add_u32 s{sT0}, s{sT0}, s{sWv}')
        e(f's_sub_u32 s{sT0}, s{sT0}, 1')
        e(f's_lshl_b32 s{sT0}, s{sT0}, 8')
        e(f's_mov_b32 s{sT2}, 52429')
        for i in range(4):
            e(f'v_add_u32 v{q}, s{sT0}, v{vL}')
            if i: e(f'v_add_u32 v{q}, {64*i}, v{q}')
            e(f'v_mul_lo_u32 v{r}, v{q}, s{sT2}')
            e(f'v_lshrrev_b32 v{r}, 18, v{r}')
            e(f'v_mul_u32_u24 v{t}, 5, v{r}')
            e(f'v_sub_u32 v{q}, v{q}, v{t}')
            e(f'v_mul_u32_u24 v{r}, 1152, v{r}')
            e(f'v_lshl_add_u32 v{q}, v{q}, 7, v{r}')
            e(f'buffer_load_dword v22, v{q}, s[8:11], s{sT1} offen', 'warm')
        e('s_waitcnt vmcnt(4)')
        e(f's_branch L_{n}_warmdone')
        e.label(f'L_{n}_nowarm')
        e('s_waitcnt vmcnt(0)')
        e.label(f'L_{n}_warmdone')
        e.vmq = []

    def epilogue(self):
        e = self.e
        t0, t1 = vT, vT + 1
        self.cstamp(0, 6)
        if self.cfg.get('flow'): self.flag_check()
        if self.cfg.get('fused') and self.cfg.get('wwarm', 1) == 1:
            if self.cfg.get('t4'):
                import tail4; tail4.wo_warm(self)
            else: self.wo_warm()
        if self.cfg.get('t4') and self.cfg.get('t4early', 1):
            import tail4; tail4.early(self)
        vMx, vLx = vS + 30, vS + 35
        for rt in range(5):
            e(f'v_sub_f32 v{vMx+rt}, 0, v{NM(rt)}')
            e(f'v_accvgpr_read_b32 v{vLx+rt}, a{Lf(rt)}')
        aw, ap = vT + 2, vT + 3
        e(f's_mul_i32 s{sT0}, s{sWv}, 640')
        e(f's_add_u32 s{sT0}, s{sT0}, {STATS}')
        e(f'v_lshlrev_b32 v{t0}, 3, v{vN}')
        e(f'v_add_u32 v{aw}, s{sT0}, v{t0}')
        e(f's_xor_b32 s{sT1}, s{sWv}, 1')
        e(f's_mul_i32 s{sT1}, s{sT1}, 640')
        e(f's_add_u32 s{sT1}, s{sT1}, {STATS}')
        e(f'v_add_u32 v{ap}, s{sT1}, v{t0}')
        for rt in range(5):
            e(f'ds_write2_b32 v{aw}, v{vMx+rt}, v{vLx+rt} offset0:{rt*32} offset1:{rt*32+1}', 'sw')
        e.wait_lg()
        self.cstamp(1, 6)
        e('s_barrier')
        self.cstamp(2, 6)
        for rt in range(5):
            e(f'ds_read_b64 {vr(vS + 2*rt, 2)}, v{ap} offset:{rt*128}', 'sr')
        e.wait_lg()
        G = vS + 16
        Mv = [vS + 10 + rt for rt in range(5)]
        Fo = [vT + 4 + rt for rt in range(5)]
        for rt in range(5): e(f'v_max_f32 v{Mv[rt]}, v{vMx+rt}, v{vS + 2*rt}')
        for rt in range(5):
            e(f'v_sub_f32 v{Fo[rt]}, v{vMx+rt}, v{Mv[rt]}')
            e(f'v_sub_f32 v{vS + 2*rt}, v{vS + 2*rt}, v{Mv[rt]}')
        for rt in range(5):
            e(f'v_exp_f32 v{Fo[rt]}, v{Fo[rt]}')
            e(f'v_exp_f32 v{vS + 2*rt}, v{vS + 2*rt}')
        for rt in range(5): e(f'v_mul_f32 v{vS + 2*rt + 1}, v{vS + 2*rt + 1}, v{vS + 2*rt}')
        for rt in range(5): e(f'v_fma_f32 v{vS + 2*rt + 1}, v{vLx+rt}, v{Fo[rt]}, v{vS + 2*rt + 1}')
        for rt in range(5): e(f'v_rcp_f32 v{vS + 2*rt + 1}, v{vS + 2*rt + 1}')
        for rt in range(5): e(f'v_mul_f32 v{G + 2*rt}, v{Fo[rt]}, v{vS + 2*rt + 1}')
        self.cstamp(3, 6)
        xa = vT + 9
        e(f's_mul_i32 s{sT0}, s{sWv}, 20480')
        e(f's_add_u32 s{sT0}, s{sT0}, {OX}')
        e(f'v_lshlrev_b32 v{t0}, 4, v{vL}')
        e(f'v_add_u32 v{xa}, s{sT0}, v{t0}')
        e(f's_xor_b32 s{sT1}, s{sWv}, 1')
        e(f's_mul_i32 s{sT1}, s{sT1}, 20480')
        e(f's_add_u32 s{sT1}, s{sT1}, {OX}')
        e(f'v_add_u32 v{xa+1}, s{sT1}, v{t0}')
        for ts in (4, 5, 6, 7):
            for rt in range(5):
                b = Oreg(ts, rt); g = G + 2*rt
                e(f'v_pk_mul_f32 {vr(b,2)}, {vr(b,2)}, {vr(g,2)} op_sel_hi:[1,0]')
                e(f'v_pk_mul_f32 {vr(b+2,2)}, {vr(b+2,2)}, {vr(g,2)} op_sel_hi:[1,0]')
                if ts >= 4:
                    e(f'ds_write_b128 v{xa}, {vr(b,4)} offset:{((ts-4)*5+rt)*1024}', 'ow')
        e.wait_lg()
        self.cstamp(4, 6)
        e('s_barrier')
        self.cstamp(5, 6)
        self.cstamp(6, 6)
        so = vT + 6
        e(f'v_lshlrev_b32 v{so}, 4, v{vL}')
        def reads(rt):
            for ts in range(4):
                e(f'ds_read_b128 {vr(Oreg(ts+4, rt),4)}, v{xa+1} offset:{(ts*5+rt)*1024}', ('or', rt))
        reads(0); reads(1)
        for rt in range(5):
            if rt + 2 < 5: reads(rt + 2)
            e.wait_lg(('or', rt))
            g = vS + 16 + 2*rt
            for ts in range(4):
                a, b = Oreg(ts, rt), Oreg(ts + 4, rt)
                e(f'v_pk_fma_f32 {vr(a,2)}, {vr(a,2)}, {vr(g,2)}, {vr(b,2)} op_sel_hi:[1,0,1]')
                e(f'v_pk_fma_f32 {vr(a+2,2)}, {vr(a+2,2)}, {vr(g,2)}, {vr(b+2,2)} op_sel_hi:[1,0,1]')
            for u in range(2):
                a, b = Oreg(2*u, rt), Oreg(2*u + 1, rt)
                e(f'v_cvt_pk_bf16_f32 v{a}, v{a}, v{a+1}')
                e(f'v_cvt_pk_bf16_f32 v{a+1}, v{a+2}, v{a+3}')
                e(f'v_cvt_pk_bf16_f32 v{a+2}, v{b}, v{b+1}')
                e(f'v_cvt_pk_bf16_f32 v{a+3}, v{b+2}, v{b+3}')
                e(f'buffer_store_dwordx4 {vr(a,4)}, v{so}, s[{sO}:{sO+3}], s{sOoff} offen offset:{u*1024}{self.ofl}', 'ost')
            if rt < 4:
                e(f's_add_u32 s{sOoff}, s{sOoff}, 131072')
        self.cstamp(7, 6)
        if self.cfg.get('fused') and self.cfg.get('wwarm', 1) == 2: self.wo_warm2()
        if self.cfg.get('stamps') and (not self.cfg.get('fused') or self.cfg.get('stamps') in (1, 6)) and not self.cfg.get('flow'): e.wait_vm('ost')
        self.cstamp(8, 6)

    def _epi_add(self, ts):
        e = self.e
        e.wait_lg(('or', ts))
        for rt in range(5):
            a, b = Oreg(ts, rt), Oreg(ts + 4, rt)
            g = vS + 16 + 2*rt
            e(f'v_pk_fma_f32 {vr(a,2)}, {vr(a,2)}, {vr(g,2)}, {vr(b,2)} op_sel_hi:[1,0,1]')
            e(f'v_pk_fma_f32 {vr(a+2,2)}, {vr(a+2,2)}, {vr(g,2)}, {vr(b+2,2)} op_sel_hi:[1,0,1]')

    def build(self):
        e = self.e
        n = self.name
        e.raw(f'.globl {n}\n.p2align 8\n.type {n},@function')
        e.label(n)
        self.stamp(0); self.stamp(0, 2); self.stamp(0, 3); self.cstamp(4); self.stamp(0, 5); self.cstamp(1, 5)
        self.prologue()
        e(f's_cmp_eq_u32 s{sBr}, 0')
        e(f's_cbranch_scc0 L_{n}_qB')
        saved = (list(e.vmq), list(e.lgq))
        self.q_phase('A')
        endA = (list(e.vmq), list(e.lgq))
        e(f's_branch L_{n}_qx')
        e.label(f'L_{n}_qB')
        e.vmq, e.lgq = list(saved[0]), list(saved[1])
        self.q_phase('B')
        assert (e.vmq, e.lgq) == endA, (e.vmq, endA)
        e.label(f'L_{n}_qx')
        self.stamp(1); self.stamp(11, 2); self.stamp(1, 3); self.cstamp(5)
        self.q_exchange()
        self.stamp(2); self.stamp(12, 2); self.stamp(2, 3); self.cstamp(6); self.stamp(2, 5)
        self.main_loop()
        self.stamp(4); self.stamp(3, 3); self.cstamp(7); self.stamp(3, 5)
        self.epilogue()
        self.stamp(5)
        if self.cfg.get('fused'):
            if self.cfg.get('t4'): from tail4 import fused_tail
            else: from tail import fused_tail
            fused_tail(self)
            self.stamp(9)
            if self.cfg.get('stamps') == 5:
                self.stamp(4, 5); self.cstamp(5, 5)
                e('s_waitcnt lgkmcnt(0)')
                e(f's_cmp_lg_u32 s2, {self.cfg.get("dbgwg", 0)}')
                e(f's_cbranch_scc1 L_{n}_end')
                e(f's_cmp_lg_u32 s{sWv}, 0')
                e(f's_cbranch_scc1 L_{n}_end')
                e('s_sub_u32 s78, s78, s70')
                e('s_sub_u32 s80, s80, s72')
                e('s_sub_u32 s76, s76, s70')
                e('s_sub_u32 s74, s74, s70')
                e('v_mov_b32 v4, s78'); e('v_mov_b32 v5, s80'); e('v_mov_b32 v6, s76'); e('v_mov_b32 v7, s74')
                e('v_mov_b32 v8, 48')
                e('s_mov_b64 exec, 1')
                e('buffer_store_dwordx4 v[4:7], v8, s[16:19], 0 offen')
                e('s_waitcnt vmcnt(0)')
                e.vmq = []
            else:
                self.write_stamps(10 if self.cfg.get('stamps') == 1 else 13)
        else:
            self.write_stamps(6 if self.cfg.get('stamps') == 1 else 13)
        e.label(f'L_{n}_end')
        e('s_endpgm')
        for r in self.rare:
            e.ins.extend(r.ins)
        e('s_endpgm')
        kd = f'''
.amdhsa_kernel {n}
  .amdhsa_next_free_vgpr 512
  .amdhsa_next_free_sgpr 102
  .amdhsa_accum_offset 256
  .amdhsa_group_segment_fixed_size 0
  .amdhsa_kernarg_size 104
  .amdhsa_user_sgpr_count 2
  .amdhsa_user_sgpr_kernarg_segment_ptr 1
  .amdhsa_system_sgpr_workgroup_id_x 1
.end_amdhsa_kernel
'''
        return kd
```

```python
from asmgen import *
import attn as A
from attn import srd, O_BR, O_BYTES, MFMA, interleave, emit_groups

WO_BYTES = 4096 * 1152
OUT_BYTES = 640 * 2304

def fused_tail(gen):
    e, cfg, n = gen.e, gen.cfg, gen.name
    ofl = cfg.get('o2_flags', ' sc1')
    wfl = cfg.get('wo_flags', '')
    sfl = cfg.get('out_flags', '')
    MT, NT = 3, 4
    RW = cfg.get('tail_rw', 8)
    RO = 4
    sWv, sBrA = A.sWv, A.sBr
    sBatt = A.sB
    sO, sW, sOut, sD = A.sO, 8, 12, 16
    sBr, sMt, sN0, sT0, sT1, sT2 = 4, 5, 6, 37, 38, 39
    sOoff, sWoff, sWl, sLoop = 7, 30, 31, 32
    sOm = 33
    sMg, sNg, sRot = 61, 62, 65
    sWo, sOo = 66, 67
    sRotO = 3
    sOk = 50
    retries = []
    vL, vN, vG, vT = A.vL, A.vN, A.vG, 4
    vWd, vOd, vWr = 10, 14, 16
    vAcc, vWF, vOF = 20, 68, 84
    RED = 0
    flow = cfg.get('flow')
    if flow:
        e('s_load_dwordx2 s[42:43], s[0:1], 72')
        e('s_load_dwordx2 s[44:45], s[0:1], 80')
        e('s_barrier')
        e('s_waitcnt lgkmcnt(0)')
        e.lgq = []
    else:
        e('s_load_dwordx2 s[42:43], s[0:1], 72')
        e('s_load_dwordx4 s[44:47], s[0:1], 80')
        e.wait_vm('ost')
        e.vmq = []
        e('s_barrier')
        e('s_waitcnt lgkmcnt(0)')
        e.lgq = []
        srd(e, sD, 46, 47, 256)
        e(f's_cmp_lg_u32 s{sWv}, 0')
        e(f's_cbranch_scc1 L_{n}_nosig')
        e(f'v_mov_b32 v{vT}, 0')
        e(f'v_mov_b32 v{vT+1}, 1')
        e('s_mov_b64 exec, 1')
        e(f'buffer_atomic_add v{vT+1}, v{vT}, s[{sD}:{sD+3}], 0 offen sc0 sc1', 'sig')
        e('s_waitcnt vmcnt(0)')
        e(f'v_readfirstlane_b32 s{sT0}, v{vT+1}')
        e(f's_cmp_lg_u32 s{sT0}, 255')
        e(f's_cbranch_scc1 L_{n}_notlast')
        e(f'v_mov_b32 v{vT+1}, 1')
        e(f'buffer_store_dword v{vT+1}, v{vT}, s[{sD}:{sD+3}], 0 offen offset:128 sc1', 'go')
        e.label(f'L_{n}_notlast')
        e('s_mov_b64 exec, -1')
        e.vmq = []
        e.label(f'L_{n}_nosig')
    e(f's_and_b32 s{sT0}, s2, 7')
    e(f's_lshr_b32 s{sT1}, s2, 3')
    e(f's_lshr_b32 s{sBr}, s{sT0}, 2')
    e(f's_and_b32 s{sOm}, s{sT0}, 1')
    e(f's_bfe_u32 s{sOm+1}, s{sT0}, 0x10001')
    e(f's_mul_i32 s{sOm}, s{sOm}, 7')
    e(f's_cmp_lt_u32 s{sT1}, 28')
    e(f's_cbranch_scc0 L_{n}_extra')
    e(f's_lshr_b32 s{sMg}, s{sT1}, 2')
    e(f's_add_u32 s{sMg}, s{sMg}, s{sOm}')
    e(f's_and_b32 s{sNg}, s{sT1}, 3')
    e(f's_mul_i32 s{sOm+1}, s{sOm+1}, 5')
    e(f's_add_u32 s{sNg}, s{sNg}, s{sOm+1}')
    e(f's_branch L_{n}_dec')
    e.label(f'L_{n}_extra')
    e(f's_sub_u32 s{sT1}, s{sT1}, 28')
    e(f's_lshl_b32 s{sOm+2}, s{sOm+1}, 2')
    e(f's_add_u32 s{sMg}, s{sT1}, s{sOm+2}')
    e(f's_cmp_ge_u32 s{sMg}, 7')
    e(f's_cbranch_scc1 L_{n}_end')
    e(f's_add_u32 s{sMg}, s{sMg}, s{sOm}')
    e(f's_mov_b32 s{sNg}, 4')
    e.label(f'L_{n}_dec')
    e(f's_lshl_b32 s{sN0}, s{sNg}, 6')
    e(f's_mul_i32 s{sMt}, s{sMg}, 3')
    e(f's_add_u32 s{sRot}, s{sMg}, s{sNg}')
    e(f's_mul_i32 s{sT1}, s{sRot}, 37')
    e(f's_lshr_b32 s{sT1}, s{sT1}, 8')
    e(f's_mul_i32 s{sT1}, s{sT1}, 7')
    e(f's_sub_u32 s{sRot}, s{sRot}, s{sT1}')
    SEG = cfg.get('oseg', 8)
    e(f's_mul_i32 s{sRot}, s{sRot}, {(SEG*64 + 6)//7}')
    e(f's_lshr_b32 s{sRot}, s{sRot}, 6')
    if not cfg.get('orot', 1): e(f's_mov_b32 s{sRot}, 0')
    sCw, sCo = 70 - 0, 0
    sCw, sCo = 98, 99
    e(f's_mov_b32 s{sCw}, 0')
    e(f's_mov_b32 s{sCo}, 0')
    def kstep(cnt, dst, tmp):
        return [(f's_add_u32 s{dst}, s{cnt}, s{sRot}', None), (f's_and_b32 s{dst}, s{dst}, {SEG-1}', None),
                (f's_and_b32 s{tmp}, s{cnt}, {32-SEG}', None), (f's_or_b32 s{dst}, s{dst}, s{tmp}', None),
                (f's_lshl_b32 s{dst}, s{dst}, 10', None), (f's_add_u32 s{cnt}, s{cnt}, 1', None)]
    e(f's_movk_i32 s{sT1}, 1152')
    e(f'v_lshrrev_b32 v{vT}, 3, v{vL}')
    e(f'v_mul_lo_u32 v{vT}, v{vT}, s{sT1}')
    e(f'v_lshlrev_b32 v{vT+1}, 1, v{vG}')
    e(f'v_and_b32 v{vT+2}, 7, v{vL}')
    e(f'v_xor_b32 v{vT+1}, v{vT+1}, v{vT+2}')
    e(f'v_lshl_add_u32 v{vWd}, v{vT+1}, 4, v{vT}')
    for j in range(1, 4):
        e(f'v_add_u32 v{vWd+j}, {8192*j}, v{vWd}')
    e(f'v_lshlrev_b32 v{vOd}, 4, v{vL}')
    e(f's_mul_i32 s{sWl}, s{sWv}, {RW*4096}')
    e(f'v_bfe_u32 v{vT}, v{vL}, 2, 2')
    e(f'v_lshl_add_u32 v{vT}, v{vG}, 2, v{vT}')
    e(f'v_bfe_u32 v{vT+1}, v{vT}, 1, 2')
    e(f'v_lshlrev_b32 v{vT+1}, 1, v{vT+1}')
    e(f'v_bfe_u32 v{vT+2}, v{vL}, 1, 1')
    e(f'v_xor_b32 v{vT+1}, v{vT+1}, v{vT+2}')
    e(f'v_and_b32 v{vT+2}, 1, v{vL}')
    e(f'v_lshlrev_b32 v{vT+2}, 3, v{vT+2}')
    e(f'v_lshl_add_u32 v{vT+2}, v{vT}, 7, v{vT+2}')
    e(f'v_add_u32 v{vT+2}, s{sWl}, v{vT+2}')
    for nt in range(NT):
        e(f'v_xor_b32 v{vT}, {2*nt}, v{vT+1}')
        e(f'v_lshl_add_u32 v{vWr+nt}, v{vT}, 4, v{vT+2}')
    e(f's_cmp_eq_u32 s{sBr}, 0')
    e(f's_cselect_b32 s40, s48, s42')
    e(f's_cselect_b32 s41, s49, s43')
    srd(e, sW, 40, 41, WO_BYTES)
    srd(e, sOut, 44, 45, OUT_BYTES)
    e(f's_mul_i32 s{sWoff}, s{sWv}, {32*32*1152}')
    e(f's_lshl_b32 s{sT0}, s{sN0}, 1')
    e(f's_add_u32 s{sWoff}, s{sWoff}, s{sT0}')
    e(f's_mul_i32 s{sOoff}, s{sBr}, {O_BR}')
    e(f's_lshl_b32 s{sT0}, s{sMt}, 17')
    e(f's_add_u32 s{sOoff}, s{sOoff}, s{sT0}')
    e(f's_lshl_b32 s{sT0}, s{sWv}, 15')
    e(f's_add_u32 s{sOoff}, s{sOoff}, s{sT0}')
    for mi in range(MT):
        e(f's_add_u32 s{sOm+mi}, s{sOoff}, {mi*131072}')

    def w_groups(slot, tag):
        G = [kstep(sCw, sWo, sT0) + [(f's_add_u32 m0, s{sWl}, {slot*4096}', None),
              (f's_mul_i32 s{sWo}, s{sWo}, 36', None),
              (f's_add_u32 s{sWo}, s{sWo}, s{sWoff}', None)]]
        for j in range(4):
            G.append([(f'buffer_load_dwordx4 v{vWd+j}, s[{sW}:{sW+3}], s{sWo} offen offset:{1024*j}{wfl} lds', tag)])
        return G
    def o_groups(slot, tag):
        g = kstep(sCo, sRotO, sT1) + [(f's_add_u32 s{sOo+mi}, s{sOm+mi}, s{sRotO}', None) for mi in range(MT)]
        if flow: g.append((f's_mov_b32 s{sOk+slot}, s{sRotO}', None))
        G = [g]
        for mi in range(MT):
            r = vOF + slot*12 + mi*4
            G.append([(f'buffer_load_dwordx4 {vr(r,4)}, v{vOd}, s[{sO}:{sO+3}], s{sOo+mi} offen{ofl}', tag)])
        return G

    for t in range(RW): emit_groups(e, w_groups(t, ('w', t)))
    gen.stamp(6)
    if not flow:
        e(f's_cmp_lg_u32 s{sWv}, 0')
        e(f's_cbranch_scc1 L_{n}_nopoll')
        e(f'v_mov_b32 v{vT}, 128')
        e(f's_mov_b32 s{sLoop}, 0')
        e.label(f'L_{n}_poll')
        e(f'buffer_load_dword v{vT+2}, v{vT}, s[{sD}:{sD+3}], 0 offen sc1')
        e('s_waitcnt vmcnt(0)')
        e(f'v_readfirstlane_b32 s{sT0}, v{vT+2}')
        e(f's_cmp_lg_u32 s{sT0}, 0')
        e(f's_cbranch_scc1 L_{n}_nopoll')
        e(f's_add_u32 s{sLoop}, s{sLoop}, 1')
        e(f's_cmp_lt_u32 s{sLoop}, 0x20000')
        e(f's_cbranch_scc0 L_{n}_nopoll')
        e(f's_sleep {cfg.get("psleep", 4)}')
        e(f's_branch L_{n}_poll')
        e.label(f'L_{n}_nopoll')
        e.vmq = [('w', t) for t in range(RW) for _ in range(4)]
        e('s_barrier')
    gen.stamp(7)
    for t in range(RO): emit_groups(e, o_groups(t, ('o', t)))

    vWF2 = [vWF, 140]
    def w_reads(t):
        ws, b = t % RW, vWF2[t & 1]
        return [[(f'ds_read_b64_tr_b16 {vr(b + nt*4 + 2*sec, 2)}, v{vWr+nt} offset:{ws*4096 + sec*2048}', 'wf')] for nt in range(NT) for sec in range(2)]
    def step(t, first, nxt_w, nxt_o, last=False):
        ws, os_ = t % RW, t % RO
        e.wait_lg()
        e.wait_vm([('o', t)] + ([] if last else [('w', t + 1)]))
        if flow:
            r0 = vOF + os_*12
            tv = vT
            e(f'v_max3_u32 v{tv}, v{r0}, v{r0+1}, v{r0+2}')
            for q in range(3, 11, 2): e(f'v_max3_u32 v{tv}, v{tv}, v{r0+q}, v{r0+q+1}')
            e(f'v_max_u32 v{tv}, v{tv}, v{r0+11}')
            e(f'v_cmp_eq_u32 vcc, -1, v{tv}')
            lab = f'L_{n}_rt{len(retries)}'
            e(f's_cbranch_vccnz {lab}')
            e.label(lab + 'b')
            r = Emitter()
            r.label(lab)
            r(f's_mov_b32 s{sLoop+0}, s{sLoop}') if False else None
            r('s_mov_b32 s54, 0')
            r.label(lab + 'l')
            r('s_sleep 2')
            for mi in range(MT):
                r(f's_add_u32 s55, s{sOm+mi}, s{sOk+os_}')
                r(f'buffer_load_dwordx4 {vr(r0 + mi*4, 4)}, v{vOd}, s[{sO}:{sO+3}], s55 offen{ofl}')
            r('s_waitcnt vmcnt(0)')
            r(f'v_max3_u32 v{tv}, v{r0}, v{r0+1}, v{r0+2}')
            for q in range(3, 11, 2): r(f'v_max3_u32 v{tv}, v{tv}, v{r0+q}, v{r0+q+1}')
            r(f'v_max_u32 v{tv}, v{tv}, v{r0+11}')
            r(f'v_cmp_eq_u32 vcc, -1, v{tv}')
            r(f's_cbranch_vccz {lab}b')
            r('s_add_u32 s54, s54, 1')
            r('s_cmp_lt_u32 s54, 0x4000')
            r(f's_cbranch_scc1 {lab}l')
            r(f's_branch {lab}b')
            r.fix_hazards()
            retries.append(r)
        b = vWF2[t & 1]
        mf = []
        for nt in range(NT):
            for mi in range(MT):
                acc = vr(vAcc + (nt*MT + mi)*4, 4)
                mf.append(f'{MFMA} {acc}, {vr(b + nt*4, 4)}, {vr(vOF + os_*12 + mi*4, 4)}, {"0" if first else acc}')
        R = [] if last else w_reads(t + 1)
        Gw = w_groups(ws, ('w', t + RW)) if nxt_w else []
        Go = o_groups(os_, ('o', t + RO)) if nxt_o else []
        interleave(e, mf[:4], R, start=0)
        interleave(e, mf[4:], Gw + Go[:1], start=0)
        emit_groups(e, Go[1:])

    e.wait_vm([('w', 0)])
    emit_groups(e, w_reads(0))
    for t in range(RW): step(t, t == 0, True, True)
    nmid = (32 - 2*RW) // RW
    if nmid > 0:
        q0 = [(k, i - RW) for (k, i) in e.vmq]
        l0 = list(e.lgq)
        e(f's_mov_b32 s{sLoop}, {nmid}')
        e.label(f'L_{n}_oloop')
        for t in range(RW, 2*RW): step(t, False, True, True)
        q1 = [(k, i - 2*RW) for (k, i) in e.vmq]
        assert q0 == q1, (q0, q1)
        assert l0 == e.lgq
        e(f's_sub_u32 s{sLoop}, s{sLoop}, 1')
        e(f's_cmp_lg_u32 s{sLoop}, 0')
        e(f's_cbranch_scc1 L_{n}_oloop')
    base = 2*RW if nmid > 0 else RW
    for t in range(base, base + RW): step(t, False, False, t + RO < base + RW, last=(t == base + RW - 1))
    gen.stamp(8)
    e('s_barrier')
    e(f's_mul_i32 s{sT0}, s{sWv}, 12288')
    e(f'v_add_u32 v{vT}, s{sT0}, v{vOd}')
    for t in range(NT*MT):
        e(f'ds_write_b128 v{vT}, {vr(vAcc + t*4, 4)} offset:{RED + t*1024}', 'rw')
    e.wait_lg()
    e('s_barrier')
    e(f's_mul_i32 s{sT0}, s{sWv}, {MT*1024}')
    e(f'v_add_u32 v{vT}, s{sT0}, v{vOd}')
    R = vOF
    for mi in range(MT):
        for v in range(4):
            e(f'ds_read_b128 {vr(R + (mi*4 + v)*4, 4)}, v{vT} offset:{RED + v*12288 + mi*1024}', ('r', mi))
    e(f's_lshl_b32 s{sT0}, s{sMt}, 4')
    e(f'v_add_u32 v{vT+1}, s{sT0}, v{vN}')
    e(f's_movk_i32 s{sT1}, 2304')
    e(f'v_mul_lo_u32 v{vT+1}, v{vT+1}, s{sT1}')
    e(f'v_lshl_add_u32 v{vT+1}, v{vG}, 3, v{vT+1}')
    e(f's_mul_i32 s{sT0}, s{sBr}, 1152')
    e(f's_lshl_b32 s{sT1}, s{sN0}, 1')
    e(f's_add_u32 s{sT0}, s{sT0}, s{sT1}')
    e(f's_lshl_b32 s{sT1}, s{sWv}, 5')
    e(f's_add_u32 s{sT0}, s{sT0}, s{sT1}')
    for mi in range(MT):
        e.wait_lg(('r', mi))
        b = R + mi*16
        e(f'v_pk_add_f32 {vr(b,2)}, {vr(b,2)}, {vr(b+4,2)}')
        e(f'v_pk_add_f32 {vr(b+2,2)}, {vr(b+2,2)}, {vr(b+6,2)}')
        e(f'v_pk_add_f32 {vr(b+8,2)}, {vr(b+8,2)}, {vr(b+12,2)}')
        e(f'v_pk_add_f32 {vr(b+10,2)}, {vr(b+10,2)}, {vr(b+14,2)}')
        e(f'v_pk_add_f32 {vr(b,2)}, {vr(b,2)}, {vr(b+8,2)}')
        e(f'v_pk_add_f32 {vr(b+2,2)}, {vr(b+2,2)}, {vr(b+10,2)}')
        e(f'v_cvt_pk_bf16_f32 v{b}, v{b}, v{b+1}')
        e(f'v_cvt_pk_bf16_f32 v{b+1}, v{b+2}, v{b+3}')
        e(f'buffer_store_dwordx2 {vr(b,2)}, v{vT+1}, s[{sOut}:{sOut+3}], s{sT0} offen{sfl}', 'st')
        if mi < MT - 1:
            e(f's_add_u32 s{sT0}, s{sT0}, {16*2304}')
    if cfg.get('stamps'): e.wait_vm_all()
    gen.rare.extend(retries)
```

```python
from asmgen import *
import attn as A
from attn import srd, O_BR, O_BYTES, MFMA, interleave, emit_groups

WO_BYTES = 4096 * 1152
OUT_BYTES = 640 * 2304
INBOX = 0x1800000
INBOX_END = INBOX + 240 * 36864
RW, RO = 8, 6
STAGE = 12288
OBUF = RW * STAGE

def wo_warm(gen):
    e = gen.e
    sT0, sT1, sT2, sWv = A.sT0, A.sT1, A.sT2, A.sWv
    q, vL = A.vT + 7, A.vL
    e(f's_bfe_u32 s{sT0}, s2, 0x10002')
    e(f's_cmp_eq_u32 s{sT0}, 0')
    e(f's_cselect_b32 s8, s48, s100')
    e(f's_cselect_b32 s9, s49, s101')
    e(f's_mov_b32 s10, {WO_BYTES}')
    e(f's_mov_b32 s11, 0x00020000')
    e(f's_and_b32 s{sT1}, s2, 3')
    e(f's_mul_i32 s{sT1}, s{sT1}, {1024*1152}')
    e(f's_lshr_b32 s{sT0}, s2, 3')
    e(f's_lshl_b32 s{sT0}, s{sT0}, 2')
    e(f's_add_u32 s{sT0}, s{sT0}, s{sWv}')
    e(f's_mul_i32 s{sT0}, s{sT0}, {72*128}')
    e(f's_add_u32 s{sT1}, s{sT1}, s{sT0}')
    e(f'v_lshlrev_b32 v{q}, 7, v{vL}')
    e(f'buffer_load_dword v22, v{q}, s[8:11], s{sT1} offen', 'warm')
    e(f'v_add_u32 v{q}, {64*128}, v{q}')
    e(f'v_cmp_gt_u32 vcc, 8, v{vL}')
    e(f'v_mov_b32 v23, 0x7ff00000')
    e(f'v_cndmask_b32 v{q}, v23, v{q}, vcc')
    e(f'buffer_load_dword v22, v{q}, s[8:11], s{sT1} offen', 'warm')

def early(gen):
    e, cfg, n = gen.e, gen.cfg, gen.name
    gen.t4_early_done = True
    sWv = A.sWv
    sI = 4
    sT0, sT1, sT2 = A.sT0, A.sT1, A.sT2
    sBr, sKq, sMg, sNg, sIdle, sRot = 28, 29, 61, 62, 64, 65
    sCw, sCo = 98, 99
    sIn, sSend = 34, 35
    vL = A.vL
    vOd, vP = 11, 4
    e(f's_and_b32 s{sT0}, s2, 7')
    e(f's_lshr_b32 s{sT1}, s2, 3')
    e(f's_lshr_b32 s{sBr}, s{sT0}, 2')
    e(f's_and_b32 s{sKq}, s{sT0}, 3')
    e(f's_cmp_ge_u32 s{sT1}, 30')
    e(f's_cselect_b32 s{sIdle}, 1, 0')
    e(f's_cselect_b32 s{sT1}, 0, s{sT1}')
    e(f's_mul_i32 s{sMg}, s{sT1}, 86')
    e(f's_lshr_b32 s{sMg}, s{sMg}, 8')
    e(f's_mul_i32 s{sT2}, s{sMg}, 3')
    e(f's_sub_u32 s{sNg}, s{sT1}, s{sT2}')
    e(f's_mul_i32 s{sRot}, s{sNg}, 3')
    e(f's_add_u32 s{sRot}, s{sRot}, s{sMg}')
    e(f's_sub_u32 s{sT2}, s{sRot}, 10')
    e(f's_cmp_ge_u32 s{sRot}, 10')
    e(f's_cselect_b32 s{sRot}, s{sT2}, s{sRot}')
    e(f's_mul_i32 s{sRot}, s{sRot}, 205')
    e(f's_lshr_b32 s{sRot}, s{sRot}, 6')
    if not cfg.get('orot', 1): e(f's_mov_b32 s{sRot}, 0')
    e(f's_mov_b32 s{sCw}, s{sRot}')
    e(f's_mov_b32 s{sCo}, s{sRot}')
    e(f's_mul_i32 s{sT0}, s{sBr}, 10')
    e(f's_add_u32 s{sT0}, s{sT0}, s{sMg}')
    e(f's_mul_i32 s{sT0}, s{sT0}, 3')
    e(f's_add_u32 s{sT0}, s{sT0}, s{sNg}')
    e(f's_lshl_b32 s{sT0}, s{sT0}, 2')
    e(f's_mul_i32 s{sSend}, s{sT0}, 36864')
    e(f's_mul_i32 s{sT1}, s{sWv}, 3072')
    e(f's_add_u32 s{sSend}, s{sSend}, s{sT1}')
    e(f's_add_u32 s{sSend}, s{sSend}, {INBOX}')
    e(f's_mul_i32 s{sT1}, s{sKq}, 36864')
    e(f's_add_u32 s{sIn}, s{sSend}, s{sT1}')
    srd(e, sI, 58, 59, INBOX_END)
    e(f'v_lshlrev_b32 v{vOd}, 4, v{vL}')
    for k in range(4): e(f'v_mov_b32 v{vP+k}, -1')
    e(f's_cmp_lg_u32 s{sIdle}, 0')
    e(f's_cbranch_scc1 L_{n}_nopois')
    for s in range(3):
        e(f's_add_u32 s{sT1}, s{sIn}, {s*12288}')
        for i in range(3):
            e(f'buffer_store_dwordx4 {vr(vP,4)}, v{vOd}, s[{sI}:{sI+3}], s{sT1} offen offset:{i*1024} sc1', 'pois')
    e.label(f'L_{n}_nopois')

def fused_tail(gen):
    e, cfg, n = gen.e, gen.cfg, gen.name
    ofl = cfg.get('o2_flags', ' sc1')
    wfl = cfg.get('wo_flags', '')
    sfl = cfg.get('out_flags', '')
    sWv = A.sWv
    sO, sW, sOut, sD, sI = A.sO, 8, 12, 16, 4
    sT0, sT1, sT2 = A.sT0, A.sT1, A.sT2
    sBr, sKq, sMg, sNg, sIdle, sRot = 28, 29, 61, 62, 64, 65
    sOb, sWb, sWl, sLoop = 30, 31, 33, 32
    sCw, sCo, sWo, sOo = 98, 99, 66, 67
    sIn, sSend = 34, 35
    vL, vN, vG, vT = A.vL, A.vN, A.vG, 4
    vWd, vOd, vWr, vOr = 10, 11, 12, 18
    vP = 24
    vAcc = 32
    vF = [80, 108]
    vOq = 136
    vIn = 160
    def acc(s, i): return vAcc + (s*3 + i)*4
    if not getattr(gen, 't4_early_done', False): early(gen)
    e('s_load_dwordx4 s[44:47], s[0:1], 80')
    e('s_waitcnt vmcnt(0)')
    e.vmq = []
    e('s_barrier')
    e('s_waitcnt lgkmcnt(0)')
    e.lgq = []
    srd(e, sD, 46, 47, 256)
    e(f's_cmp_lg_u32 s{sWv}, 0')
    e(f's_cbranch_scc1 L_{n}_nosig')
    e(f'v_mov_b32 v{vT}, 0')
    e(f'v_mov_b32 v{vT+1}, 1')
    e('s_mov_b64 exec, 1')
    e(f'buffer_atomic_add v{vT+1}, v{vT}, s[{sD}:{sD+3}], 0 offen sc0 sc1', 'sig')
    e('s_waitcnt vmcnt(0)')
    e(f'v_readfirstlane_b32 s{sT0}, v{vT+1}')
    e(f's_cmp_lg_u32 s{sT0}, 255')
    e(f's_cbranch_scc1 L_{n}_notlast')
    e(f'v_mov_b32 v{vT+1}, 1')
    e(f'buffer_store_dword v{vT+1}, v{vT}, s[{sD}:{sD+3}], 0 offen offset:128 sc1', 'go')
    e.label(f'L_{n}_notlast')
    e('s_mov_b64 exec, -1')
    e.vmq = []
    e.label(f'L_{n}_nosig')
    e(f's_cmp_lg_u32 s{sIdle}, 0')
    e(f's_cbranch_scc1 L_{n}_end')
    e(f's_movk_i32 s{sT1}, 1152')
    e(f'v_lshrrev_b32 v{vT}, 3, v{vL}')
    e(f's_lshl_b32 s{sT0}, s{sWv}, 3')
    e(f'v_add_u32 v{vT}, s{sT0}, v{vT}')
    e(f'v_mul_lo_u32 v{vT}, v{vT}, s{sT1}')
    e(f'v_lshlrev_b32 v{vT+1}, 1, v{vG}')
    e(f'v_and_b32 v{vT+2}, 7, v{vL}')
    e(f'v_xor_b32 v{vT+1}, v{vT+1}, v{vT+2}')
    e(f'v_lshl_add_u32 v{vWd}, v{vT+1}, 4, v{vT}')
    e(f's_lshl_b32 s{sWl}, s{sWv}, 10')
    e(f'v_bfe_u32 v{vT}, v{vL}, 2, 2')
    e(f'v_lshl_add_u32 v{vT}, v{vG}, 2, v{vT}')
    e(f'v_bfe_u32 v{vT+1}, v{vT}, 1, 2')
    e(f'v_lshlrev_b32 v{vT+1}, 1, v{vT+1}')
    e(f'v_bfe_u32 v{vT+2}, v{vL}, 1, 1')
    e(f'v_xor_b32 v{vT+1}, v{vT+1}, v{vT+2}')
    e(f'v_and_b32 v{vT+2}, 1, v{vL}')
    e(f'v_lshlrev_b32 v{vT+2}, 3, v{vT+2}')
    e(f'v_lshl_add_u32 v{vT+2}, v{vT}, 7, v{vT+2}')
    for i in range(3):
        e(f's_mul_i32 s{sT0}, s{sWv}, 3')
        e(f's_add_u32 s{sT0}, s{sT0}, {i}')
        e(f's_and_b32 s{sT1}, s{sT0}, 3')
        e(f's_lshl_b32 s{sT1}, s{sT1}, 1')
        e(f's_lshr_b32 s{sT0}, s{sT0}, 2')
        e(f's_lshl_b32 s{sT0}, s{sT0}, 12')
        e(f'v_xor_b32 v{vT}, s{sT1}, v{vT+1}')
        e(f'v_lshl_add_u32 v{vT}, v{vT}, 4, v{vT+2}')
        e(f'v_add_u32 v{vWr+i}, s{sT0}, v{vT}')
        e(f'v_add_u32 v{vWr+3+i}, {4*STAGE}, v{vWr+i}')
    for s in range(4):
        e(f's_xor_b32 s{sT0}, s{sKq}, {s}')
        e(f's_lshl_b32 s{sT0}, s{sT0}, 10')
        e(f's_add_u32 s{sT0}, s{sT0}, {OBUF}')
        e(f'v_add_u32 v{vOr+s}, s{sT0}, v{vOd}')
    e(f's_add_u32 s{sT0}, s{sWl}, {OBUF}')
    e(f'v_add_u32 v{vT+3}, s{sT0}, v{vOd}')
    vOw = vT + 3
    e(f's_cmp_eq_u32 s{sBr}, 0')
    e(f's_cselect_b32 s40, s48, s100')
    e(f's_cselect_b32 s41, s49, s101')
    srd(e, sW, 40, 41, WO_BYTES)
    srd(e, sOut, 44, 45, OUT_BYTES)
    e(f's_mul_i32 s{sWb}, s{sKq}, {32*36864}')
    e(f's_mul_i32 s{sT0}, s{sNg}, 384')
    e(f's_add_u32 s{sWb}, s{sWb}, s{sT0}')
    e(f's_lshl_b32 s{sT0}, s{sMg}, 2')
    e(f's_add_u32 s{sT0}, s{sT0}, s{sWv}')
    e(f's_lshl_b32 s{sT0}, s{sT0}, 17')
    e(f's_mul_i32 s{sOb}, s{sBr}, {O_BR}')
    e(f's_add_u32 s{sOb}, s{sOb}, s{sT0}')
    e(f's_lshl_b32 s{sT0}, s{sKq}, 15')
    e(f's_add_u32 s{sOb}, s{sOb}, s{sT0}')

    def w_groups(stage, tag):
        G = []
        for cb in range(3):
            g = []
            if cb == 0:
                g += [(f's_mul_i32 s{sWo}, s{sCw}, 36864', None), (f's_add_u32 s{sWo}, s{sWo}, s{sWb}', None),
                      (f's_add_u32 s{sCw}, s{sCw}, 1', None), (f's_and_b32 s{sCw}, s{sCw}, 31', None)]
            g += [(f's_add_u32 m0, s{sWl}, {stage*STAGE + cb*(4096-128)}', None), ('s_nop 0', None) if cb else (f's_nop 0', None),
                  (f'buffer_load_dwordx4 v{vWd}, s[{sW}:{sW+3}], s{sWo} offen offset:{128*cb}{wfl} lds', tag)]
            G.append(g)
        return G
    def o_group(slot, tag):
        return [[(f's_lshl_b32 s{sOo}, s{sCo}, 10', None), (f's_add_u32 s{sOo}, s{sOo}, s{sOb}', None),
                 (f's_add_u32 s{sCo}, s{sCo}, 1', None), (f's_and_b32 s{sCo}, s{sCo}, 31', None),
                 (f'buffer_load_dwordx4 {vr(vOq + slot*4, 4)}, v{vOd}, s[{sO}:{sO+3}], s{sOo} offen{ofl}', tag)]]
    for t in range(RW): emit_groups(e, w_groups(t, ('w', t)))
    gen.stamp(6)
    e(f's_cmp_lg_u32 s{sWv}, 0')
    e(f's_cbranch_scc1 L_{n}_nopoll')
    e(f'v_mov_b32 v{vT}, 128')
    e(f's_mov_b32 s{sLoop}, 0')
    e.label(f'L_{n}_poll')
    e(f'buffer_load_dword v{vT+2}, v{vT}, s[{sD}:{sD+3}], 0 offen sc1')
    e('s_waitcnt vmcnt(0)')
    e(f'v_readfirstlane_b32 s{sT0}, v{vT+2}')
    e(f's_cmp_lg_u32 s{sT0}, 0')
    e(f's_cbranch_scc1 L_{n}_nopoll')
    e(f's_add_u32 s{sLoop}, s{sLoop}, 1')
    e(f's_cmp_lt_u32 s{sLoop}, 0x20000')
    e(f's_cbranch_scc0 L_{n}_nopoll')
    e(f's_sleep {cfg.get("psleep", 4)}')
    e(f's_branch L_{n}_poll')
    e.label(f'L_{n}_nopoll')
    e.vmq = [('w', t) for t in range(RW) for _ in range(3)]
    e('s_barrier')
    gen.stamp(7)
    for t in range(RO): emit_groups(e, o_group(t, ('o', t)))

    def frag_reads(t):
        st, b = t % RW, vF[t & 1]
        G = []
        base, off = (vWr, st*STAGE) if st < 4 else (vWr + 3, (st - 4)*STAGE)
        for s in range(4):
            G.append([(f'ds_read_b128 {vr(b + 12 + s*4, 4)}, v{vOr+s} offset:{(t & 1)*4096}', 'fr')])
        for i in range(3):
            for sec in range(2):
                G.append([(f'ds_read_b64_tr_b16 {vr(b + i*4 + 2*sec, 2)}, v{base+i} offset:{off + sec*2048}', 'fr')])
        return G
    def stage_o(t):
        e(f'ds_write_b128 v{vOw}, {vr(vOq + (t % RO)*4, 4)} offset:{(t & 1)*4096}', 'ow')
    e.wait_vm([('o', 1), ('w', 0)])
    stage_o(0); stage_o(1)
    e.wait_lg()
    e('s_barrier')
    emit_groups(e, frag_reads(0))
    emit_groups(e, o_group(0, ('o', RO)))
    emit_groups(e, o_group(1, ('o', RO + 1)))
    for t in range(32):
        last = t == 31
        e.wait_lg()
        if not last:
            e.wait_vm([('w', t + 1)])
            e('s_barrier')
        b = vF[t & 1]
        mf = []
        for s in range(4):
            for i in range(3):
                a = vr(acc(s, i), 4)
                mf.append(f'{MFMA} {a}, {vr(b + i*4, 4)}, {vr(b + 12 + s*4, 4)}, {"0" if t == 0 else a}')
        R = [] if last else frag_reads(t + 1)
        Gw = w_groups(t % RW, ('w', t + RW)) if t + RW < 32 else []
        interleave(e, mf[:6], R, start=0)
        interleave(e, mf[6:10], Gw, start=0)
        if t + 2 < 32:
            e.wait_vm([('o', t + 2)])
            e(f'ds_write_b128 v{vOw}, {vr(vOq + ((t + 2) % RO)*4, 4)} offset:{(t & 1)*4096}', 'ow')
        e(mf[10])
        if t >= 1 and t + 1 + RO < 32: emit_groups(e, o_group((t + 1) % RO, ('o', t + 1 + RO)))
        e(mf[11])
    gen.stamp(8)
    for s in range(1, 4):
        e(f's_xor_b32 s{sT0}, s{sKq}, {s}')
        e(f's_mul_i32 s{sT0}, s{sT0}, 36864')
        e(f's_add_u32 s{sT0}, s{sT0}, s{sSend}')
        e(f's_add_u32 s{sT0}, s{sT0}, {(s-1)*12288}')
        for i in range(3):
            e(f'buffer_store_dwordx4 {vr(acc(s, i), 4)}, v{vOd}, s[{sI}:{sI+3}], s{sT0} offen offset:{i*1024} sc1', 'snd')
    e(f's_mov_b32 s{sLoop}, 0')
    e.label(f'L_{n}_rcv')
    for s in range(3):
        e(f's_add_u32 s{sT1}, s{sIn}, {s*12288}')
        for i in range(3):
            e(f'buffer_load_dwordx4 {vr(vIn + (s*3 + i)*4, 4)}, v{vOd}, s[{sI}:{sI+3}], s{sT1} offen offset:{i*1024} sc1', 'rcv')
    e('s_waitcnt vmcnt(0)')
    e.vmq = []
    e(f'v_max3_u32 v{vT}, v{vIn}, v{vIn+1}, v{vIn+2}')
    for q in range(3, 35, 2): e(f'v_max3_u32 v{vT}, v{vT}, v{vIn+q}, v{vIn+q+1}')
    e(f'v_max_u32 v{vT}, v{vT}, v{vIn+35}')
    e(f'v_cmp_eq_u32 vcc, -1, v{vT}')
    e(f's_cbranch_vccz L_{n}_rcvd')
    e(f's_add_u32 s{sLoop}, s{sLoop}, 1')
    e(f's_cmp_lt_u32 s{sLoop}, 0x8000')
    e(f's_cbranch_scc0 L_{n}_rcvd')
    e('s_sleep 1')
    e(f's_branch L_{n}_rcv')
    e.label(f'L_{n}_rcvd')
    e(f's_lshl_b32 s{sT0}, s{sMg}, 2')
    e(f's_add_u32 s{sT0}, s{sT0}, s{sKq}')
    e(f's_lshl_b32 s{sT0}, s{sT0}, 4')
    e(f'v_add_u32 v{vT+1}, s{sT0}, v{vN}')
    e(f's_movk_i32 s{sT1}, 2304')
    e(f'v_mul_lo_u32 v{vT+1}, v{vT+1}, s{sT1}')
    e(f'v_lshl_add_u32 v{vT+1}, v{vG}, 3, v{vT+1}')
    e(f's_mul_i32 s{sT0}, s{sBr}, 1152')
    e(f's_mul_i32 s{sT1}, s{sNg}, 384')
    e(f's_add_u32 s{sT0}, s{sT0}, s{sT1}')
    e(f's_mul_i32 s{sT1}, s{sWv}, 96')
    e(f's_add_u32 s{sT0}, s{sT0}, s{sT1}')
    for i in range(3):
        a = acc(0, i)
        r = [vIn + (s*3 + i)*4 for s in range(3)]
        e(f'v_pk_add_f32 {vr(a,2)}, {vr(a,2)}, {vr(r[0],2)}')
        e(f'v_pk_add_f32 {vr(a+2,2)}, {vr(a+2,2)}, {vr(r[0]+2,2)}')
        e(f'v_pk_add_f32 {vr(r[1],2)}, {vr(r[1],2)}, {vr(r[2],2)}')
        e(f'v_pk_add_f32 {vr(r[1]+2,2)}, {vr(r[1]+2,2)}, {vr(r[2]+2,2)}')
        e(f'v_pk_add_f32 {vr(a,2)}, {vr(a,2)}, {vr(r[1],2)}')
        e(f'v_pk_add_f32 {vr(a+2,2)}, {vr(a+2,2)}, {vr(r[1]+2,2)}')
        e(f'v_cvt_pk_bf16_f32 v{a}, v{a}, v{a+1}')
        e(f'v_cvt_pk_bf16_f32 v{a+1}, v{a+2}, v{a+3}')
        e(f'buffer_store_dwordx2 {vr(a,2)}, v{vT+1}, s[{sOut}:{sOut+3}], s{sT0} offen offset:{i*32}{sfl}', 'st')
    if cfg.get('stamps'): e.wait_vm_all()
```

```python
from asmgen import *

X_BYTES = 8 * 80 * 1152
W_BYTES = 576 * 8192
KA_BYTES = 8 * 16 * 1024 * 256
KB_BYTES = 8 * 32 * 1024 * 256
O_BR = 40 * 128 * 1024
O_BYTES = 2 * O_BR

QBUF0, QBUFSZ = 34816, 43008
KS, VS = 0, 65536
QIMG = 122880
STATS = 131072
OX = 0

sX, sW, sK, sV, sO = 4, 8, 12, 16, 20
sWv, sJ, sKH, sBr, sC, sT = 24, 25, 26, 27, 28, 29
sKoff, sVoff, sKl, sVl = 30, 31, 32, 33
sXoff, sWoff, sOoff = 34, 35, 36
sT0, sT1, sT2 = 37, 38, 39
sP = 40
sLoop = 60
sXl, sWl = 61, 62
sKt, sVt = 96, 97
sB, sH = 63, 64
sCc, sXc, sWc, sX3c = 67, 68, 69, 3
vL, vN, vG = 1, 2, 3
vKd, vVd = 4, 8
vKr, vVr = 10, 14
vNM = 24
vXr, vWr = 36, 38
vT = 44
vXd, vWd = 56, 60
vQA = 64
vS = 56
vO = 96
aQ = 0
aK = 80
aV = 112
aL = 144
aOne = 164
aXF = [168, 204]
aWF = [188, 224]

def Sreg(rt, kt): return vS + rt * 8 + kt * 4
def Oreg(ts, rt): return vO + (ts * 5 + rt) * 4
def Qacc(tt, rt): return vO + (tt * 5 + rt) * 4
def Qf(rt, s): return aQ + (rt * 4 + s) * 4
def Kf(kt, s): return aK + (kt * 4 + s) * 4
def Vf(ts): return aV + ts * 4
def NM(rt): return vNM + rt * 4
def Lf(rt): return aL + rt * 4

MFMA = 'v_mfma_f32_16x16x32_bf16'

def srd(e, s, lo, hi, nbytes):
    e(f's_mov_b32 s{s}, s{lo}')
    e(f's_mov_b32 s{s+1}, s{hi}')
    e(f's_mov_b32 s{s+2}, {nbytes}')
    e(f's_mov_b32 s{s+3}, 0x00020000')

def interleave(e, prim, groups, start=0, every=None, end=None):
    n = len(prim); g = len(groups)
    end = n if end is None else end
    pos = {}
    if g:
        span = max(end - start, 1)
        for k in range(g):
            p = start + (k * span) // g if every is None else start + k * every
            pos.setdefault(min(p, n - 1), []).append(groups[k])
    for i, t in enumerate(prim):
        e(t)
        for grp in pos.get(i, []):
            for (tt, tag) in grp: e(tt, tag)
    if n == 0:
        for grp in groups:
            for (tt, tag) in grp: e(tt, tag)

def emit_groups(e, groups):
    for grp in groups:
        for (tt, tag) in grp: e(tt, tag)

class AttnGen:
    def __init__(self, e, cfg):
        self.e = e
        self.cfg = cfg
        self.kvfl = cfg.get('kv_flags', ' nt')
        self.xfl = cfg.get('x_flags', '')
        self.wfl = cfg.get('w_flags', ' nt')
        self.ofl = cfg.get('o_flags', ' sc1' if cfg.get('fused') else '')
        self.name = cfg.get('name', 'attn_kernel')
        self.rare = []
        self.nrare = 0

    def stamp(self, i, mode=1):
        if self.cfg.get('stamps') == mode:
            self.e(f's_memrealtime s[{70+2*i}:{71+2*i}]')
    def cstamp(self, i, mode=3):
        if self.cfg.get('stamps') == mode:
            self.e(f's_memtime s[{70+2*i}:{71+2*i}]')
    def write_stamps(self, n, kernel_idx=0):
        if not self.cfg.get('stamps'): return
        e = self.e
        e('s_waitcnt lgkmcnt(0)')
        e(f's_lshl_b32 s{sT0}, s2, 2')
        e(f's_add_u32 s{sT0}, s{sT0}, s{sWv}')
        e(f's_lshl_b32 s{sT0}, s{sT0}, 7')
        e(f's_add_u32 s{sT0}, s{sT0}, {0x1000000 + kernel_idx*0x100000}')
        e(f's_mov_b32 s{sO+2}, 0x2000000')
        e(f'v_mov_b32 v{vT}, 0')
        for i in range(n):
            e(f'v_mov_b32 v{vT+2}, s{70+2*i}')
            e(f'v_mov_b32 v{vT+3}, s{71+2*i}')
            e(f'buffer_store_dwordx2 {vr(vT+2,2)}, v{vT}, s[{sO}:{sO+3}], s{sT0} offen offset:{8*i}')
            e('s_waitcnt vmcnt(0)')
        e.vmq = []
    def prologue(self):
        e = self.e
        e(f's_cmp_ge_u32 s2, 256')
        e(f's_cbranch_scc1 L_{self.name}_end')
        e(f's_load_dwordx16 s[40:55], s[0:1], 0')
        e(f's_load_dwordx2 s[56:57], s[0:1], 64')
        e(f's_load_dwordx2 s[58:59], s[0:1], 96')
        e(f's_load_dwordx2 s[100:101], s[0:1], 72')
        e(f's_load_dwordx2 s[90:91], s[0:1], 88')
        t0, t1, t2, t3 = vT, vT + 1, vT + 2, vT + 3
        e(f'v_lshrrev_b32 v{t0}, 6, v0')
        e(f'v_and_b32 v{vL}, 63, v0')
        e(f'v_readfirstlane_b32 s{sWv}, v{t0}')
        e(f'v_and_b32 v{vN}, 15, v{vL}')
        e(f'v_lshrrev_b32 v{vG}, 4, v{vL}')
        e(f's_lshr_b32 s{sJ}, s{sWv}, 1')
        e(f's_and_b32 s{sKH}, s{sWv}, 1')
        e(f's_and_b32 s{sT0}, s2, 7')
        e(f's_lshr_b32 s{sT1}, s2, 3')
        e(f's_lshr_b32 s{sBr}, s{sT1}, 4')
        e(f's_and_b32 s{sT1}, s{sT1}, 15')
        e(f's_mov_b32 s{sC}, 0x3e029407')
        import struct, math
        c = (128 ** -0.5) * math.log2(math.e)
        bits = struct.unpack('<I', struct.pack('<f', c))[0]
        e.ins[-1] = Inst(f's_mov_b32 s{sC}, {bits:#010x}')
        e(f's_mov_b32 s{sT}, 0x41000000')
        for j in range(4):
            e(f'v_add_u32 v{t0}, {4*j}, v{vG}')
            e(f'v_xor_b32 v{t0}, v{t0}, v{vN}')
            e(f'v_lshlrev_b32 v{t0}, 4, v{t0}')
            e(f'v_lshl_add_u32 v{vKd+j}, v{vG}, 8, v{t0}')
        for p in range(2):
            e(f'v_add_u32 v{t0}, {4*p}, v{vG}')
            e(f'v_lshlrev_b32 v{t0}, 1, v{t0}')
            e(f'v_xor_b32 v{t0}, v{t0}, v{vN}')
            e(f'v_lshlrev_b32 v{t0}, 4, v{t0}')
            e(f'v_lshl_add_u32 v{vVd+p}, v{vG}, 8, v{t0}')
        for i in range(4):
            q = i >> 1
            e(f'v_or_b32 v{t0}, {q << 2}, v{vG}')
            e(f'v_lshlrev_b32 v{t0}, 1, v{t0}')
            e(f'v_xor_b32 v{t0}, v{t0}, v{vN}')
            e(f'v_lshlrev_b32 v{t0}, 4, v{t0}')
            e(f'v_lshl_add_u32 v{vWd+i}, v{vG}, 13, v{t0}')
            if i: e(f'v_add_u32 v{vWd+i}, {(32768-1024)*i}, v{vWd+i}')
        e(f'v_lshrrev_b32 v{t1}, 3, v{vL}')
        e(f's_movk_i32 s{sT2}, 1152')
        e(f'v_mul_lo_u32 v{t1}, v{t1}, s{sT2}')
        e(f'v_and_b32 v{t2}, 7, v{vL}')
        for i in range(4):
            e(f's_add_u32 s{sT2}, s{sKH}, {i}')
            e(f's_and_b32 s{sT2}, s{sT2}, 1')
            e(f's_lshl_b32 s{sT2}, s{sT2}, 2')
            e(f'v_add_u32 v{t0}, s{sT2}, v{vG}')
            e(f'v_and_b32 v{t0}, 7, v{t0}')
            e(f'v_xor_b32 v{t0}, v{t0}, v{t2}')
            e(f'v_lshl_add_u32 v{vXd+i}, v{t0}, 4, v{t1}')
            if i: e(f'v_add_u32 v{vXd+i}, {8192*i}, v{vXd+i}')
        e(f's_lshl_b32 s{sKl}, s{sWv}, 13')
        e(f's_add_u32 s{sVl}, s{sKl}, {VS}')
        for s in range(4):
            e(f'v_add_u32 v{t0}, {4*s}, v{vG}')
            e(f'v_xor_b32 v{t0}, v{t0}, v{vN}')
            e(f'v_lshlrev_b32 v{t0}, 4, v{t0}')
            e(f'v_lshl_add_u32 v{t0}, v{vN}, 8, v{t0}')
            e(f'v_add_u32 v{vKr+s}, s{sKl}, v{t0}')
        e(f'v_bfe_u32 v{t1}, v{vL}, 2, 2')
        e(f'v_lshl_add_u32 v{t1}, v{vG}, 2, v{t1}')
        e(f'v_and_b32 v{t2}, 7, v{t1}')
        e(f'v_lshlrev_b32 v{t2}, 1, v{t2}')
        e(f'v_bfe_u32 v{t3}, v{vL}, 1, 1')
        e(f'v_xor_b32 v{t2}, v{t2}, v{t3}')
        e(f'v_and_b32 v{t3}, 1, v{vL}')
        e(f'v_lshlrev_b32 v{t3}, 3, v{t3}')
        e(f'v_lshl_add_u32 v{t3}, v{t1}, 8, v{t3}')
        e(f'v_add_u32 v{t3}, s{sVl}, v{t3}')
        for ts in range(8):
            e(f's_lshl_b32 s{sT2}, s{sKH}, 2')
            e(f's_xor_b32 s{sT2}, s{sT2}, {ts}')
            e(f's_lshl_b32 s{sT2}, s{sT2}, 1')
            e(f'v_xor_b32 v{t0}, s{sT2}, v{t2}')
            e(f'v_lshl_add_u32 v{vVr+ts}, v{t0}, 4, v{t3}')
        e('s_waitcnt lgkmcnt(0)')

    def q_setup(self, br):
        e = self.e
        t0, t1, t2, t3 = vT, vT + 1, vT + 2, vT + 3
        rot = self.cfg.get('qrot', 1)
        if br == 'A':
            e(f's_lshr_b32 s{sCc}, s{sT1}, 1')
            e(f's_and_b32 s{sT2}, s{sT1}, 1')
            e(f's_lshl_b32 s{sT2}, s{sT2}, 2')
            e(f's_add_u32 s{sCc}, s{sCc}, s{sT2}')
            e(f's_sub_u32 s{sT2}, s{sCc}, 9')
            e(f's_cmp_ge_u32 s{sCc}, 9')
            e(f's_cselect_b32 s{sCc}, s{sT2}, s{sCc}')
        else:
            e(f's_lshr_b32 s{sCc}, s{sT1}, 2')
            e(f's_add_u32 s{sCc}, s{sCc}, s{sT1}')
            e(f's_and_b32 s{sCc}, s{sCc}, 3')
            e(f's_mul_i32 s{sCc}, s{sCc}, 5')
            e(f's_lshr_b32 s{sCc}, s{sCc}, 1')
        if rot == 2:
            if br == 'A':
                e(f's_lshr_b32 s{sCc}, s{sT1}, 1')
                e(f's_and_b32 s{sT2}, s{sT1}, 1')
                e(f's_lshl_b32 s{sT2}, s{sT2}, 2')
                e(f's_add_u32 s{sCc}, s{sCc}, s{sT2}')
                e(f's_and_b32 s{sCc}, s{sCc}, 7')
            else:
                e(f's_lshr_b32 s{sCc}, s{sT1}, 2')
                e(f's_add_u32 s{sCc}, s{sCc}, s{sT1}')
                e(f's_and_b32 s{sCc}, s{sCc}, 3')
                e(f's_lshl_b32 s{sCc}, s{sCc}, 1')
            e(f's_add_u32 s{sCc}, s{sCc}, 1')
        if not rot: e(f's_mov_b32 s{sCc}, 0')
        if br == 'A':
            e(f's_lshr_b32 s{sB}, s{sT1}, 1')
            e(f's_and_b32 s{sT1}, s{sT1}, 1')
            e(f's_lshl_b32 s{sT0}, s{sT0}, 1')
            e(f's_add_u32 s{sT0}, s{sT0}, s{sT1}')
            e(f's_lshl_b32 s{sH}, s{sT0}, 1')
            e(f's_add_u32 s{sH}, s{sH}, s{sJ}')
            e(f's_lshl_b32 s{sT1}, s{sB}, 4')
            e(f's_add_u32 s{sT1}, s{sT1}, s{sT0}')
            srd(e, sX, 40, 41, X_BYTES); srd(e, sK, 42, 43, KA_BYTES); srd(e, sV, 44, 45, KA_BYTES); srd(e, sW, 46, 47, W_BYTES)
        else:
            e(f's_lshr_b32 s{sB}, s{sT1}, 2')
            e(f's_lshl_b32 s{sT2}, s{sJ}, 2')
            e(f's_add_u32 s{sB}, s{sB}, s{sT2}')
            e(f's_and_b32 s{sT1}, s{sT1}, 3')
            e(f's_lshl_b32 s{sH}, s{sT0}, 2')
            e(f's_add_u32 s{sH}, s{sH}, s{sT1}')
            e(f's_lshl_b32 s{sT1}, s{sB}, 5')
            e(f's_add_u32 s{sT1}, s{sT1}, s{sH}')
            srd(e, sX, 50, 51, X_BYTES); srd(e, sK, 52, 53, KB_BYTES); srd(e, sV, 54, 55, KB_BYTES); srd(e, sW, 56, 57, W_BYTES)
        srd(e, sO, 58, 59, O_BYTES)
        if self.cfg.get('kvsame'): e(f's_and_b32 s{sT1}, s2, 7')
        e(f's_lshl_b32 s{sKoff}, s{sT1}, 18')
        e(f's_lshl_b32 s{sT2}, s{sKH}, 13')
        e(f's_add_u32 s{sKoff}, s{sKoff}, s{sT2}')
        e(f's_mov_b32 s{sVoff}, s{sKoff}')
        e(f's_mul_i32 s{sOoff}, s{sB}, {5*128*1024}')
        e(f's_lshl_b32 s{sT2}, s{sH}, 12')
        e(f's_add_u32 s{sOoff}, s{sOoff}, s{sT2}')
        e(f's_lshl_b32 s{sT2}, s{sKH}, 11')
        e(f's_add_u32 s{sOoff}, s{sOoff}, s{sT2}')
        if br == 'B':
            e(f's_add_u32 s{sOoff}, s{sOoff}, {O_BR}')
        if br == 'A':
            e(f's_mul_i32 s{sXoff}, s{sB}, 92160')
            e(f's_mul_i32 s{sT2}, s{sWv}, 9216')
            e(f's_add_u32 s{sXoff}, s{sXoff}, s{sT2}')
            e(f's_lshl_b32 s{sXl}, s{sWv}, 10')
            e(f's_mul_i32 s65, s{sB}, 92160')
            e(f's_add_u32 s{sT2}, s{sKH}, 8')
            e(f's_lshl_b32 s66, s{sT2}, 10')
            e(f's_mul_i32 s{sT2}, s{sT2}, 9216')
            e(f's_add_u32 s65, s65, s{sT2}')
            e(f's_lshl_b32 s{sWoff}, s{sH}, 8')
            e(f's_lshl_b32 s{sT2}, s{sKH}, 18')
            e(f's_add_u32 s{sWoff}, s{sWoff}, s{sT2}')
            e(f's_lshl_b32 s{sWl}, s{sJ}, 14')
            e(f's_lshl_b32 s{sT2}, s{sKH}, 13')
            e(f's_add_u32 s{sWl}, s{sWl}, s{sT2}')
            e(f's_add_u32 s{sWl}, s{sWl}, 10240')
            xoffj, woffj = (0, 0), (10240, 16384)
        else:
            e(f's_mul_i32 s{sXoff}, s{sB}, 92160')
            e(f's_mul_i32 s{sT2}, s{sKH}, {40*1152}')
            e(f's_add_u32 s{sXoff}, s{sXoff}, s{sT2}')
            e(f's_mul_i32 s{sXl}, s{sWv}, 5120')
            e(f's_lshl_b32 s{sWoff}, s{sH}, 8')
            e(f's_lshl_b32 s{sT2}, s{sWv}, 17')
            e(f's_add_u32 s{sWoff}, s{sWoff}, s{sT2}')
            e(f's_lshl_b32 s{sWl}, s{sWv}, 12')
            e(f's_add_u32 s{sWl}, s{sWl}, 20480')
            xoffj, woffj = (0, 10240), (20480, 0)
        e(f's_mul_i32 s{sT2}, s{sJ}, {xoffj[1]}')
        e(f's_add_u32 s{sT2}, s{sT2}, {QBUF0 + xoffj[0]}')
        e(f'v_lshrrev_b32 v{t1}, 1, v{vN}')
        for s2 in range(2):
            e(f'v_add_u32 v{t0}, {4*s2}, v{vG}')
            e(f'v_xor_b32 v{t0}, v{t0}, v{t1}')
            e(f'v_lshlrev_b32 v{t0}, 4, v{t0}')
            e(f'v_lshl_add_u32 v{t0}, v{vN}, 7, v{t0}')
            e(f'v_add_u32 v{vXr+s2}, s{sT2}, v{t0}')
        e(f's_mul_i32 s{sT2}, s{sJ}, {woffj[1]}')
        e(f's_add_u32 s{sT2}, s{sT2}, {QBUF0 + woffj[0]}')
        e(f'v_bfe_u32 v{t1}, v{vL}, 2, 2')
        e(f'v_and_b32 v{t2}, 1, v{vG}')
        e(f'v_lshl_or_b32 v{t2}, v{t2}, 2, v{t1}')
        e(f'v_lshlrev_b32 v{t2}, 1, v{t2}')
        e(f'v_bfe_u32 v{t3}, v{vL}, 1, 1')
        e(f'v_xor_b32 v{t2}, v{t2}, v{t3}')
        e(f'v_lshl_add_u32 v{t1}, v{vG}, 3, v{t1}')
        e(f'v_and_b32 v{t3}, 1, v{vL}')
        e(f'v_lshlrev_b32 v{t3}, 3, v{t3}')
        e(f'v_lshl_add_u32 v{t3}, v{t1}, 8, v{t3}')
        e(f'v_add_u32 v{t3}, s{sT2}, v{t3}')
        for tt in range(4):
            e(f's_lshl_b32 s{sT2}, s{sKH}, 2')
            e(f's_add_u32 s{sT2}, s{sT2}, {tt}')
            e(f's_lshl_b32 s{sT2}, s{sT2}, 1')
            e(f'v_xor_b32 v{t0}, s{sT2}, v{t2}')
            e(f'v_lshl_add_u32 v{vWr+tt}, v{t0}, 4, v{t3}')

    def q_addr_copies(self):
        e = self.e
        for b in range(3):
            for k, r in enumerate((vXr, vXr + 1, vWr, vWr + 1, vWr + 2, vWr + 3)):
                if b == 0: e(f'v_mov_b32 v{vQA + k}, v{r}')
                else: e(f'v_add_u32 v{vQA + 6*b + k}, {b*QBUFSZ}, v{r}')

    def q_dma(self, br, c):
        qb = QBUF0 + (c % 3) * QBUFSZ
        tag = ('Q', c)
        G = []
        hyb = self.cfg.get('qrot', 1) == 2
        if hyb and c == 0:
            g = [(f's_mov_b32 s{sXc}, s{sXoff}', None), (f's_mov_b32 s{sWc}, s{sWoff}', None)]
            if br == 'A': g.append((f's_mov_b32 s{sX3c}, s65', None))
        else:
            g = [(f's_lshl_b32 s{sT2}, s{sCc}, 7', None), (f's_add_u32 s{sXc}, s{sXoff}, s{sT2}', None)]
            if br == 'A': g.append((f's_add_u32 s{sX3c}, s65, s{sT2}', None))
        if self.cfg.get('qsame'):
            g = [(f's_mov_b32 s{sXc}, 0', None), (f's_mov_b32 s{sX3c}, 0', None), (f's_mov_b32 s{sWc}, 0', None)]
        elif not (hyb and c == 0):
          g += [(f's_lshl_b32 s{sT2}, s{sCc}, 19', None), (f's_add_u32 s{sWc}, s{sWoff}, s{sT2}', None),
              (f's_add_u32 s{sCc}, s{sCc}, 1', None), (f's_cmp_eq_u32 s{sCc}, 9', None), (f's_cselect_b32 s{sCc}, {1 if hyb else 0}, s{sCc}', None)]
        G.append(g)
        def ld(voff, srdr, soff, off, fl, pre=()):
            G.append(list(pre) + [(f'buffer_load_dwordx4 v{voff}, s[{srdr}:{srdr+3}], s{soff} offen offset:{off}{fl} lds', tag)])
        m0 = lambda reg, imm: (f's_add_u32 m0, s{reg}, {qb + imm}', None)
        if br == 'A':
            ld(vXd, sX, sXc, 0, self.xfl, [m0(sXl, 0)])
            ld(vXd, sX, sT2, 0, self.xfl, [m0(sXl, 4096), (f's_add_u32 s{sT2}, s{sXc}, {4*9216}', None)])
            ld(vXd, sX, sX3c, 0, self.xfl, [m0(66, 0), ('s_nop 0', None)])
            for i in range(4):
                ld(vWd + i, sW, sWc, 1024*i, self.wfl, [m0(sWl, 0), ('s_nop 0', None)] if i == 0 else [])
            for i in range(4):
                ld(vWd + i, sW, sWc, 1024*i, self.wfl, [m0(sWl, 4096), (f's_add_u32 s{sWc}, s{sWc}, {4*32768}', None)] if i == 0 else [])
        else:
            for i in range(4):
                ld(vXd + i, sX, sXc, 1024*i, self.xfl, [m0(sXl, 0), ('s_nop 0', None)] if i == 0 else [])
            ld(vXd, sX, sXc, 0, self.xfl, [m0(sXl, 4096), (f's_add_u32 s{sXc}, s{sXc}, {4*9216}', None)])
            for i in range(4):
                ld(vWd + i, sW, sWc, 1024*i, self.wfl, [m0(sWl, 0), ('s_nop 0', None)] if i == 0 else [])
        return G

    def kv_dma(self, kind, par, tag):
        if kind == 'K': l, off, s, vo, tmp = sKl, sKoff, sK, [vKd, vKd + 1, vKd + 2, vKd + 3], sKt
        else: l, off, s, vo, tmp = sVl, sVoff, sV, [vVd, vVd + 1, vVd, vVd + 1], sVt
        G = []
        for half in range(2):
            for q in range(4):
                g = []
                if q == 0:
                    g.append((f's_add_u32 m0, s{l}, {par * 32768 + half * 4096}', None))
                    if half == 0: g.append((f's_add_u32 s{tmp}, s{off}, 4096', None))
                    else: g.append((f's_add_u32 s{off}, s{off}, 16384', None))
                so = off if half == 0 else tmp
                g.append((f'buffer_load_dwordx4 v{vo[q]}, s[{s}:{s+3}], s{so} offen offset:{q*1024}{self.kvfl} lds', tag))
                G.append(g)
        return G

    def q_reads(self, s2, c):
        G = []
        base = vQA + 6 * (c % 3)
        for tt in range(4):
            for sec in range(2):
                G.append([(f'ds_read_b64_tr_b16 {ar(aWF[s2] + 4*tt + 2*sec, 2)}, v{base+2+tt} offset:{s2*8192 + sec*1024}', ('q', s2))])
            if tt == 0:
                for rt in range(5):
                    G.append([(f'ds_read_b128 {ar(aXF[s2] + 4*rt, 4)}, v{base+s2} offset:{rt*2048}', ('q', s2))])
        return G

    def q_mfmas(self, s2, first):
        L = []
        for tt in range(4):
            for rt in range(5):
                acc = vr(Qacc(tt, rt), 4)
                cc = '0' if first else acc
                L.append(f'{MFMA} {acc}, {ar(aWF[s2] + 4*tt, 4)}, {ar(aXF[s2] + 4*rt, 4)}, {cc}')
        return L

    def pretouch(self, br):
        e = self.e
        n = self.name
        st = self.cfg.get('pretouch')
        t0 = vT + 8
        e(f's_cmp_lg_u32 s{sWv}, 0')
        e(f's_cbranch_scc1 L_{n}_npt{br}')
        e(f's_bfe_u32 s{sT2}, s2, 0x10002')
        e(f's_cmp_eq_u32 s{sT2}, 0')
        e(f's_cselect_b32 s92, s48, s100')
        e(f's_cselect_b32 s93, s49, s101')
        e(f's_mov_b32 s94, {4096*1152}')
        e(f's_mov_b32 s95, 0x00020000')
        e(f's_lshr_b32 s{sT2}, s2, 3')
        e(f's_mul_i32 s{sT2}, s{sT2}, {64*st}')
        e(f's_mov_b32 s{sT1}, {st}')
        e(f'v_mul_lo_u32 v{t0}, v{vL}, s{sT1}')
        e(f'buffer_load_dword v{t0+1}, v{t0}, s[92:95], s{sT2} offen', ('T', 0))
        e.vmq.pop()
        e(f'buffer_load_dword v{t0+2}, v{t0}, s[{sO}:{sO+3}], s{sT2} offen', ('T', 0))
        e.vmq.pop()
        e.label(f'L_{n}_npt{br}')

    def poison(self):
        e = self.e
        for k in range(4): e(f'v_mov_b32 v{252+k}, -1')
        e(f'v_lshlrev_b32 v{vT+4}, 4, v{vL}')
        e(f's_mov_b32 s92, s90')
        e(f's_mov_b32 s93, s91')
        e(f's_mov_b32 s94, 256')
        e(f's_mov_b32 s95, 0x00020000')
        for rt in range(5):
            e(f's_add_u32 s{sT2}, s{sOoff}, {rt*131072}')
            for u in range(2):
                e(f'buffer_store_dwordx4 v[252:255], v{vT+4}, s[{sO}:{sO+3}], s{sT2} offen offset:{u*1024} sc1', ('P', 0))

    def arrive(self, br):
        e = self.e
        n = self.name
        e(f's_cmp_lg_u32 s{sWv}, 0')
        e(f's_cbranch_scc1 L_{n}_na{br}')
        e('v_mov_b32 v54, 0')
        e('v_mov_b32 v55, 1')
        e('s_mov_b64 exec, 1')
        e('buffer_atomic_add v55, v54, s[92:95], 0 offen sc0 sc1', 'sig')
        e.vmq.pop()
        e('s_mov_b64 exec, -1')
        e.label(f'L_{n}_na{br}')

    def arrive_check(self, br):
        e = self.e
        n = self.name
        e(f's_cmp_lg_u32 s{sWv}, 0')
        e(f's_cbranch_scc1 L_{n}_nc{br}')
        e(f'v_readfirstlane_b32 s{sT2}, v55')
        e(f's_cmp_lg_u32 s{sT2}, 255')
        e(f's_cbranch_scc1 L_{n}_nc{br}')
        e('s_mov_b64 exec, 1')
        e('v_mov_b32 v55, 1')
        e('buffer_store_dword v55, v54, s[92:95], 0 offen offset:128 sc1', 'go')
        e.vmq.pop()
        e('s_mov_b64 exec, -1')
        e.label(f'L_{n}_nc{br}')

    def flag_load(self):
        e = self.e
        e('v_mov_b32 v54, 128')
        e('buffer_load_dword v55, v54, s[92:95], 0 offen sc1', 'f2')

    def flag_check(self):
        e = self.e
        n = self.name
        e.wait_vm('f2')
        e(f's_mov_b32 s{sT1}, 0')
        e.label(f'L_{n}_fchk')
        e(f'v_readfirstlane_b32 s{sT0}, v55')
        e(f's_cmp_lg_u32 s{sT0}, 0')
        e(f's_cbranch_scc1 L_{n}_fok')
        e(f's_add_u32 s{sT1}, s{sT1}, 1')
        e(f's_cmp_lt_u32 s{sT1}, 0x20000')
        e(f's_cbranch_scc0 L_{n}_fok')
        e('s_sleep 8')
        e('buffer_load_dword v55, v54, s[92:95], 0 offen sc1', 'f2')
        e('s_waitcnt vmcnt(0)')
        e.vmq.pop()
        e(f's_branch L_{n}_fchk')
        e.label(f'L_{n}_fok')

    def q_phase(self, br):
        e = self.e
        self.q_setup(br)
        self.stamp(1, 2)
        emit_groups(e, self.q_dma(br, 0))
        emit_groups(e, self.q_dma(br, 1))
        self.q_addr_copies()
        if self.cfg.get('pretouch'): self.pretouch(br)
        flow = self.cfg.get('flow')
        if flow: self.poison()
        for c in range(9):
            e.wait_vm(('Q', c))
            e.wait_lg()
            e('s_barrier')
            if flow and c == 2: self.arrive(br)
            if flow and c == 4: self.arrive_check(br)
            if c == 4: self.cstamp(0, 4)
            if c == 5: self.cstamp(3, 4)
            self.stamp(2 + c, 2)
            G = []
            if c + 2 <= 8: G += self.q_dma(br, c + 2)
            if c == self.cfg.get('k0at', 6): G += self.kv_dma('K', 0, ('K', 0))
            if c == 7: G += self.kv_dma('K', 1, ('K', 1))
            if c == 8: G += self.kv_dma('V', 0, ('V', 0))
            R0 = self.q_reads(0, c)
            h = (len(G) + 1) // 2
            def mix(mf, R, D):
                n = len(mf)
                slots = [[] for _ in range(n)]
                for k, g in enumerate(R): slots[k].append(g)
                for k, g in enumerate(D): slots[min(n - 1, 1 + (k * (n - 2)) // max(len(D), 1))].append(g)
                for k in range(n):
                    e(mf[k])
                    for g in slots[k]:
                        for (tt, tag) in g: e(tt, tag)
            if c > 0: mix(self.q_mfmas(1, False), R0, G[:h])
            else:
                emit_groups(e, R0); emit_groups(e, G[:h])
            if c == 4: self.cstamp(1, 4)
            e.wait_lg(('q', 0))
            mix(self.q_mfmas(0, c == 0), self.q_reads(1, c), G[h:])
            if c == 4: self.cstamp(2, 4)
        e.wait_lg()
        for t in self.q_mfmas(1, False): e(t)

    def q_exchange(self):
        e = self.e
        t0, t1, t2, t3 = vT, vT + 1, vT + 2, vT + 3
        e('s_barrier')
        e(f's_mul_i32 s{sT2}, s{sJ}, 20480')
        e(f's_add_u32 s{sT2}, s{sT2}, {QIMG}')
        e(f'v_and_b32 v{t1}, 1, v{vG}')
        e(f'v_lshlrev_b32 v{t1}, 3, v{t1}')
        e(f'v_lshl_add_u32 v{t1}, v{vN}, 8, v{t1}')
        e(f'v_add_u32 v{t1}, s{sT2}, v{t1}')
        e(f'v_lshrrev_b32 v{t2}, 1, v{vG}')
        e(f'v_xor_b32 v{t2}, v{t2}, v{vN}')
        for tt in range(4):
            e(f's_lshl_b32 s{sT1}, s{sKH}, 2')
            e(f's_add_u32 s{sT1}, s{sT1}, {tt}')
            e(f's_lshl_b32 s{sT1}, s{sT1}, 1')
            e(f'v_xor_b32 v{t0}, s{sT1}, v{t2}')
            e(f'v_lshl_add_u32 v{vT+4+tt}, v{t0}, 4, v{t1}')
        e(f'v_mov_b32 v{vT+8}, s{sC}')
        e(f'v_mov_b32 v{vT+9}, s{sC}')
        for tt in range(4):
            for rt in range(5):
                b = Qacc(tt, rt)
                e(f'v_pk_mul_f32 {vr(b,2)}, {vr(b,2)}, {vr(vT+8,2)}')
                e(f'v_pk_mul_f32 {vr(b+2,2)}, {vr(b+2,2)}, {vr(vT+8,2)}')
                e(f'v_cvt_pk_bf16_f32 v{b}, v{b}, v{b+1}')
                e(f'v_cvt_pk_bf16_f32 v{b+1}, v{b+2}, v{b+3}')
                e(f'ds_write_b64 v{vT+4+tt}, {vr(b, 2)} offset:{rt*4096}', 'qw')
        e.wait_lg()
        e('s_barrier')
        e(f's_sub_u32 s{sT2}, s{sT2}, s{sKl}')
        for s in range(4):
            e(f'v_add_u32 v{vT+4+s}, s{sT2}, v{vKr+s}')
        for rt in range(5):
            for s in range(4):
                e(f'ds_read_b128 {ar(Qf(rt, s), 4)}, v{vT+4+s} offset:{rt*4096}', 'qr')
        e(f'v_mov_b32 v{vT}, 0x3f803f80')
        for k in range(4): e(f'v_accvgpr_write_b32 a{aOne+k}, v{vT}')
        e.wait_lg()
        e('s_barrier')
        emit_groups(e, self.kv_dma('V', 1, ('V', 1)))

    def rowmax_xlane(self, r, rt):
        mx, t = vT + rt, vT + 5
        r(f'v_mov_b32 v{t}, v{mx}')
        r(f'v_permlane16_swap_b32 v{mx}, v{t}')
        r(f'v_max_f32 v{mx}, v{mx}, v{t}')
        r(f'v_mov_b32 v{t}, v{mx}')
        r(f'v_permlane32_swap_b32 v{mx}, v{t}')
        r(f'v_max_f32 v{mx}, v{mx}, v{t}')

    def rare_block(self, lab, back):
        r = Emitter()
        r.label(lab)
        r('s_nop 7')
        f = vT + 6
        for rt in range(5):
            mx = vT + rt
            self.rowmax_xlane(r, rt)
            r(f'v_max_f32 v{mx}, 0, v{mx}')
            r(f'v_sub_f32 v{f}, 0, v{mx}')
            r(f'v_exp_f32 v{f}, v{f}')
            for k in range(4): r(f'v_sub_f32 v{NM(rt)+k}, v{NM(rt)+k}, v{mx}')
            for k in range(8): r(f'v_sub_f32 v{Sreg(rt,0)+k}, v{Sreg(rt,0)+k}, v{mx}')
            for k in range(4):
                r(f'v_accvgpr_read_b32 v{vT+8}, a{Lf(rt)+k}')
                r(f'v_mul_f32 v{vT+8}, v{vT+8}, v{f}')
                r(f'v_accvgpr_write_b32 a{Lf(rt)+k}, v{vT+8}')
            for ts in range(8):
                b = Oreg(ts, rt)
                r(f'v_pk_mul_f32 {vr(b,2)}, {vr(b,2)}, {vr(f,2)} op_sel_hi:[1,0]')
                r(f'v_pk_mul_f32 {vr(b+2,2)}, {vr(b+2,2)}, {vr(f,2)} op_sel_hi:[1,0]')
        r('s_nop 7')
        r(f's_branch {back}')
        r.fix_hazards()
        self.rare.append(r)

    def k_reads(self, it, par):
        e = self.e
        e.wait_vm(('K', it))
        for s in range(4):
            for kt in range(2):
                e(f'ds_read_b128 {ar(Kf(kt, s), 4)}, v{vKr+s} offset:{par*32768 + kt*4096}', 'k')

    def iteration(self, it, par, issue_next, next_k=True, first=False, send=False, xq=None, xp=None):
        e = self.e
        mx = [vT + i for i in range(5)]
        def maxops(rt):
            b = Sreg(rt, 0)
            return [[(f'v_max3_f32 v{mx[rt]}, v{b}, v{b+1}, v{b+2}', None)],
                    [(f'v_max3_f32 v{mx[rt]}, v{mx[rt]}, v{b+3}, v{b+4}', None)],
                    [(f'v_max3_f32 v{mx[rt]}, v{mx[rt]}, v{b+5}, v{b+6}', None)],
                    [(f'v_max_f32 v{mx[rt]}, v{mx[rt]}, v{b+7}', None)]]
        def softmax(rt):
            b = Sreg(rt, 0)
            L = []
            for k in range(4):
                L.append(f'v_exp_f32 v{b+2*k}, v{b+2*k}')
                L.append(f'v_exp_f32 v{b+2*k+1}, v{b+2*k+1}')
            for k in range(4): L.append(f'v_cvt_pk_bf16_f32 v{b+k}, v{b+2*k}, v{b+2*k+1}')
            return [[(t, None)] for t in L]
        def vreads():
            return [[(f'ds_read_b64_tr_b16 {ar(Vf(ts) + 2*sec, 2)}, v{vVr+ts} offset:{par*32768 + sec*4096}', 'v')] for ts in range(8) for sec in range(2)]
        e.wait_lg()
        mb = self.cfg.get('mainbar', 1)
        if mb and issue_next:
            self.nbar = getattr(self, 'nbar', 0) + 1
            if mb == 1:
                e(f's_cmp_lg_u32 s{sBr}, 0')
                e(f's_cbranch_scc1 L_{self.name}_nb{self.nbar}')
                e('s_barrier')
                e.label(f'L_{self.name}_nb{self.nbar}')
            else:
                e('s_barrier')
        G = self.kv_dma('K', par, ('K', it + 2)) if issue_next else []
        for rt in range(5):
            mf = []
            for s in range(4):
                for kt in range(2):
                    acc = vr(Sreg(rt, kt), 4)
                    cc = acc if s else ('0' if first else vr(NM(rt), 4))
                    mf.append(f'{MFMA} {acc}, {ar(Kf(kt, s), 4)}, {ar(Qf(rt, s), 4)}, {cc}')
            extra = []
            if rt < 4 and G: extra += G[2*rt:2*rt+2]
            if rt >= 2: extra += maxops(rt - 2)
            if xq and rt in xq: extra = [xq[rt]] + extra
            if rt == 4:
                e.wait_vm(('V', it))
                R = vreads()
                extra = extra[:2] + R[:4] + extra[2:] + R[4:8]
                interleave(e, mf, extra, start=0)
                emit_groups(e, R[8:])
            else:
                interleave(e, mf, extra, start=1)
        emit_groups(e, maxops(3))
        emit_groups(e, maxops(4))
        if first:
            for rt in range(5):
                self.rowmax_xlane(e, rt)
                for k in range(4): e(f'v_sub_f32 v{NM(rt)+k}, 0, v{mx[rt]}')
                for k in range(8): e(f'v_sub_f32 v{Sreg(rt,0)+k}, v{Sreg(rt,0)+k}, v{mx[rt]}')
        else:
            t = vT + 5
            e(f'v_max3_f32 v{t}, v{mx[0]}, v{mx[1]}, v{mx[2]}')
            e(f'v_max3_f32 v{t}, v{t}, v{mx[3]}, v{mx[4]}')
            e(f'v_cmp_lt_f32 vcc, s{sT}, v{t}')
            self.nrare += 1
            lab, back = f'L_{self.name}_rare{self.nrare}', f'L_{self.name}_back{self.nrare}'
            e(f's_cbranch_vccnz {lab}')
            e.label(back)
            self.rare_block(lab, back)
        emit_groups(e, softmax(0))
        e.wait_lg()
        G = self.kv_dma('V', par, ('V', it + 2)) if issue_next else []
        for rt in range(5):
            mf = []
            P = vr(Sreg(rt, 0), 4)
            for ts in range(8):
                acc = vr(Oreg(ts, rt), 4)
                mf.append(f'{MFMA} {acc}, {ar(Vf(ts), 4)}, {P}, {"0" if first else acc}')
            la = ar(Lf(rt), 4)
            mf.append(f'{MFMA} {la}, {ar(aOne, 4)}, {P}, {"0" if first else la}')
            snd = self.send_groups(rt - 1) if (send and rt >= 1) else []
            if xp and rt in xp: snd = [xp[rt]] + snd
            if rt < 4:
                sm = softmax(rt + 1)
                gg = G[2*rt:2*rt+2] if G else []
                extra = sm[:4] + gg[:1] + sm[4:8] + snd[:2] + gg[1:] + sm[8:] + snd[2:]
                interleave(e, mf, extra, start=0)
            else:
                if next_k: self.k_reads(it + 1, par ^ 1)
                if snd: interleave(e, mf, snd, start=3)
                else:
                    for t in mf: e(t)

    def send_groups(self, rt):
        G = []
        for ts in range(4, 8):
            q = rt * 4 + (ts - 4)
            if q < 8: a, off = 53, q * 1024
            elif q < 16: a, off = 53, 32768 + (q - 8) * 1024
            else: a, off = 54, (q - 16) * 1024
            G.append([(f'ds_write_b128 v{a}, {vr(Oreg(ts, rt), 4)} offset:{off}', 'ow')])
        return G

    def main_loop(self):
        e = self.e
        self.k_reads(0, 0)
        self.iteration(0, 0, True, first=True)
        self.iteration(1, 1, True)
        self.stamp(3)
        q0 = [(k, i - 2) for (k, i) in e.vmq]
        l0 = list(e.lgq)
        e(f's_mov_b32 s{sLoop}, 6')
        e.label(f'L_{self.name}_loop')
        self.iteration(2, 0, True)
        self.iteration(3, 1, True)
        q1 = [(k, i - 4) for (k, i) in e.vmq]
        assert q0 == q1, (q0, q1)
        assert l0 == e.lgq
        e(f's_sub_u32 s{sLoop}, s{sLoop}, 1')
        e(f's_cmp_lg_u32 s{sLoop}, 0')
        e(f's_cbranch_scc1 L_{self.name}_loop')
        if self.cfg.get('flow'): self.flag_load()
        if self.cfg.get('fused') and self.cfg.get('wwarm', 1) == 3: self.wo_warm()
        w5 = self.cfg.get('fused') and self.cfg.get('wwarm', 1) == 5
        if w5: self.wo_warm_setup()
        pos = self.cfg.get('wpos', [[None, {1: 0, 4: 1}], [{2: 2}, {1: 3, 4: 4}]])
        mk = lambda d: ({int(k): self.wo_warm_group(v) for k, v in d.items()} if (d and w5) else None)
        self.iteration(4, 0, False, xq=mk(pos[0][0]), xp=mk(pos[0][1]))
        if self.cfg.get('fused') and self.cfg.get('wwarm', 1) == 4: self.wo_warm()
        if self.cfg.get('epi2', 1):
            e(f'v_lshlrev_b32 v53, 4, v{vL}')
            e(f'v_add_u32 v53, s{sKl}, v53')
            e(f'v_add_u32 v54, {VS}, v53')
        self.iteration(5, 1, False, next_k=False, send=bool(self.cfg.get('epi2', 1)), xq=mk(pos[1][0]), xp=mk(pos[1][1]))

    def wo_warm(self):
        e = self.e
        q, r, t = vT + 7, vT + 8, vT + 11
        e(f's_bfe_u32 s{sT0}, s2, 0x10002')
        e(f's_cmp_eq_u32 s{sT0}, 0')
        e(f's_cselect_b32 s8, s48, s100')
        e(f's_cselect_b32 s9, s49, s101')
        e(f's_mov_b32 s10, {4096*1152}')
        e(f's_mov_b32 s11, 0x00020000')
        e(f's_bfe_u32 s{sT1}, s2, 0x10001')
        e(f's_lshl_b32 s{sT1}, s{sT1}, 9')
        e(f's_lshr_b32 s{sT0}, s2, 3')
        e(f's_lshl_b32 s{sT0}, s{sT0}, 2')
        e(f's_add_u32 s{sT0}, s{sT0}, s{sWv}')
        e(f's_mul_i32 s{sT0}, s{sT0}, 192')
        e(f's_mov_b32 s{sT2}, 52429')
        for i in range(3):
            e(f'v_add_u32 v{q}, s{sT0}, v{vL}')
            if i: e(f'v_add_u32 v{q}, {64*i}, v{q}')
            e(f'v_mul_lo_u32 v{r}, v{q}, s{sT2}')
            e(f'v_lshrrev_b32 v{r}, 18, v{r}')
            e(f'v_mul_u32_u24 v{t}, 5, v{r}')
            e(f'v_sub_u32 v{q}, v{q}, v{t}')
            e(f'v_mul_u32_u24 v{r}, 1152, v{r}')
            e(f'v_lshl_add_u32 v{q}, v{q}, 7, v{r}')
            e(f'buffer_load_dword v22, v{q}, s[8:11], s{sT1} offen', 'warm')

    def wo_warm_setup(self):
        e = self.e
        r, t = vT + 7, vT + 8
        e(f's_bfe_u32 s{sT0}, s2, 0x10002')
        e(f's_cmp_eq_u32 s{sT0}, 0')
        e(f's_cselect_b32 s8, s48, s100')
        e(f's_cselect_b32 s9, s49, s101')
        e(f's_mov_b32 s10, {4096*1152}')
        e(f's_mov_b32 s11, 0x00020000')
        e(f's_bfe_u32 s4, s2, 0x10001')
        e(f's_lshl_b32 s4, s4, 9')
        e(f's_lshr_b32 s{sT0}, s2, 3')
        e(f's_lshl_b32 s{sT0}, s{sT0}, 2')
        e(f's_add_u32 s{sT0}, s{sT0}, s{sWv}')
        e(f's_mul_i32 s{sT0}, s{sT0}, 160')
        e(f's_mov_b32 s{sT2}, 52429')
        for i, q in enumerate((22, 23, 55)):
            e(f'v_add_u32 v{q}, s{sT0}, v{vL}')
            if i: e(f'v_add_u32 v{q}, {64*i}, v{q}')
            e(f'v_mul_lo_u32 v{r}, v{q}, s{sT2}')
            e(f'v_lshrrev_b32 v{r}, 18, v{r}')
            e(f'v_mul_u32_u24 v{t}, 5, v{r}')
            e(f'v_sub_u32 v{q}, v{q}, v{t}')
            e(f'v_mul_u32_u24 v{r}, 1152, v{r}')
            e(f'v_lshl_add_u32 v{q}, v{q}, 7, v{r}')

    def wo_warm_group(self, j):
        q = (22, 23, 55)[j >> 1]
        lo, hi = ('-1', '0') if (j & 1) == 0 else ('0', '-1')
        return [(f's_mov_b32 exec_lo, {lo}', None), (f's_mov_b32 exec_hi, {hi}', None),
                (f'buffer_load_dword a250, v{q}, s[8:11], s4 offen', 'warm'), ('s_mov_b64 exec, -1', None)]

    def wo_warm_a(self):
        e = self.e
        n = self.name
        q, r, t = vT + 7, vT + 8, vT + 11
        e(f's_cmp_lg_u32 s{sBr}, 0')
        e(f's_cbranch_scc1 L_{n}_nowarma')
        e(f's_bfe_u32 s{sT0}, s2, 0x10002')
        e(f's_cmp_eq_u32 s{sT0}, 0')
        e(f's_cselect_b32 s8, s48, s100')
        e(f's_cselect_b32 s9, s49, s101')
        e(f's_mov_b32 s10, {4096*1152}')
        e(f's_mov_b32 s11, 0x00020000')
        e(f's_bfe_u32 s{sT1}, s2, 0x10001')
        e(f's_lshl_b32 s{sT1}, s{sT1}, 9')
        e(f's_lshr_b32 s{sT0}, s2, 3')
        e(f's_lshl_b32 s{sT0}, s{sT0}, 2')
        e(f's_add_u32 s{sT0}, s{sT0}, s{sWv}')
        e(f's_mul_i32 s{sT0}, s{sT0}, 320')
        e(f's_mov_b32 s{sT2}, 52429')
        for i in range(5):
            e(f'v_add_u32 v{q}, s{sT0}, v{vL}')
            if i: e(f'v_add_u32 v{q}, {64*i}, v{q}')
            e(f'v_mul_lo_u32 v{r}, v{q}, s{sT2}')
            e(f'v_lshrrev_b32 v{r}, 18, v{r}')
            e(f'v_mul_u32_u24 v{t}, 5, v{r}')
            e(f'v_sub_u32 v{q}, v{q}, v{t}')
            e(f'v_mul_u32_u24 v{r}, 1152, v{r}')
            e(f'v_lshl_add_u32 v{q}, v{q}, 7, v{r}')
            e(f'buffer_load_dword v22, v{q}, s[8:11], s{sT1} offen', 'warm')
            e.vmq.pop()
        e.label(f'L_{n}_nowarma')

    def wo_warm2(self):
        e = self.e
        n = self.name
        q, r, t = vT + 7, vT + 8, vT + 11
        e(f's_cmp_eq_u32 s{sWv}, 0')
        e(f's_cbranch_scc1 L_{n}_nowarm')
        e(f's_bfe_u32 s{sT0}, s2, 0x10002')
        e(f's_cmp_eq_u32 s{sT0}, 0')
        e(f's_cselect_b32 s8, s48, s100')
        e(f's_cselect_b32 s9, s49, s101')
        e(f's_mov_b32 s10, {4096*1152}')
        e(f's_mov_b32 s11, 0x00020000')
        e(f's_bfe_u32 s{sT1}, s2, 0x10001')
        e(f's_lshl_b32 s{sT1}, s{sT1}, 9')
        e(f's_lshr_b32 s{sT0}, s2, 3')
        e(f's_mul_i32 s{sT0}, s{sT0}, 3')
        e(f's_add_u32 s{sT0}, s{sT0}, s{sWv}')
        e(f's_sub_u32 s{sT0}, s{sT0}, 1')
        e(f's_lshl_b32 s{sT0}, s{sT0}, 8')
        e(f's_mov_b32 s{sT2}, 52429')
        for i in range(4):
            e(f'v_add_u32 v{q}, s{sT0}, v{vL}')
            if i: e(f'v_add_u32 v{q}, {64*i}, v{q}')
            e(f'v_mul_lo_u32 v{r}, v{q}, s{sT2}')
            e(f'v_lshrrev_b32 v{r}, 18, v{r}')
            e(f'v_mul_u32_u24 v{t}, 5, v{r}')
            e(f'v_sub_u32 v{q}, v{q}, v{t}')
            e(f'v_mul_u32_u24 v{r}, 1152, v{r}')
            e(f'v_lshl_add_u32 v{q}, v{q}, 7, v{r}')
            e(f'buffer_load_dword v22, v{q}, s[8:11], s{sT1} offen', 'warm')
        e('s_waitcnt vmcnt(4)')
        e(f's_branch L_{n}_warmdone')
        e.label(f'L_{n}_nowarm')
        e('s_waitcnt vmcnt(0)')
        e.label(f'L_{n}_warmdone')
        e.vmq = []

    def epilogue2(self):
        e = self.e
        t0 = vT
        self.cstamp(0, 6)
        emit_groups(e, self.send_groups(4))
        if self.cfg.get('fused') and self.cfg.get('wwarm', 1) == 6: self.wo_warm_a()
        if self.cfg.get('flow'): self.flag_check()
        if self.cfg.get('fused') and self.cfg.get('wwarm', 1) == 1:
            if self.cfg.get('t4'):
                import tail4; tail4.wo_warm(self)
            else: self.wo_warm()
        if self.cfg.get('t4') and self.cfg.get('t4early', 1):
            import tail4; tail4.early(self)
        vMx, vLx = vS + 30, vS + 35
        for rt in range(5):
            e(f'v_sub_f32 v{vMx+rt}, 0, v{NM(rt)}')
            e(f'v_accvgpr_read_b32 v{vLx+rt}, a{Lf(rt)}')
        aw, ap = vT + 2, vT + 3
        e(f's_mul_i32 s{sT0}, s{sWv}, 640')
        e(f's_add_u32 s{sT0}, s{sT0}, {STATS}')
        e(f'v_lshlrev_b32 v{t0}, 3, v{vN}')
        e(f'v_add_u32 v{aw}, s{sT0}, v{t0}')
        e(f's_xor_b32 s{sT1}, s{sWv}, 1')
        e(f's_mul_i32 s{sT2}, s{sT1}, 640')
        e(f's_add_u32 s{sT2}, s{sT2}, {STATS}')
        e(f'v_add_u32 v{ap}, s{sT2}, v{t0}')
        for rt in range(5):
            e(f'ds_write2_b32 v{aw}, v{vMx+rt}, v{vLx+rt} offset0:{rt*32} offset1:{rt*32+1}', 'sw')
        e(f's_lshl_b32 s{sT1}, s{sT1}, 13')
        e(f'v_lshlrev_b32 v{t0}, 4, v{vL}')
        e(f'v_add_u32 v23, s{sT1}, v{t0}')
        e(f'v_add_u32 v{vT+1}, {VS}, v23')
        pa, pb = 23, vT + 1
        e.wait_lg()
        self.cstamp(1, 6)
        e('s_barrier')
        self.cstamp(2, 6)
        for rt in range(5):
            e(f'ds_read_b64 {vr(vS + 2*rt, 2)}, v{ap} offset:{rt*128}', 'sr')
        def reads(rt):
            for ts in range(4):
                q = rt * 4 + ts
                if q < 8: a, off = pa, q * 1024
                elif q < 16: a, off = pa, 32768 + (q - 8) * 1024
                else: a, off = pb, (q - 16) * 1024
                e(f'ds_read_b128 {vr(Oreg(ts+4, rt),4)}, v{a} offset:{off}', ('or', rt))
        reads(0); reads(1)
        e.wait_lg('sr')
        Go, Gp = vS + 16, vS + 40 - 40 + 0
        Mv = [vS + 10 + rt for rt in range(5)]
        Fo = [vT + 4 + rt for rt in range(5)]
        for rt in range(5): e(f'v_max_f32 v{Mv[rt]}, v{vMx+rt}, v{vS + 2*rt}')
        for rt in range(5):
            e(f'v_sub_f32 v{Fo[rt]}, v{vMx+rt}, v{Mv[rt]}')
            e(f'v_sub_f32 v{vS + 2*rt}, v{vS + 2*rt}, v{Mv[rt]}')
        for rt in range(5):
            e(f'v_exp_f32 v{Fo[rt]}, v{Fo[rt]}')
            e(f'v_exp_f32 v{vS + 2*rt}, v{vS + 2*rt}')
        for rt in range(5): e(f'v_mul_f32 v{vS + 2*rt + 1}, v{vS + 2*rt + 1}, v{vS + 2*rt}')
        for rt in range(5): e(f'v_fma_f32 v{vS + 2*rt + 1}, v{vLx+rt}, v{Fo[rt]}, v{vS + 2*rt + 1}')
        for rt in range(5): e(f'v_rcp_f32 v{vS + 2*rt + 1}, v{vS + 2*rt + 1}')
        for rt in range(5):
            e(f'v_mul_f32 v{Go + 2*rt}, v{Fo[rt]}, v{vS + 2*rt + 1}')
            e(f'v_mul_f32 v{vS + 2*rt}, v{vS + 2*rt}, v{vS + 2*rt + 1}')
        for k in (3, 4, 5, 6): self.cstamp(k, 6)
        so = vT + 6
        e(f'v_lshlrev_b32 v{so}, 4, v{vL}')
        for rt in range(5):
            if rt + 2 < 5: reads(rt + 2)
            e.wait_lg(('or', rt))
            go, gp = Go + 2*rt, vS + 2*rt
            for ts in range(4):
                a, b = Oreg(ts, rt), Oreg(ts + 4, rt)
                e(f'v_pk_mul_f32 {vr(b,2)}, {vr(b,2)}, {vr(gp,2)} op_sel_hi:[1,0]')
                e(f'v_pk_mul_f32 {vr(b+2,2)}, {vr(b+2,2)}, {vr(gp,2)} op_sel_hi:[1,0]')
                e(f'v_pk_fma_f32 {vr(a,2)}, {vr(a,2)}, {vr(go,2)}, {vr(b,2)} op_sel_hi:[1,0,1]')
                e(f'v_pk_fma_f32 {vr(a+2,2)}, {vr(a+2,2)}, {vr(go,2)}, {vr(b+2,2)} op_sel_hi:[1,0,1]')
            for u in range(2):
                a, b = Oreg(2*u, rt), Oreg(2*u + 1, rt)
                e(f'v_cvt_pk_bf16_f32 v{a}, v{a}, v{a+1}')
                e(f'v_cvt_pk_bf16_f32 v{a+1}, v{a+2}, v{a+3}')
                e(f'v_cvt_pk_bf16_f32 v{a+2}, v{b}, v{b+1}')
                e(f'v_cvt_pk_bf16_f32 v{a+3}, v{b+2}, v{b+3}')
                e(f'buffer_store_dwordx4 {vr(a,4)}, v{so}, s[{sO}:{sO+3}], s{sOoff} offen offset:{u*1024}{self.ofl}', 'ost')
            if rt < 4:
                e(f's_add_u32 s{sOoff}, s{sOoff}, 131072')
        self.cstamp(7, 6)
        if self.cfg.get('stamps') and (not self.cfg.get('fused') or self.cfg.get('stamps') == 6) and not self.cfg.get('flow'): e.wait_vm('ost')
        self.cstamp(8, 6)

    def epilogue(self):
        if self.cfg.get('epi2', 1): return self.epilogue2()
        e = self.e
        t0, t1 = vT, vT + 1
        self.cstamp(0, 6)
        if self.cfg.get('flow'): self.flag_check()
        if self.cfg.get('fused') and self.cfg.get('wwarm', 1) == 1:
            if self.cfg.get('t4'):
                import tail4; tail4.wo_warm(self)
            else: self.wo_warm()
        if self.cfg.get('t4') and self.cfg.get('t4early', 1):
            import tail4; tail4.early(self)
        vMx, vLx = vS + 30, vS + 35
        for rt in range(5):
            e(f'v_sub_f32 v{vMx+rt}, 0, v{NM(rt)}')
            e(f'v_accvgpr_read_b32 v{vLx+rt}, a{Lf(rt)}')
        aw, ap = vT + 2, vT + 3
        e(f's_mul_i32 s{sT0}, s{sWv}, 640')
        e(f's_add_u32 s{sT0}, s{sT0}, {STATS}')
        e(f'v_lshlrev_b32 v{t0}, 3, v{vN}')
        e(f'v_add_u32 v{aw}, s{sT0}, v{t0}')
        e(f's_xor_b32 s{sT1}, s{sWv}, 1')
        e(f's_mul_i32 s{sT1}, s{sT1}, 640')
        e(f's_add_u32 s{sT1}, s{sT1}, {STATS}')
        e(f'v_add_u32 v{ap}, s{sT1}, v{t0}')
        for rt in range(5):
            e(f'ds_write2_b32 v{aw}, v{vMx+rt}, v{vLx+rt} offset0:{rt*32} offset1:{rt*32+1}', 'sw')
        e.wait_lg()
        self.cstamp(1, 6)
        e('s_barrier')
        self.cstamp(2, 6)
        for rt in range(5):
            e(f'ds_read_b64 {vr(vS + 2*rt, 2)}, v{ap} offset:{rt*128}', 'sr')
        e.wait_lg()
        G = vS + 16
        Mv = [vS + 10 + rt for rt in range(5)]
        Fo = [vT + 4 + rt for rt in range(5)]
        for rt in range(5): e(f'v_max_f32 v{Mv[rt]}, v{vMx+rt}, v{vS + 2*rt}')
        for rt in range(5):
            e(f'v_sub_f32 v{Fo[rt]}, v{vMx+rt}, v{Mv[rt]}')
            e(f'v_sub_f32 v{vS + 2*rt}, v{vS + 2*rt}, v{Mv[rt]}')
        for rt in range(5):
            e(f'v_exp_f32 v{Fo[rt]}, v{Fo[rt]}')
            e(f'v_exp_f32 v{vS + 2*rt}, v{vS + 2*rt}')
        for rt in range(5): e(f'v_mul_f32 v{vS + 2*rt + 1}, v{vS + 2*rt + 1}, v{vS + 2*rt}')
        for rt in range(5): e(f'v_fma_f32 v{vS + 2*rt + 1}, v{vLx+rt}, v{Fo[rt]}, v{vS + 2*rt + 1}')
        for rt in range(5): e(f'v_rcp_f32 v{vS + 2*rt + 1}, v{vS + 2*rt + 1}')
        for rt in range(5): e(f'v_mul_f32 v{G + 2*rt}, v{Fo[rt]}, v{vS + 2*rt + 1}')
        self.cstamp(3, 6)
        xa = vT + 9
        e(f's_mul_i32 s{sT0}, s{sWv}, 20480')
        e(f's_add_u32 s{sT0}, s{sT0}, {OX}')
        e(f'v_lshlrev_b32 v{t0}, 4, v{vL}')
        e(f'v_add_u32 v{xa}, s{sT0}, v{t0}')
        e(f's_xor_b32 s{sT1}, s{sWv}, 1')
        e(f's_mul_i32 s{sT1}, s{sT1}, 20480')
        e(f's_add_u32 s{sT1}, s{sT1}, {OX}')
        e(f'v_add_u32 v{xa+1}, s{sT1}, v{t0}')
        for ts in (4, 5, 6, 7):
            for rt in range(5):
                b = Oreg(ts, rt); g = G + 2*rt
                e(f'v_pk_mul_f32 {vr(b,2)}, {vr(b,2)}, {vr(g,2)} op_sel_hi:[1,0]')
                e(f'v_pk_mul_f32 {vr(b+2,2)}, {vr(b+2,2)}, {vr(g,2)} op_sel_hi:[1,0]')
                if ts >= 4:
                    e(f'ds_write_b128 v{xa}, {vr(b,4)} offset:{((ts-4)*5+rt)*1024}', 'ow')
        e.wait_lg()
        self.cstamp(4, 6)
        e('s_barrier')
        self.cstamp(5, 6)
        self.cstamp(6, 6)
        so = vT + 6
        e(f'v_lshlrev_b32 v{so}, 4, v{vL}')
        def reads(rt):
            for ts in range(4):
                e(f'ds_read_b128 {vr(Oreg(ts+4, rt),4)}, v{xa+1} offset:{(ts*5+rt)*1024}', ('or', rt))
        reads(0); reads(1)
        for rt in range(5):
            if rt + 2 < 5: reads(rt + 2)
            e.wait_lg(('or', rt))
            g = vS + 16 + 2*rt
            for ts in range(4):
                a, b = Oreg(ts, rt), Oreg(ts + 4, rt)
                e(f'v_pk_fma_f32 {vr(a,2)}, {vr(a,2)}, {vr(g,2)}, {vr(b,2)} op_sel_hi:[1,0,1]')
                e(f'v_pk_fma_f32 {vr(a+2,2)}, {vr(a+2,2)}, {vr(g,2)}, {vr(b+2,2)} op_sel_hi:[1,0,1]')
            for u in range(2):
                a, b = Oreg(2*u, rt), Oreg(2*u + 1, rt)
                e(f'v_cvt_pk_bf16_f32 v{a}, v{a}, v{a+1}')
                e(f'v_cvt_pk_bf16_f32 v{a+1}, v{a+2}, v{a+3}')
                e(f'v_cvt_pk_bf16_f32 v{a+2}, v{b}, v{b+1}')
                e(f'v_cvt_pk_bf16_f32 v{a+3}, v{b+2}, v{b+3}')
                e(f'buffer_store_dwordx4 {vr(a,4)}, v{so}, s[{sO}:{sO+3}], s{sOoff} offen offset:{u*1024}{self.ofl}', 'ost')
            if rt < 4:
                e(f's_add_u32 s{sOoff}, s{sOoff}, 131072')
        self.cstamp(7, 6)
        if self.cfg.get('fused') and self.cfg.get('wwarm', 1) == 2: self.wo_warm2()
        if self.cfg.get('stamps') and (not self.cfg.get('fused') or self.cfg.get('stamps') == 6) and not self.cfg.get('flow'): e.wait_vm('ost')
        self.cstamp(8, 6)

    def _epi_add(self, ts):
        e = self.e
        e.wait_lg(('or', ts))
        for rt in range(5):
            a, b = Oreg(ts, rt), Oreg(ts + 4, rt)
            g = vS + 16 + 2*rt
            e(f'v_pk_fma_f32 {vr(a,2)}, {vr(a,2)}, {vr(g,2)}, {vr(b,2)} op_sel_hi:[1,0,1]')
            e(f'v_pk_fma_f32 {vr(a+2,2)}, {vr(a+2,2)}, {vr(g,2)}, {vr(b+2,2)} op_sel_hi:[1,0,1]')

    def build(self):
        e = self.e
        n = self.name
        e.raw(f'.globl {n}\n.p2align 8\n.type {n},@function')
        e.label(n)
        self.stamp(0); self.stamp(0, 2); self.stamp(0, 3); self.cstamp(4); self.stamp(0, 5); self.cstamp(1, 5)
        self.prologue()
        e(f's_cmp_eq_u32 s{sBr}, 0')
        e(f's_cbranch_scc0 L_{n}_qB')
        saved = (list(e.vmq), list(e.lgq))
        self.q_phase('A')
        endA = (list(e.vmq), list(e.lgq))
        e(f's_branch L_{n}_qx')
        e.label(f'L_{n}_qB')
        e.vmq, e.lgq = list(saved[0]), list(saved[1])
        self.q_phase('B')
        assert (e.vmq, e.lgq) == endA, (e.vmq, endA)
        e.label(f'L_{n}_qx')
        self.stamp(1); self.stamp(11, 2); self.stamp(1, 3); self.cstamp(5)
        self.q_exchange()
        self.stamp(2); self.stamp(12, 2); self.stamp(2, 3); self.cstamp(6); self.stamp(2, 5)
        self.main_loop()
        self.stamp(4); self.stamp(3, 3); self.cstamp(7); self.stamp(3, 5)
        self.epilogue()
        self.stamp(5)
        if self.cfg.get('fused'):
            if self.cfg.get('t4'): from tail4 import fused_tail
            else: from tail import fused_tail
            fused_tail(self)
            self.stamp(9)
            if self.cfg.get('stamps') == 5:
                self.stamp(4, 5); self.cstamp(5, 5)
                e('s_waitcnt lgkmcnt(0)')
                e(f's_cmp_lg_u32 s2, {self.cfg.get("dbgwg", 0)}')
                e(f's_cbranch_scc1 L_{n}_end')
                e(f's_cmp_lg_u32 s{sWv}, 0')
                e(f's_cbranch_scc1 L_{n}_end')
                e('s_sub_u32 s78, s78, s70')
                e('s_sub_u32 s80, s80, s72')
                e('s_sub_u32 s76, s76, s70')
                e('s_sub_u32 s74, s74, s70')
                e('v_mov_b32 v4, s78'); e('v_mov_b32 v5, s80'); e('v_mov_b32 v6, s76'); e('v_mov_b32 v7, s74')
                e('v_mov_b32 v8, 48')
                e('s_mov_b64 exec, 1')
                e('buffer_store_dwordx4 v[4:7], v8, s[16:19], 0 offen')
                e('s_waitcnt vmcnt(0)')
                e.vmq = []
            else:
                self.write_stamps(10 if self.cfg.get('stamps') == 1 else 13)
        else:
            self.write_stamps(6 if self.cfg.get('stamps') == 1 else 13)
        e.label(f'L_{n}_end')
        e('s_endpgm')
        for r in self.rare:
            e.ins.extend(r.ins)
        e('s_endpgm')
        kd = f'''
.amdhsa_kernel {n}
  .amdhsa_next_free_vgpr 512
  .amdhsa_next_free_sgpr 102
  .amdhsa_accum_offset 256
  .amdhsa_group_segment_fixed_size 0
  .amdhsa_kernarg_size 104
  .amdhsa_user_sgpr_count 2
  .amdhsa_user_sgpr_kernarg_segment_ptr 1
  .amdhsa_system_sgpr_workgroup_id_x 1
.end_amdhsa_kernel
'''
        return kd
```

```python
from asmgen import *
import attn as A
from attn import srd, O_BR, O_BYTES, MFMA, interleave, emit_groups

WO_BYTES = 4096 * 1152
OUT_BYTES = 640 * 2304

def fused_tail(gen):
    e, cfg, n = gen.e, gen.cfg, gen.name
    ofl = cfg.get('o2_flags', ' sc1')
    wfl = cfg.get('wo_flags', '')
    sfl = cfg.get('out_flags', '')
    MT, NT = 3, 4
    RW = cfg.get('tail_rw', 8)
    RO = 4
    sWv, sBrA = A.sWv, A.sBr
    sBatt = A.sB
    sO, sW, sOut, sD = A.sO, 8, 12, 16
    sBr, sMt, sN0, sT0, sT1, sT2 = 4, 5, 6, 37, 38, 39
    sOoff, sWoff, sWl, sLoop = 7, 30, 31, 32
    sOm = 33
    sMg, sNg, sRot = 61, 62, 65
    sWo, sOo = 66, 67
    sRotO = 3
    sOk = 50
    retries = []
    vL, vN, vG, vT = A.vL, A.vN, A.vG, 4
    vWd, vOd, vWr = 10, 14, 16
    vAcc, vWF, vOF = 20, 68, 84
    RED = 0
    flow = cfg.get('flow')
    assert not flow
    e('s_load_dwordx2 s[42:43], s[0:1], 72')
    e('s_load_dwordx4 s[44:47], s[0:1], 80')
    sIdle = 64
    e(f's_mov_b32 s{sIdle}, 0')
    e(f's_and_b32 s{sT0}, s2, 7')
    e(f's_lshr_b32 s{sT1}, s2, 3')
    e(f's_lshr_b32 s{sBr}, s{sT0}, 2')
    e(f's_and_b32 s{sOm}, s{sT0}, 1')
    e(f's_bfe_u32 s{sOm+1}, s{sT0}, 0x10001')
    e(f's_mul_i32 s{sOm}, s{sOm}, 7')
    e(f's_cmp_lt_u32 s{sT1}, 28')
    e(f's_cbranch_scc0 L_{n}_extra')
    e(f's_lshr_b32 s{sMg}, s{sT1}, 2')
    e(f's_add_u32 s{sMg}, s{sMg}, s{sOm}')
    e(f's_and_b32 s{sNg}, s{sT1}, 3')
    e(f's_mul_i32 s{sOm+1}, s{sOm+1}, 5')
    e(f's_add_u32 s{sNg}, s{sNg}, s{sOm+1}')
    e(f's_branch L_{n}_dec')
    e.label(f'L_{n}_extra')
    e(f's_sub_u32 s{sT1}, s{sT1}, 28')
    e(f's_lshl_b32 s{sOm+2}, s{sOm+1}, 2')
    e(f's_add_u32 s{sMg}, s{sT1}, s{sOm+2}')
    e(f's_cmp_ge_u32 s{sMg}, 7')
    e(f's_cselect_b32 s{sIdle}, 1, 0')
    e(f's_cselect_b32 s{sMg}, 0, s{sMg}')
    e(f's_add_u32 s{sMg}, s{sMg}, s{sOm}')
    e(f's_mov_b32 s{sNg}, 4')
    e.label(f'L_{n}_dec')
    e(f's_lshl_b32 s{sN0}, s{sNg}, 6')
    e(f's_mul_i32 s{sMt}, s{sMg}, 3')
    e(f's_add_u32 s{sRot}, s{sMg}, s{sNg}')
    e(f's_mul_i32 s{sT1}, s{sRot}, 37')
    e(f's_lshr_b32 s{sT1}, s{sT1}, 8')
    e(f's_mul_i32 s{sT1}, s{sT1}, 7')
    e(f's_sub_u32 s{sRot}, s{sRot}, s{sT1}')
    SEG = cfg.get('oseg', 8)
    e(f's_mul_i32 s{sRot}, s{sRot}, {(SEG*64 + 6)//7}')
    e(f's_lshr_b32 s{sRot}, s{sRot}, 6')
    if not cfg.get('orot', 1): e(f's_mov_b32 s{sRot}, 0')
    sCw, sCo = 70 - 0, 0
    sCw, sCo = 98, 99
    e(f's_mov_b32 s{sCw}, 0')
    e(f's_mov_b32 s{sCo}, 0')
    def kstep(cnt, dst, tmp):
        return [(f's_add_u32 s{dst}, s{cnt}, s{sRot}', None), (f's_and_b32 s{dst}, s{dst}, {SEG-1}', None),
                (f's_and_b32 s{tmp}, s{cnt}, {32-SEG}', None), (f's_or_b32 s{dst}, s{dst}, s{tmp}', None),
                (f's_lshl_b32 s{dst}, s{dst}, 10', None), (f's_add_u32 s{cnt}, s{cnt}, 1', None)]
    e(f's_movk_i32 s{sT1}, 1152')
    e(f'v_lshrrev_b32 v{vT}, 3, v{vL}')
    e(f'v_mul_lo_u32 v{vT}, v{vT}, s{sT1}')
    e(f'v_lshlrev_b32 v{vT+1}, 1, v{vG}')
    e(f'v_and_b32 v{vT+2}, 7, v{vL}')
    e(f'v_xor_b32 v{vT+1}, v{vT+1}, v{vT+2}')
    e(f'v_lshl_add_u32 v{vWd}, v{vT+1}, 4, v{vT}')
    for j in range(1, 4):
        e(f'v_add_u32 v{vWd+j}, {8192*j}, v{vWd}')
    e(f'v_lshlrev_b32 v{vOd}, 4, v{vL}')
    e(f's_mul_i32 s{sWl}, s{sWv}, {RW*4096}')
    e(f'v_bfe_u32 v{vT}, v{vL}, 2, 2')
    e(f'v_lshl_add_u32 v{vT}, v{vG}, 2, v{vT}')
    e(f'v_bfe_u32 v{vT+1}, v{vT}, 1, 2')
    e(f'v_lshlrev_b32 v{vT+1}, 1, v{vT+1}')
    e(f'v_bfe_u32 v{vT+2}, v{vL}, 1, 1')
    e(f'v_xor_b32 v{vT+1}, v{vT+1}, v{vT+2}')
    e(f'v_and_b32 v{vT+2}, 1, v{vL}')
    e(f'v_lshlrev_b32 v{vT+2}, 3, v{vT+2}')
    e(f'v_lshl_add_u32 v{vT+2}, v{vT}, 7, v{vT+2}')
    e(f'v_add_u32 v{vT+2}, s{sWl}, v{vT+2}')
    for j in range(NT):
        e(f's_xor_b32 s{sT0}, s{sWv}, {j}')
        e(f's_lshl_b32 s{sT0}, s{sT0}, 1')
        e(f'v_xor_b32 v{vT}, s{sT0}, v{vT+1}')
        e(f'v_lshl_add_u32 v{vWr+j}, v{vT}, 4, v{vT+2}')
    e('s_waitcnt lgkmcnt(0)')
    e.lgq = []
    e(f's_cmp_eq_u32 s{sBr}, 0')
    e(f's_cselect_b32 s40, s48, s42')
    e(f's_cselect_b32 s41, s49, s43')
    srd(e, sW, 40, 41, WO_BYTES)
    srd(e, sOut, 44, 45, OUT_BYTES)
    e(f's_mul_i32 s{sWoff}, s{sWv}, {32*32*1152}')
    e(f's_lshl_b32 s{sT0}, s{sN0}, 1')
    e(f's_add_u32 s{sWoff}, s{sWoff}, s{sT0}')
    e(f's_mul_i32 s{sOoff}, s{sBr}, {O_BR}')
    e(f's_lshl_b32 s{sT0}, s{sMt}, 17')
    e(f's_add_u32 s{sOoff}, s{sOoff}, s{sT0}')
    e(f's_lshl_b32 s{sT0}, s{sWv}, 15')
    e(f's_add_u32 s{sOoff}, s{sOoff}, s{sT0}')
    for mi in range(MT):
        e(f's_add_u32 s{sOm+mi}, s{sOoff}, {mi*131072}')

    def w_groups(slot, tag):
        G = [kstep(sCw, sWo, sT0) + [(f's_add_u32 m0, s{sWl}, {slot*4096}', None),
              (f's_mul_i32 s{sWo}, s{sWo}, 36', None),
              (f's_add_u32 s{sWo}, s{sWo}, s{sWoff}', None)]]
        for j in range(4):
            G.append([(f'buffer_load_dwordx4 v{vWd+j}, s[{sW}:{sW+3}], s{sWo} offen offset:{1024*j}{wfl} lds', tag)])
        return G
    def o_groups(slot, tag):
        g = kstep(sCo, sRotO, sT1) + [(f's_add_u32 s{sOo+mi}, s{sOm+mi}, s{sRotO}', None) for mi in range(MT)]
        if flow: g.append((f's_mov_b32 s{sOk+slot}, s{sRotO}', None))
        G = [g]
        for mi in range(MT):
            r = vOF + slot*12 + mi*4
            G.append([(f'buffer_load_dwordx4 {vr(r,4)}, v{vOd}, s[{sO}:{sO+3}], s{sOo+mi} offen{ofl}', tag)])
        return G

    srd(e, sD, 46, 47, 256)
    e.wait_vm('ost')
    e.vmq = []
    e('s_barrier')
    e(f's_cmp_lg_u32 s{sWv}, 0')
    e(f's_cbranch_scc1 L_{n}_nosig')
    e(f'v_mov_b32 v{vT}, 0')
    e(f'v_mov_b32 v{vT+1}, 1')
    e('s_mov_b64 exec, 1')
    e(f'buffer_atomic_add v{vT+1}, v{vT}, s[{sD}:{sD+3}], 0 offen sc0 sc1', 'sig')
    e('s_waitcnt vmcnt(0)')
    e(f'v_readfirstlane_b32 s{sT0}, v{vT+1}')
    e(f's_cmp_lg_u32 s{sT0}, 255')
    e(f's_cbranch_scc1 L_{n}_notlast')
    e(f'v_mov_b32 v{vT+1}, 1')
    e(f'buffer_store_dword v{vT+1}, v{vT}, s[{sD}:{sD+3}], 0 offen offset:128 sc1', 'go')
    e.label(f'L_{n}_notlast')
    e('s_mov_b64 exec, -1')
    e.vmq = []
    e.label(f'L_{n}_nosig')
    e(f's_cmp_lg_u32 s{sIdle}, 0')
    e(f's_cbranch_scc1 L_{n}_end')
    for t in range(RW): emit_groups(e, w_groups(t, ('w', t)))
    gen.stamp(6)
    if not flow:
        e(f's_cmp_lg_u32 s{sWv}, 0')
        e(f's_cbranch_scc1 L_{n}_nopoll')
        e(f'v_mov_b32 v{vT}, 128')
        e(f's_mov_b32 s{sLoop}, 0')
        e.label(f'L_{n}_poll')
        e(f'buffer_load_dword v{vT+2}, v{vT}, s[{sD}:{sD+3}], 0 offen sc1')
        e('s_waitcnt vmcnt(0)')
        e(f'v_readfirstlane_b32 s{sT0}, v{vT+2}')
        e(f's_cmp_lg_u32 s{sT0}, 0')
        e(f's_cbranch_scc1 L_{n}_nopoll')
        e(f's_add_u32 s{sLoop}, s{sLoop}, 1')
        e(f's_cmp_lt_u32 s{sLoop}, 0x20000')
        e(f's_cbranch_scc0 L_{n}_nopoll')
        e(f's_sleep {cfg.get("psleep", 4)}')
        e(f's_branch L_{n}_poll')
        e.label(f'L_{n}_nopoll')
        e.vmq = [('w', t) for t in range(RW) for _ in range(4)]
        e('s_barrier')
    gen.stamp(7)
    for t in range(RO): emit_groups(e, o_groups(t, ('o', t)))

    vWF2 = [vWF, 140]
    def w_reads(t):
        ws, b = t % RW, vWF2[t & 1]
        return [[(f'ds_read_b64_tr_b16 {vr(b + nt*4 + 2*sec, 2)}, v{vWr+nt} offset:{ws*4096 + sec*2048}', 'wf')] for nt in range(NT) for sec in range(2)]
    def step(t, first, nxt_w, nxt_o, last=False):
        ws, os_ = t % RW, t % RO
        e.wait_lg()
        e.wait_vm([('o', t)] + ([] if last else [('w', t + 1)]))
        if flow:
            r0 = vOF + os_*12
            tv = vT
            e(f'v_max3_u32 v{tv}, v{r0}, v{r0+1}, v{r0+2}')
            for q in range(3, 11, 2): e(f'v_max3_u32 v{tv}, v{tv}, v{r0+q}, v{r0+q+1}')
            e(f'v_max_u32 v{tv}, v{tv}, v{r0+11}')
            e(f'v_cmp_eq_u32 vcc, -1, v{tv}')
            lab = f'L_{n}_rt{len(retries)}'
            e(f's_cbranch_vccnz {lab}')
            e.label(lab + 'b')
            r = Emitter()
            r.label(lab)
            r(f's_mov_b32 s{sLoop+0}, s{sLoop}') if False else None
            r('s_mov_b32 s54, 0')
            r.label(lab + 'l')
            r('s_sleep 2')
            for mi in range(MT):
                r(f's_add_u32 s55, s{sOm+mi}, s{sOk+os_}')
                r(f'buffer_load_dwordx4 {vr(r0 + mi*4, 4)}, v{vOd}, s[{sO}:{sO+3}], s55 offen{ofl}')
            r('s_waitcnt vmcnt(0)')
            r(f'v_max3_u32 v{tv}, v{r0}, v{r0+1}, v{r0+2}')
            for q in range(3, 11, 2): r(f'v_max3_u32 v{tv}, v{tv}, v{r0+q}, v{r0+q+1}')
            r(f'v_max_u32 v{tv}, v{tv}, v{r0+11}')
            r(f'v_cmp_eq_u32 vcc, -1, v{tv}')
            r(f's_cbranch_vccz {lab}b')
            r('s_add_u32 s54, s54, 1')
            r('s_cmp_lt_u32 s54, 0x4000')
            r(f's_cbranch_scc1 {lab}l')
            r(f's_branch {lab}b')
            r.fix_hazards()
            retries.append(r)
        b = vWF2[t & 1]
        mf = []
        for nt in range(NT):
            for mi in range(MT):
                acc = vr(vAcc + (nt*MT + mi)*4, 4)
                mf.append(f'{MFMA} {acc}, {vr(b + nt*4, 4)}, {vr(vOF + os_*12 + mi*4, 4)}, {"0" if first else acc}')
        R = [] if last else w_reads(t + 1)
        Gw = w_groups(ws, ('w', t + RW)) if nxt_w else []
        Go = o_groups(os_, ('o', t + RO)) if nxt_o else []
        interleave(e, mf[:4], R, start=0)
        interleave(e, mf[4:], Gw + Go[:1], start=0)
        emit_groups(e, Go[1:])

    e.wait_vm([('w', 0)])
    emit_groups(e, w_reads(0))
    for t in range(RW): step(t, t == 0, True, True)
    nmid = (32 - 2*RW) // RW
    if nmid > 0:
        q0 = [(k, i - RW) for (k, i) in e.vmq]
        l0 = list(e.lgq)
        e(f's_mov_b32 s{sLoop}, {nmid}')
        e.label(f'L_{n}_oloop')
        for t in range(RW, 2*RW): step(t, False, True, True)
        q1 = [(k, i - 2*RW) for (k, i) in e.vmq]
        assert q0 == q1, (q0, q1)
        assert l0 == e.lgq
        e(f's_sub_u32 s{sLoop}, s{sLoop}, 1')
        e(f's_cmp_lg_u32 s{sLoop}, 0')
        e(f's_cbranch_scc1 L_{n}_oloop')
    base = 2*RW if nmid > 0 else RW
    for t in range(base, base + RW): step(t, False, False, t + RO < base + RW, last=(t == base + RW - 1))
    gen.stamp(8)
    e(f'v_add_u32 v{vT}, s{sWl}, v{vOd}')
    for j in range(1, NT):
        for mi in range(MT):
            e(f'ds_write_b128 v{vT}, {vr(vAcc + (j*MT + mi)*4, 4)} offset:{((j-1)*MT + mi)*1024}', 'rw')
    for j in range(1, NT):
        e(f's_xor_b32 s{sT0}, s{sWv}, {j}')
        e(f's_mul_i32 s{sT0}, s{sT0}, {RW*4096}')
        e(f'v_add_u32 v{vT+3+j-1}, s{sT0}, v{vOd}')
    e.wait_lg()
    e('s_barrier')
    R = vOF
    for mi in range(MT):
        for j in range(1, NT):
            e(f'ds_read_b128 {vr(R + (mi*3 + j-1)*4, 4)}, v{vT+3+j-1} offset:{((j-1)*MT + mi)*1024}', ('r', mi))
    e(f's_lshl_b32 s{sT0}, s{sMt}, 4')
    e(f'v_add_u32 v{vT+1}, s{sT0}, v{vN}')
    e(f's_movk_i32 s{sT1}, 2304')
    e(f'v_mul_lo_u32 v{vT+1}, v{vT+1}, s{sT1}')
    e(f'v_lshl_add_u32 v{vT+1}, v{vG}, 3, v{vT+1}')
    e(f's_mul_i32 s{sT0}, s{sBr}, 1152')
    e(f's_lshl_b32 s{sT1}, s{sN0}, 1')
    e(f's_add_u32 s{sT0}, s{sT0}, s{sT1}')
    e(f's_lshl_b32 s{sT1}, s{sWv}, 5')
    e(f's_add_u32 s{sT0}, s{sT0}, s{sT1}')
    for mi in range(MT):
        e.wait_lg(('r', mi))
        a = vAcc + mi*4
        b = R + mi*12
        e(f'v_pk_add_f32 {vr(a,2)}, {vr(a,2)}, {vr(b,2)}')
        e(f'v_pk_add_f32 {vr(a+2,2)}, {vr(a+2,2)}, {vr(b+2,2)}')
        e(f'v_pk_add_f32 {vr(b+4,2)}, {vr(b+4,2)}, {vr(b+8,2)}')
        e(f'v_pk_add_f32 {vr(b+6,2)}, {vr(b+6,2)}, {vr(b+10,2)}')
        e(f'v_pk_add_f32 {vr(a,2)}, {vr(a,2)}, {vr(b+4,2)}')
        e(f'v_pk_add_f32 {vr(a+2,2)}, {vr(a+2,2)}, {vr(b+6,2)}')
        e(f'v_cvt_pk_bf16_f32 v{a}, v{a}, v{a+1}')
        e(f'v_cvt_pk_bf16_f32 v{a+1}, v{a+2}, v{a+3}')
        e(f'buffer_store_dwordx2 {vr(a,2)}, v{vT+1}, s[{sOut}:{sOut+3}], s{sT0} offen{sfl}', 'st')
        if mi < MT - 1:
            e(f's_add_u32 s{sT0}, s{sT0}, {16*2304}')
    if cfg.get('stamps'): e.wait_vm_all()
    gen.rare.extend(retries)
```

```python
from asmgen import *

X_BYTES = 8 * 80 * 1152
W_BYTES = 576 * 8192
KA_BYTES = 8 * 16 * 1024 * 256
KB_BYTES = 8 * 32 * 1024 * 256
O_BR = 40 * 128 * 1024
O_BYTES = 2 * O_BR

QBUF0, QBUFSZ = 34816, 43008
KS, VS = 0, 65536
QIMG = 122880
STATS = 131072
OX = 0

sX, sW, sK, sV, sO = 4, 8, 12, 16, 20
sWv, sJ, sKH, sBr, sC, sT = 24, 25, 26, 27, 28, 29
sKoff, sVoff, sKl, sVl = 30, 31, 32, 33
sXoff, sWoff, sOoff = 34, 35, 36
sT0, sT1, sT2 = 37, 38, 39
sP = 40
sLoop = 60
sXl, sWl = 61, 62
sKt, sVt = 96, 97
sB, sH = 63, 64
sCc, sXc, sWc, sX3c = 67, 68, 69, 3
vL, vN, vG = 1, 2, 3
vKd, vVd = 4, 8
vKr, vVr = 10, 14
vNM = 24
vXr, vWr = 36, 38
vT = 44
vXd, vWd = 56, 60
vQA = 64
vS = 56
vO = 96
aQ = 0
aK = 80
aV = 112
aL = 144
aOne = 164
aXF = [168, 204]
aWF = [188, 224]

def Sreg(rt, kt): return vS + rt * 8 + kt * 4
def Oreg(ts, rt): return vO + (ts * 5 + rt) * 4
def Qacc(tt, rt): return vO + (tt * 5 + rt) * 4
def Qf(rt, s): return aQ + (rt * 4 + s) * 4
def Kf(kt, s): return aK + (kt * 4 + s) * 4
def Vf(ts): return aV + ts * 4
def NM(rt): return vNM + rt * 4
def Lf(rt): return aL + rt * 4

MFMA = 'v_mfma_f32_16x16x32_bf16'

def srd(e, s, lo, hi, nbytes):
    e(f's_mov_b32 s{s}, s{lo}')
    e(f's_mov_b32 s{s+1}, s{hi}')
    e(f's_mov_b32 s{s+2}, {nbytes}')
    e(f's_mov_b32 s{s+3}, 0x00020000')

def interleave(e, prim, groups, start=0, every=None, end=None):
    n = len(prim); g = len(groups)
    end = n if end is None else end
    pos = {}
    if g:
        span = max(end - start, 1)
        for k in range(g):
            p = start + (k * span) // g if every is None else start + k * every
            pos.setdefault(min(p, n - 1), []).append(groups[k])
    for i, t in enumerate(prim):
        e(t)
        for grp in pos.get(i, []):
            for (tt, tag) in grp: e(tt, tag)
    if n == 0:
        for grp in groups:
            for (tt, tag) in grp: e(tt, tag)

def emit_groups(e, groups):
    for grp in groups:
        for (tt, tag) in grp: e(tt, tag)

class AttnGen:
    def __init__(self, e, cfg):
        self.e = e
        self.cfg = cfg
        self.kvfl = cfg.get('kv_flags', ' nt')
        self.xfl = cfg.get('x_flags', '')
        self.wfl = cfg.get('w_flags', ' nt')
        self.ofl = cfg.get('o_flags', ' sc1' if cfg.get('fused') else '')
        self.name = cfg.get('name', 'attn_kernel')
        self.rare = []
        self.nrare = 0

    def stamp(self, i, mode=1):
        if self.cfg.get('stamps') == mode:
            self.e(f's_memrealtime s[{70+2*i}:{71+2*i}]')
    def cstamp(self, i, mode=3):
        if self.cfg.get('stamps') == mode:
            self.e(f's_memtime s[{70+2*i}:{71+2*i}]')
    def write_stamps(self, n, kernel_idx=0):
        if not self.cfg.get('stamps'): return
        e = self.e
        e('s_waitcnt lgkmcnt(0)')
        e(f's_lshl_b32 s{sT0}, s2, 2')
        e(f's_add_u32 s{sT0}, s{sT0}, s{sWv}')
        e(f's_lshl_b32 s{sT0}, s{sT0}, 7')
        e(f's_add_u32 s{sT0}, s{sT0}, {0x1000000 + kernel_idx*0x100000}')
        e(f's_mov_b32 s{sO+2}, 0x2000000')
        e(f'v_mov_b32 v{vT}, 0')
        for i in range(n):
            e(f'v_mov_b32 v{vT+2}, s{70+2*i}')
            e(f'v_mov_b32 v{vT+3}, s{71+2*i}')
            e(f'buffer_store_dwordx2 {vr(vT+2,2)}, v{vT}, s[{sO}:{sO+3}], s{sT0} offen offset:{8*i}')
            e('s_waitcnt vmcnt(0)')
        e.vmq = []
    def prologue(self):
        e = self.e
        e(f's_cmp_ge_u32 s2, 256')
        e(f's_cbranch_scc1 L_{self.name}_end')
        e(f's_load_dwordx16 s[40:55], s[0:1], 0')
        e(f's_load_dwordx2 s[56:57], s[0:1], 64')
        e(f's_load_dwordx2 s[58:59], s[0:1], 96')
        e(f's_load_dwordx2 s[100:101], s[0:1], 72')
        e(f's_load_dwordx2 s[90:91], s[0:1], 88')
        t0, t1, t2, t3 = vT, vT + 1, vT + 2, vT + 3
        e(f'v_lshrrev_b32 v{t0}, 6, v0')
        e(f'v_and_b32 v{vL}, 63, v0')
        e(f'v_readfirstlane_b32 s{sWv}, v{t0}')
        e(f'v_and_b32 v{vN}, 15, v{vL}')
        e(f'v_lshrrev_b32 v{vG}, 4, v{vL}')
        e(f's_lshr_b32 s{sJ}, s{sWv}, 1')
        e(f's_and_b32 s{sKH}, s{sWv}, 1')
        e(f's_and_b32 s{sT0}, s2, 7')
        e(f's_lshr_b32 s{sT1}, s2, 3')
        e(f's_lshr_b32 s{sBr}, s{sT1}, 4')
        e(f's_and_b32 s{sT1}, s{sT1}, 15')
        e(f's_mov_b32 s{sC}, 0x3e029407')
        import struct, math
        c = (128 ** -0.5) * math.log2(math.e)
        bits = struct.unpack('<I', struct.pack('<f', c))[0]
        e.ins[-1] = Inst(f's_mov_b32 s{sC}, {bits:#010x}')
        e(f's_mov_b32 s{sT}, 0x41000000')
        for j in range(4):
            e(f'v_add_u32 v{t0}, {4*j}, v{vG}')
            e(f'v_xor_b32 v{t0}, v{t0}, v{vN}')
            e(f'v_lshlrev_b32 v{t0}, 4, v{t0}')
            e(f'v_lshl_add_u32 v{vKd+j}, v{vG}, 8, v{t0}')
        for p in range(2):
            e(f'v_add_u32 v{t0}, {4*p}, v{vG}')
            e(f'v_lshlrev_b32 v{t0}, 1, v{t0}')
            e(f'v_xor_b32 v{t0}, v{t0}, v{vN}')
            e(f'v_lshlrev_b32 v{t0}, 4, v{t0}')
            e(f'v_lshl_add_u32 v{vVd+p}, v{vG}, 8, v{t0}')
        for i in range(4):
            q = i >> 1
            e(f'v_or_b32 v{t0}, {q << 2}, v{vG}')
            e(f'v_lshlrev_b32 v{t0}, 1, v{t0}')
            e(f'v_xor_b32 v{t0}, v{t0}, v{vN}')
            e(f'v_lshlrev_b32 v{t0}, 4, v{t0}')
            e(f'v_lshl_add_u32 v{vWd+i}, v{vG}, 13, v{t0}')
            if i: e(f'v_add_u32 v{vWd+i}, {(32768-1024)*i}, v{vWd+i}')
        e(f'v_lshrrev_b32 v{t1}, 3, v{vL}')
        e(f's_movk_i32 s{sT2}, 1152')
        e(f'v_mul_lo_u32 v{t1}, v{t1}, s{sT2}')
        e(f'v_and_b32 v{t2}, 7, v{vL}')
        for i in range(4):
            e(f's_add_u32 s{sT2}, s{sKH}, {i}')
            e(f's_and_b32 s{sT2}, s{sT2}, 1')
            e(f's_lshl_b32 s{sT2}, s{sT2}, 2')
            e(f'v_add_u32 v{t0}, s{sT2}, v{vG}')
            e(f'v_and_b32 v{t0}, 7, v{t0}')
            e(f'v_xor_b32 v{t0}, v{t0}, v{t2}')
            e(f'v_lshl_add_u32 v{vXd+i}, v{t0}, 4, v{t1}')
            if i: e(f'v_add_u32 v{vXd+i}, {8192*i}, v{vXd+i}')
        e(f's_lshl_b32 s{sKl}, s{sWv}, 13')
        e(f's_add_u32 s{sVl}, s{sKl}, {VS}')
        for s in range(4):
            e(f's_lshl_b32 s{sT2}, s{sKH}, 1')
            e(f's_xor_b32 s{sT2}, s{sT2}, {s}')
            e(f's_lshl_b32 s{sT2}, s{sT2}, 2')
            e(f'v_add_u32 v{t0}, s{sT2}, v{vG}')
            e(f'v_xor_b32 v{t0}, v{t0}, v{vN}')
            e(f'v_lshlrev_b32 v{t0}, 4, v{t0}')
            e(f'v_lshl_add_u32 v{t0}, v{vN}, 8, v{t0}')
            e(f'v_add_u32 v{vKr+s}, s{sKl}, v{t0}')
        e(f'v_bfe_u32 v{t1}, v{vL}, 2, 2')
        e(f'v_lshl_add_u32 v{t1}, v{vG}, 2, v{t1}')
        e(f'v_and_b32 v{t2}, 7, v{t1}')
        e(f'v_lshlrev_b32 v{t2}, 1, v{t2}')
        e(f'v_bfe_u32 v{t3}, v{vL}, 1, 1')
        e(f'v_xor_b32 v{t2}, v{t2}, v{t3}')
        e(f'v_and_b32 v{t3}, 1, v{vL}')
        e(f'v_lshlrev_b32 v{t3}, 3, v{t3}')
        e(f'v_lshl_add_u32 v{t3}, v{t1}, 8, v{t3}')
        e(f'v_add_u32 v{t3}, s{sVl}, v{t3}')
        for ts in range(8):
            e(f's_lshl_b32 s{sT2}, s{sKH}, 2')
            e(f's_xor_b32 s{sT2}, s{sT2}, {ts}')
            e(f's_lshl_b32 s{sT2}, s{sT2}, 1')
            e(f'v_xor_b32 v{t0}, s{sT2}, v{t2}')
            e(f'v_lshl_add_u32 v{vVr+ts}, v{t0}, 4, v{t3}')
        e('s_waitcnt lgkmcnt(0)')

    def q_setup(self, br):
        e = self.e
        t0, t1, t2, t3 = vT, vT + 1, vT + 2, vT + 3
        rot = self.cfg.get('qrot', 1)
        if br == 'A':
            e(f's_lshr_b32 s{sCc}, s{sT1}, 1')
            e(f's_and_b32 s{sT2}, s{sT1}, 1')
            e(f's_lshl_b32 s{sT2}, s{sT2}, 2')
            e(f's_add_u32 s{sCc}, s{sCc}, s{sT2}')
            e(f's_sub_u32 s{sT2}, s{sCc}, 9')
            e(f's_cmp_ge_u32 s{sCc}, 9')
            e(f's_cselect_b32 s{sCc}, s{sT2}, s{sCc}')
        else:
            e(f's_lshr_b32 s{sCc}, s{sT1}, 2')
            e(f's_add_u32 s{sCc}, s{sCc}, s{sT1}')
            e(f's_and_b32 s{sCc}, s{sCc}, 3')
            e(f's_mul_i32 s{sCc}, s{sCc}, 5')
            e(f's_lshr_b32 s{sCc}, s{sCc}, 1')
        if rot == 2:
            if br == 'A':
                e(f's_lshr_b32 s{sCc}, s{sT1}, 1')
                e(f's_and_b32 s{sT2}, s{sT1}, 1')
                e(f's_lshl_b32 s{sT2}, s{sT2}, 2')
                e(f's_add_u32 s{sCc}, s{sCc}, s{sT2}')
                e(f's_and_b32 s{sCc}, s{sCc}, 7')
            else:
                e(f's_lshr_b32 s{sCc}, s{sT1}, 2')
                e(f's_add_u32 s{sCc}, s{sCc}, s{sT1}')
                e(f's_and_b32 s{sCc}, s{sCc}, 3')
                e(f's_lshl_b32 s{sCc}, s{sCc}, 1')
            e(f's_add_u32 s{sCc}, s{sCc}, 1')
        if not rot: e(f's_mov_b32 s{sCc}, 0')
        if br == 'A':
            e(f's_lshr_b32 s{sB}, s{sT1}, 1')
            e(f's_and_b32 s{sT1}, s{sT1}, 1')
            e(f's_lshl_b32 s{sT0}, s{sT0}, 1')
            e(f's_add_u32 s{sT0}, s{sT0}, s{sT1}')
            e(f's_lshl_b32 s{sH}, s{sT0}, 1')
            e(f's_add_u32 s{sH}, s{sH}, s{sJ}')
            e(f's_lshl_b32 s{sT1}, s{sB}, 4')
            e(f's_add_u32 s{sT1}, s{sT1}, s{sT0}')
            srd(e, sX, 40, 41, X_BYTES); srd(e, sK, 42, 43, KA_BYTES); srd(e, sV, 44, 45, KA_BYTES); srd(e, sW, 46, 47, W_BYTES)
        else:
            e(f's_lshr_b32 s{sB}, s{sT1}, 2')
            e(f's_lshl_b32 s{sT2}, s{sJ}, 2')
            e(f's_add_u32 s{sB}, s{sB}, s{sT2}')
            e(f's_and_b32 s{sT1}, s{sT1}, 3')
            e(f's_lshl_b32 s{sH}, s{sT0}, 2')
            e(f's_add_u32 s{sH}, s{sH}, s{sT1}')
            e(f's_lshl_b32 s{sT1}, s{sB}, 5')
            e(f's_add_u32 s{sT1}, s{sT1}, s{sH}')
            srd(e, sX, 50, 51, X_BYTES); srd(e, sK, 52, 53, KB_BYTES); srd(e, sV, 54, 55, KB_BYTES); srd(e, sW, 56, 57, W_BYTES)
        srd(e, sO, 58, 59, O_BYTES)
        if self.cfg.get('kvsame'): e(f's_and_b32 s{sT1}, s2, 7')
        e(f's_lshl_b32 s{sKoff}, s{sT1}, 18')
        e(f's_lshl_b32 s{sT2}, s{sKH}, 13')
        e(f's_add_u32 s{sKoff}, s{sKoff}, s{sT2}')
        e(f's_mov_b32 s{sVoff}, s{sKoff}')
        e(f's_mul_i32 s{sOoff}, s{sB}, {5*128*1024}')
        e(f's_lshl_b32 s{sT2}, s{sH}, 12')
        e(f's_add_u32 s{sOoff}, s{sOoff}, s{sT2}')
        e(f's_lshl_b32 s{sT2}, s{sKH}, 11')
        e(f's_add_u32 s{sOoff}, s{sOoff}, s{sT2}')
        if br == 'B':
            e(f's_add_u32 s{sOoff}, s{sOoff}, {O_BR}')
        if br == 'A':
            e(f's_mul_i32 s{sXoff}, s{sB}, 92160')
            e(f's_mul_i32 s{sT2}, s{sWv}, 9216')
            e(f's_add_u32 s{sXoff}, s{sXoff}, s{sT2}')
            e(f's_lshl_b32 s{sXl}, s{sWv}, 10')
            e(f's_mul_i32 s65, s{sB}, 92160')
            e(f's_add_u32 s{sT2}, s{sKH}, 8')
            e(f's_lshl_b32 s66, s{sT2}, 10')
            e(f's_mul_i32 s{sT2}, s{sT2}, 9216')
            e(f's_add_u32 s65, s65, s{sT2}')
            e(f's_lshl_b32 s{sWoff}, s{sH}, 8')
            e(f's_lshl_b32 s{sT2}, s{sKH}, 18')
            e(f's_add_u32 s{sWoff}, s{sWoff}, s{sT2}')
            e(f's_lshl_b32 s{sWl}, s{sJ}, 14')
            e(f's_lshl_b32 s{sT2}, s{sKH}, 13')
            e(f's_add_u32 s{sWl}, s{sWl}, s{sT2}')
            e(f's_add_u32 s{sWl}, s{sWl}, 10240')
            xoffj, woffj = (0, 0), (10240, 16384)
        else:
            e(f's_mul_i32 s{sXoff}, s{sB}, 92160')
            e(f's_mul_i32 s{sT2}, s{sKH}, {40*1152}')
            e(f's_add_u32 s{sXoff}, s{sXoff}, s{sT2}')
            e(f's_mul_i32 s{sXl}, s{sWv}, 5120')
            e(f's_lshl_b32 s{sWoff}, s{sH}, 8')
            e(f's_lshl_b32 s{sT2}, s{sWv}, 17')
            e(f's_add_u32 s{sWoff}, s{sWoff}, s{sT2}')
            e(f's_lshl_b32 s{sWl}, s{sWv}, 12')
            e(f's_add_u32 s{sWl}, s{sWl}, 20480')
            xoffj, woffj = (0, 10240), (20480, 0)
        e(f's_mul_i32 s{sT2}, s{sJ}, {xoffj[1]}')
        e(f's_add_u32 s{sT2}, s{sT2}, {QBUF0 + xoffj[0]}')
        e(f'v_lshrrev_b32 v{t1}, 1, v{vN}')
        for s2 in range(2):
            e(f'v_add_u32 v{t0}, {4*s2}, v{vG}')
            e(f'v_xor_b32 v{t0}, v{t0}, v{t1}')
            e(f'v_lshlrev_b32 v{t0}, 4, v{t0}')
            e(f'v_lshl_add_u32 v{t0}, v{vN}, 7, v{t0}')
            e(f'v_add_u32 v{vXr+s2}, s{sT2}, v{t0}')
        e(f's_mul_i32 s{sT2}, s{sJ}, {woffj[1]}')
        e(f's_add_u32 s{sT2}, s{sT2}, {QBUF0 + woffj[0]}')
        e(f'v_bfe_u32 v{t1}, v{vL}, 2, 2')
        e(f'v_and_b32 v{t2}, 1, v{vG}')
        e(f'v_lshl_or_b32 v{t2}, v{t2}, 2, v{t1}')
        e(f'v_lshlrev_b32 v{t2}, 1, v{t2}')
        e(f'v_and_b32 v{t3}, 3, v{vL}')
        e(f'v_xor_b32 v{t2}, v{t2}, v{t3}')
        e(f'v_lshl_add_u32 v{t1}, v{vG}, 3, v{t1}')
        e(f'v_lshlrev_b32 v{t3}, 8, v{t1}')
        e(f'v_add_u32 v{t3}, s{sT2}, v{t3}')
        for tt in range(4):
            e(f's_lshl_b32 s{sT2}, s{sKH}, 3')
            e(f's_add_u32 s{sT2}, s{sT2}, {4 * (tt >> 1)}')
            e(f'v_xor_b32 v{t0}, s{sT2}, v{t2}')
            e(f'v_lshl_add_u32 v{vWr+tt}, v{t0}, 4, v{t3}')
            if tt & 1: e(f'v_add_u32 v{vWr+tt}, 8, v{vWr+tt}')

    def q_addr_copies(self):
        e = self.e
        for b in range(3):
            for k, r in enumerate((vXr, vXr + 1, vWr, vWr + 1, vWr + 2, vWr + 3)):
                if b == 0: e(f'v_mov_b32 v{vQA + k}, v{r}')
                else: e(f'v_add_u32 v{vQA + 6*b + k}, {b*QBUFSZ}, v{r}')

    def q_dma(self, br, c):
        qb = QBUF0 + (c % 3) * QBUFSZ
        tag = ('Q', c)
        G = []
        hyb = self.cfg.get('qrot', 1) == 2
        if hyb and c == 0:
            g = [(f's_mov_b32 s{sXc}, s{sXoff}', None), (f's_mov_b32 s{sWc}, s{sWoff}', None)]
            if br == 'A': g.append((f's_mov_b32 s{sX3c}, s65', None))
        else:
            g = [(f's_lshl_b32 s{sT2}, s{sCc}, 7', None), (f's_add_u32 s{sXc}, s{sXoff}, s{sT2}', None)]
            if br == 'A': g.append((f's_add_u32 s{sX3c}, s65, s{sT2}', None))
        if self.cfg.get('qsame'):
            g = [(f's_mov_b32 s{sXc}, 0', None), (f's_mov_b32 s{sX3c}, 0', None), (f's_mov_b32 s{sWc}, 0', None)]
        elif not (hyb and c == 0):
          g += [(f's_lshl_b32 s{sT2}, s{sCc}, 19', None), (f's_add_u32 s{sWc}, s{sWoff}, s{sT2}', None),
              (f's_add_u32 s{sCc}, s{sCc}, 1', None), (f's_cmp_eq_u32 s{sCc}, 9', None), (f's_cselect_b32 s{sCc}, {1 if hyb else 0}, s{sCc}', None)]
        G.append(g)
        def ld(voff, srdr, soff, off, fl, pre=()):
            G.append(list(pre) + [(f'buffer_load_dwordx4 v{voff}, s[{srdr}:{srdr+3}], s{soff} offen offset:{off}{fl} lds', tag)])
        m0 = lambda reg, imm: (f's_add_u32 m0, s{reg}, {qb + imm}', None)
        if br == 'A':
            ld(vXd, sX, sXc, 0, self.xfl, [m0(sXl, 0)])
            ld(vXd, sX, sT2, 0, self.xfl, [m0(sXl, 4096), (f's_add_u32 s{sT2}, s{sXc}, {4*9216}', None)])
            ld(vXd, sX, sX3c, 0, self.xfl, [m0(66, 0), ('s_nop 0', None)])
            for i in range(4):
                ld(vWd + i, sW, sWc, 1024*i, self.wfl, [m0(sWl, 0), ('s_nop 0', None)] if i == 0 else [])
            for i in range(4):
                ld(vWd + i, sW, sWc, 1024*i, self.wfl, [m0(sWl, 4096), (f's_add_u32 s{sWc}, s{sWc}, {4*32768}', None)] if i == 0 else [])
        else:
            for i in range(4):
                ld(vXd + i, sX, sXc, 1024*i, self.xfl, [m0(sXl, 0), ('s_nop 0', None)] if i == 0 else [])
            ld(vXd, sX, sXc, 0, self.xfl, [m0(sXl, 4096), (f's_add_u32 s{sXc}, s{sXc}, {4*9216}', None)])
            for i in range(4):
                ld(vWd + i, sW, sWc, 1024*i, self.wfl, [m0(sWl, 0), ('s_nop 0', None)] if i == 0 else [])
        return G

    def kv_dma(self, kind, par, tag):
        if kind == 'K': l, off, s, vo, tmp = sKl, sKoff, sK, [vKd, vKd + 1, vKd + 2, vKd + 3], sKt
        else: l, off, s, vo, tmp = sVl, sVoff, sV, [vVd, vVd + 1, vVd, vVd + 1], sVt
        G = []
        for half in range(2):
            for q in range(4):
                g = []
                if q == 0:
                    g.append((f's_add_u32 m0, s{l}, {par * 32768 + half * 4096}', None))
                    if half == 0: g.append((f's_add_u32 s{tmp}, s{off}, 4096', None))
                    else: g.append((f's_add_u32 s{off}, s{off}, 16384', None))
                so = off if half == 0 else tmp
                g.append((f'buffer_load_dwordx4 v{vo[q]}, s[{s}:{s+3}], s{so} offen offset:{q*1024}{self.kvfl} lds', tag))
                G.append(g)
        return G

    def q_reads(self, s2, c):
        G = []
        base = vQA + 6 * (c % 3)
        for tt in range(4):
            for sec in range(2):
                G.append([(f'ds_read_b64_tr_b16 {ar(aWF[s2] + 4*tt + 2*sec, 2)}, v{base+2+tt} offset:{s2*8192 + sec*1024}', ('q', s2))])
            if tt == 0:
                for rt in range(5):
                    G.append([(f'ds_read_b128 {ar(aXF[s2] + 4*rt, 4)}, v{base+s2} offset:{rt*2048}', ('q', s2))])
        return G

    def q_mfmas(self, s2, first):
        L = []
        for tt in range(4):
            for rt in range(5):
                acc = vr(Qacc(tt, rt), 4)
                cc = '0' if first else acc
                L.append(f'{MFMA} {acc}, {ar(aWF[s2] + 4*tt, 4)}, {ar(aXF[s2] + 4*rt, 4)}, {cc}')
        return L

    def pretouch(self, br):
        e = self.e
        n = self.name
        st = self.cfg.get('pretouch')
        t0 = vT + 8
        e(f's_cmp_lg_u32 s{sWv}, 0')
        e(f's_cbranch_scc1 L_{n}_npt{br}')
        e(f's_bfe_u32 s{sT2}, s2, 0x10002')
        e(f's_cmp_eq_u32 s{sT2}, 0')
        e(f's_cselect_b32 s92, s48, s100')
        e(f's_cselect_b32 s93, s49, s101')
        e(f's_mov_b32 s94, {4096*1152}')
        e(f's_mov_b32 s95, 0x00020000')
        e(f's_lshr_b32 s{sT2}, s2, 3')
        e(f's_mul_i32 s{sT2}, s{sT2}, {64*st}')
        e(f's_mov_b32 s{sT1}, {st}')
        e(f'v_mul_lo_u32 v{t0}, v{vL}, s{sT1}')
        e(f'buffer_load_dword v{t0+1}, v{t0}, s[92:95], s{sT2} offen', ('T', 0))
        e.vmq.pop()
        e(f'buffer_load_dword v{t0+2}, v{t0}, s[{sO}:{sO+3}], s{sT2} offen', ('T', 0))
        e.vmq.pop()
        e.label(f'L_{n}_npt{br}')

    def poison_groups(self):
        G = [[(f'v_mov_b32 v{252+k}, -1', None) for k in range(4)] + [(f'v_lshlrev_b32 v{vT+10}, 4, v{vL}', None)]]
        for rt in range(5):
            for u in range(2):
                g = []
                if u == 0: g.append((f's_add_u32 s3, s{sOoff}, {rt*131072}', None))
                g.append((f'buffer_store_dwordx4 v[252:255], v{vT+10}, s[{sO}:{sO+3}], s3 offen offset:{u*1024} sc1', ('P', 0)))
                G.append(g)
        return G

    def arrive2(self):
        e = self.e
        n = self.name
        e('s_barrier')
        e(f's_cmp_lg_u32 s{sWv}, 0')
        e(f's_cbranch_scc1 L_{n}_na2')
        e('v_mov_b32 v54, 0')
        e('v_mov_b32 v55, 1')
        e('s_mov_b64 exec, 1')
        e('buffer_atomic_add v55, v54, s[92:95], 0 offen sc1', 'sig')
        e.vmq.pop()
        e('s_mov_b64 exec, -1')
        e.label(f'L_{n}_na2')

    def poison(self):
        e = self.e
        for k in range(4): e(f'v_mov_b32 v{252+k}, -1')
        e(f'v_lshlrev_b32 v{vT+4}, 4, v{vL}')
        e(f's_mov_b32 s92, s90')
        e(f's_mov_b32 s93, s91')
        e(f's_mov_b32 s94, 256')
        e(f's_mov_b32 s95, 0x00020000')
        for rt in range(5):
            e(f's_add_u32 s{sT2}, s{sOoff}, {rt*131072}')
            for u in range(2):
                e(f'buffer_store_dwordx4 v[252:255], v{vT+4}, s[{sO}:{sO+3}], s{sT2} offen offset:{u*1024} sc1', ('P', 0))

    def arrive(self, br):
        e = self.e
        n = self.name
        e(f's_cmp_lg_u32 s{sWv}, 0')
        e(f's_cbranch_scc1 L_{n}_na{br}')
        e('v_mov_b32 v54, 0')
        e('v_mov_b32 v55, 1')
        e('s_mov_b64 exec, 1')
        e('buffer_atomic_add v55, v54, s[92:95], 0 offen sc0 sc1', 'sig')
        e.vmq.pop()
        e('s_mov_b64 exec, -1')
        e.label(f'L_{n}_na{br}')

    def arrive_check(self, br):
        e = self.e
        n = self.name
        e(f's_cmp_lg_u32 s{sWv}, 0')
        e(f's_cbranch_scc1 L_{n}_nc{br}')
        e(f'v_readfirstlane_b32 s{sT2}, v55')
        e(f's_cmp_lg_u32 s{sT2}, 255')
        e(f's_cbranch_scc1 L_{n}_nc{br}')
        e('s_mov_b64 exec, 1')
        e('v_mov_b32 v55, 1')
        e('buffer_store_dword v55, v54, s[92:95], 0 offen offset:128 sc1', 'go')
        e.vmq.pop()
        e('s_mov_b64 exec, -1')
        e.label(f'L_{n}_nc{br}')

    def flag_load(self):
        e = self.e
        e('v_mov_b32 v54, 0')
        e('buffer_load_dword v55, v54, s[92:95], 0 offen sc1', 'f2')

    def flag_check(self):
        e = self.e
        n = self.name
        e.wait_vm('f2')
        e(f's_mov_b32 s{sT1}, 0')
        e.label(f'L_{n}_fchk')
        e(f'v_readfirstlane_b32 s{sT0}, v55')
        e(f's_cmp_ge_u32 s{sT0}, 256')
        e(f's_cbranch_scc1 L_{n}_fok')
        e(f's_add_u32 s{sT1}, s{sT1}, 1')
        e(f's_cmp_lt_u32 s{sT1}, 0x20000')
        e(f's_cbranch_scc0 L_{n}_fok')
        e('s_sleep 8')
        e(f'v_mov_b32 v{vT}, 0')
        e(f'buffer_load_dword v55, v{vT}, s[92:95], 0 offen sc1', 'f2')
        e('s_waitcnt vmcnt(0)')
        e.vmq.pop()
        e(f's_branch L_{n}_fchk')
        e.label(f'L_{n}_fok')

    def q_phase(self, br):
        e = self.e
        self.q_setup(br)
        self.stamp(1, 2)
        emit_groups(e, self.q_dma(br, 0))
        emit_groups(e, self.q_dma(br, 1))
        self.q_addr_copies()
        if self.cfg.get('pretouch'): self.pretouch(br)
        flow = self.cfg.get('flow')
        if flow:
            e(f's_mov_b32 s92, s90')
            e(f's_mov_b32 s93, s91')
            e(f's_mov_b32 s94, 256')
            e(f's_mov_b32 s95, 0x00020000')
        for c in range(9):
            e.wait_vm(('Q', c))
            e.wait_lg()
            e('s_barrier')
            if c == 4: self.cstamp(0, 4)
            if c == 5: self.cstamp(3, 4)
            self.stamp(2 + c, 2)
            G = []
            if c + 2 <= 8: G += self.q_dma(br, c + 2)
            if c == self.cfg.get('k0at', 6): G += self.kv_dma('K', 0, ('K', 0))
            if c == 7: G += self.kv_dma('K', 1, ('K', 1))
            if c == 8: G += self.kv_dma('V', 0, ('V', 0))
            if flow and c == self.cfg.get('pat', 8): G += self.poison_groups()
            R0 = self.q_reads(0, c)
            h = (len(G) + 1) // 2
            def mix(mf, R, D):
                n = len(mf)
                slots = [[] for _ in range(n)]
                for k, g in enumerate(R): slots[k].append(g)
                for k, g in enumerate(D): slots[min(n - 1, 1 + (k * (n - 2)) // max(len(D), 1))].append(g)
                for k in range(n):
                    e(mf[k])
                    for g in slots[k]:
                        for (tt, tag) in g: e(tt, tag)
            if c > 0: mix(self.q_mfmas(1, False), R0, G[:h])
            else:
                emit_groups(e, R0); emit_groups(e, G[:h])
            if c == 4: self.cstamp(1, 4)
            e.wait_lg(('q', 0))
            mix(self.q_mfmas(0, c == 0), self.q_reads(1, c), G[h:])
            if c == 4: self.cstamp(2, 4)
        e.wait_lg()
        if not self.cfg.get('qxov', 1):
            for t in self.q_mfmas(1, False): e(t)

    def q_exchange(self):
        e = self.e
        t0 = vT
        self.cstamp(0, 8)
        e('s_barrier')
        self.cstamp(1, 8)
        e(f's_mul_i32 s{sT2}, s{sWv}, 10240')
        e(f's_add_u32 s{sT2}, s{sT2}, {QIMG}')
        e(f'v_lshlrev_b32 v{t0}, 4, v{vL}')
        e(f'v_add_u32 v{vT+4}, s{sT2}, v{t0}')
        e(f's_xor_b32 s{sT1}, s{sWv}, 1')
        e(f's_mul_i32 s{sT1}, s{sT1}, 10240')
        e(f's_add_u32 s{sT1}, s{sT1}, {QIMG}')
        e(f'v_add_u32 v{vT+5}, s{sT1}, v{t0}')
        self.cstamp(2, 8)
        e(f'v_mov_b32 v{vT+8}, s{sC}')
        e(f'v_mov_b32 v{vT+9}, s{sC}')
        def finish(rt, u):
            b0, b1 = Qacc(2*u, rt), Qacc(2*u + 1, rt)
            L = []
            for b in (b0, b1):
                L.append(f'v_pk_mul_f32 {vr(b,2)}, {vr(b,2)}, {vr(vT+8,2)}')
                L.append(f'v_pk_mul_f32 {vr(b+2,2)}, {vr(b+2,2)}, {vr(vT+8,2)}')
            L += [f'v_cvt_pk_bf16_f32 v{b0}, v{b0}, v{b0+1}', f'v_cvt_pk_bf16_f32 v{b0+1}, v{b0+2}, v{b0+3}',
                  f'v_cvt_pk_bf16_f32 v{b0+2}, v{b1}, v{b1+1}', f'v_cvt_pk_bf16_f32 v{b0+3}, v{b1+2}, v{b1+3}']
            G = [[(t, None)] for t in L]
            G.append([(f'ds_write_b128 v{vT+4}, {vr(b0, 4)} offset:{(rt*2 + u)*1024}', 'qw')])
            G += [[(f'v_accvgpr_write_b32 a{Qf(rt, u)+k}, v{b0+k}', None)] for k in range(4)]
            return G
        pairs = [(rt, u) for u in range(2) for rt in range(5)]
        if self.cfg.get('qxov', 1):
            def mf(tt, rt):
                acc = vr(Qacc(tt, rt), 4)
                return f'{MFMA} {acc}, {ar(aWF[1] + 4*tt, 4)}, {ar(aXF[1] + 4*rt, 4)}, {acc}'
            pend = []
            for k, (rt, u) in enumerate(pairs):
                e(mf(2*u, rt))
                take = pend[:3]; pend = pend[3:]
                emit_groups(e, take)
                e(mf(2*u + 1, rt))
                take = pend[:3]; pend = pend[3:]
                emit_groups(e, take)
                if k >= 3: pend += finish(*pairs[k - 3])
            emit_groups(e, pend)
            for k in range(7, 10): emit_groups(e, finish(*pairs[k]))
        else:
            for (rt, u) in pairs: emit_groups(e, finish(rt, u))
        self.cstamp(3, 8)
        e.wait_lg()
        self.cstamp(4, 8)
        e('s_barrier')
        self.cstamp(5, 8)
        for rt in range(5):
            for u in range(2):
                e(f'ds_read_b128 {ar(Qf(rt, 2 + u), 4)}, v{vT+5} offset:{(rt*2 + u)*1024}', 'qr')
        e(f'v_mov_b32 v{vT}, 0x3f803f80')
        for k in range(4): e(f'v_accvgpr_write_b32 a{aOne+k}, v{vT}')
        e.wait_lg()
        self.cstamp(6, 8)
        e('s_barrier')
        self.cstamp(7, 8)
        emit_groups(e, self.kv_dma('V', 1, ('V', 1)))
        self.cstamp(8, 8)

    def rowmax_xlane(self, r, rt):
        mx, t = vT + rt, vT + 5
        r(f'v_mov_b32 v{t}, v{mx}')
        r(f'v_permlane16_swap_b32 v{mx}, v{t}')
        r(f'v_max_f32 v{mx}, v{mx}, v{t}')
        r(f'v_mov_b32 v{t}, v{mx}')
        r(f'v_permlane32_swap_b32 v{mx}, v{t}')
        r(f'v_max_f32 v{mx}, v{mx}, v{t}')

    def rare_block(self, lab, back):
        r = Emitter()
        r.label(lab)
        r('s_nop 7')
        f = vT + 6
        for rt in range(5):
            mx = vT + rt
            self.rowmax_xlane(r, rt)
            r(f'v_max_f32 v{mx}, 0, v{mx}')
            r(f'v_sub_f32 v{f}, 0, v{mx}')
            r(f'v_exp_f32 v{f}, v{f}')
            for k in range(4): r(f'v_sub_f32 v{NM(rt)+k}, v{NM(rt)+k}, v{mx}')
            for k in range(8): r(f'v_sub_f32 v{Sreg(rt,0)+k}, v{Sreg(rt,0)+k}, v{mx}')
            for k in range(4):
                r(f'v_accvgpr_read_b32 v{vT+8}, a{Lf(rt)+k}')
                r(f'v_mul_f32 v{vT+8}, v{vT+8}, v{f}')
                r(f'v_accvgpr_write_b32 a{Lf(rt)+k}, v{vT+8}')
            for ts in range(8):
                b = Oreg(ts, rt)
                r(f'v_pk_mul_f32 {vr(b,2)}, {vr(b,2)}, {vr(f,2)} op_sel_hi:[1,0]')
                r(f'v_pk_mul_f32 {vr(b+2,2)}, {vr(b+2,2)}, {vr(f,2)} op_sel_hi:[1,0]')
        r('s_nop 7')
        r(f's_branch {back}')
        r.fix_hazards()
        self.rare.append(r)

    def k_reads(self, it, par):
        e = self.e
        e.wait_vm(('K', it))
        for s in range(4):
            for kt in range(2):
                e(f'ds_read_b128 {ar(Kf(kt, s), 4)}, v{vKr+s} offset:{par*32768 + kt*4096}', 'k')

    def iteration(self, it, par, issue_next, next_k=True, first=False, send=False, xq=None, xp=None):
        e = self.e
        mx = [vT + i for i in range(5)]
        def maxops(rt):
            b = Sreg(rt, 0)
            return [[(f'v_max3_f32 v{mx[rt]}, v{b}, v{b+1}, v{b+2}', None)],
                    [(f'v_max3_f32 v{mx[rt]}, v{mx[rt]}, v{b+3}, v{b+4}', None)],
                    [(f'v_max3_f32 v{mx[rt]}, v{mx[rt]}, v{b+5}, v{b+6}', None)],
                    [(f'v_max_f32 v{mx[rt]}, v{mx[rt]}, v{b+7}', None)]]
        def softmax(rt):
            b = Sreg(rt, 0)
            L = []
            for k in range(4):
                L.append(f'v_exp_f32 v{b+2*k}, v{b+2*k}')
                L.append(f'v_exp_f32 v{b+2*k+1}, v{b+2*k+1}')
            for k in range(4): L.append(f'v_cvt_pk_bf16_f32 v{b+k}, v{b+2*k}, v{b+2*k+1}')
            return [[(t, None)] for t in L]
        def vreads():
            return [[(f'ds_read_b64_tr_b16 {ar(Vf(ts) + 2*sec, 2)}, v{vVr+ts} offset:{par*32768 + sec*4096}', 'v')] for ts in range(8) for sec in range(2)]
        dbg7 = self.cfg.get('stamps') == 7 and it == 2
        if dbg7: self.cstamp(0, 7)
        e.wait_lg()
        mb = self.cfg.get('mainbar', 1)
        if mb and issue_next:
            self.nbar = getattr(self, 'nbar', 0) + 1
            if mb == 1:
                e(f's_cmp_lg_u32 s{sBr}, 0')
                e(f's_cbranch_scc1 L_{self.name}_nb{self.nbar}')
                e('s_barrier')
                e.label(f'L_{self.name}_nb{self.nbar}')
            else:
                e('s_barrier')
        G = self.kv_dma('K', par, ('K', it + 2)) if issue_next else []
        for rt in range(5):
            mf = []
            for s in range(4):
                for kt in range(2):
                    acc = vr(Sreg(rt, kt), 4)
                    cc = acc if s else ('0' if first else vr(NM(rt), 4))
                    mf.append(f'{MFMA} {acc}, {ar(Kf(kt, s), 4)}, {ar(Qf(rt, s), 4)}, {cc}')
            extra = []
            if rt < 4 and G: extra += G[2*rt:2*rt+2]
            if rt >= 2: extra += maxops(rt - 2)
            if xq and rt in xq: extra = [xq[rt]] + extra
            if rt == 4:
                e.wait_vm(('V', it))
                R = vreads()
                extra = extra[:2] + R[:4] + extra[2:] + R[4:8]
                interleave(e, mf, extra, start=0)
                emit_groups(e, R[8:])
            else:
                interleave(e, mf, extra, start=1)
        if dbg7: self.cstamp(1, 7)
        emit_groups(e, maxops(3))
        emit_groups(e, maxops(4))
        if first:
            for rt in range(5):
                self.rowmax_xlane(e, rt)
                for k in range(4): e(f'v_sub_f32 v{NM(rt)+k}, 0, v{mx[rt]}')
                for k in range(8): e(f'v_sub_f32 v{Sreg(rt,0)+k}, v{Sreg(rt,0)+k}, v{mx[rt]}')
        else:
            t = vT + 5
            e(f'v_max3_f32 v{t}, v{mx[0]}, v{mx[1]}, v{mx[2]}')
            e(f'v_max3_f32 v{t}, v{t}, v{mx[3]}, v{mx[4]}')
            e(f'v_cmp_lt_f32 vcc, s{sT}, v{t}')
            self.nrare += 1
            lab, back = f'L_{self.name}_rare{self.nrare}', f'L_{self.name}_back{self.nrare}'
            e(f's_cbranch_vccnz {lab}')
            e.label(back)
            self.rare_block(lab, back)
        if dbg7: self.cstamp(2, 7)
        emit_groups(e, softmax(0))
        e.wait_lg()
        if dbg7: self.cstamp(3, 7)
        G = self.kv_dma('V', par, ('V', it + 2)) if issue_next else []
        for rt in range(5):
            mf = []
            P = vr(Sreg(rt, 0), 4)
            for ts in range(8):
                acc = vr(Oreg(ts, rt), 4)
                mf.append(f'{MFMA} {acc}, {ar(Vf(ts), 4)}, {P}, {"0" if first else acc}')
            la = ar(Lf(rt), 4)
            mf.append(f'{MFMA} {la}, {ar(aOne, 4)}, {P}, {"0" if first else la}')
            snd = self.send_groups(rt - 1) if (send and rt >= 1) else []
            if xp and rt in xp: snd = [xp[rt]] + snd
            if rt < 4:
                sm = softmax(rt + 1)
                gg = G[2*rt:2*rt+2] if G else []
                extra = sm[:4] + gg[:1] + sm[4:8] + snd[:2] + gg[1:] + sm[8:] + snd[2:]
                interleave(e, mf, extra, start=0)
            else:
                if dbg7: self.cstamp(4, 7)
                if next_k: self.k_reads(it + 1, par ^ 1)
                if dbg7: self.cstamp(5, 7)
                if snd: interleave(e, mf, snd, start=3)
                else:
                    for t in mf: e(t)

    def dbg7_end(self):
        self.cstamp(6, 7)

    def send_groups(self, rt):
        G = []
        for ts in range(4, 8):
            q = rt * 4 + (ts - 4)
            if q < 8: a, off = 53, q * 1024
            elif q < 16: a, off = 53, 32768 + (q - 8) * 1024
            else: a, off = 54, (q - 16) * 1024
            G.append([(f'ds_write_b128 v{a}, {vr(Oreg(ts, rt), 4)} offset:{off}', 'ow')])
        return G

    def main_loop(self):
        e = self.e
        self.k_reads(0, 0)
        self.iteration(0, 0, True, first=True)
        self.iteration(1, 1, True)
        if self.cfg.get('flow'):
            assert ('P', 0) not in e.vmq
            self.arrive2()
        self.stamp(3)
        q0 = [(k, i - 2) for (k, i) in e.vmq]
        l0 = list(e.lgq)
        e(f's_mov_b32 s{sLoop}, 6')
        e.label(f'L_{self.name}_loop')
        self.iteration(2, 0, True)
        self.dbg7_end()
        self.iteration(3, 1, True)
        q1 = [(k, i - 4) for (k, i) in e.vmq]
        assert q0 == q1, (q0, q1)
        assert l0 == e.lgq
        e(f's_sub_u32 s{sLoop}, s{sLoop}, 1')
        e(f's_cmp_lg_u32 s{sLoop}, 0')
        e(f's_cbranch_scc1 L_{self.name}_loop')
        if self.cfg.get('flow'): self.flag_load()
        if self.cfg.get('fused') and self.cfg.get('wwarm', 1) == 3: self.wo_warm()
        w5 = self.cfg.get('fused') and self.cfg.get('wwarm', 1) == 5
        if w5: self.wo_warm_setup()
        pos = self.cfg.get('wpos', [[None, {1: 0, 4: 1}], [{2: 2}, {1: 3, 4: 4}]])
        mk = lambda d: ({int(k): self.wo_warm_group(v) for k, v in d.items()} if (d and w5) else None)
        self.iteration(4, 0, False, xq=mk(pos[0][0]), xp=mk(pos[0][1]))
        if self.cfg.get('fused') and self.cfg.get('wwarm', 1) == 4: self.wo_warm()
        if self.cfg.get('epi2', 1):
            e(f'v_lshlrev_b32 v53, 4, v{vL}')
            e(f'v_add_u32 v53, s{sKl}, v53')
            e(f'v_add_u32 v54, {VS}, v53')
        self.iteration(5, 1, False, next_k=False, send=bool(self.cfg.get('epi2', 1)), xq=mk(pos[1][0]), xp=mk(pos[1][1]))

    def wo_warm(self):
        e = self.e
        q, r, t = vT + 7, vT + 8, vT + 11
        e(f's_bfe_u32 s{sT0}, s2, 0x10002')
        e(f's_cmp_eq_u32 s{sT0}, 0')
        e(f's_cselect_b32 s8, s48, s100')
        e(f's_cselect_b32 s9, s49, s101')
        e(f's_mov_b32 s10, {4096*1152}')
        e(f's_mov_b32 s11, 0x00020000')
        e(f's_bfe_u32 s{sT1}, s2, 0x10001')
        e(f's_lshl_b32 s{sT1}, s{sT1}, 9')
        e(f's_lshr_b32 s{sT0}, s2, 3')
        e(f's_lshl_b32 s{sT0}, s{sT0}, 2')
        e(f's_add_u32 s{sT0}, s{sT0}, s{sWv}')
        e(f's_mul_i32 s{sT0}, s{sT0}, 192')
        e(f's_mov_b32 s{sT2}, 52429')
        for i in range(3):
            e(f'v_add_u32 v{q}, s{sT0}, v{vL}')
            if i: e(f'v_add_u32 v{q}, {64*i}, v{q}')
            e(f'v_mul_lo_u32 v{r}, v{q}, s{sT2}')
            e(f'v_lshrrev_b32 v{r}, 18, v{r}')
            e(f'v_mul_u32_u24 v{t}, 5, v{r}')
            e(f'v_sub_u32 v{q}, v{q}, v{t}')
            e(f'v_mul_u32_u24 v{r}, 1152, v{r}')
            e(f'v_lshl_add_u32 v{q}, v{q}, 7, v{r}')
            e(f'buffer_load_dword v22, v{q}, s[8:11], s{sT1} offen', 'warm')

    def wo_warm_setup(self):
        e = self.e
        r, t = vT + 7, vT + 8
        e(f's_bfe_u32 s{sT0}, s2, 0x10002')
        e(f's_cmp_eq_u32 s{sT0}, 0')
        e(f's_cselect_b32 s8, s48, s100')
        e(f's_cselect_b32 s9, s49, s101')
        e(f's_mov_b32 s10, {4096*1152}')
        e(f's_mov_b32 s11, 0x00020000')
        e(f's_bfe_u32 s4, s2, 0x10001')
        e(f's_lshl_b32 s4, s4, 9')
        e(f's_lshr_b32 s{sT0}, s2, 3')
        e(f's_lshl_b32 s{sT0}, s{sT0}, 2')
        e(f's_add_u32 s{sT0}, s{sT0}, s{sWv}')
        e(f's_mul_i32 s{sT0}, s{sT0}, 160')
        e(f's_mov_b32 s{sT2}, 52429')
        for i, q in enumerate((22, 23, 55)):
            e(f'v_add_u32 v{q}, s{sT0}, v{vL}')
            if i: e(f'v_add_u32 v{q}, {64*i}, v{q}')
            e(f'v_mul_lo_u32 v{r}, v{q}, s{sT2}')
            e(f'v_lshrrev_b32 v{r}, 18, v{r}')
            e(f'v_mul_u32_u24 v{t}, 5, v{r}')
            e(f'v_sub_u32 v{q}, v{q}, v{t}')
            e(f'v_mul_u32_u24 v{r}, 1152, v{r}')
            e(f'v_lshl_add_u32 v{q}, v{q}, 7, v{r}')

    def wo_warm_group(self, j):
        q = (22, 23, 55)[j >> 1]
        lo, hi = ('-1', '0') if (j & 1) == 0 else ('0', '-1')
        return [(f's_mov_b32 exec_lo, {lo}', None), (f's_mov_b32 exec_hi, {hi}', None),
                (f'buffer_load_dword a250, v{q}, s[8:11], s4 offen', 'warm'), ('s_mov_b64 exec, -1', None)]

    def wo_warm_a(self):
        e = self.e
        n = self.name
        q, r, t = vT + 7, vT + 8, vT + 11
        e(f's_cmp_lg_u32 s{sBr}, 0')
        e(f's_cbranch_scc1 L_{n}_nowarma')
        e(f's_bfe_u32 s{sT0}, s2, 0x10002')
        e(f's_cmp_eq_u32 s{sT0}, 0')
        e(f's_cselect_b32 s8, s48, s100')
        e(f's_cselect_b32 s9, s49, s101')
        e(f's_mov_b32 s10, {4096*1152}')
        e(f's_mov_b32 s11, 0x00020000')
        e(f's_bfe_u32 s{sT1}, s2, 0x10001')
        e(f's_lshl_b32 s{sT1}, s{sT1}, 9')
        e(f's_lshr_b32 s{sT0}, s2, 3')
        e(f's_lshl_b32 s{sT0}, s{sT0}, 2')
        e(f's_add_u32 s{sT0}, s{sT0}, s{sWv}')
        e(f's_mul_i32 s{sT0}, s{sT0}, 320')
        e(f's_mov_b32 s{sT2}, 52429')
        for i in range(5):
            e(f'v_add_u32 v{q}, s{sT0}, v{vL}')
            if i: e(f'v_add_u32 v{q}, {64*i}, v{q}')
            e(f'v_mul_lo_u32 v{r}, v{q}, s{sT2}')
            e(f'v_lshrrev_b32 v{r}, 18, v{r}')
            e(f'v_mul_u32_u24 v{t}, 5, v{r}')
            e(f'v_sub_u32 v{q}, v{q}, v{t}')
            e(f'v_mul_u32_u24 v{r}, 1152, v{r}')
            e(f'v_lshl_add_u32 v{q}, v{q}, 7, v{r}')
            e(f'buffer_load_dword v22, v{q}, s[8:11], s{sT1} offen', 'warm')
            e.vmq.pop()
        e.label(f'L_{n}_nowarma')

    def wo_warm2(self):
        e = self.e
        n = self.name
        q, r, t = vT + 7, vT + 8, vT + 11
        e(f's_cmp_eq_u32 s{sWv}, 0')
        e(f's_cbranch_scc1 L_{n}_nowarm')
        e(f's_bfe_u32 s{sT0}, s2, 0x10002')
        e(f's_cmp_eq_u32 s{sT0}, 0')
        e(f's_cselect_b32 s8, s48, s100')
        e(f's_cselect_b32 s9, s49, s101')
        e(f's_mov_b32 s10, {4096*1152}')
        e(f's_mov_b32 s11, 0x00020000')
        e(f's_bfe_u32 s{sT1}, s2, 0x10001')
        e(f's_lshl_b32 s{sT1}, s{sT1}, 9')
        e(f's_lshr_b32 s{sT0}, s2, 3')
        e(f's_mul_i32 s{sT0}, s{sT0}, 3')
        e(f's_add_u32 s{sT0}, s{sT0}, s{sWv}')
        e(f's_sub_u32 s{sT0}, s{sT0}, 1')
        e(f's_lshl_b32 s{sT0}, s{sT0}, 8')
        e(f's_mov_b32 s{sT2}, 52429')
        for i in range(4):
            e(f'v_add_u32 v{q}, s{sT0}, v{vL}')
            if i: e(f'v_add_u32 v{q}, {64*i}, v{q}')
            e(f'v_mul_lo_u32 v{r}, v{q}, s{sT2}')
            e(f'v_lshrrev_b32 v{r}, 18, v{r}')
            e(f'v_mul_u32_u24 v{t}, 5, v{r}')
            e(f'v_sub_u32 v{q}, v{q}, v{t}')
            e(f'v_mul_u32_u24 v{r}, 1152, v{r}')
            e(f'v_lshl_add_u32 v{q}, v{q}, 7, v{r}')
            e(f'buffer_load_dword v22, v{q}, s[8:11], s{sT1} offen', 'warm')
        e('s_waitcnt vmcnt(4)')
        e(f's_branch L_{n}_warmdone')
        e.label(f'L_{n}_nowarm')
        e('s_waitcnt vmcnt(0)')
        e.label(f'L_{n}_warmdone')
        e.vmq = []

    def epilogue2(self):
        e = self.e
        t0 = vT
        self.cstamp(0, 6)
        emit_groups(e, self.send_groups(4))
        if self.cfg.get('fused') and self.cfg.get('wwarm', 1) == 6: self.wo_warm_a()
        if self.cfg.get('flow'): self.flag_check()
        if self.cfg.get('fused') and self.cfg.get('wwarm', 1) == 1:
            if self.cfg.get('t4'):
                import tail4; tail4.wo_warm(self)
            else: self.wo_warm()
        if self.cfg.get('t4') and self.cfg.get('t4early', 1):
            import tail4; tail4.early(self)
        vMx, vLx = vS + 30, vS + 35
        for rt in range(5):
            e(f'v_sub_f32 v{vMx+rt}, 0, v{NM(rt)}')
            e(f'v_accvgpr_read_b32 v{vLx+rt}, a{Lf(rt)}')
        aw, ap = vT + 2, vT + 3
        e(f's_mul_i32 s{sT0}, s{sWv}, 640')
        e(f's_add_u32 s{sT0}, s{sT0}, {STATS}')
        e(f'v_lshlrev_b32 v{t0}, 3, v{vN}')
        e(f'v_add_u32 v{aw}, s{sT0}, v{t0}')
        e(f's_xor_b32 s{sT1}, s{sWv}, 1')
        e(f's_mul_i32 s{sT2}, s{sT1}, 640')
        e(f's_add_u32 s{sT2}, s{sT2}, {STATS}')
        e(f'v_add_u32 v{ap}, s{sT2}, v{t0}')
        for rt in range(5):
            e(f'ds_write2_b32 v{aw}, v{vMx+rt}, v{vLx+rt} offset0:{rt*32} offset1:{rt*32+1}', 'sw')
        e(f's_lshl_b32 s{sT1}, s{sT1}, 13')
        e(f'v_lshlrev_b32 v{t0}, 4, v{vL}')
        e(f'v_add_u32 v23, s{sT1}, v{t0}')
        e(f'v_add_u32 v{vT+1}, {VS}, v23')
        pa, pb = 23, vT + 1
        e.wait_lg()
        self.cstamp(1, 6)
        e('s_barrier')
        self.cstamp(2, 6)
        for rt in range(5):
            e(f'ds_read_b64 {vr(vS + 2*rt, 2)}, v{ap} offset:{rt*128}', 'sr')
        def reads(rt):
            for ts in range(4):
                q = rt * 4 + ts
                if q < 8: a, off = pa, q * 1024
                elif q < 16: a, off = pa, 32768 + (q - 8) * 1024
                else: a, off = pb, (q - 16) * 1024
                e(f'ds_read_b128 {vr(Oreg(ts+4, rt),4)}, v{a} offset:{off}', ('or', rt))
        reads(0); reads(1)
        e.wait_lg('sr')
        Go, Gp = vS + 16, vS + 40 - 40 + 0
        Mv = [vS + 10 + rt for rt in range(5)]
        Fo = [vT + 4 + rt for rt in range(5)]
        for rt in range(5): e(f'v_max_f32 v{Mv[rt]}, v{vMx+rt}, v{vS + 2*rt}')
        for rt in range(5):
            e(f'v_sub_f32 v{Fo[rt]}, v{vMx+rt}, v{Mv[rt]}')
            e(f'v_sub_f32 v{vS + 2*rt}, v{vS + 2*rt}, v{Mv[rt]}')
        for rt in range(5):
            e(f'v_exp_f32 v{Fo[rt]}, v{Fo[rt]}')
            e(f'v_exp_f32 v{vS + 2*rt}, v{vS + 2*rt}')
        for rt in range(5): e(f'v_mul_f32 v{vS + 2*rt + 1}, v{vS + 2*rt + 1}, v{vS + 2*rt}')
        for rt in range(5): e(f'v_fma_f32 v{vS + 2*rt + 1}, v{vLx+rt}, v{Fo[rt]}, v{vS + 2*rt + 1}')
        for rt in range(5): e(f'v_rcp_f32 v{vS + 2*rt + 1}, v{vS + 2*rt + 1}')
        for rt in range(5):
            e(f'v_mul_f32 v{Go + 2*rt}, v{Fo[rt]}, v{vS + 2*rt + 1}')
            e(f'v_mul_f32 v{vS + 2*rt}, v{vS + 2*rt}, v{vS + 2*rt + 1}')
        for k in (3, 4, 5, 6): self.cstamp(k, 6)
        so = vT + 6
        e(f'v_lshlrev_b32 v{so}, 4, v{vL}')
        for rt in range(5):
            if rt + 2 < 5: reads(rt + 2)
            e.wait_lg(('or', rt))
            go, gp = Go + 2*rt, vS + 2*rt
            for ts in range(4):
                a, b = Oreg(ts, rt), Oreg(ts + 4, rt)
                e(f'v_pk_mul_f32 {vr(b,2)}, {vr(b,2)}, {vr(gp,2)} op_sel_hi:[1,0]')
                e(f'v_pk_mul_f32 {vr(b+2,2)}, {vr(b+2,2)}, {vr(gp,2)} op_sel_hi:[1,0]')
                e(f'v_pk_fma_f32 {vr(a,2)}, {vr(a,2)}, {vr(go,2)}, {vr(b,2)} op_sel_hi:[1,0,1]')
                e(f'v_pk_fma_f32 {vr(a+2,2)}, {vr(a+2,2)}, {vr(go,2)}, {vr(b+2,2)} op_sel_hi:[1,0,1]')
            for u in range(2):
                a, b = Oreg(2*u, rt), Oreg(2*u + 1, rt)
                e(f'v_cvt_pk_bf16_f32 v{a}, v{a}, v{a+1}')
                e(f'v_cvt_pk_bf16_f32 v{a+1}, v{a+2}, v{a+3}')
                e(f'v_cvt_pk_bf16_f32 v{a+2}, v{b}, v{b+1}')
                e(f'v_cvt_pk_bf16_f32 v{a+3}, v{b+2}, v{b+3}')
                e(f'buffer_store_dwordx4 {vr(a,4)}, v{so}, s[{sO}:{sO+3}], s{sOoff} offen offset:{u*1024}{self.ofl}', 'ost')
            if rt < 4:
                e(f's_add_u32 s{sOoff}, s{sOoff}, 131072')
        self.cstamp(7, 6)
        if self.cfg.get('stamps') and (not self.cfg.get('fused') or self.cfg.get('stamps') == 6) and not self.cfg.get('flow'): e.wait_vm('ost')
        self.cstamp(8, 6)

    def epilogue(self):
        if self.cfg.get('epi2', 1): return self.epilogue2()
        e = self.e
        t0, t1 = vT, vT + 1
        self.cstamp(0, 6)
        if self.cfg.get('flow'): self.flag_check()
        if self.cfg.get('fused') and self.cfg.get('wwarm', 1) == 1:
            if self.cfg.get('t4'):
                import tail4; tail4.wo_warm(self)
            else: self.wo_warm()
        if self.cfg.get('t4') and self.cfg.get('t4early', 1):
            import tail4; tail4.early(self)
        vMx, vLx = vS + 30, vS + 35
        for rt in range(5):
            e(f'v_sub_f32 v{vMx+rt}, 0, v{NM(rt)}')
            e(f'v_accvgpr_read_b32 v{vLx+rt}, a{Lf(rt)}')
        aw, ap = vT + 2, vT + 3
        e(f's_mul_i32 s{sT0}, s{sWv}, 640')
        e(f's_add_u32 s{sT0}, s{sT0}, {STATS}')
        e(f'v_lshlrev_b32 v{t0}, 3, v{vN}')
        e(f'v_add_u32 v{aw}, s{sT0}, v{t0}')
        e(f's_xor_b32 s{sT1}, s{sWv}, 1')
        e(f's_mul_i32 s{sT1}, s{sT1}, 640')
        e(f's_add_u32 s{sT1}, s{sT1}, {STATS}')
        e(f'v_add_u32 v{ap}, s{sT1}, v{t0}')
        for rt in range(5):
            e(f'ds_write2_b32 v{aw}, v{vMx+rt}, v{vLx+rt} offset0:{rt*32} offset1:{rt*32+1}', 'sw')
        e.wait_lg()
        self.cstamp(1, 6)
        e('s_barrier')
        self.cstamp(2, 6)
        for rt in range(5):
            e(f'ds_read_b64 {vr(vS + 2*rt, 2)}, v{ap} offset:{rt*128}', 'sr')
        e.wait_lg()
        G = vS + 16
        Mv = [vS + 10 + rt for rt in range(5)]
        Fo = [vT + 4 + rt for rt in range(5)]
        for rt in range(5): e(f'v_max_f32 v{Mv[rt]}, v{vMx+rt}, v{vS + 2*rt}')
        for rt in range(5):
            e(f'v_sub_f32 v{Fo[rt]}, v{vMx+rt}, v{Mv[rt]}')
            e(f'v_sub_f32 v{vS + 2*rt}, v{vS + 2*rt}, v{Mv[rt]}')
        for rt in range(5):
            e(f'v_exp_f32 v{Fo[rt]}, v{Fo[rt]}')
            e(f'v_exp_f32 v{vS + 2*rt}, v{vS + 2*rt}')
        for rt in range(5): e(f'v_mul_f32 v{vS + 2*rt + 1}, v{vS + 2*rt + 1}, v{vS + 2*rt}')
        for rt in range(5): e(f'v_fma_f32 v{vS + 2*rt + 1}, v{vLx+rt}, v{Fo[rt]}, v{vS + 2*rt + 1}')
        for rt in range(5): e(f'v_rcp_f32 v{vS + 2*rt + 1}, v{vS + 2*rt + 1}')
        for rt in range(5): e(f'v_mul_f32 v{G + 2*rt}, v{Fo[rt]}, v{vS + 2*rt + 1}')
        self.cstamp(3, 6)
        xa = vT + 9
        e(f's_mul_i32 s{sT0}, s{sWv}, 20480')
        e(f's_add_u32 s{sT0}, s{sT0}, {OX}')
        e(f'v_lshlrev_b32 v{t0}, 4, v{vL}')
        e(f'v_add_u32 v{xa}, s{sT0}, v{t0}')
        e(f's_xor_b32 s{sT1}, s{sWv}, 1')
        e(f's_mul_i32 s{sT1}, s{sT1}, 20480')
        e(f's_add_u32 s{sT1}, s{sT1}, {OX}')
        e(f'v_add_u32 v{xa+1}, s{sT1}, v{t0}')
        for ts in (4, 5, 6, 7):
            for rt in range(5):
                b = Oreg(ts, rt); g = G + 2*rt
                e(f'v_pk_mul_f32 {vr(b,2)}, {vr(b,2)}, {vr(g,2)} op_sel_hi:[1,0]')
                e(f'v_pk_mul_f32 {vr(b+2,2)}, {vr(b+2,2)}, {vr(g,2)} op_sel_hi:[1,0]')
                if ts >= 4:
                    e(f'ds_write_b128 v{xa}, {vr(b,4)} offset:{((ts-4)*5+rt)*1024}', 'ow')
        e.wait_lg()
        self.cstamp(4, 6)
        e('s_barrier')
        self.cstamp(5, 6)
        self.cstamp(6, 6)
        so = vT + 6
        e(f'v_lshlrev_b32 v{so}, 4, v{vL}')
        def reads(rt):
            for ts in range(4):
                e(f'ds_read_b128 {vr(Oreg(ts+4, rt),4)}, v{xa+1} offset:{(ts*5+rt)*1024}', ('or', rt))
        reads(0); reads(1)
        for rt in range(5):
            if rt + 2 < 5: reads(rt + 2)
            e.wait_lg(('or', rt))
            g = vS + 16 + 2*rt
            for ts in range(4):
                a, b = Oreg(ts, rt), Oreg(ts + 4, rt)
                e(f'v_pk_fma_f32 {vr(a,2)}, {vr(a,2)}, {vr(g,2)}, {vr(b,2)} op_sel_hi:[1,0,1]')
                e(f'v_pk_fma_f32 {vr(a+2,2)}, {vr(a+2,2)}, {vr(g,2)}, {vr(b+2,2)} op_sel_hi:[1,0,1]')
            for u in range(2):
                a, b = Oreg(2*u, rt), Oreg(2*u + 1, rt)
                e(f'v_cvt_pk_bf16_f32 v{a}, v{a}, v{a+1}')
                e(f'v_cvt_pk_bf16_f32 v{a+1}, v{a+2}, v{a+3}')
                e(f'v_cvt_pk_bf16_f32 v{a+2}, v{b}, v{b+1}')
                e(f'v_cvt_pk_bf16_f32 v{a+3}, v{b+2}, v{b+3}')
                e(f'buffer_store_dwordx4 {vr(a,4)}, v{so}, s[{sO}:{sO+3}], s{sOoff} offen offset:{u*1024}{self.ofl}', 'ost')
            if rt < 4:
                e(f's_add_u32 s{sOoff}, s{sOoff}, 131072')
        self.cstamp(7, 6)
        if self.cfg.get('fused') and self.cfg.get('wwarm', 1) == 2: self.wo_warm2()
        if self.cfg.get('stamps') and (not self.cfg.get('fused') or self.cfg.get('stamps') == 6) and not self.cfg.get('flow'): e.wait_vm('ost')
        self.cstamp(8, 6)

    def _epi_add(self, ts):
        e = self.e
        e.wait_lg(('or', ts))
        for rt in range(5):
            a, b = Oreg(ts, rt), Oreg(ts + 4, rt)
            g = vS + 16 + 2*rt
            e(f'v_pk_fma_f32 {vr(a,2)}, {vr(a,2)}, {vr(g,2)}, {vr(b,2)} op_sel_hi:[1,0,1]')
            e(f'v_pk_fma_f32 {vr(a+2,2)}, {vr(a+2,2)}, {vr(g,2)}, {vr(b+2,2)} op_sel_hi:[1,0,1]')

    def build(self):
        e = self.e
        n = self.name
        e.raw(f'.globl {n}\n.p2align 8\n.type {n},@function')
        e.label(n)
        self.stamp(0); self.stamp(0, 2); self.stamp(0, 3); self.cstamp(4); self.stamp(0, 5); self.cstamp(1, 5)
        self.prologue()
        e(f's_cmp_eq_u32 s{sBr}, 0')
        e(f's_cbranch_scc0 L_{n}_qB')
        saved = (list(e.vmq), list(e.lgq))
        self.q_phase('A')
        endA = (list(e.vmq), list(e.lgq))
        e(f's_branch L_{n}_qx')
        e.label(f'L_{n}_qB')
        e.vmq, e.lgq = list(saved[0]), list(saved[1])
        self.q_phase('B')
        assert (e.vmq, e.lgq) == endA, (e.vmq, endA)
        e.label(f'L_{n}_qx')
        self.stamp(1); self.stamp(11, 2); self.stamp(1, 3); self.cstamp(5)
        self.q_exchange()
        self.stamp(2); self.stamp(12, 2); self.stamp(2, 3); self.cstamp(6); self.stamp(2, 5)
        self.main_loop()
        self.stamp(4); self.stamp(3, 3); self.cstamp(7); self.stamp(3, 5)
        self.epilogue()
        self.stamp(5)
        if self.cfg.get('fused'):
            if self.cfg.get('t4'): from tail4 import fused_tail
            else: from tail import fused_tail
            fused_tail(self)
            self.stamp(9)
            if self.cfg.get('stamps') == 5:
                self.stamp(4, 5); self.cstamp(5, 5)
                e('s_waitcnt lgkmcnt(0)')
                e(f's_cmp_lg_u32 s2, {self.cfg.get("dbgwg", 0)}')
                e(f's_cbranch_scc1 L_{n}_end')
                e(f's_cmp_lg_u32 s{sWv}, 0')
                e(f's_cbranch_scc1 L_{n}_end')
                e('s_sub_u32 s78, s78, s70')
                e('s_sub_u32 s80, s80, s72')
                e('s_sub_u32 s76, s76, s70')
                e('s_sub_u32 s74, s74, s70')
                e('v_mov_b32 v4, s78'); e('v_mov_b32 v5, s80'); e('v_mov_b32 v6, s76'); e('v_mov_b32 v7, s74')
                e('v_mov_b32 v8, 48')
                e('s_mov_b64 exec, 1')
                e('buffer_store_dwordx4 v[4:7], v8, s[16:19], 0 offen')
                e('s_waitcnt vmcnt(0)')
                e.vmq = []
            else:
                self.write_stamps(10 if self.cfg.get('stamps') == 1 else 13)
        else:
            self.write_stamps(6 if self.cfg.get('stamps') == 1 else 13)
        e.label(f'L_{n}_end')
        e('s_endpgm')
        for r in self.rare:
            e.ins.extend(r.ins)
        e('s_endpgm')
        kd = f'''
.amdhsa_kernel {n}
  .amdhsa_next_free_vgpr 512
  .amdhsa_next_free_sgpr 102
  .amdhsa_accum_offset 256
  .amdhsa_group_segment_fixed_size 0
  .amdhsa_kernarg_size 104
  .amdhsa_user_sgpr_count 2
  .amdhsa_user_sgpr_kernarg_segment_ptr 1
  .amdhsa_system_sgpr_workgroup_id_x 1
.end_amdhsa_kernel
'''
        return kd
```

```python
from asmgen import *
import attn as A
from attn import srd, O_BR, O_BYTES, MFMA, interleave, emit_groups

WO_BYTES = 4096 * 1152
OUT_BYTES = 640 * 2304

def fused_tail(gen):
    e, cfg, n = gen.e, gen.cfg, gen.name
    ofl = cfg.get('o2_flags', ' sc1')
    wfl = cfg.get('wo_flags', '')
    sfl = cfg.get('out_flags', '')
    MT, NT = 3, 4
    RW = cfg.get('tail_rw', 8)
    RO = 4
    sWv, sBrA = A.sWv, A.sBr
    sBatt = A.sB
    sO, sW, sOut, sD = A.sO, 8, 12, 16
    sBr, sMt, sN0, sT0, sT1, sT2 = 4, 5, 6, 37, 38, 39
    sOoff, sWoff, sWl, sLoop = 7, 30, 31, 32
    sOm = 33
    sMg, sNg, sRot = 61, 62, 65
    sWo, sOo = 66, 67
    sRotO = 3
    sOk = 50
    retries = []
    vL, vN, vG, vT = A.vL, A.vN, A.vG, 4
    vWd, vOd, vWr = 10, 14, 16
    vAcc, vWF, vOF = 20, 68, 84
    RED = 0
    flow = cfg.get('flow')
    e('s_load_dwordx2 s[42:43], s[0:1], 72')
    e('s_load_dwordx4 s[44:47], s[0:1], 80')
    sIdle = 64
    e(f's_mov_b32 s{sIdle}, 0')
    e(f's_and_b32 s{sT0}, s2, 7')
    e(f's_lshr_b32 s{sT1}, s2, 3')
    e(f's_lshr_b32 s{sBr}, s{sT0}, 2')
    e(f's_and_b32 s{sOm}, s{sT0}, 1')
    e(f's_bfe_u32 s{sOm+1}, s{sT0}, 0x10001')
    e(f's_mul_i32 s{sOm}, s{sOm}, 7')
    e(f's_cmp_lt_u32 s{sT1}, 28')
    e(f's_cbranch_scc0 L_{n}_extra')
    e(f's_lshr_b32 s{sMg}, s{sT1}, 2')
    e(f's_add_u32 s{sMg}, s{sMg}, s{sOm}')
    e(f's_and_b32 s{sNg}, s{sT1}, 3')
    e(f's_mul_i32 s{sOm+1}, s{sOm+1}, 5')
    e(f's_add_u32 s{sNg}, s{sNg}, s{sOm+1}')
    e(f's_branch L_{n}_dec')
    e.label(f'L_{n}_extra')
    e(f's_sub_u32 s{sT1}, s{sT1}, 28')
    e(f's_lshl_b32 s{sOm+2}, s{sOm+1}, 2')
    e(f's_add_u32 s{sMg}, s{sT1}, s{sOm+2}')
    e(f's_cmp_ge_u32 s{sMg}, 7')
    e(f's_cselect_b32 s{sIdle}, 1, 0')
    e(f's_cselect_b32 s{sMg}, 0, s{sMg}')
    e(f's_add_u32 s{sMg}, s{sMg}, s{sOm}')
    e(f's_mov_b32 s{sNg}, 4')
    e.label(f'L_{n}_dec')
    e(f's_lshl_b32 s{sN0}, s{sNg}, 6')
    e(f's_mul_i32 s{sMt}, s{sMg}, 3')
    e(f's_add_u32 s{sRot}, s{sMg}, s{sNg}')
    e(f's_mul_i32 s{sT1}, s{sRot}, 37')
    e(f's_lshr_b32 s{sT1}, s{sT1}, 8')
    e(f's_mul_i32 s{sT1}, s{sT1}, 7')
    e(f's_sub_u32 s{sRot}, s{sRot}, s{sT1}')
    SEG = cfg.get('oseg', 8)
    e(f's_mul_i32 s{sRot}, s{sRot}, {(SEG*64 + 6)//7}')
    e(f's_lshr_b32 s{sRot}, s{sRot}, 6')
    if not cfg.get('orot', 1): e(f's_mov_b32 s{sRot}, 0')
    sCw, sCo = 70 - 0, 0
    sCw, sCo = 98, 99
    e(f's_mov_b32 s{sCw}, 0')
    e(f's_mov_b32 s{sCo}, 0')
    def kstep(cnt, dst, tmp):
        return [(f's_add_u32 s{dst}, s{cnt}, s{sRot}', None), (f's_and_b32 s{dst}, s{dst}, {SEG-1}', None),
                (f's_and_b32 s{tmp}, s{cnt}, {32-SEG}', None), (f's_or_b32 s{dst}, s{dst}, s{tmp}', None),
                (f's_lshl_b32 s{dst}, s{dst}, 10', None), (f's_add_u32 s{cnt}, s{cnt}, 1', None)]
    e(f's_movk_i32 s{sT1}, 1152')
    e(f'v_lshrrev_b32 v{vT}, 3, v{vL}')
    e(f'v_mul_lo_u32 v{vT}, v{vT}, s{sT1}')
    e(f'v_lshlrev_b32 v{vT+1}, 1, v{vG}')
    e(f'v_and_b32 v{vT+2}, 7, v{vL}')
    e(f'v_xor_b32 v{vT+1}, v{vT+1}, v{vT+2}')
    e(f'v_lshl_add_u32 v{vWd}, v{vT+1}, 4, v{vT}')
    for j in range(1, 4):
        e(f'v_add_u32 v{vWd+j}, {8192*j}, v{vWd}')
    e(f'v_lshlrev_b32 v{vOd}, 4, v{vL}')
    e(f's_mul_i32 s{sWl}, s{sWv}, {RW*4096}')
    e(f'v_bfe_u32 v{vT}, v{vL}, 2, 2')
    e(f'v_lshl_add_u32 v{vT}, v{vG}, 2, v{vT}')
    e(f'v_bfe_u32 v{vT+1}, v{vT}, 1, 2')
    e(f'v_lshlrev_b32 v{vT+1}, 1, v{vT+1}')
    e(f'v_bfe_u32 v{vT+2}, v{vL}, 1, 1')
    e(f'v_xor_b32 v{vT+1}, v{vT+1}, v{vT+2}')
    e(f'v_and_b32 v{vT+2}, 1, v{vL}')
    e(f'v_lshlrev_b32 v{vT+2}, 3, v{vT+2}')
    e(f'v_lshl_add_u32 v{vT+2}, v{vT}, 7, v{vT+2}')
    e(f'v_add_u32 v{vT+2}, s{sWl}, v{vT+2}')
    for j in range(NT):
        e(f's_xor_b32 s{sT0}, s{sWv}, {j}')
        e(f's_lshl_b32 s{sT0}, s{sT0}, 1')
        e(f'v_xor_b32 v{vT}, s{sT0}, v{vT+1}')
        e(f'v_lshl_add_u32 v{vWr+j}, v{vT}, 4, v{vT+2}')
    e('s_waitcnt lgkmcnt(0)')
    e.lgq = []
    e(f's_cmp_eq_u32 s{sBr}, 0')
    e(f's_cselect_b32 s40, s48, s42')
    e(f's_cselect_b32 s41, s49, s43')
    srd(e, sW, 40, 41, WO_BYTES)
    srd(e, sOut, 44, 45, OUT_BYTES)
    e(f's_mul_i32 s{sWoff}, s{sWv}, {32*32*1152}')
    e(f's_lshl_b32 s{sT0}, s{sN0}, 1')
    e(f's_add_u32 s{sWoff}, s{sWoff}, s{sT0}')
    e(f's_mul_i32 s{sOoff}, s{sBr}, {O_BR}')
    e(f's_lshl_b32 s{sT0}, s{sMt}, 17')
    e(f's_add_u32 s{sOoff}, s{sOoff}, s{sT0}')
    e(f's_lshl_b32 s{sT0}, s{sWv}, 15')
    e(f's_add_u32 s{sOoff}, s{sOoff}, s{sT0}')
    for mi in range(MT):
        e(f's_add_u32 s{sOm+mi}, s{sOoff}, {mi*131072}')

    def w_groups(slot, tag):
        G = [kstep(sCw, sWo, sT0) + [(f's_add_u32 m0, s{sWl}, {slot*4096}', None),
              (f's_mul_i32 s{sWo}, s{sWo}, 36', None),
              (f's_add_u32 s{sWo}, s{sWo}, s{sWoff}', None)]]
        for j in range(4):
            G.append([(f'buffer_load_dwordx4 v{vWd+j}, s[{sW}:{sW+3}], s{sWo} offen offset:{1024*j}{wfl} lds', tag)])
        return G
    def o_groups(slot, tag):
        g = kstep(sCo, sRotO, sT1) + [(f's_add_u32 s{sOo+mi}, s{sOm+mi}, s{sRotO}', None) for mi in range(MT)]
        if flow: g.append((f's_mov_b32 s{sOk+slot}, s{sRotO}', None))
        G = [g]
        for mi in range(MT):
            r = vOF + slot*12 + mi*4
            G.append([(f'buffer_load_dwordx4 {vr(r,4)}, v{vOd}, s[{sO}:{sO+3}], s{sOo+mi} offen{ofl}', tag)])
        return G

    if flow:
        e('s_barrier')
    else:
        srd(e, sD, 46, 47, 256)
        e.wait_vm('ost')
        e.vmq = []
        e('s_barrier')
        e(f's_cmp_lg_u32 s{sWv}, 0')
        e(f's_cbranch_scc1 L_{n}_nosig')
        e(f'v_mov_b32 v{vT}, 0')
        e(f'v_mov_b32 v{vT+1}, 1')
        e('s_mov_b64 exec, 1')
        e(f'buffer_atomic_add v{vT+1}, v{vT}, s[{sD}:{sD+3}], 0 offen sc0 sc1', 'sig')
        e('s_waitcnt vmcnt(0)')
        e(f'v_readfirstlane_b32 s{sT0}, v{vT+1}')
        e(f's_cmp_lg_u32 s{sT0}, 255')
        e(f's_cbranch_scc1 L_{n}_notlast')
        e(f'v_mov_b32 v{vT+1}, 1')
        e(f'buffer_store_dword v{vT+1}, v{vT}, s[{sD}:{sD+3}], 0 offen offset:128 sc1', 'go')
        e.label(f'L_{n}_notlast')
        e('s_mov_b64 exec, -1')
        e.vmq = []
        e.label(f'L_{n}_nosig')
    e(f's_cmp_lg_u32 s{sIdle}, 0')
    e(f's_cbranch_scc1 L_{n}_end')
    for t in range(RW): emit_groups(e, w_groups(t, ('w', t)))
    gen.stamp(6)
    if not flow:
        e(f's_cmp_lg_u32 s{sWv}, 0')
        e(f's_cbranch_scc1 L_{n}_nopoll')
        e(f'v_mov_b32 v{vT}, 128')
        e(f's_mov_b32 s{sLoop}, 0')
        e.label(f'L_{n}_poll')
        e(f'buffer_load_dword v{vT+2}, v{vT}, s[{sD}:{sD+3}], 0 offen sc1')
        e('s_waitcnt vmcnt(0)')
        e(f'v_readfirstlane_b32 s{sT0}, v{vT+2}')
        e(f's_cmp_lg_u32 s{sT0}, 0')
        e(f's_cbranch_scc1 L_{n}_nopoll')
        e(f's_add_u32 s{sLoop}, s{sLoop}, 1')
        e(f's_cmp_lt_u32 s{sLoop}, 0x20000')
        e(f's_cbranch_scc0 L_{n}_nopoll')
        e(f's_sleep {cfg.get("psleep", 4)}')
        e(f's_branch L_{n}_poll')
        e.label(f'L_{n}_nopoll')
        e.vmq = [('w', t) for t in range(RW) for _ in range(4)]
        e('s_barrier')
    gen.stamp(7)
    for t in range(RO): emit_groups(e, o_groups(t, ('o', t)))

    vWF2 = [vWF, 140]
    def w_reads(t):
        ws, b = t % RW, vWF2[t & 1]
        return [[(f'ds_read_b64_tr_b16 {vr(b + nt*4 + 2*sec, 2)}, v{vWr+nt} offset:{ws*4096 + sec*2048}', 'wf')] for nt in range(NT) for sec in range(2)]
    def step(t, first, nxt_w, nxt_o, last=False):
        ws, os_ = t % RW, t % RO
        e.wait_lg()
        e.wait_vm([('o', t)] + ([] if last else [('w', t + 1)]))
        if flow:
            r0 = vOF + os_*12
            tv = vT
            e(f'v_max3_u32 v{tv}, v{r0}, v{r0+1}, v{r0+2}')
            for q in range(3, 11, 2): e(f'v_max3_u32 v{tv}, v{tv}, v{r0+q}, v{r0+q+1}')
            e(f'v_max_u32 v{tv}, v{tv}, v{r0+11}')
            e(f'v_cmp_eq_u32 vcc, -1, v{tv}')
            lab = f'L_{n}_rt{len(retries)}'
            e(f's_cbranch_vccnz {lab}')
            e.label(lab + 'b')
            r = Emitter()
            r.label(lab)
            r(f's_mov_b32 s{sLoop+0}, s{sLoop}') if False else None
            r('s_mov_b32 s54, 0')
            r.label(lab + 'l')
            r('s_sleep 2')
            for mi in range(MT):
                r(f's_add_u32 s55, s{sOm+mi}, s{sOk+os_}')
                r(f'buffer_load_dwordx4 {vr(r0 + mi*4, 4)}, v{vOd}, s[{sO}:{sO+3}], s55 offen{ofl}')
            r('s_waitcnt vmcnt(0)')
            r(f'v_max3_u32 v{tv}, v{r0}, v{r0+1}, v{r0+2}')
            for q in range(3, 11, 2): r(f'v_max3_u32 v{tv}, v{tv}, v{r0+q}, v{r0+q+1}')
            r(f'v_max_u32 v{tv}, v{tv}, v{r0+11}')
            r(f'v_cmp_eq_u32 vcc, -1, v{tv}')
            r(f's_cbranch_vccz {lab}b')
            r('s_add_u32 s54, s54, 1')
            r('s_cmp_lt_u32 s54, 0x4000')
            r(f's_cbranch_scc1 {lab}l')
            r(f's_branch {lab}b')
            r.fix_hazards()
            retries.append(r)
        b = vWF2[t & 1]
        mf = []
        for nt in range(NT):
            for mi in range(MT):
                acc = vr(vAcc + (nt*MT + mi)*4, 4)
                mf.append(f'{MFMA} {acc}, {vr(b + nt*4, 4)}, {vr(vOF + os_*12 + mi*4, 4)}, {"0" if first else acc}')
        R = [] if last else w_reads(t + 1)
        Gw = w_groups(ws, ('w', t + RW)) if nxt_w else []
        Go = o_groups(os_, ('o', t + RO)) if nxt_o else []
        interleave(e, mf[:4], R, start=0)
        interleave(e, mf[4:], Gw + Go[:1], start=0)
        emit_groups(e, Go[1:])

    e.wait_vm([('w', 0)])
    emit_groups(e, w_reads(0))
    for t in range(RW): step(t, t == 0, True, True)
    nmid = (32 - 2*RW) // RW
    if nmid > 0:
        q0 = [(k, i - RW) for (k, i) in e.vmq]
        l0 = list(e.lgq)
        e(f's_mov_b32 s{sLoop}, {nmid}')
        e.label(f'L_{n}_oloop')
        for t in range(RW, 2*RW): step(t, False, True, True)
        q1 = [(k, i - 2*RW) for (k, i) in e.vmq]
        assert q0 == q1, (q0, q1)
        assert l0 == e.lgq
        e(f's_sub_u32 s{sLoop}, s{sLoop}, 1')
        e(f's_cmp_lg_u32 s{sLoop}, 0')
        e(f's_cbranch_scc1 L_{n}_oloop')
    base = 2*RW if nmid > 0 else RW
    for t in range(base, base + RW): step(t, False, False, t + RO < base + RW, last=(t == base + RW - 1))
    gen.stamp(8)
    e(f'v_add_u32 v{vT}, s{sWl}, v{vOd}')
    for j in range(1, NT):
        for mi in range(MT):
            e(f'ds_write_b128 v{vT}, {vr(vAcc + (j*MT + mi)*4, 4)} offset:{((j-1)*MT + mi)*1024}', 'rw')
    for j in range(1, NT):
        e(f's_xor_b32 s{sT0}, s{sWv}, {j}')
        e(f's_mul_i32 s{sT0}, s{sT0}, {RW*4096}')
        e(f'v_add_u32 v{vT+3+j-1}, s{sT0}, v{vOd}')
    e.wait_lg()
    e('s_barrier')
    R = vOF
    for mi in range(MT):
        for j in range(1, NT):
            e(f'ds_read_b128 {vr(R + (mi*3 + j-1)*4, 4)}, v{vT+3+j-1} offset:{((j-1)*MT + mi)*1024}', ('r', mi))
    e(f's_lshl_b32 s{sT0}, s{sMt}, 4')
    e(f'v_add_u32 v{vT+1}, s{sT0}, v{vN}')
    e(f's_movk_i32 s{sT1}, 2304')
    e(f'v_mul_lo_u32 v{vT+1}, v{vT+1}, s{sT1}')
    e(f'v_lshl_add_u32 v{vT+1}, v{vG}, 3, v{vT+1}')
    e(f's_mul_i32 s{sT0}, s{sBr}, 1152')
    e(f's_lshl_b32 s{sT1}, s{sN0}, 1')
    e(f's_add_u32 s{sT0}, s{sT0}, s{sT1}')
    e(f's_lshl_b32 s{sT1}, s{sWv}, 5')
    e(f's_add_u32 s{sT0}, s{sT0}, s{sT1}')
    for mi in range(MT):
        e.wait_lg(('r', mi))
        a = vAcc + mi*4
        b = R + mi*12
        e(f'v_pk_add_f32 {vr(a,2)}, {vr(a,2)}, {vr(b,2)}')
        e(f'v_pk_add_f32 {vr(a+2,2)}, {vr(a+2,2)}, {vr(b+2,2)}')
        e(f'v_pk_add_f32 {vr(b+4,2)}, {vr(b+4,2)}, {vr(b+8,2)}')
        e(f'v_pk_add_f32 {vr(b+6,2)}, {vr(b+6,2)}, {vr(b+10,2)}')
        e(f'v_pk_add_f32 {vr(a,2)}, {vr(a,2)}, {vr(b+4,2)}')
        e(f'v_pk_add_f32 {vr(a+2,2)}, {vr(a+2,2)}, {vr(b+6,2)}')
        e(f'v_cvt_pk_bf16_f32 v{a}, v{a}, v{a+1}')
        e(f'v_cvt_pk_bf16_f32 v{a+1}, v{a+2}, v{a+3}')
        e(f'buffer_store_dwordx2 {vr(a,2)}, v{vT+1}, s[{sOut}:{sOut+3}], s{sT0} offen{sfl}', 'st')
        if mi < MT - 1:
            e(f's_add_u32 s{sT0}, s{sT0}, {16*2304}')
    if cfg.get('stamps'): e.wait_vm_all()
    gen.rare.extend(retries)
```

```python
from asmgen import *

X_BYTES = 8 * 80 * 1152
W_BYTES = 576 * 8192
KA_BYTES = 8 * 16 * 1024 * 256
KB_BYTES = 8 * 32 * 1024 * 256
O_BR = 40 * 128 * 1024
O_BYTES = 2 * O_BR

QBUF0, QBUFSZ = 34816, 43008
KS, VS = 0, 65536
QIMG = 122880
STATS = 131072
OX = 0

sX, sW, sK, sV, sO = 4, 8, 12, 16, 20
sWv, sJ, sKH, sBr, sC, sT = 24, 25, 26, 27, 28, 29
sKoff, sVoff, sKl, sVl = 30, 31, 32, 33
sXoff, sWoff, sOoff = 34, 35, 36
sT0, sT1, sT2 = 37, 38, 39
sP = 40
sLoop = 60
sXl, sWl = 61, 62
sKt, sVt = 96, 97
sB, sH = 63, 64
sCc, sXc, sWc, sX3c = 67, 68, 69, 3
vL, vN, vG = 1, 2, 3
vKd, vVd = 4, 8
vKr, vVr = 10, 14
vNM = 24
vXr, vWr = 36, 38
vT = 44
vXd, vWd = 56, 60
vQA = 64
vS = 56
vO = 96
aQ = 0
aK = 80
aV = 112
aL = 144
aOne = 164
aXF = [168, 204]
aWF = [188, 224]

def Sreg(rt, kt): return vS + rt * 8 + kt * 4
def Oreg(ts, rt): return vO + (ts * 5 + rt) * 4
def Qacc(tt, rt): return vO + (tt * 5 + rt) * 4
def Qf(rt, s): return aQ + (rt * 4 + s) * 4
def Kf(kt, s): return aK + (kt * 4 + s) * 4
def Vf(ts): return aV + ts * 4
def NM(rt): return vNM + rt * 4
def Lf(rt): return aL + rt * 4

MFMA = 'v_mfma_f32_16x16x32_bf16'

def srd(e, s, lo, hi, nbytes):
    e(f's_mov_b32 s{s}, s{lo}')
    e(f's_mov_b32 s{s+1}, s{hi}')
    e(f's_mov_b32 s{s+2}, {nbytes}')
    e(f's_mov_b32 s{s+3}, 0x00020000')

def interleave(e, prim, groups, start=0, every=None, end=None):
    n = len(prim); g = len(groups)
    end = n if end is None else end
    pos = {}
    if g:
        span = max(end - start, 1)
        for k in range(g):
            p = start + (k * span) // g if every is None else start + k * every
            pos.setdefault(min(p, n - 1), []).append(groups[k])
    for i, t in enumerate(prim):
        e(t)
        for grp in pos.get(i, []):
            for (tt, tag) in grp: e(tt, tag)
    if n == 0:
        for grp in groups:
            for (tt, tag) in grp: e(tt, tag)

def emit_groups(e, groups):
    for grp in groups:
        for (tt, tag) in grp: e(tt, tag)

class AttnGen:
    def __init__(self, e, cfg):
        self.e = e
        self.cfg = cfg
        self.kvfl = cfg.get('kv_flags', ' nt')
        self.xfl = cfg.get('x_flags', '')
        self.wfl = cfg.get('w_flags', ' nt')
        self.ofl = cfg.get('o_flags', ' sc1' if cfg.get('fused') else '')
        self.name = cfg.get('name', 'attn_kernel')
        self.rare = []
        self.nrare = 0

    def stamp(self, i, mode=1):
        if self.cfg.get('stamps') == mode:
            self.e(f's_memrealtime s[{70+2*i}:{71+2*i}]')
    def cstamp(self, i, mode=3):
        if self.cfg.get('stamps') == mode:
            self.e(f's_memtime s[{70+2*i}:{71+2*i}]')
    def write_stamps(self, n, kernel_idx=0):
        if not self.cfg.get('stamps'): return
        e = self.e
        e('s_waitcnt lgkmcnt(0)')
        e(f's_lshl_b32 s{sT0}, s2, 2')
        e(f's_add_u32 s{sT0}, s{sT0}, s{sWv}')
        e(f's_lshl_b32 s{sT0}, s{sT0}, 7')
        e(f's_add_u32 s{sT0}, s{sT0}, {0x1000000 + kernel_idx*0x100000}')
        e(f's_mov_b32 s{sO+2}, 0x2000000')
        e(f'v_mov_b32 v{vT}, 0')
        for i in range(n):
            e(f'v_mov_b32 v{vT+2}, s{70+2*i}')
            e(f'v_mov_b32 v{vT+3}, s{71+2*i}')
            e(f'buffer_store_dwordx2 {vr(vT+2,2)}, v{vT}, s[{sO}:{sO+3}], s{sT0} offen offset:{8*i}')
            e('s_waitcnt vmcnt(0)')
        e.vmq = []
    def prologue(self):
        e = self.e
        e(f's_cmp_ge_u32 s2, 256')
        e(f's_cbranch_scc1 L_{self.name}_end')
        e(f's_load_dwordx16 s[40:55], s[0:1], 0')
        e(f's_load_dwordx2 s[56:57], s[0:1], 64')
        e(f's_load_dwordx2 s[58:59], s[0:1], 96')
        e(f's_load_dwordx2 s[100:101], s[0:1], 72')
        e(f's_load_dwordx2 s[90:91], s[0:1], 88')
        t0, t1, t2, t3 = vT, vT + 1, vT + 2, vT + 3
        e(f'v_lshrrev_b32 v{t0}, 6, v0')
        e(f'v_and_b32 v{vL}, 63, v0')
        e(f'v_readfirstlane_b32 s{sWv}, v{t0}')
        e(f'v_and_b32 v{vN}, 15, v{vL}')
        e(f'v_lshrrev_b32 v{vG}, 4, v{vL}')
        e(f's_lshr_b32 s{sJ}, s{sWv}, 1')
        e(f's_and_b32 s{sKH}, s{sWv}, 1')
        e(f's_and_b32 s{sT0}, s2, 7')
        e(f's_lshr_b32 s{sT1}, s2, 3')
        e(f's_lshr_b32 s{sBr}, s{sT1}, 4')
        e(f's_and_b32 s{sT1}, s{sT1}, 15')
        e(f's_mov_b32 s{sC}, 0x3e029407')
        import struct, math
        c = (128 ** -0.5) * math.log2(math.e)
        bits = struct.unpack('<I', struct.pack('<f', c))[0]
        e.ins[-1] = Inst(f's_mov_b32 s{sC}, {bits:#010x}')
        e(f's_mov_b32 s{sT}, 0x41000000')
        for i in range(4):
            q = i >> 1
            e(f'v_or_b32 v{t0}, {q << 2}, v{vG}')
            e(f'v_lshlrev_b32 v{t0}, 1, v{t0}')
            e(f'v_xor_b32 v{t0}, v{t0}, v{vN}')
            e(f'v_lshlrev_b32 v{t0}, 4, v{t0}')
            e(f'v_lshl_add_u32 v{vWd+i}, v{vG}, 13, v{t0}')
            if i: e(f'v_add_u32 v{vWd+i}, {(32768-1024)*i}, v{vWd+i}')
        e(f'v_lshrrev_b32 v{t1}, 3, v{vL}')
        e(f's_movk_i32 s{sT2}, 1152')
        e(f'v_mul_lo_u32 v{t1}, v{t1}, s{sT2}')
        e(f'v_and_b32 v{t2}, 7, v{vL}')
        for i in range(4):
            e(f's_add_u32 s{sT2}, s{sKH}, {i}')
            e(f's_and_b32 s{sT2}, s{sT2}, 1')
            e(f's_lshl_b32 s{sT2}, s{sT2}, 2')
            e(f'v_add_u32 v{t0}, s{sT2}, v{vG}')
            e(f'v_and_b32 v{t0}, 7, v{t0}')
            e(f'v_xor_b32 v{t0}, v{t0}, v{t2}')
            e(f'v_lshl_add_u32 v{vXd+i}, v{t0}, 4, v{t1}')
            if i: e(f'v_add_u32 v{vXd+i}, {8192*i}, v{vXd+i}')

    def prologue_b(self):
        e = self.e
        t0, t1, t2, t3 = vT, vT + 1, vT + 2, vT + 3
        for j in range(4):
            e(f'v_add_u32 v{t0}, {4*j}, v{vG}')
            e(f'v_xor_b32 v{t0}, v{t0}, v{vN}')
            e(f'v_lshlrev_b32 v{t0}, 4, v{t0}')
            e(f'v_lshl_add_u32 v{vKd+j}, v{vG}, 8, v{t0}')
        for p in range(2):
            e(f'v_add_u32 v{t0}, {4*p}, v{vG}')
            e(f'v_lshlrev_b32 v{t0}, 1, v{t0}')
            e(f'v_xor_b32 v{t0}, v{t0}, v{vN}')
            e(f'v_lshlrev_b32 v{t0}, 4, v{t0}')
            e(f'v_lshl_add_u32 v{vVd+p}, v{vG}, 8, v{t0}')
        e(f's_lshl_b32 s{sKl}, s{sWv}, 13')
        e(f's_add_u32 s{sVl}, s{sKl}, {VS}')
        for s in range(4):
            e(f's_lshl_b32 s{sT2}, s{sKH}, 1')
            e(f's_xor_b32 s{sT2}, s{sT2}, {s}')
            e(f's_lshl_b32 s{sT2}, s{sT2}, 2')
            e(f'v_add_u32 v{t0}, s{sT2}, v{vG}')
            e(f'v_xor_b32 v{t0}, v{t0}, v{vN}')
            e(f'v_lshlrev_b32 v{t0}, 4, v{t0}')
            e(f'v_lshl_add_u32 v{t0}, v{vN}, 8, v{t0}')
            e(f'v_add_u32 v{vKr+s}, s{sKl}, v{t0}')
        e(f'v_bfe_u32 v{t1}, v{vL}, 2, 2')
        e(f'v_lshl_add_u32 v{t1}, v{vG}, 2, v{t1}')
        e(f'v_and_b32 v{t2}, 7, v{t1}')
        e(f'v_lshlrev_b32 v{t2}, 1, v{t2}')
        e(f'v_bfe_u32 v{t3}, v{vL}, 1, 1')
        e(f'v_xor_b32 v{t2}, v{t2}, v{t3}')
        e(f'v_and_b32 v{t3}, 1, v{vL}')
        e(f'v_lshlrev_b32 v{t3}, 3, v{t3}')
        e(f'v_lshl_add_u32 v{t3}, v{t1}, 8, v{t3}')
        e(f'v_add_u32 v{t3}, s{sVl}, v{t3}')
        for ts in range(8):
            e(f's_lshl_b32 s{sT2}, s{sKH}, 2')
            e(f's_xor_b32 s{sT2}, s{sT2}, {ts}')
            e(f's_lshl_b32 s{sT2}, s{sT2}, 1')
            e(f'v_xor_b32 v{t0}, s{sT2}, v{t2}')
            e(f'v_lshl_add_u32 v{vVr+ts}, v{t0}, 4, v{t3}')

    def q_setup(self, br):
        e = self.e
        t0, t1, t2, t3 = vT, vT + 1, vT + 2, vT + 3
        rot = self.cfg.get('qrot', 1)
        if br == 'A':
            e(f's_lshr_b32 s{sCc}, s{sT1}, 1')
            e(f's_and_b32 s{sT2}, s{sT1}, 1')
            e(f's_lshl_b32 s{sT2}, s{sT2}, 2')
            e(f's_add_u32 s{sCc}, s{sCc}, s{sT2}')
            e(f's_sub_u32 s{sT2}, s{sCc}, 9')
            e(f's_cmp_ge_u32 s{sCc}, 9')
            e(f's_cselect_b32 s{sCc}, s{sT2}, s{sCc}')
        else:
            e(f's_lshr_b32 s{sCc}, s{sT1}, 2')
            e(f's_add_u32 s{sCc}, s{sCc}, s{sT1}')
            e(f's_and_b32 s{sCc}, s{sCc}, 3')
            e(f's_mul_i32 s{sCc}, s{sCc}, 5')
            e(f's_lshr_b32 s{sCc}, s{sCc}, 1')
        if rot == 2:
            if br == 'A':
                e(f's_lshr_b32 s{sCc}, s{sT1}, 1')
                e(f's_and_b32 s{sT2}, s{sT1}, 1')
                e(f's_lshl_b32 s{sT2}, s{sT2}, 2')
                e(f's_add_u32 s{sCc}, s{sCc}, s{sT2}')
                e(f's_and_b32 s{sCc}, s{sCc}, 7')
            else:
                e(f's_lshr_b32 s{sCc}, s{sT1}, 2')
                e(f's_add_u32 s{sCc}, s{sCc}, s{sT1}')
                e(f's_and_b32 s{sCc}, s{sCc}, 3')
                e(f's_lshl_b32 s{sCc}, s{sCc}, 1')
            e(f's_add_u32 s{sCc}, s{sCc}, 1')
        if not rot: e(f's_mov_b32 s{sCc}, 0')
        if br == 'A':
            e(f's_lshr_b32 s{sB}, s{sT1}, 1')
            e(f's_and_b32 s{sT1}, s{sT1}, 1')
            e(f's_lshl_b32 s{sT0}, s{sT0}, 1')
            e(f's_add_u32 s{sT0}, s{sT0}, s{sT1}')
            e(f's_lshl_b32 s{sH}, s{sT0}, 1')
            e(f's_add_u32 s{sH}, s{sH}, s{sJ}')
            e(f's_lshl_b32 s{sT1}, s{sB}, 4')
            e(f's_add_u32 s{sT1}, s{sT1}, s{sT0}')
            late = lambda: (srd(e, sK, 42, 43, KA_BYTES), srd(e, sV, 44, 45, KA_BYTES))
            early = lambda: (srd(e, sX, 40, 41, X_BYTES), srd(e, sW, 46, 47, W_BYTES))
        else:
            e(f's_lshr_b32 s{sB}, s{sT1}, 2')
            e(f's_lshl_b32 s{sT2}, s{sJ}, 2')
            e(f's_add_u32 s{sB}, s{sB}, s{sT2}')
            e(f's_and_b32 s{sT1}, s{sT1}, 3')
            e(f's_lshl_b32 s{sH}, s{sT0}, 2')
            e(f's_add_u32 s{sH}, s{sH}, s{sT1}')
            e(f's_lshl_b32 s{sT1}, s{sB}, 5')
            e(f's_add_u32 s{sT1}, s{sT1}, s{sH}')
            late = lambda: (srd(e, sK, 52, 53, KB_BYTES), srd(e, sV, 54, 55, KB_BYTES))
            early = lambda: (srd(e, sX, 50, 51, X_BYTES), srd(e, sW, 56, 57, W_BYTES))
        if self.cfg.get('kvsame'): e(f's_and_b32 s{sT1}, s2, 7')
        e(f's_lshl_b32 s{sKoff}, s{sT1}, 18')
        e(f's_lshl_b32 s{sT2}, s{sKH}, 13')
        e(f's_add_u32 s{sKoff}, s{sKoff}, s{sT2}')
        e(f's_mov_b32 s{sVoff}, s{sKoff}')
        e(f's_mul_i32 s{sOoff}, s{sB}, {5*128*1024}')
        e(f's_lshl_b32 s{sT2}, s{sH}, 12')
        e(f's_add_u32 s{sOoff}, s{sOoff}, s{sT2}')
        e(f's_lshl_b32 s{sT2}, s{sKH}, 11')
        e(f's_add_u32 s{sOoff}, s{sOoff}, s{sT2}')
        if br == 'B':
            e(f's_add_u32 s{sOoff}, s{sOoff}, {O_BR}')
        if br == 'A':
            e(f's_mul_i32 s{sXoff}, s{sB}, 92160')
            e(f's_mul_i32 s{sT2}, s{sWv}, 9216')
            e(f's_add_u32 s{sXoff}, s{sXoff}, s{sT2}')
            e(f's_lshl_b32 s{sXl}, s{sWv}, 10')
            e(f's_mul_i32 s65, s{sB}, 92160')
            e(f's_add_u32 s{sT2}, s{sKH}, 8')
            e(f's_lshl_b32 s66, s{sT2}, 10')
            e(f's_mul_i32 s{sT2}, s{sT2}, 9216')
            e(f's_add_u32 s65, s65, s{sT2}')
            e(f's_lshl_b32 s{sWoff}, s{sH}, 8')
            e(f's_lshl_b32 s{sT2}, s{sKH}, 18')
            e(f's_add_u32 s{sWoff}, s{sWoff}, s{sT2}')
            e(f's_lshl_b32 s{sWl}, s{sJ}, 14')
            e(f's_lshl_b32 s{sT2}, s{sKH}, 13')
            e(f's_add_u32 s{sWl}, s{sWl}, s{sT2}')
            e(f's_add_u32 s{sWl}, s{sWl}, 10240')
            xoffj, woffj = (0, 0), (10240, 16384)
        else:
            e(f's_mul_i32 s{sXoff}, s{sB}, 92160')
            e(f's_mul_i32 s{sT2}, s{sKH}, {40*1152}')
            e(f's_add_u32 s{sXoff}, s{sXoff}, s{sT2}')
            e(f's_mul_i32 s{sXl}, s{sWv}, 5120')
            e(f's_lshl_b32 s{sWoff}, s{sH}, 8')
            e(f's_lshl_b32 s{sT2}, s{sWv}, 17')
            e(f's_add_u32 s{sWoff}, s{sWoff}, s{sT2}')
            e(f's_lshl_b32 s{sWl}, s{sWv}, 12')
            e(f's_add_u32 s{sWl}, s{sWl}, 20480')
            xoffj, woffj = (0, 10240), (20480, 0)
        e('s_waitcnt lgkmcnt(0)')
        early()
        emit_groups(e, self.q_dma(br, 0))
        emit_groups(e, self.q_dma(br, 1))
        late()
        srd(e, sO, 58, 59, O_BYTES)
        self.prologue_b()
        e(f's_mul_i32 s{sT2}, s{sJ}, {xoffj[1]}')
        e(f's_add_u32 s{sT2}, s{sT2}, {QBUF0 + xoffj[0]}')
        e(f'v_lshrrev_b32 v{t1}, 1, v{vN}')
        for s2 in range(2):
            e(f'v_add_u32 v{t0}, {4*s2}, v{vG}')
            e(f'v_xor_b32 v{t0}, v{t0}, v{t1}')
            e(f'v_lshlrev_b32 v{t0}, 4, v{t0}')
            e(f'v_lshl_add_u32 v{t0}, v{vN}, 7, v{t0}')
            e(f'v_add_u32 v{vXr+s2}, s{sT2}, v{t0}')
        e(f's_mul_i32 s{sT2}, s{sJ}, {woffj[1]}')
        e(f's_add_u32 s{sT2}, s{sT2}, {QBUF0 + woffj[0]}')
        e(f'v_bfe_u32 v{t1}, v{vL}, 2, 2')
        e(f'v_and_b32 v{t2}, 1, v{vG}')
        e(f'v_lshl_or_b32 v{t2}, v{t2}, 2, v{t1}')
        e(f'v_lshlrev_b32 v{t2}, 1, v{t2}')
        e(f'v_and_b32 v{t3}, 3, v{vL}')
        e(f'v_xor_b32 v{t2}, v{t2}, v{t3}')
        e(f'v_lshl_add_u32 v{t1}, v{vG}, 3, v{t1}')
        e(f'v_lshlrev_b32 v{t3}, 8, v{t1}')
        e(f'v_add_u32 v{t3}, s{sT2}, v{t3}')
        for tt in range(4):
            e(f's_lshl_b32 s{sT2}, s{sKH}, 3')
            e(f's_add_u32 s{sT2}, s{sT2}, {4 * (tt >> 1)}')
            e(f'v_xor_b32 v{t0}, s{sT2}, v{t2}')
            e(f'v_lshl_add_u32 v{vWr+tt}, v{t0}, 4, v{t3}')
            if tt & 1: e(f'v_add_u32 v{vWr+tt}, 8, v{vWr+tt}')

    def q_addr_copies(self):
        e = self.e
        for b in range(3):
            for k, r in enumerate((vXr, vXr + 1, vWr, vWr + 1, vWr + 2, vWr + 3)):
                if b == 0: e(f'v_mov_b32 v{vQA + k}, v{r}')
                else: e(f'v_add_u32 v{vQA + 6*b + k}, {b*QBUFSZ}, v{r}')

    def q_dma(self, br, c):
        qb = QBUF0 + (c % 3) * QBUFSZ
        tag = ('Q', c)
        G = []
        hyb = self.cfg.get('qrot', 1) == 2
        if hyb and c == 0:
            g = [(f's_mov_b32 s{sXc}, s{sXoff}', None), (f's_mov_b32 s{sWc}, s{sWoff}', None)]
            if br == 'A': g.append((f's_mov_b32 s{sX3c}, s65', None))
        else:
            g = [(f's_lshl_b32 s{sT2}, s{sCc}, 7', None), (f's_add_u32 s{sXc}, s{sXoff}, s{sT2}', None)]
            if br == 'A': g.append((f's_add_u32 s{sX3c}, s65, s{sT2}', None))
        if self.cfg.get('qsame'):
            g = [(f's_mov_b32 s{sXc}, 0', None), (f's_mov_b32 s{sX3c}, 0', None), (f's_mov_b32 s{sWc}, 0', None)]
        elif not (hyb and c == 0):
          g += [(f's_lshl_b32 s{sT2}, s{sCc}, 19', None), (f's_add_u32 s{sWc}, s{sWoff}, s{sT2}', None),
              (f's_add_u32 s{sCc}, s{sCc}, 1', None), (f's_cmp_eq_u32 s{sCc}, 9', None), (f's_cselect_b32 s{sCc}, {1 if hyb else 0}, s{sCc}', None)]
        G.append(g)
        def ld(voff, srdr, soff, off, fl, pre=()):
            G.append(list(pre) + [(f'buffer_load_dwordx4 v{voff}, s[{srdr}:{srdr+3}], s{soff} offen offset:{off}{fl} lds', tag)])
        m0 = lambda reg, imm: (f's_add_u32 m0, s{reg}, {qb + imm}', None)
        if br == 'A':
            ld(vXd, sX, sXc, 0, self.xfl, [m0(sXl, 0)])
            ld(vXd, sX, sT2, 0, self.xfl, [m0(sXl, 4096), (f's_add_u32 s{sT2}, s{sXc}, {4*9216}', None)])
            ld(vXd, sX, sX3c, 0, self.xfl, [m0(66, 0), ('s_nop 0', None)])
            for i in range(4):
                ld(vWd + i, sW, sWc, 1024*i, self.wfl, [m0(sWl, 0), ('s_nop 0', None)] if i == 0 else [])
            for i in range(4):
                ld(vWd + i, sW, sWc, 1024*i, self.wfl, [m0(sWl, 4096), (f's_add_u32 s{sWc}, s{sWc}, {4*32768}', None)] if i == 0 else [])
        else:
            for i in range(4):
                ld(vXd + i, sX, sXc, 1024*i, self.xfl, [m0(sXl, 0), ('s_nop 0', None)] if i == 0 else [])
            ld(vXd, sX, sXc, 0, self.xfl, [m0(sXl, 4096), (f's_add_u32 s{sXc}, s{sXc}, {4*9216}', None)])
            for i in range(4):
                ld(vWd + i, sW, sWc, 1024*i, self.wfl, [m0(sWl, 0), ('s_nop 0', None)] if i == 0 else [])
        return G

    def kv_dma(self, kind, par, tag):
        if kind == 'K': l, off, s, vo, tmp = sKl, sKoff, sK, [vKd, vKd + 1, vKd + 2, vKd + 3], sKt
        else: l, off, s, vo, tmp = sVl, sVoff, sV, [vVd, vVd + 1, vVd, vVd + 1], sVt
        G = []
        for half in range(2):
            for q in range(4):
                g = []
                if q == 0:
                    g.append((f's_add_u32 m0, s{l}, {par * 32768 + half * 4096}', None))
                    if half == 0: g.append((f's_add_u32 s{tmp}, s{off}, 4096', None))
                    else: g.append((f's_add_u32 s{off}, s{off}, 16384', None))
                so = off if half == 0 else tmp
                g.append((f'buffer_load_dwordx4 v{vo[q]}, s[{s}:{s+3}], s{so} offen offset:{q*1024}{self.kvfl} lds', tag))
                G.append(g)
        return G

    def q_reads(self, s2, c):
        G = []
        base = vQA + 6 * (c % 3)
        for tt in range(4):
            for sec in range(2):
                G.append([(f'ds_read_b64_tr_b16 {ar(aWF[s2] + 4*tt + 2*sec, 2)}, v{base+2+tt} offset:{s2*8192 + sec*1024}', ('q', s2))])
            if tt == 0:
                for rt in range(5):
                    G.append([(f'ds_read_b128 {ar(aXF[s2] + 4*rt, 4)}, v{base+s2} offset:{rt*2048}', ('q', s2))])
        return G

    def q_mfmas(self, s2, first):
        L = []
        for tt in range(4):
            for rt in range(5):
                acc = vr(Qacc(tt, rt), 4)
                cc = '0' if first else acc
                L.append(f'{MFMA} {acc}, {ar(aWF[s2] + 4*tt, 4)}, {ar(aXF[s2] + 4*rt, 4)}, {cc}')
        return L

    def pretouch(self, br):
        e = self.e
        n = self.name
        st = self.cfg.get('pretouch')
        t0 = vT + 8
        e(f's_cmp_lg_u32 s{sWv}, 0')
        e(f's_cbranch_scc1 L_{n}_npt{br}')
        e(f's_bfe_u32 s{sT2}, s2, 0x10002')
        e(f's_cmp_eq_u32 s{sT2}, 0')
        e(f's_cselect_b32 s92, s48, s100')
        e(f's_cselect_b32 s93, s49, s101')
        e(f's_mov_b32 s94, {4096*1152}')
        e(f's_mov_b32 s95, 0x00020000')
        e(f's_lshr_b32 s{sT2}, s2, 3')
        e(f's_mul_i32 s{sT2}, s{sT2}, {64*st}')
        e(f's_mov_b32 s{sT1}, {st}')
        e(f'v_mul_lo_u32 v{t0}, v{vL}, s{sT1}')
        e(f'buffer_load_dword v{t0+1}, v{t0}, s[92:95], s{sT2} offen', ('T', 0))
        e.vmq.pop()
        e(f'buffer_load_dword v{t0+2}, v{t0}, s[{sO}:{sO+3}], s{sT2} offen', ('T', 0))
        e.vmq.pop()
        e.label(f'L_{n}_npt{br}')

    def poison_groups(self):
        G = [[(f'v_mov_b32 v{252+k}, -1', None) for k in range(4)] + [(f'v_lshlrev_b32 v{vT+10}, 4, v{vL}', None)]]
        for rt in range(5):
            for u in range(2):
                g = []
                if u == 0: g.append((f's_add_u32 s3, s{sOoff}, {rt*131072}', None))
                g.append((f'buffer_store_dwordx4 v[252:255], v{vT+10}, s[{sO}:{sO+3}], s3 offen offset:{u*1024} sc1', ('P', 0)))
                G.append(g)
        return G

    def arrive2(self):
        e = self.e
        n = self.name
        e('s_barrier')
        e(f's_cmp_lg_u32 s{sWv}, 0')
        e(f's_cbranch_scc1 L_{n}_na2')
        e('v_mov_b32 v54, 0')
        e('v_mov_b32 v55, 1')
        e('s_mov_b64 exec, 1')
        e('buffer_atomic_add v55, v54, s[92:95], 0 offen sc1', 'sig')
        e.vmq.pop()
        e('s_mov_b64 exec, -1')
        e.label(f'L_{n}_na2')

    def poison(self):
        e = self.e
        for k in range(4): e(f'v_mov_b32 v{252+k}, -1')
        e(f'v_lshlrev_b32 v{vT+4}, 4, v{vL}')
        e(f's_mov_b32 s92, s90')
        e(f's_mov_b32 s93, s91')
        e(f's_mov_b32 s94, 256')
        e(f's_mov_b32 s95, 0x00020000')
        for rt in range(5):
            e(f's_add_u32 s{sT2}, s{sOoff}, {rt*131072}')
            for u in range(2):
                e(f'buffer_store_dwordx4 v[252:255], v{vT+4}, s[{sO}:{sO+3}], s{sT2} offen offset:{u*1024} sc1', ('P', 0))

    def arrive(self, br):
        e = self.e
        n = self.name
        e(f's_cmp_lg_u32 s{sWv}, 0')
        e(f's_cbranch_scc1 L_{n}_na{br}')
        e('v_mov_b32 v54, 0')
        e('v_mov_b32 v55, 1')
        e('s_mov_b64 exec, 1')
        e('buffer_atomic_add v55, v54, s[92:95], 0 offen sc0 sc1', 'sig')
        e.vmq.pop()
        e('s_mov_b64 exec, -1')
        e.label(f'L_{n}_na{br}')

    def arrive_check(self, br):
        e = self.e
        n = self.name
        e(f's_cmp_lg_u32 s{sWv}, 0')
        e(f's_cbranch_scc1 L_{n}_nc{br}')
        e(f'v_readfirstlane_b32 s{sT2}, v55')
        e(f's_cmp_lg_u32 s{sT2}, 255')
        e(f's_cbranch_scc1 L_{n}_nc{br}')
        e('s_mov_b64 exec, 1')
        e('v_mov_b32 v55, 1')
        e('buffer_store_dword v55, v54, s[92:95], 0 offen offset:128 sc1', 'go')
        e.vmq.pop()
        e('s_mov_b64 exec, -1')
        e.label(f'L_{n}_nc{br}')

    def flag_load(self):
        e = self.e
        e('v_mov_b32 v54, 0')
        e('buffer_load_dword v55, v54, s[92:95], 0 offen sc1', 'f2')

    def flag_check(self):
        e = self.e
        n = self.name
        e.wait_vm('f2')
        e(f's_mov_b32 s{sT1}, 0')
        e.label(f'L_{n}_fchk')
        e(f'v_readfirstlane_b32 s{sT0}, v55')
        e(f's_cmp_ge_u32 s{sT0}, 256')
        e(f's_cbranch_scc1 L_{n}_fok')
        e(f's_add_u32 s{sT1}, s{sT1}, 1')
        e(f's_cmp_lt_u32 s{sT1}, 0x20000')
        e(f's_cbranch_scc0 L_{n}_fok')
        e('s_sleep 8')
        e(f'v_mov_b32 v{vT}, 0')
        e(f'buffer_load_dword v55, v{vT}, s[92:95], 0 offen sc1', 'f2')
        e('s_waitcnt vmcnt(0)')
        e.vmq.pop()
        e(f's_branch L_{n}_fchk')
        e.label(f'L_{n}_fok')

    def q_phase(self, br):
        e = self.e
        self.q_setup(br)
        self.stamp(1, 2)
        self.q_addr_copies()
        if self.cfg.get('pretouch'): self.pretouch(br)
        flow = self.cfg.get('flow')
        if flow:
            e(f's_mov_b32 s92, s90')
            e(f's_mov_b32 s93, s91')
            e(f's_mov_b32 s94, 256')
            e(f's_mov_b32 s95, 0x00020000')
        for c in range(9):
            e.wait_vm(('Q', c))
            e.wait_lg()
            e('s_barrier')
            if c == 4: self.cstamp(0, 4)
            if c == 5: self.cstamp(3, 4)
            self.stamp(2 + c, 2)
            G = []
            if c + 2 <= 8: G += self.q_dma(br, c + 2)
            if c == self.cfg.get('k0at', 6): G += self.kv_dma('K', 0, ('K', 0))
            if c == 7: G += self.kv_dma('K', 1, ('K', 1))
            if c == 8: G += self.kv_dma('V', 0, ('V', 0))
            if flow and c == self.cfg.get('pat', 8): G += self.poison_groups()
            R0 = self.q_reads(0, c)
            h = (len(G) + 1) // 2
            def mix(mf, R, D):
                n = len(mf)
                slots = [[] for _ in range(n)]
                for k, g in enumerate(R): slots[k].append(g)
                for k, g in enumerate(D): slots[min(n - 1, 1 + (k * (n - 2)) // max(len(D), 1))].append(g)
                for k in range(n):
                    e(mf[k])
                    for g in slots[k]:
                        for (tt, tag) in g: e(tt, tag)
            if c > 0: mix(self.q_mfmas(1, False), R0, G[:h])
            else:
                emit_groups(e, R0); emit_groups(e, G[:h])
            if c == 4: self.cstamp(1, 4)
            e.wait_lg(('q', 0))
            mix(self.q_mfmas(0, c == 0), self.q_reads(1, c), G[h:])
            if c == 4: self.cstamp(2, 4)
        e.wait_lg()
        if not self.cfg.get('qxov', 1):
            for t in self.q_mfmas(1, False): e(t)

    def q_exchange(self):
        e = self.e
        t0 = vT
        self.cstamp(0, 8)
        e('s_barrier')
        self.cstamp(1, 8)
        e(f's_mul_i32 s{sT2}, s{sWv}, 10240')
        e(f's_add_u32 s{sT2}, s{sT2}, {QIMG}')
        e(f'v_lshlrev_b32 v{t0}, 4, v{vL}')
        e(f'v_add_u32 v{vT+4}, s{sT2}, v{t0}')
        e(f's_xor_b32 s{sT1}, s{sWv}, 1')
        e(f's_mul_i32 s{sT1}, s{sT1}, 10240')
        e(f's_add_u32 s{sT1}, s{sT1}, {QIMG}')
        e(f'v_add_u32 v{vT+5}, s{sT1}, v{t0}')
        self.cstamp(2, 8)
        e(f'v_mov_b32 v{vT+8}, s{sC}')
        e(f'v_mov_b32 v{vT+9}, s{sC}')
        def finish(rt, u):
            b0, b1 = Qacc(2*u, rt), Qacc(2*u + 1, rt)
            L = []
            for b in (b0, b1):
                L.append(f'v_pk_mul_f32 {vr(b,2)}, {vr(b,2)}, {vr(vT+8,2)}')
                L.append(f'v_pk_mul_f32 {vr(b+2,2)}, {vr(b+2,2)}, {vr(vT+8,2)}')
            L += [f'v_cvt_pk_bf16_f32 v{b0}, v{b0}, v{b0+1}', f'v_cvt_pk_bf16_f32 v{b0+1}, v{b0+2}, v{b0+3}',
                  f'v_cvt_pk_bf16_f32 v{b0+2}, v{b1}, v{b1+1}', f'v_cvt_pk_bf16_f32 v{b0+3}, v{b1+2}, v{b1+3}']
            G = [[(t, None)] for t in L]
            G.append([(f'ds_write_b128 v{vT+4}, {vr(b0, 4)} offset:{(rt*2 + u)*1024}', 'qw')])
            G += [[(f'v_accvgpr_write_b32 a{Qf(rt, u)+k}, v{b0+k}', None)] for k in range(4)]
            return G
        pairs = [(rt, u) for u in range(2) for rt in range(5)]
        if self.cfg.get('qxov', 1):
            def mf(tt, rt):
                acc = vr(Qacc(tt, rt), 4)
                return f'{MFMA} {acc}, {ar(aWF[1] + 4*tt, 4)}, {ar(aXF[1] + 4*rt, 4)}, {acc}'
            pend = []
            for k, (rt, u) in enumerate(pairs):
                e(mf(2*u, rt))
                take = pend[:3]; pend = pend[3:]
                emit_groups(e, take)
                e(mf(2*u + 1, rt))
                take = pend[:3]; pend = pend[3:]
                emit_groups(e, take)
                if k >= 3: pend += finish(*pairs[k - 3])
            emit_groups(e, pend)
            for k in range(7, 10): emit_groups(e, finish(*pairs[k]))
        else:
            for (rt, u) in pairs: emit_groups(e, finish(rt, u))
        self.cstamp(3, 8)
        e.wait_lg()
        self.cstamp(4, 8)
        e('s_barrier')
        self.cstamp(5, 8)
        for rt in range(5):
            for u in range(2):
                e(f'ds_read_b128 {ar(Qf(rt, 2 + u), 4)}, v{vT+5} offset:{(rt*2 + u)*1024}', 'qr')
        e(f'v_mov_b32 v{vT}, 0x3f803f80')
        for k in range(4): e(f'v_accvgpr_write_b32 a{aOne+k}, v{vT}')
        e.wait_lg()
        self.cstamp(6, 8)
        e('s_barrier')
        self.cstamp(7, 8)
        emit_groups(e, self.kv_dma('V', 1, ('V', 1)))
        self.cstamp(8, 8)

    def rowmax_xlane(self, r, rt):
        mx, t = vT + rt, vT + 5
        r(f'v_mov_b32 v{t}, v{mx}')
        r(f'v_permlane16_swap_b32 v{mx}, v{t}')
        r(f'v_max_f32 v{mx}, v{mx}, v{t}')
        r(f'v_mov_b32 v{t}, v{mx}')
        r(f'v_permlane32_swap_b32 v{mx}, v{t}')
        r(f'v_max_f32 v{mx}, v{mx}, v{t}')

    def rare_block(self, lab, back):
        r = Emitter()
        r.label(lab)
        r('s_nop 7')
        f = vT + 6
        for rt in range(5):
            mx = vT + rt
            self.rowmax_xlane(r, rt)
            r(f'v_max_f32 v{mx}, 0, v{mx}')
            r(f'v_sub_f32 v{f}, 0, v{mx}')
            r(f'v_exp_f32 v{f}, v{f}')
            for k in range(4): r(f'v_sub_f32 v{NM(rt)+k}, v{NM(rt)+k}, v{mx}')
            for k in range(8): r(f'v_sub_f32 v{Sreg(rt,0)+k}, v{Sreg(rt,0)+k}, v{mx}')
            for k in range(4):
                r(f'v_accvgpr_read_b32 v{vT+8}, a{Lf(rt)+k}')
                r(f'v_mul_f32 v{vT+8}, v{vT+8}, v{f}')
                r(f'v_accvgpr_write_b32 a{Lf(rt)+k}, v{vT+8}')
            for ts in range(8):
                b = Oreg(ts, rt)
                r(f'v_pk_mul_f32 {vr(b,2)}, {vr(b,2)}, {vr(f,2)} op_sel_hi:[1,0]')
                r(f'v_pk_mul_f32 {vr(b+2,2)}, {vr(b+2,2)}, {vr(f,2)} op_sel_hi:[1,0]')
        r('s_nop 7')
        r(f's_branch {back}')
        r.fix_hazards()
        self.rare.append(r)

    def k_reads(self, it, par):
        e = self.e
        e.wait_vm(('K', it))
        for s in range(4):
            for kt in range(2):
                e(f'ds_read_b128 {ar(Kf(kt, s), 4)}, v{vKr+s} offset:{par*32768 + kt*4096}', 'k')

    def iteration(self, it, par, issue_next, next_k=True, first=False, send=False, xq=None, xp=None):
        e = self.e
        mx = [vT + i for i in range(5)]
        def maxops(rt):
            b = Sreg(rt, 0)
            return [[(f'v_max3_f32 v{mx[rt]}, v{b}, v{b+1}, v{b+2}', None)],
                    [(f'v_max3_f32 v{mx[rt]}, v{mx[rt]}, v{b+3}, v{b+4}', None)],
                    [(f'v_max3_f32 v{mx[rt]}, v{mx[rt]}, v{b+5}, v{b+6}', None)],
                    [(f'v_max_f32 v{mx[rt]}, v{mx[rt]}, v{b+7}', None)]]
        def softmax(rt):
            b = Sreg(rt, 0)
            L = []
            for k in range(4):
                L.append(f'v_exp_f32 v{b+2*k}, v{b+2*k}')
                L.append(f'v_exp_f32 v{b+2*k+1}, v{b+2*k+1}')
            for k in range(4): L.append(f'v_cvt_pk_bf16_f32 v{b+k}, v{b+2*k}, v{b+2*k+1}')
            return [[(t, None)] for t in L]
        def vreads():
            return [[(f'ds_read_b64_tr_b16 {ar(Vf(ts) + 2*sec, 2)}, v{vVr+ts} offset:{par*32768 + sec*4096}', 'v')] for ts in range(8) for sec in range(2)]
        dbg7 = self.cfg.get('stamps') == 7 and it == 2
        if dbg7: self.cstamp(0, 7)
        e.wait_lg()
        mb = self.cfg.get('mainbar', 1)
        if mb and issue_next:
            self.nbar = getattr(self, 'nbar', 0) + 1
            if mb == 1:
                e(f's_cmp_lg_u32 s{sBr}, 0')
                e(f's_cbranch_scc1 L_{self.name}_nb{self.nbar}')
                e('s_barrier')
                e.label(f'L_{self.name}_nb{self.nbar}')
            else:
                e('s_barrier')
        G = self.kv_dma('K', par, ('K', it + 2)) if issue_next else []
        for rt in range(5):
            mf = []
            for s in range(4):
                for kt in range(2):
                    acc = vr(Sreg(rt, kt), 4)
                    cc = acc if s else ('0' if first else vr(NM(rt), 4))
                    mf.append(f'{MFMA} {acc}, {ar(Kf(kt, s), 4)}, {ar(Qf(rt, s), 4)}, {cc}')
            extra = []
            if rt < 4 and G: extra += G[2*rt:2*rt+2]
            if rt >= 2: extra += maxops(rt - 2)
            if xq and rt in xq: extra = [xq[rt]] + extra
            if rt == 4:
                e.wait_vm(('V', it))
                R = vreads()
                extra = extra[:2] + R[:4] + extra[2:] + R[4:8]
                interleave(e, mf, extra, start=0)
                emit_groups(e, R[8:])
            else:
                interleave(e, mf, extra, start=1)
        if dbg7: self.cstamp(1, 7)
        emit_groups(e, maxops(3))
        emit_groups(e, maxops(4))
        if first:
            for rt in range(5):
                self.rowmax_xlane(e, rt)
                for k in range(4): e(f'v_sub_f32 v{NM(rt)+k}, 0, v{mx[rt]}')
                for k in range(8): e(f'v_sub_f32 v{Sreg(rt,0)+k}, v{Sreg(rt,0)+k}, v{mx[rt]}')
        else:
            t = vT + 5
            e(f'v_max3_f32 v{t}, v{mx[0]}, v{mx[1]}, v{mx[2]}')
            e(f'v_max3_f32 v{t}, v{t}, v{mx[3]}, v{mx[4]}')
            e(f'v_cmp_lt_f32 vcc, s{sT}, v{t}')
            self.nrare += 1
            lab, back = f'L_{self.name}_rare{self.nrare}', f'L_{self.name}_back{self.nrare}'
            e(f's_cbranch_vccnz {lab}')
            e.label(back)
            self.rare_block(lab, back)
        if dbg7: self.cstamp(2, 7)
        emit_groups(e, softmax(0))
        e.wait_lg()
        if dbg7: self.cstamp(3, 7)
        G = self.kv_dma('V', par, ('V', it + 2)) if issue_next else []
        for rt in range(5):
            mf = []
            P = vr(Sreg(rt, 0), 4)
            for ts in range(8):
                acc = vr(Oreg(ts, rt), 4)
                mf.append(f'{MFMA} {acc}, {ar(Vf(ts), 4)}, {P}, {"0" if first else acc}')
            la = ar(Lf(rt), 4)
            mf.append(f'{MFMA} {la}, {ar(aOne, 4)}, {P}, {"0" if first else la}')
            snd = self.send_groups(rt - 1) if (send and rt >= 1) else []
            if xp and rt in xp: snd = [xp[rt]] + snd
            if rt < 4:
                sm = softmax(rt + 1)
                gg = G[2*rt:2*rt+2] if G else []
                extra = sm[:4] + gg[:1] + sm[4:8] + snd[:2] + gg[1:] + sm[8:] + snd[2:]
                interleave(e, mf, extra, start=0)
            else:
                if dbg7: self.cstamp(4, 7)
                if next_k: self.k_reads(it + 1, par ^ 1)
                if dbg7: self.cstamp(5, 7)
                if snd: interleave(e, mf, snd, start=3)
                else:
                    for t in mf: e(t)

    def dbg7_end(self):
        self.cstamp(6, 7)

    def send_groups(self, rt):
        G = []
        for ts in range(4, 8):
            q = rt * 4 + (ts - 4)
            if q < 8: a, off = 53, q * 1024
            elif q < 16: a, off = 53, 32768 + (q - 8) * 1024
            else: a, off = 54, (q - 16) * 1024
            G.append([(f'ds_write_b128 v{a}, {vr(Oreg(ts, rt), 4)} offset:{off}', 'ow')])
        return G

    def main_loop(self):
        e = self.e
        self.k_reads(0, 0)
        self.iteration(0, 0, True, first=True)
        self.iteration(1, 1, True)
        if self.cfg.get('flow'):
            assert ('P', 0) not in e.vmq
            self.arrive2()
        self.stamp(3)
        q0 = [(k, i - 2) for (k, i) in e.vmq]
        l0 = list(e.lgq)
        e(f's_mov_b32 s{sLoop}, 6')
        e.label(f'L_{self.name}_loop')
        self.iteration(2, 0, True)
        self.dbg7_end()
        self.iteration(3, 1, True)
        q1 = [(k, i - 4) for (k, i) in e.vmq]
        assert q0 == q1, (q0, q1)
        assert l0 == e.lgq
        e(f's_sub_u32 s{sLoop}, s{sLoop}, 1')
        e(f's_cmp_lg_u32 s{sLoop}, 0')
        e(f's_cbranch_scc1 L_{self.name}_loop')
        if self.cfg.get('flow'): self.flag_load()
        if self.cfg.get('fused') and self.cfg.get('wwarm', 1) == 3: self.wo_warm()
        w5 = self.cfg.get('fused') and self.cfg.get('wwarm', 1) == 5
        if w5: self.wo_warm_setup()
        pos = self.cfg.get('wpos', [[None, {1: 0, 4: 1}], [{2: 2}, {1: 3, 4: 4}]])
        mk = lambda d: ({int(k): self.wo_warm_group(v) for k, v in d.items()} if (d and w5) else None)
        self.iteration(4, 0, False, xq=mk(pos[0][0]), xp=mk(pos[0][1]))
        if self.cfg.get('fused') and self.cfg.get('wwarm', 1) == 4: self.wo_warm()
        if self.cfg.get('epi2', 1):
            e(f'v_lshlrev_b32 v53, 4, v{vL}')
            e(f'v_add_u32 v53, s{sKl}, v53')
            e(f'v_add_u32 v54, {VS}, v53')
        self.iteration(5, 1, False, next_k=False, send=bool(self.cfg.get('epi2', 1)), xq=mk(pos[1][0]), xp=mk(pos[1][1]))

    def wo_warm(self):
        e = self.e
        q, r, t = vT + 7, vT + 8, vT + 11
        e(f's_bfe_u32 s{sT0}, s2, 0x10002')
        e(f's_cmp_eq_u32 s{sT0}, 0')
        e(f's_cselect_b32 s8, s48, s100')
        e(f's_cselect_b32 s9, s49, s101')
        e(f's_mov_b32 s10, {4096*1152}')
        e(f's_mov_b32 s11, 0x00020000')
        e(f's_bfe_u32 s{sT1}, s2, 0x10001')
        e(f's_lshl_b32 s{sT1}, s{sT1}, 9')
        e(f's_lshr_b32 s{sT0}, s2, 3')
        e(f's_lshl_b32 s{sT0}, s{sT0}, 2')
        e(f's_add_u32 s{sT0}, s{sT0}, s{sWv}')
        e(f's_mul_i32 s{sT0}, s{sT0}, 192')
        e(f's_mov_b32 s{sT2}, 52429')
        for i in range(3):
            e(f'v_add_u32 v{q}, s{sT0}, v{vL}')
            if i: e(f'v_add_u32 v{q}, {64*i}, v{q}')
            e(f'v_mul_lo_u32 v{r}, v{q}, s{sT2}')
            e(f'v_lshrrev_b32 v{r}, 18, v{r}')
            e(f'v_mul_u32_u24 v{t}, 5, v{r}')
            e(f'v_sub_u32 v{q}, v{q}, v{t}')
            e(f'v_mul_u32_u24 v{r}, 1152, v{r}')
            e(f'v_lshl_add_u32 v{q}, v{q}, 7, v{r}')
            e(f'buffer_load_dword v22, v{q}, s[8:11], s{sT1} offen', 'warm')

    def wo_warm_setup(self):
        e = self.e
        r, t = vT + 7, vT + 8
        e(f's_bfe_u32 s{sT0}, s2, 0x10002')
        e(f's_cmp_eq_u32 s{sT0}, 0')
        e(f's_cselect_b32 s8, s48, s100')
        e(f's_cselect_b32 s9, s49, s101')
        e(f's_mov_b32 s10, {4096*1152}')
        e(f's_mov_b32 s11, 0x00020000')
        e(f's_bfe_u32 s4, s2, 0x10001')
        e(f's_lshl_b32 s4, s4, 9')
        e(f's_lshr_b32 s{sT0}, s2, 3')
        e(f's_lshl_b32 s{sT0}, s{sT0}, 2')
        e(f's_add_u32 s{sT0}, s{sT0}, s{sWv}')
        e(f's_mul_i32 s{sT0}, s{sT0}, 160')
        e(f's_mov_b32 s{sT2}, 52429')
        for i, q in enumerate((22, 23, 55)):
            e(f'v_add_u32 v{q}, s{sT0}, v{vL}')
            if i: e(f'v_add_u32 v{q}, {64*i}, v{q}')
            e(f'v_mul_lo_u32 v{r}, v{q}, s{sT2}')
            e(f'v_lshrrev_b32 v{r}, 18, v{r}')
            e(f'v_mul_u32_u24 v{t}, 5, v{r}')
            e(f'v_sub_u32 v{q}, v{q}, v{t}')
            e(f'v_mul_u32_u24 v{r}, 1152, v{r}')
            e(f'v_lshl_add_u32 v{q}, v{q}, 7, v{r}')

    def wo_warm_group(self, j):
        q = (22, 23, 55)[j >> 1]
        lo, hi = ('-1', '0') if (j & 1) == 0 else ('0', '-1')
        return [(f's_mov_b32 exec_lo, {lo}', None), (f's_mov_b32 exec_hi, {hi}', None),
                (f'buffer_load_dword a250, v{q}, s[8:11], s4 offen', 'warm'), ('s_mov_b64 exec, -1', None)]

    def wo_warm_a(self):
        e = self.e
        n = self.name
        q, r, t = vT + 7, vT + 8, vT + 11
        e(f's_cmp_lg_u32 s{sBr}, 0')
        e(f's_cbranch_scc1 L_{n}_nowarma')
        e(f's_bfe_u32 s{sT0}, s2, 0x10002')
        e(f's_cmp_eq_u32 s{sT0}, 0')
        e(f's_cselect_b32 s8, s48, s100')
        e(f's_cselect_b32 s9, s49, s101')
        e(f's_mov_b32 s10, {4096*1152}')
        e(f's_mov_b32 s11, 0x00020000')
        e(f's_bfe_u32 s{sT1}, s2, 0x10001')
        e(f's_lshl_b32 s{sT1}, s{sT1}, 9')
        e(f's_lshr_b32 s{sT0}, s2, 3')
        e(f's_lshl_b32 s{sT0}, s{sT0}, 2')
        e(f's_add_u32 s{sT0}, s{sT0}, s{sWv}')
        e(f's_mul_i32 s{sT0}, s{sT0}, 320')
        e(f's_mov_b32 s{sT2}, 52429')
        for i in range(5):
            e(f'v_add_u32 v{q}, s{sT0}, v{vL}')
            if i: e(f'v_add_u32 v{q}, {64*i}, v{q}')
            e(f'v_mul_lo_u32 v{r}, v{q}, s{sT2}')
            e(f'v_lshrrev_b32 v{r}, 18, v{r}')
            e(f'v_mul_u32_u24 v{t}, 5, v{r}')
            e(f'v_sub_u32 v{q}, v{q}, v{t}')
            e(f'v_mul_u32_u24 v{r}, 1152, v{r}')
            e(f'v_lshl_add_u32 v{q}, v{q}, 7, v{r}')
            e(f'buffer_load_dword v22, v{q}, s[8:11], s{sT1} offen', 'warm')
            e.vmq.pop()
        e.label(f'L_{n}_nowarma')

    def wo_warm2(self):
        e = self.e
        n = self.name
        q, r, t = vT + 7, vT + 8, vT + 11
        e(f's_cmp_eq_u32 s{sWv}, 0')
        e(f's_cbranch_scc1 L_{n}_nowarm')
        e(f's_bfe_u32 s{sT0}, s2, 0x10002')
        e(f's_cmp_eq_u32 s{sT0}, 0')
        e(f's_cselect_b32 s8, s48, s100')
        e(f's_cselect_b32 s9, s49, s101')
        e(f's_mov_b32 s10, {4096*1152}')
        e(f's_mov_b32 s11, 0x00020000')
        e(f's_bfe_u32 s{sT1}, s2, 0x10001')
        e(f's_lshl_b32 s{sT1}, s{sT1}, 9')
        e(f's_lshr_b32 s{sT0}, s2, 3')
        e(f's_mul_i32 s{sT0}, s{sT0}, 3')
        e(f's_add_u32 s{sT0}, s{sT0}, s{sWv}')
        e(f's_sub_u32 s{sT0}, s{sT0}, 1')
        e(f's_lshl_b32 s{sT0}, s{sT0}, 8')
        e(f's_mov_b32 s{sT2}, 52429')
        for i in range(4):
            e(f'v_add_u32 v{q}, s{sT0}, v{vL}')
            if i: e(f'v_add_u32 v{q}, {64*i}, v{q}')
            e(f'v_mul_lo_u32 v{r}, v{q}, s{sT2}')
            e(f'v_lshrrev_b32 v{r}, 18, v{r}')
            e(f'v_mul_u32_u24 v{t}, 5, v{r}')
            e(f'v_sub_u32 v{q}, v{q}, v{t}')
            e(f'v_mul_u32_u24 v{r}, 1152, v{r}')
            e(f'v_lshl_add_u32 v{q}, v{q}, 7, v{r}')
            e(f'buffer_load_dword v22, v{q}, s[8:11], s{sT1} offen', 'warm')
        e('s_waitcnt vmcnt(4)')
        e(f's_branch L_{n}_warmdone')
        e.label(f'L_{n}_nowarm')
        e('s_waitcnt vmcnt(0)')
        e.label(f'L_{n}_warmdone')
        e.vmq = []

    def epilogue2(self):
        e = self.e
        t0 = vT
        self.cstamp(0, 6)
        emit_groups(e, self.send_groups(4))
        if self.cfg.get('fused') and self.cfg.get('wwarm', 1) == 6: self.wo_warm_a()
        if self.cfg.get('flow'): self.flag_check()
        if self.cfg.get('fused') and self.cfg.get('wwarm', 1) == 1:
            if self.cfg.get('t4'):
                import tail4; tail4.wo_warm(self)
            else: self.wo_warm()
        if self.cfg.get('t4') and self.cfg.get('t4early', 1):
            import tail4; tail4.early(self)
        vMx, vLx = vS + 30, vS + 35
        for rt in range(5):
            e(f'v_sub_f32 v{vMx+rt}, 0, v{NM(rt)}')
            e(f'v_accvgpr_read_b32 v{vLx+rt}, a{Lf(rt)}')
        aw, ap = vT + 2, vT + 3
        e(f's_mul_i32 s{sT0}, s{sWv}, 640')
        e(f's_add_u32 s{sT0}, s{sT0}, {STATS}')
        e(f'v_lshlrev_b32 v{t0}, 3, v{vN}')
        e(f'v_add_u32 v{aw}, s{sT0}, v{t0}')
        e(f's_xor_b32 s{sT1}, s{sWv}, 1')
        e(f's_mul_i32 s{sT2}, s{sT1}, 640')
        e(f's_add_u32 s{sT2}, s{sT2}, {STATS}')
        e(f'v_add_u32 v{ap}, s{sT2}, v{t0}')
        for rt in range(5):
            e(f'ds_write2_b32 v{aw}, v{vMx+rt}, v{vLx+rt} offset0:{rt*32} offset1:{rt*32+1}', 'sw')
        e(f's_lshl_b32 s{sT1}, s{sT1}, 13')
        e(f'v_lshlrev_b32 v{t0}, 4, v{vL}')
        e(f'v_add_u32 v23, s{sT1}, v{t0}')
        e(f'v_add_u32 v{vT+1}, {VS}, v23')
        pa, pb = 23, vT + 1
        e.wait_lg()
        self.cstamp(1, 6)
        e('s_barrier')
        self.cstamp(2, 6)
        for rt in range(5):
            e(f'ds_read_b64 {vr(vS + 2*rt, 2)}, v{ap} offset:{rt*128}', 'sr')
        def reads(rt):
            for ts in range(4):
                q = rt * 4 + ts
                if q < 8: a, off = pa, q * 1024
                elif q < 16: a, off = pa, 32768 + (q - 8) * 1024
                else: a, off = pb, (q - 16) * 1024
                e(f'ds_read_b128 {vr(Oreg(ts+4, rt),4)}, v{a} offset:{off}', ('or', rt))
        reads(0); reads(1)
        e.wait_lg('sr')
        Go, Gp = vS + 16, vS + 40 - 40 + 0
        Mv = [vS + 10 + rt for rt in range(5)]
        Fo = [vT + 4 + rt for rt in range(5)]
        for rt in range(5): e(f'v_max_f32 v{Mv[rt]}, v{vMx+rt}, v{vS + 2*rt}')
        for rt in range(5):
            e(f'v_sub_f32 v{Fo[rt]}, v{vMx+rt}, v{Mv[rt]}')
            e(f'v_sub_f32 v{vS + 2*rt}, v{vS + 2*rt}, v{Mv[rt]}')
        for rt in range(5):
            e(f'v_exp_f32 v{Fo[rt]}, v{Fo[rt]}')
            e(f'v_exp_f32 v{vS + 2*rt}, v{vS + 2*rt}')
        for rt in range(5): e(f'v_mul_f32 v{vS + 2*rt + 1}, v{vS + 2*rt + 1}, v{vS + 2*rt}')
        for rt in range(5): e(f'v_fma_f32 v{vS + 2*rt + 1}, v{vLx+rt}, v{Fo[rt]}, v{vS + 2*rt + 1}')
        for rt in range(5): e(f'v_rcp_f32 v{vS + 2*rt + 1}, v{vS + 2*rt + 1}')
        for rt in range(5):
            e(f'v_mul_f32 v{Go + 2*rt}, v{Fo[rt]}, v{vS + 2*rt + 1}')
            e(f'v_mul_f32 v{vS + 2*rt}, v{vS + 2*rt}, v{vS + 2*rt + 1}')
        for k in (3, 4, 5, 6): self.cstamp(k, 6)
        so = vT + 6
        e(f'v_lshlrev_b32 v{so}, 4, v{vL}')
        for rt in range(5):
            if rt + 2 < 5: reads(rt + 2)
            e.wait_lg(('or', rt))
            go, gp = Go + 2*rt, vS + 2*rt
            for ts in range(4):
                a, b = Oreg(ts, rt), Oreg(ts + 4, rt)
                e(f'v_pk_mul_f32 {vr(b,2)}, {vr(b,2)}, {vr(gp,2)} op_sel_hi:[1,0]')
                e(f'v_pk_mul_f32 {vr(b+2,2)}, {vr(b+2,2)}, {vr(gp,2)} op_sel_hi:[1,0]')
                e(f'v_pk_fma_f32 {vr(a,2)}, {vr(a,2)}, {vr(go,2)}, {vr(b,2)} op_sel_hi:[1,0,1]')
                e(f'v_pk_fma_f32 {vr(a+2,2)}, {vr(a+2,2)}, {vr(go,2)}, {vr(b+2,2)} op_sel_hi:[1,0,1]')
            for u in range(2):
                a, b = Oreg(2*u, rt), Oreg(2*u + 1, rt)
                e(f'v_cvt_pk_bf16_f32 v{a}, v{a}, v{a+1}')
                e(f'v_cvt_pk_bf16_f32 v{a+1}, v{a+2}, v{a+3}')
                e(f'v_cvt_pk_bf16_f32 v{a+2}, v{b}, v{b+1}')
                e(f'v_cvt_pk_bf16_f32 v{a+3}, v{b+2}, v{b+3}')
                e(f'buffer_store_dwordx4 {vr(a,4)}, v{so}, s[{sO}:{sO+3}], s{sOoff} offen offset:{u*1024}{self.ofl}', 'ost')
            if rt < 4:
                e(f's_add_u32 s{sOoff}, s{sOoff}, 131072')
        self.cstamp(7, 6)
        if self.cfg.get('stamps') and (not self.cfg.get('fused') or self.cfg.get('stamps') == 6) and not self.cfg.get('flow'): e.wait_vm('ost')
        self.cstamp(8, 6)

    def epilogue(self):
        if self.cfg.get('epi2', 1): return self.epilogue2()
        e = self.e
        t0, t1 = vT, vT + 1
        self.cstamp(0, 6)
        if self.cfg.get('flow'): self.flag_check()
        if self.cfg.get('fused') and self.cfg.get('wwarm', 1) == 1:
            if self.cfg.get('t4'):
                import tail4; tail4.wo_warm(self)
            else: self.wo_warm()
        if self.cfg.get('t4') and self.cfg.get('t4early', 1):
            import tail4; tail4.early(self)
        vMx, vLx = vS + 30, vS + 35
        for rt in range(5):
            e(f'v_sub_f32 v{vMx+rt}, 0, v{NM(rt)}')
            e(f'v_accvgpr_read_b32 v{vLx+rt}, a{Lf(rt)}')
        aw, ap = vT + 2, vT + 3
        e(f's_mul_i32 s{sT0}, s{sWv}, 640')
        e(f's_add_u32 s{sT0}, s{sT0}, {STATS}')
        e(f'v_lshlrev_b32 v{t0}, 3, v{vN}')
        e(f'v_add_u32 v{aw}, s{sT0}, v{t0}')
        e(f's_xor_b32 s{sT1}, s{sWv}, 1')
        e(f's_mul_i32 s{sT1}, s{sT1}, 640')
        e(f's_add_u32 s{sT1}, s{sT1}, {STATS}')
        e(f'v_add_u32 v{ap}, s{sT1}, v{t0}')
        for rt in range(5):
            e(f'ds_write2_b32 v{aw}, v{vMx+rt}, v{vLx+rt} offset0:{rt*32} offset1:{rt*32+1}', 'sw')
        e.wait_lg()
        self.cstamp(1, 6)
        e('s_barrier')
        self.cstamp(2, 6)
        for rt in range(5):
            e(f'ds_read_b64 {vr(vS + 2*rt, 2)}, v{ap} offset:{rt*128}', 'sr')
        e.wait_lg()
        G = vS + 16
        Mv = [vS + 10 + rt for rt in range(5)]
        Fo = [vT + 4 + rt for rt in range(5)]
        for rt in range(5): e(f'v_max_f32 v{Mv[rt]}, v{vMx+rt}, v{vS + 2*rt}')
        for rt in range(5):
            e(f'v_sub_f32 v{Fo[rt]}, v{vMx+rt}, v{Mv[rt]}')
            e(f'v_sub_f32 v{vS + 2*rt}, v{vS + 2*rt}, v{Mv[rt]}')
        for rt in range(5):
            e(f'v_exp_f32 v{Fo[rt]}, v{Fo[rt]}')
            e(f'v_exp_f32 v{vS + 2*rt}, v{vS + 2*rt}')
        for rt in range(5): e(f'v_mul_f32 v{vS + 2*rt + 1}, v{vS + 2*rt + 1}, v{vS + 2*rt}')
        for rt in range(5): e(f'v_fma_f32 v{vS + 2*rt + 1}, v{vLx+rt}, v{Fo[rt]}, v{vS + 2*rt + 1}')
        for rt in range(5): e(f'v_rcp_f32 v{vS + 2*rt + 1}, v{vS + 2*rt + 1}')
        for rt in range(5): e(f'v_mul_f32 v{G + 2*rt}, v{Fo[rt]}, v{vS + 2*rt + 1}')
        self.cstamp(3, 6)
        xa = vT + 9
        e(f's_mul_i32 s{sT0}, s{sWv}, 20480')
        e(f's_add_u32 s{sT0}, s{sT0}, {OX}')
        e(f'v_lshlrev_b32 v{t0}, 4, v{vL}')
        e(f'v_add_u32 v{xa}, s{sT0}, v{t0}')
        e(f's_xor_b32 s{sT1}, s{sWv}, 1')
        e(f's_mul_i32 s{sT1}, s{sT1}, 20480')
        e(f's_add_u32 s{sT1}, s{sT1}, {OX}')
        e(f'v_add_u32 v{xa+1}, s{sT1}, v{t0}')
        for ts in (4, 5, 6, 7):
            for rt in range(5):
                b = Oreg(ts, rt); g = G + 2*rt
                e(f'v_pk_mul_f32 {vr(b,2)}, {vr(b,2)}, {vr(g,2)} op_sel_hi:[1,0]')
                e(f'v_pk_mul_f32 {vr(b+2,2)}, {vr(b+2,2)}, {vr(g,2)} op_sel_hi:[1,0]')
                if ts >= 4:
                    e(f'ds_write_b128 v{xa}, {vr(b,4)} offset:{((ts-4)*5+rt)*1024}', 'ow')
        e.wait_lg()
        self.cstamp(4, 6)
        e('s_barrier')
        self.cstamp(5, 6)
        self.cstamp(6, 6)
        so = vT + 6
        e(f'v_lshlrev_b32 v{so}, 4, v{vL}')
        def reads(rt):
            for ts in range(4):
                e(f'ds_read_b128 {vr(Oreg(ts+4, rt),4)}, v{xa+1} offset:{(ts*5+rt)*1024}', ('or', rt))
        reads(0); reads(1)
        for rt in range(5):
            if rt + 2 < 5: reads(rt + 2)
            e.wait_lg(('or', rt))
            g = vS + 16 + 2*rt
            for ts in range(4):
                a, b = Oreg(ts, rt), Oreg(ts + 4, rt)
                e(f'v_pk_fma_f32 {vr(a,2)}, {vr(a,2)}, {vr(g,2)}, {vr(b,2)} op_sel_hi:[1,0,1]')
                e(f'v_pk_fma_f32 {vr(a+2,2)}, {vr(a+2,2)}, {vr(g,2)}, {vr(b+2,2)} op_sel_hi:[1,0,1]')
            for u in range(2):
                a, b = Oreg(2*u, rt), Oreg(2*u + 1, rt)
                e(f'v_cvt_pk_bf16_f32 v{a}, v{a}, v{a+1}')
                e(f'v_cvt_pk_bf16_f32 v{a+1}, v{a+2}, v{a+3}')
                e(f'v_cvt_pk_bf16_f32 v{a+2}, v{b}, v{b+1}')
                e(f'v_cvt_pk_bf16_f32 v{a+3}, v{b+2}, v{b+3}')
                e(f'buffer_store_dwordx4 {vr(a,4)}, v{so}, s[{sO}:{sO+3}], s{sOoff} offen offset:{u*1024}{self.ofl}', 'ost')
            if rt < 4:
                e(f's_add_u32 s{sOoff}, s{sOoff}, 131072')
        self.cstamp(7, 6)
        if self.cfg.get('fused') and self.cfg.get('wwarm', 1) == 2: self.wo_warm2()
        if self.cfg.get('stamps') and (not self.cfg.get('fused') or self.cfg.get('stamps') == 6) and not self.cfg.get('flow'): e.wait_vm('ost')
        self.cstamp(8, 6)

    def _epi_add(self, ts):
        e = self.e
        e.wait_lg(('or', ts))
        for rt in range(5):
            a, b = Oreg(ts, rt), Oreg(ts + 4, rt)
            g = vS + 16 + 2*rt
            e(f'v_pk_fma_f32 {vr(a,2)}, {vr(a,2)}, {vr(g,2)}, {vr(b,2)} op_sel_hi:[1,0,1]')
            e(f'v_pk_fma_f32 {vr(a+2,2)}, {vr(a+2,2)}, {vr(g,2)}, {vr(b+2,2)} op_sel_hi:[1,0,1]')

    def build(self):
        e = self.e
        n = self.name
        e.raw(f'.globl {n}\n.p2align 8\n.type {n},@function')
        e.label(n)
        self.stamp(0); self.stamp(0, 2); self.stamp(0, 3); self.cstamp(4); self.stamp(0, 5); self.cstamp(1, 5)
        self.prologue()
        e(f's_cmp_eq_u32 s{sBr}, 0')
        e(f's_cbranch_scc0 L_{n}_qB')
        saved = (list(e.vmq), list(e.lgq))
        self.q_phase('A')
        endA = (list(e.vmq), list(e.lgq))
        e(f's_branch L_{n}_qx')
        e.label(f'L_{n}_qB')
        e.vmq, e.lgq = list(saved[0]), list(saved[1])
        self.q_phase('B')
        assert (e.vmq, e.lgq) == endA, (e.vmq, endA)
        e.label(f'L_{n}_qx')
        self.stamp(1); self.stamp(11, 2); self.stamp(1, 3); self.cstamp(5)
        self.q_exchange()
        self.stamp(2); self.stamp(12, 2); self.stamp(2, 3); self.cstamp(6); self.stamp(2, 5)
        self.main_loop()
        self.stamp(4); self.stamp(3, 3); self.cstamp(7); self.stamp(3, 5)
        self.epilogue()
        self.stamp(5)
        if self.cfg.get('fused'):
            if self.cfg.get('t4'): from tail4 import fused_tail
            else: from tail import fused_tail
            fused_tail(self)
            self.stamp(9)
            if self.cfg.get('stamps') == 5:
                self.stamp(4, 5); self.cstamp(5, 5)
                e('s_waitcnt lgkmcnt(0)')
                e(f's_cmp_lg_u32 s2, {self.cfg.get("dbgwg", 0)}')
                e(f's_cbranch_scc1 L_{n}_end')
                e(f's_cmp_lg_u32 s{sWv}, 0')
                e(f's_cbranch_scc1 L_{n}_end')
                e('s_sub_u32 s78, s78, s70')
                e('s_sub_u32 s80, s80, s72')
                e('s_sub_u32 s76, s76, s70')
                e('s_sub_u32 s74, s74, s70')
                e('v_mov_b32 v4, s78'); e('v_mov_b32 v5, s80'); e('v_mov_b32 v6, s76'); e('v_mov_b32 v7, s74')
                e('v_mov_b32 v8, 48')
                e('s_mov_b64 exec, 1')
                e('buffer_store_dwordx4 v[4:7], v8, s[16:19], 0 offen')
                e('s_waitcnt vmcnt(0)')
                e.vmq = []
            else:
                self.write_stamps(10 if self.cfg.get('stamps') == 1 else 13)
        else:
            self.write_stamps(6 if self.cfg.get('stamps') == 1 else 13)
        e.label(f'L_{n}_end')
        e('s_endpgm')
        for r in self.rare:
            e.ins.extend(r.ins)
        e('s_endpgm')
        kd = f'''
.amdhsa_kernel {n}
  .amdhsa_next_free_vgpr 512
  .amdhsa_next_free_sgpr 102
  .amdhsa_accum_offset 256
  .amdhsa_group_segment_fixed_size 0
  .amdhsa_kernarg_size 104
  .amdhsa_user_sgpr_count 2
  .amdhsa_user_sgpr_kernarg_segment_ptr 1
  .amdhsa_system_sgpr_workgroup_id_x 1
.end_amdhsa_kernel
'''
        return kd
```

```python
from asmgen import *

X_BYTES = 8 * 80 * 1152
W_BYTES = 576 * 8192
KA_BYTES = 8 * 16 * 1024 * 256
KB_BYTES = 8 * 32 * 1024 * 256
O_BR = 40 * 128 * 1024
O_BYTES = 2 * O_BR

QBUF0, QBUFSZ = 34816, 43008
KS, VS = 0, 65536
QIMG = 122880
STATS = 131072
OX = 0

sX, sW, sK, sV, sO = 4, 8, 12, 16, 20
sWv, sJ, sKH, sBr, sC, sT = 24, 25, 26, 27, 28, 29
sKoff, sVoff, sKl, sVl = 30, 31, 32, 33
sXoff, sWoff, sOoff = 34, 35, 36
sT0, sT1, sT2 = 37, 38, 39
sP = 40
sLoop = 60
sXl, sWl = 61, 62
sKt, sVt = 96, 97
sB, sH = 63, 64
sCc, sXc, sWc, sX3c = 67, 68, 69, 3
vL, vN, vG = 1, 2, 3
vKd, vVd = 4, 8
vKr, vVr = 10, 14
vNM = 24
vXr, vWr = 36, 38
vT = 44
vXd, vWd = 56, 60
vQA = 64
vS = 56
vO = 96
aQ = 0
aK = 80
aV = 112
aL = 144
aOne = 164
aXF = [168, 204]
aWF = [188, 224]

def Sreg(rt, kt): return vS + rt * 8 + kt * 4
def Oreg(ts, rt): return vO + (ts * 5 + rt) * 4
def Qacc(tt, rt): return vO + (tt * 5 + rt) * 4
def Qf(rt, s): return aQ + (rt * 4 + s) * 4
def Kf(kt, s): return aK + (kt * 4 + s) * 4
def Vf(ts): return aV + ts * 4
def NM(rt): return vNM + rt * 4
def Lf(rt): return aL + rt * 4

MFMA = 'v_mfma_f32_16x16x32_bf16'

def srd(e, s, lo, hi, nbytes):
    e(f's_mov_b32 s{s}, s{lo}')
    e(f's_mov_b32 s{s+1}, s{hi}')
    e(f's_mov_b32 s{s+2}, {nbytes}')
    e(f's_mov_b32 s{s+3}, 0x00020000')

def interleave(e, prim, groups, start=0, every=None, end=None):
    n = len(prim); g = len(groups)
    end = n if end is None else end
    pos = {}
    if g:
        span = max(end - start, 1)
        for k in range(g):
            p = start + (k * span) // g if every is None else start + k * every
            pos.setdefault(min(p, n - 1), []).append(groups[k])
    for i, t in enumerate(prim):
        e(t)
        for grp in pos.get(i, []):
            for (tt, tag) in grp: e(tt, tag)
    if n == 0:
        for grp in groups:
            for (tt, tag) in grp: e(tt, tag)

def emit_groups(e, groups):
    for grp in groups:
        for (tt, tag) in grp: e(tt, tag)

class AttnGen:
    def __init__(self, e, cfg):
        self.e = e
        self.cfg = cfg
        self.kvfl = cfg.get('kv_flags', ' nt')
        self.xfl = cfg.get('x_flags', '')
        self.wfl = cfg.get('w_flags', ' nt')
        self.ofl = cfg.get('o_flags', ' sc1' if cfg.get('fused') else '')
        self.name = cfg.get('name', 'attn_kernel')
        self.rare = []
        self.nrare = 0

    def stamp(self, i, mode=1):
        if self.cfg.get('stamps') == mode:
            self.e(f's_memrealtime s[{70+2*i}:{71+2*i}]')
    def cstamp(self, i, mode=3):
        if self.cfg.get('stamps') == mode:
            self.e(f's_memtime s[{70+2*i}:{71+2*i}]')
    def write_stamps(self, n, kernel_idx=0):
        if not self.cfg.get('stamps'): return
        e = self.e
        e('s_waitcnt lgkmcnt(0)')
        e(f's_lshl_b32 s{sT0}, s2, 2')
        e(f's_add_u32 s{sT0}, s{sT0}, s{sWv}')
        e(f's_lshl_b32 s{sT0}, s{sT0}, 7')
        e(f's_add_u32 s{sT0}, s{sT0}, {0x1000000 + kernel_idx*0x100000}')
        e(f's_mov_b32 s{sO+2}, 0x2000000')
        e(f'v_mov_b32 v{vT}, 0')
        for i in range(n):
            e(f'v_mov_b32 v{vT+2}, s{70+2*i}')
            e(f'v_mov_b32 v{vT+3}, s{71+2*i}')
            e(f'buffer_store_dwordx2 {vr(vT+2,2)}, v{vT}, s[{sO}:{sO+3}], s{sT0} offen offset:{8*i}')
            e('s_waitcnt vmcnt(0)')
        e.vmq = []
    def prologue(self):
        e = self.e
        e(f's_cmp_ge_u32 s2, 256')
        e(f's_cbranch_scc1 L_{self.name}_end')
        e(f's_load_dwordx16 s[40:55], s[0:1], 0')
        e(f's_load_dwordx2 s[56:57], s[0:1], 64')
        e(f's_load_dwordx2 s[58:59], s[0:1], 96')
        e(f's_load_dwordx2 s[100:101], s[0:1], 72')
        e(f's_load_dwordx2 s[90:91], s[0:1], 88')
        t0, t1, t2, t3 = vT, vT + 1, vT + 2, vT + 3
        e(f'v_lshrrev_b32 v{t0}, 6, v0')
        e(f'v_and_b32 v{vL}, 63, v0')
        e(f'v_readfirstlane_b32 s{sWv}, v{t0}')
        e(f'v_and_b32 v{vN}, 15, v{vL}')
        e(f'v_lshrrev_b32 v{vG}, 4, v{vL}')
        if self.cfg.get('codepf'):
            n = self.name
            e(f's_lshr_b32 s{sT0}, s2, 3')
            e(f's_cmp_ge_u32 s{sT0}, 2')
            e(f's_cbranch_scc1 L_{n}_nopf')
            e(f's_lshl_b32 s{sT0}, s{sT0}, 2')
            e(f's_add_u32 s{sT0}, s{sT0}, s{sWv}')
            e(f's_lshl_b32 s{sT0}, s{sT0}, 13')
            e('s_getpc_b64 s[66:67]')
            e.label(f'L_{n}_pc')
            e(f'v_lshlrev_b32 v{t0}, 7, v{vL}')
            e(f'v_add_u32 v{t0}, s{sT0}, v{t0}')
            e(f'v_min_u32 v{t0}, L_{n}_rareend-L_{n}_pc-4, v{t0}')
            e(f'v_mov_b32 v{t1}, s67')
            e(f'v_add_co_u32 v{t2}, vcc, s66, v{t0}')
            e(f'v_addc_co_u32 v{t3}, vcc, 0, v{t1}, vcc')
            e(f'global_load_dword v{vT+8}, v[{t2}:{t3}], off', 'pf')
            e.vmq.pop()
            e.label(f'L_{n}_nopf')
        e(f's_lshr_b32 s{sJ}, s{sWv}, 1')
        e(f's_and_b32 s{sKH}, s{sWv}, 1')
        e(f's_and_b32 s{sT0}, s2, 7')
        e(f's_lshr_b32 s{sT1}, s2, 3')
        e(f's_lshr_b32 s{sBr}, s{sT1}, 4')
        e(f's_and_b32 s{sT1}, s{sT1}, 15')
        e(f's_mov_b32 s{sC}, 0x3e029407')
        import struct, math
        c = (128 ** -0.5) * math.log2(math.e)
        bits = struct.unpack('<I', struct.pack('<f', c))[0]
        e.ins[-1] = Inst(f's_mov_b32 s{sC}, {bits:#010x}')
        e(f's_mov_b32 s{sT}, 0x41000000')
        for i in range(4):
            q = i >> 1
            e(f'v_or_b32 v{t0}, {q << 2}, v{vG}')
            e(f'v_lshlrev_b32 v{t0}, 1, v{t0}')
            e(f'v_xor_b32 v{t0}, v{t0}, v{vN}')
            e(f'v_lshlrev_b32 v{t0}, 4, v{t0}')
            e(f'v_lshl_add_u32 v{vWd+i}, v{vG}, 13, v{t0}')
            if i: e(f'v_add_u32 v{vWd+i}, {(32768-1024)*i}, v{vWd+i}')
        e(f'v_lshrrev_b32 v{t1}, 3, v{vL}')
        e(f's_movk_i32 s{sT2}, 1152')
        e(f'v_mul_lo_u32 v{t1}, v{t1}, s{sT2}')
        e(f'v_and_b32 v{t2}, 7, v{vL}')
        for i in range(4):
            e(f's_add_u32 s{sT2}, s{sKH}, {i}')
            e(f's_and_b32 s{sT2}, s{sT2}, 1')
            e(f's_lshl_b32 s{sT2}, s{sT2}, 2')
            e(f'v_add_u32 v{t0}, s{sT2}, v{vG}')
            e(f'v_and_b32 v{t0}, 7, v{t0}')
            e(f'v_xor_b32 v{t0}, v{t0}, v{t2}')
            e(f'v_lshl_add_u32 v{vXd+i}, v{t0}, 4, v{t1}')
            if i: e(f'v_add_u32 v{vXd+i}, {8192*i}, v{vXd+i}')

    def prologue_b(self):
        e = self.e
        t0, t1, t2, t3 = vT, vT + 1, vT + 2, vT + 3
        for j in range(4):
            e(f'v_add_u32 v{t0}, {4*j}, v{vG}')
            e(f'v_xor_b32 v{t0}, v{t0}, v{vN}')
            e(f'v_lshlrev_b32 v{t0}, 4, v{t0}')
            e(f'v_lshl_add_u32 v{vKd+j}, v{vG}, 8, v{t0}')
        for p in range(2):
            e(f'v_add_u32 v{t0}, {4*p}, v{vG}')
            e(f'v_lshlrev_b32 v{t0}, 1, v{t0}')
            e(f'v_xor_b32 v{t0}, v{t0}, v{vN}')
            e(f'v_lshlrev_b32 v{t0}, 4, v{t0}')
            e(f'v_lshl_add_u32 v{vVd+p}, v{vG}, 8, v{t0}')
        e(f's_lshl_b32 s{sKl}, s{sWv}, 13')
        e(f's_add_u32 s{sVl}, s{sKl}, {VS}')
        for s in range(4):
            e(f's_lshl_b32 s{sT2}, s{sKH}, 1')
            e(f's_xor_b32 s{sT2}, s{sT2}, {s}')
            e(f's_lshl_b32 s{sT2}, s{sT2}, 2')
            e(f'v_add_u32 v{t0}, s{sT2}, v{vG}')
            e(f'v_xor_b32 v{t0}, v{t0}, v{vN}')
            e(f'v_lshlrev_b32 v{t0}, 4, v{t0}')
            e(f'v_lshl_add_u32 v{t0}, v{vN}, 8, v{t0}')
            e(f'v_add_u32 v{vKr+s}, s{sKl}, v{t0}')
        e(f'v_bfe_u32 v{t1}, v{vL}, 2, 2')
        e(f'v_lshl_add_u32 v{t1}, v{vG}, 2, v{t1}')
        e(f'v_and_b32 v{t2}, 7, v{t1}')
        e(f'v_lshlrev_b32 v{t2}, 1, v{t2}')
        e(f'v_bfe_u32 v{t3}, v{vL}, 1, 1')
        e(f'v_xor_b32 v{t2}, v{t2}, v{t3}')
        e(f'v_and_b32 v{t3}, 1, v{vL}')
        e(f'v_lshlrev_b32 v{t3}, 3, v{t3}')
        e(f'v_lshl_add_u32 v{t3}, v{t1}, 8, v{t3}')
        e(f'v_add_u32 v{t3}, s{sVl}, v{t3}')
        for ts in range(8):
            e(f's_lshl_b32 s{sT2}, s{sKH}, 2')
            e(f's_xor_b32 s{sT2}, s{sT2}, {ts}')
            e(f's_lshl_b32 s{sT2}, s{sT2}, 1')
            e(f'v_xor_b32 v{t0}, s{sT2}, v{t2}')
            e(f'v_lshl_add_u32 v{vVr+ts}, v{t0}, 4, v{t3}')

    def q_setup(self, br):
        e = self.e
        t0, t1, t2, t3 = vT, vT + 1, vT + 2, vT + 3
        rot = self.cfg.get('qrot', 1)
        if br == 'A':
            e(f's_lshr_b32 s{sCc}, s{sT1}, 1')
            e(f's_and_b32 s{sT2}, s{sT1}, 1')
            e(f's_lshl_b32 s{sT2}, s{sT2}, 2')
            e(f's_add_u32 s{sCc}, s{sCc}, s{sT2}')
            e(f's_sub_u32 s{sT2}, s{sCc}, 9')
            e(f's_cmp_ge_u32 s{sCc}, 9')
            e(f's_cselect_b32 s{sCc}, s{sT2}, s{sCc}')
        else:
            e(f's_lshr_b32 s{sCc}, s{sT1}, 2')
            e(f's_add_u32 s{sCc}, s{sCc}, s{sT1}')
            e(f's_and_b32 s{sCc}, s{sCc}, 3')
            e(f's_mul_i32 s{sCc}, s{sCc}, 5')
            e(f's_lshr_b32 s{sCc}, s{sCc}, 1')
        if rot == 2:
            if br == 'A':
                e(f's_lshr_b32 s{sCc}, s{sT1}, 1')
                e(f's_and_b32 s{sT2}, s{sT1}, 1')
                e(f's_lshl_b32 s{sT2}, s{sT2}, 2')
                e(f's_add_u32 s{sCc}, s{sCc}, s{sT2}')
                e(f's_and_b32 s{sCc}, s{sCc}, 7')
            else:
                e(f's_lshr_b32 s{sCc}, s{sT1}, 2')
                e(f's_add_u32 s{sCc}, s{sCc}, s{sT1}')
                e(f's_and_b32 s{sCc}, s{sCc}, 3')
                e(f's_lshl_b32 s{sCc}, s{sCc}, 1')
            e(f's_add_u32 s{sCc}, s{sCc}, 1')
        if not rot: e(f's_mov_b32 s{sCc}, 0')
        if br == 'A':
            e(f's_lshr_b32 s{sB}, s{sT1}, 1')
            e(f's_and_b32 s{sT1}, s{sT1}, 1')
            e(f's_lshl_b32 s{sT0}, s{sT0}, 1')
            e(f's_add_u32 s{sT0}, s{sT0}, s{sT1}')
            e(f's_lshl_b32 s{sH}, s{sT0}, 1')
            e(f's_add_u32 s{sH}, s{sH}, s{sJ}')
            e(f's_lshl_b32 s{sT1}, s{sB}, 4')
            e(f's_add_u32 s{sT1}, s{sT1}, s{sT0}')
            late = lambda: (srd(e, sK, 42, 43, KA_BYTES), srd(e, sV, 44, 45, KA_BYTES))
            early = lambda: (srd(e, sX, 40, 41, X_BYTES), srd(e, sW, 46, 47, W_BYTES))
        else:
            e(f's_lshr_b32 s{sB}, s{sT1}, 2')
            e(f's_lshl_b32 s{sT2}, s{sJ}, 2')
            e(f's_add_u32 s{sB}, s{sB}, s{sT2}')
            e(f's_and_b32 s{sT1}, s{sT1}, 3')
            e(f's_lshl_b32 s{sH}, s{sT0}, 2')
            e(f's_add_u32 s{sH}, s{sH}, s{sT1}')
            e(f's_lshl_b32 s{sT1}, s{sB}, 5')
            e(f's_add_u32 s{sT1}, s{sT1}, s{sH}')
            late = lambda: (srd(e, sK, 52, 53, KB_BYTES), srd(e, sV, 54, 55, KB_BYTES))
            early = lambda: (srd(e, sX, 50, 51, X_BYTES), srd(e, sW, 56, 57, W_BYTES))
        if self.cfg.get('kvsame'): e(f's_and_b32 s{sT1}, s2, 7')
        e(f's_lshl_b32 s{sKoff}, s{sT1}, 18')
        e(f's_lshl_b32 s{sT2}, s{sKH}, 13')
        e(f's_add_u32 s{sKoff}, s{sKoff}, s{sT2}')
        e(f's_mov_b32 s{sVoff}, s{sKoff}')
        e(f's_mul_i32 s{sOoff}, s{sB}, {5*128*1024}')
        e(f's_lshl_b32 s{sT2}, s{sH}, 12')
        e(f's_add_u32 s{sOoff}, s{sOoff}, s{sT2}')
        e(f's_lshl_b32 s{sT2}, s{sKH}, 11')
        e(f's_add_u32 s{sOoff}, s{sOoff}, s{sT2}')
        if br == 'B':
            e(f's_add_u32 s{sOoff}, s{sOoff}, {O_BR}')
        if br == 'A':
            e(f's_mul_i32 s{sXoff}, s{sB}, 92160')
            e(f's_mul_i32 s{sT2}, s{sWv}, 9216')
            e(f's_add_u32 s{sXoff}, s{sXoff}, s{sT2}')
            e(f's_lshl_b32 s{sXl}, s{sWv}, 10')
            e(f's_mul_i32 s65, s{sB}, 92160')
            e(f's_add_u32 s{sT2}, s{sKH}, 8')
            e(f's_lshl_b32 s66, s{sT2}, 10')
            e(f's_mul_i32 s{sT2}, s{sT2}, 9216')
            e(f's_add_u32 s65, s65, s{sT2}')
            e(f's_lshl_b32 s{sWoff}, s{sH}, 8')
            e(f's_lshl_b32 s{sT2}, s{sKH}, 18')
            e(f's_add_u32 s{sWoff}, s{sWoff}, s{sT2}')
            e(f's_lshl_b32 s{sWl}, s{sJ}, 14')
            e(f's_lshl_b32 s{sT2}, s{sKH}, 13')
            e(f's_add_u32 s{sWl}, s{sWl}, s{sT2}')
            e(f's_add_u32 s{sWl}, s{sWl}, 10240')
            xoffj, woffj = (0, 0), (10240, 16384)
        else:
            e(f's_mul_i32 s{sXoff}, s{sB}, 92160')
            e(f's_mul_i32 s{sT2}, s{sKH}, {40*1152}')
            e(f's_add_u32 s{sXoff}, s{sXoff}, s{sT2}')
            e(f's_mul_i32 s{sXl}, s{sWv}, 5120')
            e(f's_lshl_b32 s{sWoff}, s{sH}, 8')
            e(f's_lshl_b32 s{sT2}, s{sWv}, 17')
            e(f's_add_u32 s{sWoff}, s{sWoff}, s{sT2}')
            e(f's_lshl_b32 s{sWl}, s{sWv}, 12')
            e(f's_add_u32 s{sWl}, s{sWl}, 20480')
            xoffj, woffj = (0, 10240), (20480, 0)
        e('s_waitcnt lgkmcnt(0)')
        early()
        emit_groups(e, self.q_dma(br, 0))
        emit_groups(e, self.q_dma(br, 1))
        late()
        srd(e, sO, 58, 59, O_BYTES)
        self.prologue_b()
        e(f's_mul_i32 s{sT2}, s{sJ}, {xoffj[1]}')
        e(f's_add_u32 s{sT2}, s{sT2}, {QBUF0 + xoffj[0]}')
        e(f'v_lshrrev_b32 v{t1}, 1, v{vN}')
        for s2 in range(2):
            e(f'v_add_u32 v{t0}, {4*s2}, v{vG}')
            e(f'v_xor_b32 v{t0}, v{t0}, v{t1}')
            e(f'v_lshlrev_b32 v{t0}, 4, v{t0}')
            e(f'v_lshl_add_u32 v{t0}, v{vN}, 7, v{t0}')
            e(f'v_add_u32 v{vXr+s2}, s{sT2}, v{t0}')
        e(f's_mul_i32 s{sT2}, s{sJ}, {woffj[1]}')
        e(f's_add_u32 s{sT2}, s{sT2}, {QBUF0 + woffj[0]}')
        e(f'v_bfe_u32 v{t1}, v{vL}, 2, 2')
        e(f'v_and_b32 v{t2}, 1, v{vG}')
        e(f'v_lshl_or_b32 v{t2}, v{t2}, 2, v{t1}')
        e(f'v_lshlrev_b32 v{t2}, 1, v{t2}')
        e(f'v_and_b32 v{t3}, 3, v{vL}')
        e(f'v_xor_b32 v{t2}, v{t2}, v{t3}')
        e(f'v_lshl_add_u32 v{t1}, v{vG}, 3, v{t1}')
        e(f'v_lshlrev_b32 v{t3}, 8, v{t1}')
        e(f'v_add_u32 v{t3}, s{sT2}, v{t3}')
        for tt in range(4):
            e(f's_lshl_b32 s{sT2}, s{sKH}, 3')
            e(f's_add_u32 s{sT2}, s{sT2}, {4 * (tt >> 1)}')
            e(f'v_xor_b32 v{t0}, s{sT2}, v{t2}')
            e(f'v_lshl_add_u32 v{vWr+tt}, v{t0}, 4, v{t3}')
            if tt & 1: e(f'v_add_u32 v{vWr+tt}, 8, v{vWr+tt}')

    def q_addr_copies(self):
        e = self.e
        for b in range(3):
            for k, r in enumerate((vXr, vXr + 1, vWr, vWr + 1, vWr + 2, vWr + 3)):
                if b == 0: e(f'v_mov_b32 v{vQA + k}, v{r}')
                else: e(f'v_add_u32 v{vQA + 6*b + k}, {b*QBUFSZ}, v{r}')

    def q_dma(self, br, c):
        qb = QBUF0 + (c % 3) * QBUFSZ
        tag = ('Q', c)
        G = []
        hyb = self.cfg.get('qrot', 1) == 2
        if hyb and c == 0:
            g = [(f's_mov_b32 s{sXc}, s{sXoff}', None), (f's_mov_b32 s{sWc}, s{sWoff}', None)]
            if br == 'A': g.append((f's_mov_b32 s{sX3c}, s65', None))
        else:
            g = [(f's_lshl_b32 s{sT2}, s{sCc}, 7', None), (f's_add_u32 s{sXc}, s{sXoff}, s{sT2}', None)]
            if br == 'A': g.append((f's_add_u32 s{sX3c}, s65, s{sT2}', None))
        if self.cfg.get('qsame'):
            g = [(f's_mov_b32 s{sXc}, 0', None), (f's_mov_b32 s{sX3c}, 0', None), (f's_mov_b32 s{sWc}, 0', None)]
        elif not (hyb and c == 0):
          g += [(f's_lshl_b32 s{sT2}, s{sCc}, 19', None), (f's_add_u32 s{sWc}, s{sWoff}, s{sT2}', None),
              (f's_add_u32 s{sCc}, s{sCc}, 1', None), (f's_cmp_eq_u32 s{sCc}, 9', None), (f's_cselect_b32 s{sCc}, {1 if hyb else 0}, s{sCc}', None)]
        G.append(g)
        def ld(voff, srdr, soff, off, fl, pre=()):
            G.append(list(pre) + [(f'buffer_load_dwordx4 v{voff}, s[{srdr}:{srdr+3}], s{soff} offen offset:{off}{fl} lds', tag)])
        m0 = lambda reg, imm: (f's_add_u32 m0, s{reg}, {qb + imm}', None)
        if br == 'A':
            ld(vXd, sX, sXc, 0, self.xfl, [m0(sXl, 0)])
            ld(vXd, sX, sT2, 0, self.xfl, [m0(sXl, 4096), (f's_add_u32 s{sT2}, s{sXc}, {4*9216}', None)])
            ld(vXd, sX, sX3c, 0, self.xfl, [m0(66, 0), ('s_nop 0', None)])
            for i in range(4):
                ld(vWd + i, sW, sWc, 1024*i, self.wfl, [m0(sWl, 0), ('s_nop 0', None)] if i == 0 else [])
            for i in range(4):
                ld(vWd + i, sW, sWc, 1024*i, self.wfl, [m0(sWl, 4096), (f's_add_u32 s{sWc}, s{sWc}, {4*32768}', None)] if i == 0 else [])
        else:
            for i in range(4):
                ld(vXd + i, sX, sXc, 1024*i, self.xfl, [m0(sXl, 0), ('s_nop 0', None)] if i == 0 else [])
            ld(vXd, sX, sXc, 0, self.xfl, [m0(sXl, 4096), (f's_add_u32 s{sXc}, s{sXc}, {4*9216}', None)])
            for i in range(4):
                ld(vWd + i, sW, sWc, 1024*i, self.wfl, [m0(sWl, 0), ('s_nop 0', None)] if i == 0 else [])
        return G

    def kv_dma(self, kind, par, tag):
        if kind == 'K': l, off, s, vo, tmp = sKl, sKoff, sK, [vKd, vKd + 1, vKd + 2, vKd + 3], sKt
        else: l, off, s, vo, tmp = sVl, sVoff, sV, [vVd, vVd + 1, vVd, vVd + 1], sVt
        G = []
        for half in range(2):
            for q in range(4):
                g = []
                if q == 0:
                    g.append((f's_add_u32 m0, s{l}, {par * 32768 + half * 4096}', None))
                    if half == 0: g.append((f's_add_u32 s{tmp}, s{off}, 4096', None))
                    else: g.append((f's_add_u32 s{off}, s{off}, 16384', None))
                so = off if half == 0 else tmp
                g.append((f'buffer_load_dwordx4 v{vo[q]}, s[{s}:{s+3}], s{so} offen offset:{q*1024}{self.kvfl} lds', tag))
                G.append(g)
        return G

    def q_reads(self, s2, c):
        G = []
        base = vQA + 6 * (c % 3)
        for tt in range(4):
            for sec in range(2):
                G.append([(f'ds_read_b64_tr_b16 {ar(aWF[s2] + 4*tt + 2*sec, 2)}, v{base+2+tt} offset:{s2*8192 + sec*1024}', ('q', s2))])
            if tt == 0:
                for rt in range(5):
                    G.append([(f'ds_read_b128 {ar(aXF[s2] + 4*rt, 4)}, v{base+s2} offset:{rt*2048}', ('q', s2))])
        return G

    def q_mfmas(self, s2, first):
        L = []
        for tt in range(4):
            for rt in range(5):
                acc = vr(Qacc(tt, rt), 4)
                cc = '0' if first else acc
                L.append(f'{MFMA} {acc}, {ar(aWF[s2] + 4*tt, 4)}, {ar(aXF[s2] + 4*rt, 4)}, {cc}')
        return L

    def pretouch(self, br):
        e = self.e
        n = self.name
        st = self.cfg.get('pretouch')
        t0 = vT + 8
        e(f's_cmp_lg_u32 s{sWv}, 0')
        e(f's_cbranch_scc1 L_{n}_npt{br}')
        e(f's_bfe_u32 s{sT2}, s2, 0x10002')
        e(f's_cmp_eq_u32 s{sT2}, 0')
        e(f's_cselect_b32 s92, s48, s100')
        e(f's_cselect_b32 s93, s49, s101')
        e(f's_mov_b32 s94, {4096*1152}')
        e(f's_mov_b32 s95, 0x00020000')
        e(f's_lshr_b32 s{sT2}, s2, 3')
        e(f's_mul_i32 s{sT2}, s{sT2}, {64*st}')
        e(f's_mov_b32 s{sT1}, {st}')
        e(f'v_mul_lo_u32 v{t0}, v{vL}, s{sT1}')
        e(f'buffer_load_dword v{t0+1}, v{t0}, s[92:95], s{sT2} offen', ('T', 0))
        e.vmq.pop()
        e(f'buffer_load_dword v{t0+2}, v{t0}, s[{sO}:{sO+3}], s{sT2} offen', ('T', 0))
        e.vmq.pop()
        e.label(f'L_{n}_npt{br}')

    def poison_groups(self):
        G = [[(f'v_mov_b32 v{252+k}, -1', None) for k in range(4)] + [(f'v_lshlrev_b32 v{vT+10}, 4, v{vL}', None)]]
        for rt in range(5):
            for u in range(2):
                g = []
                if u == 0: g.append((f's_add_u32 s3, s{sOoff}, {rt*131072}', None))
                g.append((f'buffer_store_dwordx4 v[252:255], v{vT+10}, s[{sO}:{sO+3}], s3 offen offset:{u*1024} sc1', ('P', 0)))
                G.append(g)
        return G

    def arrive2(self):
        e = self.e
        n = self.name
        e('s_barrier')
        e(f's_cmp_lg_u32 s{sWv}, 0')
        e(f's_cbranch_scc1 L_{n}_na2')
        e('v_mov_b32 v54, 0')
        e('v_mov_b32 v55, 1')
        e('s_mov_b64 exec, 1')
        e('buffer_atomic_add v55, v54, s[92:95], 0 offen sc1', 'sig')
        e.vmq.pop()
        e('s_mov_b64 exec, -1')
        e.label(f'L_{n}_na2')

    def poison(self):
        e = self.e
        for k in range(4): e(f'v_mov_b32 v{252+k}, -1')
        e(f'v_lshlrev_b32 v{vT+4}, 4, v{vL}')
        e(f's_mov_b32 s92, s90')
        e(f's_mov_b32 s93, s91')
        e(f's_mov_b32 s94, 256')
        e(f's_mov_b32 s95, 0x00020000')
        for rt in range(5):
            e(f's_add_u32 s{sT2}, s{sOoff}, {rt*131072}')
            for u in range(2):
                e(f'buffer_store_dwordx4 v[252:255], v{vT+4}, s[{sO}:{sO+3}], s{sT2} offen offset:{u*1024} sc1', ('P', 0))

    def arrive(self, br):
        e = self.e
        n = self.name
        e(f's_cmp_lg_u32 s{sWv}, 0')
        e(f's_cbranch_scc1 L_{n}_na{br}')
        e('v_mov_b32 v54, 0')
        e('v_mov_b32 v55, 1')
        e('s_mov_b64 exec, 1')
        e('buffer_atomic_add v55, v54, s[92:95], 0 offen sc0 sc1', 'sig')
        e.vmq.pop()
        e('s_mov_b64 exec, -1')
        e.label(f'L_{n}_na{br}')

    def arrive_check(self, br):
        e = self.e
        n = self.name
        e(f's_cmp_lg_u32 s{sWv}, 0')
        e(f's_cbranch_scc1 L_{n}_nc{br}')
        e(f'v_readfirstlane_b32 s{sT2}, v55')
        e(f's_cmp_lg_u32 s{sT2}, 255')
        e(f's_cbranch_scc1 L_{n}_nc{br}')
        e('s_mov_b64 exec, 1')
        e('v_mov_b32 v55, 1')
        e('buffer_store_dword v55, v54, s[92:95], 0 offen offset:128 sc1', 'go')
        e.vmq.pop()
        e('s_mov_b64 exec, -1')
        e.label(f'L_{n}_nc{br}')

    def flag_load(self):
        e = self.e
        e('v_mov_b32 v54, 0')
        e('buffer_load_dword v55, v54, s[92:95], 0 offen sc1', 'f2')

    def flag_check(self):
        e = self.e
        n = self.name
        e.wait_vm('f2')
        e(f's_mov_b32 s{sT1}, 0')
        e.label(f'L_{n}_fchk')
        e(f'v_readfirstlane_b32 s{sT0}, v55')
        e(f's_cmp_ge_u32 s{sT0}, 256')
        e(f's_cbranch_scc1 L_{n}_fok')
        e(f's_add_u32 s{sT1}, s{sT1}, 1')
        e(f's_cmp_lt_u32 s{sT1}, 0x20000')
        e(f's_cbranch_scc0 L_{n}_fok')
        e('s_sleep 8')
        e(f'v_mov_b32 v{vT}, 0')
        e(f'buffer_load_dword v55, v{vT}, s[92:95], 0 offen sc1', 'f2')
        e('s_waitcnt vmcnt(0)')
        e.vmq.pop()
        e(f's_branch L_{n}_fchk')
        e.label(f'L_{n}_fok')

    def q_phase(self, br):
        e = self.e
        self.q_setup(br)
        self.stamp(1, 2)
        self.q_addr_copies()
        if self.cfg.get('pretouch'): self.pretouch(br)
        flow = self.cfg.get('flow')
        if flow:
            e(f's_mov_b32 s92, s90')
            e(f's_mov_b32 s93, s91')
            e(f's_mov_b32 s94, 256')
            e(f's_mov_b32 s95, 0x00020000')
        for c in range(9):
            e.wait_vm(('Q', c))
            e.wait_lg()
            e('s_barrier')
            if c == 4: self.cstamp(0, 4)
            if c == 5: self.cstamp(3, 4)
            self.stamp(2 + c, 2)
            G = []
            if c + 2 <= 8: G += self.q_dma(br, c + 2)
            if c == self.cfg.get('k0at', 6): G += self.kv_dma('K', 0, ('K', 0))
            if c == 7: G += self.kv_dma('K', 1, ('K', 1))
            if c == 8: G += self.kv_dma('V', 0, ('V', 0))
            if flow and c == self.cfg.get('pat', 8): G += self.poison_groups()
            R0 = self.q_reads(0, c)
            h = (len(G) + 1) // 2
            def mix(mf, R, D):
                n = len(mf)
                slots = [[] for _ in range(n)]
                for k, g in enumerate(R): slots[k].append(g)
                for k, g in enumerate(D): slots[min(n - 1, 1 + (k * (n - 2)) // max(len(D), 1))].append(g)
                for k in range(n):
                    e(mf[k])
                    for g in slots[k]:
                        for (tt, tag) in g: e(tt, tag)
            if c > 0: mix(self.q_mfmas(1, False), R0, G[:h])
            else:
                emit_groups(e, R0); emit_groups(e, G[:h])
            if c == 4: self.cstamp(1, 4)
            e.wait_lg(('q', 0))
            mix(self.q_mfmas(0, c == 0), self.q_reads(1, c), G[h:])
            if c == 4: self.cstamp(2, 4)
        e.wait_lg()
        if not self.cfg.get('qxov', 1):
            for t in self.q_mfmas(1, False): e(t)

    def q_exchange(self):
        e = self.e
        t0 = vT
        self.cstamp(0, 8)
        e('s_barrier')
        self.cstamp(1, 8)
        e(f's_mul_i32 s{sT2}, s{sWv}, 10240')
        e(f's_add_u32 s{sT2}, s{sT2}, {QIMG}')
        e(f'v_lshlrev_b32 v{t0}, 4, v{vL}')
        e(f'v_add_u32 v{vT+4}, s{sT2}, v{t0}')
        e(f's_xor_b32 s{sT1}, s{sWv}, 1')
        e(f's_mul_i32 s{sT1}, s{sT1}, 10240')
        e(f's_add_u32 s{sT1}, s{sT1}, {QIMG}')
        e(f'v_add_u32 v{vT+5}, s{sT1}, v{t0}')
        self.cstamp(2, 8)
        e(f'v_mov_b32 v{vT+8}, s{sC}')
        e(f'v_mov_b32 v{vT+9}, s{sC}')
        def finish(rt, u):
            b0, b1 = Qacc(2*u, rt), Qacc(2*u + 1, rt)
            L = []
            for b in (b0, b1):
                L.append(f'v_pk_mul_f32 {vr(b,2)}, {vr(b,2)}, {vr(vT+8,2)}')
                L.append(f'v_pk_mul_f32 {vr(b+2,2)}, {vr(b+2,2)}, {vr(vT+8,2)}')
            L += [f'v_cvt_pk_bf16_f32 v{b0}, v{b0}, v{b0+1}', f'v_cvt_pk_bf16_f32 v{b0+1}, v{b0+2}, v{b0+3}',
                  f'v_cvt_pk_bf16_f32 v{b0+2}, v{b1}, v{b1+1}', f'v_cvt_pk_bf16_f32 v{b0+3}, v{b1+2}, v{b1+3}']
            G = [[(t, None)] for t in L]
            G.append([(f'ds_write_b128 v{vT+4}, {vr(b0, 4)} offset:{(rt*2 + u)*1024}', 'qw')])
            G += [[(f'v_accvgpr_write_b32 a{Qf(rt, u)+k}, v{b0+k}', None)] for k in range(4)]
            return G
        pairs = [(rt, u) for u in range(2) for rt in range(5)]
        if self.cfg.get('qxov', 1):
            def mf(tt, rt):
                acc = vr(Qacc(tt, rt), 4)
                return f'{MFMA} {acc}, {ar(aWF[1] + 4*tt, 4)}, {ar(aXF[1] + 4*rt, 4)}, {acc}'
            pend = []
            for k, (rt, u) in enumerate(pairs):
                e(mf(2*u, rt))
                take = pend[:3]; pend = pend[3:]
                emit_groups(e, take)
                e(mf(2*u + 1, rt))
                take = pend[:3]; pend = pend[3:]
                emit_groups(e, take)
                if k >= 3: pend += finish(*pairs[k - 3])
            emit_groups(e, pend)
            for k in range(7, 10): emit_groups(e, finish(*pairs[k]))
        else:
            for (rt, u) in pairs: emit_groups(e, finish(rt, u))
        self.cstamp(3, 8)
        e.wait_lg()
        self.cstamp(4, 8)
        e('s_barrier')
        self.cstamp(5, 8)
        for rt in range(5):
            for u in range(2):
                e(f'ds_read_b128 {ar(Qf(rt, 2 + u), 4)}, v{vT+5} offset:{(rt*2 + u)*1024}', 'qr')
        e(f'v_mov_b32 v{vT}, 0x3f803f80')
        for k in range(4): e(f'v_accvgpr_write_b32 a{aOne+k}, v{vT}')
        e.wait_lg()
        self.cstamp(6, 8)
        e('s_barrier')
        self.cstamp(7, 8)
        emit_groups(e, self.kv_dma('V', 1, ('V', 1)))
        self.cstamp(8, 8)

    def rowmax_xlane(self, r, rt):
        mx, t = vT + rt, vT + 5
        r(f'v_mov_b32 v{t}, v{mx}')
        r(f'v_permlane16_swap_b32 v{mx}, v{t}')
        r(f'v_max_f32 v{mx}, v{mx}, v{t}')
        r(f'v_mov_b32 v{t}, v{mx}')
        r(f'v_permlane32_swap_b32 v{mx}, v{t}')
        r(f'v_max_f32 v{mx}, v{mx}, v{t}')

    def rare_block(self, lab, back):
        r = Emitter()
        r.label(lab)
        r('s_nop 7')
        f = vT + 6
        for rt in range(5):
            mx = vT + rt
            self.rowmax_xlane(r, rt)
            r(f'v_max_f32 v{mx}, 0, v{mx}')
            r(f'v_sub_f32 v{f}, 0, v{mx}')
            r(f'v_exp_f32 v{f}, v{f}')
            for k in range(4): r(f'v_sub_f32 v{NM(rt)+k}, v{NM(rt)+k}, v{mx}')
            for k in range(8): r(f'v_sub_f32 v{Sreg(rt,0)+k}, v{Sreg(rt,0)+k}, v{mx}')
            for k in range(4):
                r(f'v_accvgpr_read_b32 v{vT+8}, a{Lf(rt)+k}')
                r(f'v_mul_f32 v{vT+8}, v{vT+8}, v{f}')
                r(f'v_accvgpr_write_b32 a{Lf(rt)+k}, v{vT+8}')
            for ts in range(8):
                b = Oreg(ts, rt)
                r(f'v_pk_mul_f32 {vr(b,2)}, {vr(b,2)}, {vr(f,2)} op_sel_hi:[1,0]')
                r(f'v_pk_mul_f32 {vr(b+2,2)}, {vr(b+2,2)}, {vr(f,2)} op_sel_hi:[1,0]')
        r('s_nop 7')
        r(f's_branch {back}')
        r.fix_hazards()
        self.rare.append(r)

    def k_reads(self, it, par):
        e = self.e
        e.wait_vm(('K', it))
        for s in range(4):
            for kt in range(2):
                e(f'ds_read_b128 {ar(Kf(kt, s), 4)}, v{vKr+s} offset:{par*32768 + kt*4096}', 'k')

    def iteration(self, it, par, issue_next, next_k=True, first=False, send=False, xq=None, xp=None):
        e = self.e
        mx = [vT + i for i in range(5)]
        def maxops(rt):
            b = Sreg(rt, 0)
            return [[(f'v_max3_f32 v{mx[rt]}, v{b}, v{b+1}, v{b+2}', None)],
                    [(f'v_max3_f32 v{mx[rt]}, v{mx[rt]}, v{b+3}, v{b+4}', None)],
                    [(f'v_max3_f32 v{mx[rt]}, v{mx[rt]}, v{b+5}, v{b+6}', None)],
                    [(f'v_max_f32 v{mx[rt]}, v{mx[rt]}, v{b+7}', None)]]
        def softmax(rt):
            b = Sreg(rt, 0)
            L = []
            for k in range(4):
                L.append(f'v_exp_f32 v{b+2*k}, v{b+2*k}')
                L.append(f'v_exp_f32 v{b+2*k+1}, v{b+2*k+1}')
            for k in range(4): L.append(f'v_cvt_pk_bf16_f32 v{b+k}, v{b+2*k}, v{b+2*k+1}')
            return [[(t, None)] for t in L]
        def vreads():
            return [[(f'ds_read_b64_tr_b16 {ar(Vf(ts) + 2*sec, 2)}, v{vVr+ts} offset:{par*32768 + sec*4096}', 'v')] for ts in range(8) for sec in range(2)]
        dbg7 = self.cfg.get('stamps') == 7 and it == 2
        if dbg7: self.cstamp(0, 7)
        e.wait_lg()
        mb = self.cfg.get('mainbar', 1)
        if mb and issue_next:
            self.nbar = getattr(self, 'nbar', 0) + 1
            if mb == 1:
                e(f's_cmp_lg_u32 s{sBr}, 0')
                e(f's_cbranch_scc1 L_{self.name}_nb{self.nbar}')
                e('s_barrier')
                e.label(f'L_{self.name}_nb{self.nbar}')
            else:
                e('s_barrier')
        G = self.kv_dma('K', par, ('K', it + 2)) if issue_next else []
        for rt in range(5):
            mf = []
            for s in range(4):
                for kt in range(2):
                    acc = vr(Sreg(rt, kt), 4)
                    cc = acc if s else ('0' if first else vr(NM(rt), 4))
                    mf.append(f'{MFMA} {acc}, {ar(Kf(kt, s), 4)}, {ar(Qf(rt, s), 4)}, {cc}')
            extra = []
            if rt < 4 and G: extra += G[2*rt:2*rt+2]
            if rt >= 2: extra += maxops(rt - 2)
            if xq and rt in xq: extra = [xq[rt]] + extra
            if rt == 4:
                e.wait_vm(('V', it))
                R = vreads()
                extra = extra[:2] + R[:4] + extra[2:] + R[4:8]
                interleave(e, mf, extra, start=0)
                emit_groups(e, R[8:])
            else:
                interleave(e, mf, extra, start=1)
        if dbg7: self.cstamp(1, 7)
        emit_groups(e, maxops(3))
        emit_groups(e, maxops(4))
        if first:
            for rt in range(5):
                self.rowmax_xlane(e, rt)
                for k in range(4): e(f'v_sub_f32 v{NM(rt)+k}, 0, v{mx[rt]}')
                for k in range(8): e(f'v_sub_f32 v{Sreg(rt,0)+k}, v{Sreg(rt,0)+k}, v{mx[rt]}')
        else:
            t = vT + 5
            e(f'v_max3_f32 v{t}, v{mx[0]}, v{mx[1]}, v{mx[2]}')
            e(f'v_max3_f32 v{t}, v{t}, v{mx[3]}, v{mx[4]}')
            e(f'v_cmp_lt_f32 vcc, s{sT}, v{t}')
            self.nrare += 1
            lab, back = f'L_{self.name}_rare{self.nrare}', f'L_{self.name}_back{self.nrare}'
            e(f's_cbranch_vccnz {lab}')
            e.label(back)
            self.rare_block(lab, back)
        if dbg7: self.cstamp(2, 7)
        emit_groups(e, softmax(0))
        e.wait_lg()
        if dbg7: self.cstamp(3, 7)
        G = self.kv_dma('V', par, ('V', it + 2)) if issue_next else []
        for rt in range(5):
            mf = []
            P = vr(Sreg(rt, 0), 4)
            for ts in range(8):
                acc = vr(Oreg(ts, rt), 4)
                mf.append(f'{MFMA} {acc}, {ar(Vf(ts), 4)}, {P}, {"0" if first else acc}')
            la = ar(Lf(rt), 4)
            mf.append(f'{MFMA} {la}, {ar(aOne, 4)}, {P}, {"0" if first else la}')
            snd = self.send_groups(rt - 1) if (send and rt >= 1) else []
            if xp and rt in xp: snd = [xp[rt]] + snd
            if rt < 4:
                sm = softmax(rt + 1)
                gg = G[2*rt:2*rt+2] if G else []
                extra = sm[:4] + gg[:1] + sm[4:8] + snd[:2] + gg[1:] + sm[8:] + snd[2:]
                interleave(e, mf, extra, start=0)
            else:
                if dbg7: self.cstamp(4, 7)
                if next_k: self.k_reads(it + 1, par ^ 1)
                if dbg7: self.cstamp(5, 7)
                if snd: interleave(e, mf, snd, start=3)
                else:
                    for t in mf: e(t)

    def dbg7_end(self):
        self.cstamp(6, 7)

    def send_groups(self, rt):
        G = []
        for ts in range(4, 8):
            q = rt * 4 + (ts - 4)
            if q < 8: a, off = 53, q * 1024
            elif q < 16: a, off = 53, 32768 + (q - 8) * 1024
            else: a, off = 54, (q - 16) * 1024
            G.append([(f'ds_write_b128 v{a}, {vr(Oreg(ts, rt), 4)} offset:{off}', 'ow')])
        return G

    def main_loop(self):
        e = self.e
        self.k_reads(0, 0)
        self.iteration(0, 0, True, first=True)
        self.iteration(1, 1, True)
        if self.cfg.get('flow'):
            assert ('P', 0) not in e.vmq
            self.arrive2()
        self.stamp(3)
        q0 = [(k, i - 2) for (k, i) in e.vmq]
        l0 = list(e.lgq)
        e(f's_mov_b32 s{sLoop}, 6')
        e.label(f'L_{self.name}_loop')
        self.iteration(2, 0, True)
        self.dbg7_end()
        self.iteration(3, 1, True)
        q1 = [(k, i - 4) for (k, i) in e.vmq]
        assert q0 == q1, (q0, q1)
        assert l0 == e.lgq
        e(f's_sub_u32 s{sLoop}, s{sLoop}, 1')
        e(f's_cmp_lg_u32 s{sLoop}, 0')
        e(f's_cbranch_scc1 L_{self.name}_loop')
        if self.cfg.get('flow'): self.flag_load()
        if self.cfg.get('fused') and self.cfg.get('wwarm', 1) == 3: self.wo_warm()
        w5 = self.cfg.get('fused') and self.cfg.get('wwarm', 1) == 5
        if w5: self.wo_warm_setup()
        pos = self.cfg.get('wpos', [[None, {1: 0, 4: 1}], [{2: 2}, {1: 3, 4: 4}]])
        mk = lambda d: ({int(k): self.wo_warm_group(v) for k, v in d.items()} if (d and w5) else None)
        self.iteration(4, 0, False, xq=mk(pos[0][0]), xp=mk(pos[0][1]))
        if self.cfg.get('fused') and self.cfg.get('wwarm', 1) == 4: self.wo_warm()
        if self.cfg.get('epi2', 1):
            e(f'v_lshlrev_b32 v53, 4, v{vL}')
            e(f'v_add_u32 v53, s{sKl}, v53')
            e(f'v_add_u32 v54, {VS}, v53')
        self.iteration(5, 1, False, next_k=False, send=bool(self.cfg.get('epi2', 1)), xq=mk(pos[1][0]), xp=mk(pos[1][1]))

    def wo_warm(self):
        e = self.e
        q, r, t = vT + 7, vT + 8, vT + 11
        e(f's_bfe_u32 s{sT0}, s2, 0x10002')
        e(f's_cmp_eq_u32 s{sT0}, 0')
        e(f's_cselect_b32 s8, s48, s100')
        e(f's_cselect_b32 s9, s49, s101')
        e(f's_mov_b32 s10, {4096*1152}')
        e(f's_mov_b32 s11, 0x00020000')
        e(f's_bfe_u32 s{sT1}, s2, 0x10001')
        e(f's_lshl_b32 s{sT1}, s{sT1}, 9')
        e(f's_lshr_b32 s{sT0}, s2, 3')
        e(f's_lshl_b32 s{sT0}, s{sT0}, 2')
        e(f's_add_u32 s{sT0}, s{sT0}, s{sWv}')
        e(f's_mul_i32 s{sT0}, s{sT0}, 192')
        e(f's_mov_b32 s{sT2}, 52429')
        for i in range(3):
            e(f'v_add_u32 v{q}, s{sT0}, v{vL}')
            if i: e(f'v_add_u32 v{q}, {64*i}, v{q}')
            e(f'v_mul_lo_u32 v{r}, v{q}, s{sT2}')
            e(f'v_lshrrev_b32 v{r}, 18, v{r}')
            e(f'v_mul_u32_u24 v{t}, 5, v{r}')
            e(f'v_sub_u32 v{q}, v{q}, v{t}')
            e(f'v_mul_u32_u24 v{r}, 1152, v{r}')
            e(f'v_lshl_add_u32 v{q}, v{q}, 7, v{r}')
            e(f'buffer_load_dword v22, v{q}, s[8:11], s{sT1} offen', 'warm')

    def wo_warm_setup(self):
        e = self.e
        r, t = vT + 7, vT + 8
        e(f's_bfe_u32 s{sT0}, s2, 0x10002')
        e(f's_cmp_eq_u32 s{sT0}, 0')
        e(f's_cselect_b32 s8, s48, s100')
        e(f's_cselect_b32 s9, s49, s101')
        e(f's_mov_b32 s10, {4096*1152}')
        e(f's_mov_b32 s11, 0x00020000')
        e(f's_bfe_u32 s4, s2, 0x10001')
        e(f's_lshl_b32 s4, s4, 9')
        e(f's_lshr_b32 s{sT0}, s2, 3')
        e(f's_lshl_b32 s{sT0}, s{sT0}, 2')
        e(f's_add_u32 s{sT0}, s{sT0}, s{sWv}')
        e(f's_mul_i32 s{sT0}, s{sT0}, 160')
        e(f's_mov_b32 s{sT2}, 52429')
        for i, q in enumerate((22, 23, 55)):
            e(f'v_add_u32 v{q}, s{sT0}, v{vL}')
            if i: e(f'v_add_u32 v{q}, {64*i}, v{q}')
            e(f'v_mul_lo_u32 v{r}, v{q}, s{sT2}')
            e(f'v_lshrrev_b32 v{r}, 18, v{r}')
            e(f'v_mul_u32_u24 v{t}, 5, v{r}')
            e(f'v_sub_u32 v{q}, v{q}, v{t}')
            e(f'v_mul_u32_u24 v{r}, 1152, v{r}')
            e(f'v_lshl_add_u32 v{q}, v{q}, 7, v{r}')

    def wo_warm_group(self, j):
        q = (22, 23, 55)[j >> 1]
        lo, hi = ('-1', '0') if (j & 1) == 0 else ('0', '-1')
        return [(f's_mov_b32 exec_lo, {lo}', None), (f's_mov_b32 exec_hi, {hi}', None),
                (f'buffer_load_dword a250, v{q}, s[8:11], s4 offen', 'warm'), ('s_mov_b64 exec, -1', None)]

    def wo_warm_a(self):
        e = self.e
        n = self.name
        q, r, t = vT + 7, vT + 8, vT + 11
        e(f's_cmp_lg_u32 s{sBr}, 0')
        e(f's_cbranch_scc1 L_{n}_nowarma')
        e(f's_bfe_u32 s{sT0}, s2, 0x10002')
        e(f's_cmp_eq_u32 s{sT0}, 0')
        e(f's_cselect_b32 s8, s48, s100')
        e(f's_cselect_b32 s9, s49, s101')
        e(f's_mov_b32 s10, {4096*1152}')
        e(f's_mov_b32 s11, 0x00020000')
        e(f's_bfe_u32 s{sT1}, s2, 0x10001')
        e(f's_lshl_b32 s{sT1}, s{sT1}, 9')
        e(f's_lshr_b32 s{sT0}, s2, 3')
        e(f's_lshl_b32 s{sT0}, s{sT0}, 2')
        e(f's_add_u32 s{sT0}, s{sT0}, s{sWv}')
        e(f's_mul_i32 s{sT0}, s{sT0}, 320')
        e(f's_mov_b32 s{sT2}, 52429')
        for i in range(5):
            e(f'v_add_u32 v{q}, s{sT0}, v{vL}')
            if i: e(f'v_add_u32 v{q}, {64*i}, v{q}')
            e(f'v_mul_lo_u32 v{r}, v{q}, s{sT2}')
            e(f'v_lshrrev_b32 v{r}, 18, v{r}')
            e(f'v_mul_u32_u24 v{t}, 5, v{r}')
            e(f'v_sub_u32 v{q}, v{q}, v{t}')
            e(f'v_mul_u32_u24 v{r}, 1152, v{r}')
            e(f'v_lshl_add_u32 v{q}, v{q}, 7, v{r}')
            e(f'buffer_load_dword v22, v{q}, s[8:11], s{sT1} offen', 'warm')
            e.vmq.pop()
        e.label(f'L_{n}_nowarma')

    def wo_warm2(self):
        e = self.e
        n = self.name
        q, r, t = vT + 7, vT + 8, vT + 11
        e(f's_cmp_eq_u32 s{sWv}, 0')
        e(f's_cbranch_scc1 L_{n}_nowarm')
        e(f's_bfe_u32 s{sT0}, s2, 0x10002')
        e(f's_cmp_eq_u32 s{sT0}, 0')
        e(f's_cselect_b32 s8, s48, s100')
        e(f's_cselect_b32 s9, s49, s101')
        e(f's_mov_b32 s10, {4096*1152}')
        e(f's_mov_b32 s11, 0x00020000')
        e(f's_bfe_u32 s{sT1}, s2, 0x10001')
        e(f's_lshl_b32 s{sT1}, s{sT1}, 9')
        e(f's_lshr_b32 s{sT0}, s2, 3')
        e(f's_mul_i32 s{sT0}, s{sT0}, 3')
        e(f's_add_u32 s{sT0}, s{sT0}, s{sWv}')
        e(f's_sub_u32 s{sT0}, s{sT0}, 1')
        e(f's_lshl_b32 s{sT0}, s{sT0}, 8')
        e(f's_mov_b32 s{sT2}, 52429')
        for i in range(4):
            e(f'v_add_u32 v{q}, s{sT0}, v{vL}')
            if i: e(f'v_add_u32 v{q}, {64*i}, v{q}')
            e(f'v_mul_lo_u32 v{r}, v{q}, s{sT2}')
            e(f'v_lshrrev_b32 v{r}, 18, v{r}')
            e(f'v_mul_u32_u24 v{t}, 5, v{r}')
            e(f'v_sub_u32 v{q}, v{q}, v{t}')
            e(f'v_mul_u32_u24 v{r}, 1152, v{r}')
            e(f'v_lshl_add_u32 v{q}, v{q}, 7, v{r}')
            e(f'buffer_load_dword v22, v{q}, s[8:11], s{sT1} offen', 'warm')
        e('s_waitcnt vmcnt(4)')
        e(f's_branch L_{n}_warmdone')
        e.label(f'L_{n}_nowarm')
        e('s_waitcnt vmcnt(0)')
        e.label(f'L_{n}_warmdone')
        e.vmq = []

    def epilogue2(self):
        e = self.e
        t0 = vT
        self.cstamp(0, 6)
        emit_groups(e, self.send_groups(4))
        if self.cfg.get('fused') and self.cfg.get('wwarm', 1) == 6: self.wo_warm_a()
        if self.cfg.get('flow'): self.flag_check()
        if self.cfg.get('fused') and self.cfg.get('wwarm', 1) == 1:
            if self.cfg.get('t4'):
                import tail4; tail4.wo_warm(self)
            else: self.wo_warm()
        if self.cfg.get('t4') and self.cfg.get('t4early', 1):
            import tail4; tail4.early(self)
        vMx, vLx = vS + 30, vS + 35
        for rt in range(5):
            e(f'v_sub_f32 v{vMx+rt}, 0, v{NM(rt)}')
            e(f'v_accvgpr_read_b32 v{vLx+rt}, a{Lf(rt)}')
        aw, ap = vT + 2, vT + 3
        e(f's_mul_i32 s{sT0}, s{sWv}, 640')
        e(f's_add_u32 s{sT0}, s{sT0}, {STATS}')
        e(f'v_lshlrev_b32 v{t0}, 3, v{vN}')
        e(f'v_add_u32 v{aw}, s{sT0}, v{t0}')
        e(f's_xor_b32 s{sT1}, s{sWv}, 1')
        e(f's_mul_i32 s{sT2}, s{sT1}, 640')
        e(f's_add_u32 s{sT2}, s{sT2}, {STATS}')
        e(f'v_add_u32 v{ap}, s{sT2}, v{t0}')
        for rt in range(5):
            e(f'ds_write2_b32 v{aw}, v{vMx+rt}, v{vLx+rt} offset0:{rt*32} offset1:{rt*32+1}', 'sw')
        e(f's_lshl_b32 s{sT1}, s{sT1}, 13')
        e(f'v_lshlrev_b32 v{t0}, 4, v{vL}')
        e(f'v_add_u32 v23, s{sT1}, v{t0}')
        e(f'v_add_u32 v{vT+1}, {VS}, v23')
        pa, pb = 23, vT + 1
        e.wait_lg()
        self.cstamp(1, 6)
        e('s_barrier')
        self.cstamp(2, 6)
        for rt in range(5):
            e(f'ds_read_b64 {vr(vS + 2*rt, 2)}, v{ap} offset:{rt*128}', 'sr')
        def reads(rt):
            for ts in range(4):
                q = rt * 4 + ts
                if q < 8: a, off = pa, q * 1024
                elif q < 16: a, off = pa, 32768 + (q - 8) * 1024
                else: a, off = pb, (q - 16) * 1024
                e(f'ds_read_b128 {vr(Oreg(ts+4, rt),4)}, v{a} offset:{off}', ('or', rt))
        reads(0); reads(1)
        e.wait_lg('sr')
        Go, Gp = vS + 16, vS + 40 - 40 + 0
        Mv = [vS + 10 + rt for rt in range(5)]
        Fo = [vT + 4 + rt for rt in range(5)]
        for rt in range(5): e(f'v_max_f32 v{Mv[rt]}, v{vMx+rt}, v{vS + 2*rt}')
        for rt in range(5):
            e(f'v_sub_f32 v{Fo[rt]}, v{vMx+rt}, v{Mv[rt]}')
            e(f'v_sub_f32 v{vS + 2*rt}, v{vS + 2*rt}, v{Mv[rt]}')
        for rt in range(5):
            e(f'v_exp_f32 v{Fo[rt]}, v{Fo[rt]}')
            e(f'v_exp_f32 v{vS + 2*rt}, v{vS + 2*rt}')
        for rt in range(5): e(f'v_mul_f32 v{vS + 2*rt + 1}, v{vS + 2*rt + 1}, v{vS + 2*rt}')
        for rt in range(5): e(f'v_fma_f32 v{vS + 2*rt + 1}, v{vLx+rt}, v{Fo[rt]}, v{vS + 2*rt + 1}')
        for rt in range(5): e(f'v_rcp_f32 v{vS + 2*rt + 1}, v{vS + 2*rt + 1}')
        for rt in range(5):
            e(f'v_mul_f32 v{Go + 2*rt}, v{Fo[rt]}, v{vS + 2*rt + 1}')
            e(f'v_mul_f32 v{vS + 2*rt}, v{vS + 2*rt}, v{vS + 2*rt + 1}')
        for k in (3, 4, 5, 6): self.cstamp(k, 6)
        so = vT + 6
        e(f'v_lshlrev_b32 v{so}, 4, v{vL}')
        for rt in range(5):
            if rt + 2 < 5: reads(rt + 2)
            e.wait_lg(('or', rt))
            go, gp = Go + 2*rt, vS + 2*rt
            for ts in range(4):
                a, b = Oreg(ts, rt), Oreg(ts + 4, rt)
                e(f'v_pk_mul_f32 {vr(b,2)}, {vr(b,2)}, {vr(gp,2)} op_sel_hi:[1,0]')
                e(f'v_pk_mul_f32 {vr(b+2,2)}, {vr(b+2,2)}, {vr(gp,2)} op_sel_hi:[1,0]')
                e(f'v_pk_fma_f32 {vr(a,2)}, {vr(a,2)}, {vr(go,2)}, {vr(b,2)} op_sel_hi:[1,0,1]')
                e(f'v_pk_fma_f32 {vr(a+2,2)}, {vr(a+2,2)}, {vr(go,2)}, {vr(b+2,2)} op_sel_hi:[1,0,1]')
            for u in range(2):
                a, b = Oreg(2*u, rt), Oreg(2*u + 1, rt)
                e(f'v_cvt_pk_bf16_f32 v{a}, v{a}, v{a+1}')
                e(f'v_cvt_pk_bf16_f32 v{a+1}, v{a+2}, v{a+3}')
                e(f'v_cvt_pk_bf16_f32 v{a+2}, v{b}, v{b+1}')
                e(f'v_cvt_pk_bf16_f32 v{a+3}, v{b+2}, v{b+3}')
                e(f'buffer_store_dwordx4 {vr(a,4)}, v{so}, s[{sO}:{sO+3}], s{sOoff} offen offset:{u*1024}{self.ofl}', 'ost')
            if rt < 4:
                e(f's_add_u32 s{sOoff}, s{sOoff}, 131072')
        self.cstamp(7, 6)
        if self.cfg.get('stamps') and (not self.cfg.get('fused') or self.cfg.get('stamps') == 6) and not self.cfg.get('flow'): e.wait_vm('ost')
        self.cstamp(8, 6)

    def epilogue(self):
        if self.cfg.get('epi2', 1): return self.epilogue2()
        e = self.e
        t0, t1 = vT, vT + 1
        self.cstamp(0, 6)
        if self.cfg.get('flow'): self.flag_check()
        if self.cfg.get('fused') and self.cfg.get('wwarm', 1) == 1:
            if self.cfg.get('t4'):
                import tail4; tail4.wo_warm(self)
            else: self.wo_warm()
        if self.cfg.get('t4') and self.cfg.get('t4early', 1):
            import tail4; tail4.early(self)
        vMx, vLx = vS + 30, vS + 35
        for rt in range(5):
            e(f'v_sub_f32 v{vMx+rt}, 0, v{NM(rt)}')
            e(f'v_accvgpr_read_b32 v{vLx+rt}, a{Lf(rt)}')
        aw, ap = vT + 2, vT + 3
        e(f's_mul_i32 s{sT0}, s{sWv}, 640')
        e(f's_add_u32 s{sT0}, s{sT0}, {STATS}')
        e(f'v_lshlrev_b32 v{t0}, 3, v{vN}')
        e(f'v_add_u32 v{aw}, s{sT0}, v{t0}')
        e(f's_xor_b32 s{sT1}, s{sWv}, 1')
        e(f's_mul_i32 s{sT1}, s{sT1}, 640')
        e(f's_add_u32 s{sT1}, s{sT1}, {STATS}')
        e(f'v_add_u32 v{ap}, s{sT1}, v{t0}')
        for rt in range(5):
            e(f'ds_write2_b32 v{aw}, v{vMx+rt}, v{vLx+rt} offset0:{rt*32} offset1:{rt*32+1}', 'sw')
        e.wait_lg()
        self.cstamp(1, 6)
        e('s_barrier')
        self.cstamp(2, 6)
        for rt in range(5):
            e(f'ds_read_b64 {vr(vS + 2*rt, 2)}, v{ap} offset:{rt*128}', 'sr')
        e.wait_lg()
        G = vS + 16
        Mv = [vS + 10 + rt for rt in range(5)]
        Fo = [vT + 4 + rt for rt in range(5)]
        for rt in range(5): e(f'v_max_f32 v{Mv[rt]}, v{vMx+rt}, v{vS + 2*rt}')
        for rt in range(5):
            e(f'v_sub_f32 v{Fo[rt]}, v{vMx+rt}, v{Mv[rt]}')
            e(f'v_sub_f32 v{vS + 2*rt}, v{vS + 2*rt}, v{Mv[rt]}')
        for rt in range(5):
            e(f'v_exp_f32 v{Fo[rt]}, v{Fo[rt]}')
            e(f'v_exp_f32 v{vS + 2*rt}, v{vS + 2*rt}')
        for rt in range(5): e(f'v_mul_f32 v{vS + 2*rt + 1}, v{vS + 2*rt + 1}, v{vS + 2*rt}')
        for rt in range(5): e(f'v_fma_f32 v{vS + 2*rt + 1}, v{vLx+rt}, v{Fo[rt]}, v{vS + 2*rt + 1}')
        for rt in range(5): e(f'v_rcp_f32 v{vS + 2*rt + 1}, v{vS + 2*rt + 1}')
        for rt in range(5): e(f'v_mul_f32 v{G + 2*rt}, v{Fo[rt]}, v{vS + 2*rt + 1}')
        self.cstamp(3, 6)
        xa = vT + 9
        e(f's_mul_i32 s{sT0}, s{sWv}, 20480')
        e(f's_add_u32 s{sT0}, s{sT0}, {OX}')
        e(f'v_lshlrev_b32 v{t0}, 4, v{vL}')
        e(f'v_add_u32 v{xa}, s{sT0}, v{t0}')
        e(f's_xor_b32 s{sT1}, s{sWv}, 1')
        e(f's_mul_i32 s{sT1}, s{sT1}, 20480')
        e(f's_add_u32 s{sT1}, s{sT1}, {OX}')
        e(f'v_add_u32 v{xa+1}, s{sT1}, v{t0}')
        for ts in (4, 5, 6, 7):
            for rt in range(5):
                b = Oreg(ts, rt); g = G + 2*rt
                e(f'v_pk_mul_f32 {vr(b,2)}, {vr(b,2)}, {vr(g,2)} op_sel_hi:[1,0]')
                e(f'v_pk_mul_f32 {vr(b+2,2)}, {vr(b+2,2)}, {vr(g,2)} op_sel_hi:[1,0]')
                if ts >= 4:
                    e(f'ds_write_b128 v{xa}, {vr(b,4)} offset:{((ts-4)*5+rt)*1024}', 'ow')
        e.wait_lg()
        self.cstamp(4, 6)
        e('s_barrier')
        self.cstamp(5, 6)
        self.cstamp(6, 6)
        so = vT + 6
        e(f'v_lshlrev_b32 v{so}, 4, v{vL}')
        def reads(rt):
            for ts in range(4):
                e(f'ds_read_b128 {vr(Oreg(ts+4, rt),4)}, v{xa+1} offset:{(ts*5+rt)*1024}', ('or', rt))
        reads(0); reads(1)
        for rt in range(5):
            if rt + 2 < 5: reads(rt + 2)
            e.wait_lg(('or', rt))
            g = vS + 16 + 2*rt
            for ts in range(4):
                a, b = Oreg(ts, rt), Oreg(ts + 4, rt)
                e(f'v_pk_fma_f32 {vr(a,2)}, {vr(a,2)}, {vr(g,2)}, {vr(b,2)} op_sel_hi:[1,0,1]')
                e(f'v_pk_fma_f32 {vr(a+2,2)}, {vr(a+2,2)}, {vr(g,2)}, {vr(b+2,2)} op_sel_hi:[1,0,1]')
            for u in range(2):
                a, b = Oreg(2*u, rt), Oreg(2*u + 1, rt)
                e(f'v_cvt_pk_bf16_f32 v{a}, v{a}, v{a+1}')
                e(f'v_cvt_pk_bf16_f32 v{a+1}, v{a+2}, v{a+3}')
                e(f'v_cvt_pk_bf16_f32 v{a+2}, v{b}, v{b+1}')
                e(f'v_cvt_pk_bf16_f32 v{a+3}, v{b+2}, v{b+3}')
                e(f'buffer_store_dwordx4 {vr(a,4)}, v{so}, s[{sO}:{sO+3}], s{sOoff} offen offset:{u*1024}{self.ofl}', 'ost')
            if rt < 4:
                e(f's_add_u32 s{sOoff}, s{sOoff}, 131072')
        self.cstamp(7, 6)
        if self.cfg.get('fused') and self.cfg.get('wwarm', 1) == 2: self.wo_warm2()
        if self.cfg.get('stamps') and (not self.cfg.get('fused') or self.cfg.get('stamps') == 6) and not self.cfg.get('flow'): e.wait_vm('ost')
        self.cstamp(8, 6)

    def _epi_add(self, ts):
        e = self.e
        e.wait_lg(('or', ts))
        for rt in range(5):
            a, b = Oreg(ts, rt), Oreg(ts + 4, rt)
            g = vS + 16 + 2*rt
            e(f'v_pk_fma_f32 {vr(a,2)}, {vr(a,2)}, {vr(g,2)}, {vr(b,2)} op_sel_hi:[1,0,1]')
            e(f'v_pk_fma_f32 {vr(a+2,2)}, {vr(a+2,2)}, {vr(g,2)}, {vr(b+2,2)} op_sel_hi:[1,0,1]')

    def build(self):
        e = self.e
        n = self.name
        e.raw(f'.globl {n}\n.p2align 8\n.type {n},@function')
        e.label(n)
        self.stamp(0); self.stamp(0, 2); self.stamp(0, 3); self.cstamp(4); self.stamp(0, 5); self.cstamp(1, 5)
        self.prologue()
        e(f's_cmp_eq_u32 s{sBr}, 0')
        e(f's_cbranch_scc0 L_{n}_qB')
        saved = (list(e.vmq), list(e.lgq))
        self.q_phase('A')
        endA = (list(e.vmq), list(e.lgq))
        e(f's_branch L_{n}_qx')
        e.label(f'L_{n}_qB')
        e.vmq, e.lgq = list(saved[0]), list(saved[1])
        self.q_phase('B')
        assert (e.vmq, e.lgq) == endA, (e.vmq, endA)
        e.label(f'L_{n}_qx')
        self.stamp(1); self.stamp(11, 2); self.stamp(1, 3); self.cstamp(5)
        self.q_exchange()
        self.stamp(2); self.stamp(12, 2); self.stamp(2, 3); self.cstamp(6); self.stamp(2, 5)
        self.main_loop()
        self.stamp(4); self.stamp(3, 3); self.cstamp(7); self.stamp(3, 5)
        self.epilogue()
        self.stamp(5)
        if self.cfg.get('fused'):
            if self.cfg.get('t4'): from tail4 import fused_tail
            else: from tail import fused_tail
            fused_tail(self)
            self.stamp(9)
            if self.cfg.get('stamps') == 5:
                self.stamp(4, 5); self.cstamp(5, 5)
                e('s_waitcnt lgkmcnt(0)')
                e(f's_cmp_lg_u32 s2, {self.cfg.get("dbgwg", 0)}')
                e(f's_cbranch_scc1 L_{n}_end')
                e(f's_cmp_lg_u32 s{sWv}, 0')
                e(f's_cbranch_scc1 L_{n}_end')
                e('s_sub_u32 s78, s78, s70')
                e('s_sub_u32 s80, s80, s72')
                e('s_sub_u32 s76, s76, s70')
                e('s_sub_u32 s74, s74, s70')
                e('v_mov_b32 v4, s78'); e('v_mov_b32 v5, s80'); e('v_mov_b32 v6, s76'); e('v_mov_b32 v7, s74')
                e('v_mov_b32 v8, 48')
                e('s_mov_b64 exec, 1')
                e('buffer_store_dwordx4 v[4:7], v8, s[16:19], 0 offen')
                e('s_waitcnt vmcnt(0)')
                e.vmq = []
            else:
                self.write_stamps(10 if self.cfg.get('stamps') == 1 else 13)
        else:
            self.write_stamps(6 if self.cfg.get('stamps') == 1 else 13)
        e.label(f'L_{n}_end')
        e('s_endpgm')
        for r in self.rare:
            e.ins.extend(r.ins)
        e.label(f'L_{n}_rareend')
        e('s_endpgm')
        kd = f'''
.amdhsa_kernel {n}
  .amdhsa_next_free_vgpr 512
  .amdhsa_next_free_sgpr 102
  .amdhsa_accum_offset 256
  .amdhsa_group_segment_fixed_size 0
  .amdhsa_kernarg_size 104
  .amdhsa_user_sgpr_count 2
  .amdhsa_user_sgpr_kernarg_segment_ptr 1
  .amdhsa_system_sgpr_workgroup_id_x 1
.end_amdhsa_kernel
'''
        return kd
```

```python
from asmgen import *

X_BYTES = 8 * 80 * 1152
W_BYTES = 576 * 8192
KA_BYTES = 8 * 16 * 1024 * 256
KB_BYTES = 8 * 32 * 1024 * 256
O_BR = 40 * 128 * 1024
O_BYTES = 2 * O_BR

QBUF0, QBUFSZ = 34816, 43008
KS, VS = 0, 65536
QIMG = 122880
STATS = 131072
OX = 0

sX, sW, sK, sV, sO = 4, 8, 12, 16, 20
sWv, sJ, sKH, sBr, sC, sT = 24, 25, 26, 27, 28, 29
sKoff, sVoff, sKl, sVl = 30, 31, 32, 33
sXoff, sWoff, sOoff = 34, 35, 36
sT0, sT1, sT2 = 37, 38, 39
sP = 40
sLoop = 60
sXl, sWl = 61, 62
sKt, sVt = 96, 97
sB, sH = 63, 64
sCc, sXc, sWc, sX3c = 67, 68, 69, 3
vL, vN, vG = 1, 2, 3
vKd, vVd = 4, 8
vKr, vVr = 10, 14
vNM = 24
vXr, vWr = 36, 38
vT = 44
vXd, vWd = 56, 60
vQA = 64
vS = 56
vO = 96
aQ = 0
aK = 80
aV = 112
aL = 144
aOne = 164
aXF = [168, 204]
aWF = [188, 224]

def Sreg(rt, kt): return vS + rt * 8 + kt * 4
def Oreg(ts, rt): return vO + (ts * 5 + rt) * 4
def Qacc(tt, rt): return vO + (tt * 5 + rt) * 4
def Qf(rt, s): return aQ + (rt * 4 + s) * 4
def Kf(kt, s): return aK + (kt * 4 + s) * 4
def Vf(ts): return aV + ts * 4
def NM(rt): return vNM + rt * 4
def Lf(rt): return aL + rt * 4

MFMA = 'v_mfma_f32_16x16x32_bf16'

def srd(e, s, lo, hi, nbytes):
    e(f's_mov_b32 s{s}, s{lo}')
    e(f's_mov_b32 s{s+1}, s{hi}')
    e(f's_mov_b32 s{s+2}, {nbytes}')
    e(f's_mov_b32 s{s+3}, 0x00020000')

def interleave(e, prim, groups, start=0, every=None, end=None):
    n = len(prim); g = len(groups)
    end = n if end is None else end
    pos = {}
    if g:
        span = max(end - start, 1)
        for k in range(g):
            p = start + (k * span) // g if every is None else start + k * every
            pos.setdefault(min(p, n - 1), []).append(groups[k])
    for i, t in enumerate(prim):
        e(t)
        for grp in pos.get(i, []):
            for (tt, tag) in grp: e(tt, tag)
    if n == 0:
        for grp in groups:
            for (tt, tag) in grp: e(tt, tag)

def emit_groups(e, groups):
    for grp in groups:
        for (tt, tag) in grp: e(tt, tag)

class AttnGen:
    def __init__(self, e, cfg):
        self.e = e
        self.cfg = cfg
        self.kvfl = cfg.get('kv_flags', ' nt')
        self.xfl = cfg.get('x_flags', '')
        self.wfl = cfg.get('w_flags', ' nt')
        self.ofl = cfg.get('o_flags', ' sc1' if cfg.get('fused') else '')
        self.name = cfg.get('name', 'attn_kernel')
        self.rare = []
        self.nrare = 0

    def stamp(self, i, mode=1):
        if self.cfg.get('stamps') == mode:
            self.e(f's_memrealtime s[{70+2*i}:{71+2*i}]')
    def cstamp(self, i, mode=3):
        if self.cfg.get('stamps') == mode:
            self.e(f's_memtime s[{70+2*i}:{71+2*i}]')
    def write_stamps(self, n, kernel_idx=0):
        if not self.cfg.get('stamps'): return
        e = self.e
        e('s_waitcnt lgkmcnt(0)')
        e(f's_lshl_b32 s{sT0}, s2, 2')
        e(f's_add_u32 s{sT0}, s{sT0}, s{sWv}')
        e(f's_lshl_b32 s{sT0}, s{sT0}, 7')
        e(f's_add_u32 s{sT0}, s{sT0}, {0x1000000 + kernel_idx*0x100000}')
        e(f's_mov_b32 s{sO+2}, 0x2000000')
        e(f'v_mov_b32 v{vT}, 0')
        for i in range(n):
            e(f'v_mov_b32 v{vT+2}, s{70+2*i}')
            e(f'v_mov_b32 v{vT+3}, s{71+2*i}')
            e(f'buffer_store_dwordx2 {vr(vT+2,2)}, v{vT}, s[{sO}:{sO+3}], s{sT0} offen offset:{8*i}')
            e('s_waitcnt vmcnt(0)')
        e.vmq = []
    def prologue(self):
        e = self.e
        e(f's_cmp_ge_u32 s2, 256')
        e(f's_cbranch_scc1 L_{self.name}_end')
        e(f's_load_dwordx16 s[40:55], s[0:1], 0')
        e(f's_load_dwordx2 s[56:57], s[0:1], 64')
        e(f's_load_dwordx2 s[58:59], s[0:1], 96')
        e(f's_load_dwordx2 s[100:101], s[0:1], 72')
        e(f's_load_dwordx2 s[90:91], s[0:1], 88')
        t0, t1, t2, t3 = vT, vT + 1, vT + 2, vT + 3
        e(f'v_lshrrev_b32 v{t0}, 6, v0')
        e(f'v_and_b32 v{vL}, 63, v0')
        e(f'v_readfirstlane_b32 s{sWv}, v{t0}')
        e(f'v_and_b32 v{vN}, 15, v{vL}')
        e(f'v_lshrrev_b32 v{vG}, 4, v{vL}')
        if self.cfg.get('codepf'):
            n = self.name
            e(f's_lshr_b32 s{sT0}, s2, 3')
            e(f's_cmp_ge_u32 s{sT0}, 2')
            e(f's_cbranch_scc1 L_{n}_nopf')
            e(f's_lshl_b32 s{sT0}, s{sT0}, 2')
            e(f's_add_u32 s{sT0}, s{sT0}, s{sWv}')
            e(f's_lshl_b32 s{sT0}, s{sT0}, 13')
            e('s_getpc_b64 s[66:67]')
            e.label(f'L_{n}_pc')
            e(f'v_lshlrev_b32 v{t0}, 7, v{vL}')
            e(f'v_add_u32 v{t0}, s{sT0}, v{t0}')
            e(f'v_min_u32 v{t0}, L_{n}_rareend-L_{n}_pc-4, v{t0}')
            e(f'v_mov_b32 v{t1}, s67')
            e(f'v_add_co_u32 v{t2}, vcc, s66, v{t0}')
            e(f'v_addc_co_u32 v{t3}, vcc, 0, v{t1}, vcc')
            e(f'global_load_dword v{vT+8}, v[{t2}:{t3}], off', 'pf')
            e.vmq.pop()
            e.label(f'L_{n}_nopf')
        e(f's_lshr_b32 s{sJ}, s{sWv}, 1')
        e(f's_and_b32 s{sKH}, s{sWv}, 1')
        e(f's_and_b32 s{sT0}, s2, 7')
        e(f's_lshr_b32 s{sT1}, s2, 3')
        e(f's_lshr_b32 s{sBr}, s{sT1}, 4')
        e(f's_and_b32 s{sT1}, s{sT1}, 15')
        e(f's_mov_b32 s{sC}, 0x3e029407')
        import struct, math
        c = (128 ** -0.5) * math.log2(math.e)
        bits = struct.unpack('<I', struct.pack('<f', c))[0]
        e.ins[-1] = Inst(f's_mov_b32 s{sC}, {bits:#010x}')
        e(f's_mov_b32 s{sT}, 0x41000000')
        for i in range(4):
            q = i >> 1
            e(f'v_or_b32 v{t0}, {q << 2}, v{vG}')
            e(f'v_lshlrev_b32 v{t0}, 1, v{t0}')
            e(f'v_xor_b32 v{t0}, v{t0}, v{vN}')
            e(f'v_lshlrev_b32 v{t0}, 4, v{t0}')
            e(f'v_lshl_add_u32 v{vWd+i}, v{vG}, 13, v{t0}')
            if i: e(f'v_add_u32 v{vWd+i}, {(32768-1024)*i}, v{vWd+i}')
        e(f'v_lshrrev_b32 v{t1}, 3, v{vL}')
        e(f's_movk_i32 s{sT2}, 1152')
        e(f'v_mul_lo_u32 v{t1}, v{t1}, s{sT2}')
        e(f'v_and_b32 v{t2}, 7, v{vL}')
        for i in range(4):
            e(f's_add_u32 s{sT2}, s{sKH}, {i}')
            e(f's_and_b32 s{sT2}, s{sT2}, 1')
            e(f's_lshl_b32 s{sT2}, s{sT2}, 2')
            e(f'v_add_u32 v{t0}, s{sT2}, v{vG}')
            e(f'v_and_b32 v{t0}, 7, v{t0}')
            e(f'v_xor_b32 v{t0}, v{t0}, v{t2}')
            e(f'v_lshl_add_u32 v{vXd+i}, v{t0}, 4, v{t1}')
            if i: e(f'v_add_u32 v{vXd+i}, {8192*i}, v{vXd+i}')

    def prologue_b(self):
        e = self.e
        t0, t1, t2, t3 = vT, vT + 1, vT + 2, vT + 3
        for j in range(4):
            e(f'v_add_u32 v{t0}, {4*j}, v{vG}')
            e(f'v_xor_b32 v{t0}, v{t0}, v{vN}')
            e(f'v_lshlrev_b32 v{t0}, 4, v{t0}')
            e(f'v_lshl_add_u32 v{vKd+j}, v{vG}, 8, v{t0}')
        for p in range(2):
            e(f'v_add_u32 v{t0}, {4*p}, v{vG}')
            e(f'v_lshlrev_b32 v{t0}, 1, v{t0}')
            e(f'v_xor_b32 v{t0}, v{t0}, v{vN}')
            e(f'v_lshlrev_b32 v{t0}, 4, v{t0}')
            e(f'v_lshl_add_u32 v{vVd+p}, v{vG}, 8, v{t0}')
        e(f's_lshl_b32 s{sKl}, s{sWv}, 13')
        e(f's_add_u32 s{sVl}, s{sKl}, {VS}')
        for s in range(4):
            e(f's_lshl_b32 s{sT2}, s{sKH}, 1')
            e(f's_xor_b32 s{sT2}, s{sT2}, {s}')
            e(f's_lshl_b32 s{sT2}, s{sT2}, 2')
            e(f'v_add_u32 v{t0}, s{sT2}, v{vG}')
            e(f'v_xor_b32 v{t0}, v{t0}, v{vN}')
            e(f'v_lshlrev_b32 v{t0}, 4, v{t0}')
            e(f'v_lshl_add_u32 v{t0}, v{vN}, 8, v{t0}')
            e(f'v_add_u32 v{vKr+s}, s{sKl}, v{t0}')
        e(f'v_bfe_u32 v{t1}, v{vL}, 2, 2')
        e(f'v_lshl_add_u32 v{t1}, v{vG}, 2, v{t1}')
        e(f'v_and_b32 v{t2}, 7, v{t1}')
        e(f'v_lshlrev_b32 v{t2}, 1, v{t2}')
        e(f'v_bfe_u32 v{t3}, v{vL}, 1, 1')
        e(f'v_xor_b32 v{t2}, v{t2}, v{t3}')
        e(f'v_and_b32 v{t3}, 1, v{vL}')
        e(f'v_lshlrev_b32 v{t3}, 3, v{t3}')
        e(f'v_lshl_add_u32 v{t3}, v{t1}, 8, v{t3}')
        e(f'v_add_u32 v{t3}, s{sVl}, v{t3}')
        for ts in range(8):
            e(f's_lshl_b32 s{sT2}, s{sKH}, 2')
            e(f's_xor_b32 s{sT2}, s{sT2}, {ts}')
            e(f's_lshl_b32 s{sT2}, s{sT2}, 1')
            e(f'v_xor_b32 v{t0}, s{sT2}, v{t2}')
            e(f'v_lshl_add_u32 v{vVr+ts}, v{t0}, 4, v{t3}')

    def q_setup(self, br):
        e = self.e
        t0, t1, t2, t3 = vT, vT + 1, vT + 2, vT + 3
        rot = self.cfg.get('qrot', 1)
        if br == 'A':
            e(f's_lshr_b32 s{sCc}, s{sT1}, 1')
            e(f's_and_b32 s{sT2}, s{sT1}, 1')
            e(f's_lshl_b32 s{sT2}, s{sT2}, 2')
            e(f's_add_u32 s{sCc}, s{sCc}, s{sT2}')
            e(f's_sub_u32 s{sT2}, s{sCc}, 9')
            e(f's_cmp_ge_u32 s{sCc}, 9')
            e(f's_cselect_b32 s{sCc}, s{sT2}, s{sCc}')
        else:
            e(f's_lshr_b32 s{sCc}, s{sT1}, 2')
            e(f's_add_u32 s{sCc}, s{sCc}, s{sT1}')
            e(f's_and_b32 s{sCc}, s{sCc}, 3')
            e(f's_mul_i32 s{sCc}, s{sCc}, 5')
            e(f's_lshr_b32 s{sCc}, s{sCc}, 1')
        if rot == 2:
            if br == 'A':
                e(f's_lshr_b32 s{sCc}, s{sT1}, 1')
                e(f's_and_b32 s{sT2}, s{sT1}, 1')
                e(f's_lshl_b32 s{sT2}, s{sT2}, 2')
                e(f's_add_u32 s{sCc}, s{sCc}, s{sT2}')
                e(f's_and_b32 s{sCc}, s{sCc}, 7')
            else:
                e(f's_lshr_b32 s{sCc}, s{sT1}, 2')
                e(f's_add_u32 s{sCc}, s{sCc}, s{sT1}')
                e(f's_and_b32 s{sCc}, s{sCc}, 3')
                e(f's_lshl_b32 s{sCc}, s{sCc}, 1')
            e(f's_add_u32 s{sCc}, s{sCc}, 1')
        if not rot: e(f's_mov_b32 s{sCc}, 0')
        if br == 'A':
            e(f's_lshr_b32 s{sB}, s{sT1}, 1')
            e(f's_and_b32 s{sT1}, s{sT1}, 1')
            if self.cfg.get('hmap', 0) == 1:
                e(f's_lshl_b32 s{sT1}, s{sT1}, 3')
            else:
                e(f's_lshl_b32 s{sT0}, s{sT0}, 1')
            e(f's_add_u32 s{sT0}, s{sT0}, s{sT1}')
            e(f's_lshl_b32 s{sH}, s{sT0}, 1')
            e(f's_add_u32 s{sH}, s{sH}, s{sJ}')
            e(f's_lshl_b32 s{sT1}, s{sB}, 4')
            e(f's_add_u32 s{sT1}, s{sT1}, s{sT0}')
            late = lambda: (srd(e, sK, 42, 43, KA_BYTES), srd(e, sV, 44, 45, KA_BYTES))
            early = lambda: (srd(e, sX, 40, 41, X_BYTES), srd(e, sW, 46, 47, W_BYTES))
        else:
            e(f's_lshr_b32 s{sB}, s{sT1}, 2')
            e(f's_lshl_b32 s{sT2}, s{sJ}, 2')
            e(f's_add_u32 s{sB}, s{sB}, s{sT2}')
            e(f's_and_b32 s{sT1}, s{sT1}, 3')
            if self.cfg.get('hmap', 0) == 1:
                e(f's_lshl_b32 s{sT1}, s{sT1}, 3')
                e(f's_add_u32 s{sH}, s{sT0}, s{sT1}')
            else:
                e(f's_lshl_b32 s{sH}, s{sT0}, 2')
                e(f's_add_u32 s{sH}, s{sH}, s{sT1}')
            e(f's_lshl_b32 s{sT1}, s{sB}, 5')
            e(f's_add_u32 s{sT1}, s{sT1}, s{sH}')
            late = lambda: (srd(e, sK, 52, 53, KB_BYTES), srd(e, sV, 54, 55, KB_BYTES))
            early = lambda: (srd(e, sX, 50, 51, X_BYTES), srd(e, sW, 56, 57, W_BYTES))
        if self.cfg.get('kvsame'): e(f's_and_b32 s{sT1}, s2, 7')
        e(f's_lshl_b32 s{sKoff}, s{sT1}, 18')
        e(f's_lshl_b32 s{sT2}, s{sKH}, 13')
        e(f's_add_u32 s{sKoff}, s{sKoff}, s{sT2}')
        e(f's_mov_b32 s{sVoff}, s{sKoff}')
        e(f's_mul_i32 s{sOoff}, s{sB}, {5*128*1024}')
        e(f's_lshl_b32 s{sT2}, s{sH}, 12')
        e(f's_add_u32 s{sOoff}, s{sOoff}, s{sT2}')
        e(f's_lshl_b32 s{sT2}, s{sKH}, 11')
        e(f's_add_u32 s{sOoff}, s{sOoff}, s{sT2}')
        if br == 'B':
            e(f's_add_u32 s{sOoff}, s{sOoff}, {O_BR}')
        if br == 'A':
            e(f's_mul_i32 s{sXoff}, s{sB}, 92160')
            e(f's_mul_i32 s{sT2}, s{sWv}, 9216')
            e(f's_add_u32 s{sXoff}, s{sXoff}, s{sT2}')
            e(f's_lshl_b32 s{sXl}, s{sWv}, 10')
            e(f's_mul_i32 s65, s{sB}, 92160')
            e(f's_add_u32 s{sT2}, s{sKH}, 8')
            e(f's_lshl_b32 s66, s{sT2}, 10')
            e(f's_mul_i32 s{sT2}, s{sT2}, 9216')
            e(f's_add_u32 s65, s65, s{sT2}')
            e(f's_lshl_b32 s{sWoff}, s{sH}, 8')
            e(f's_lshl_b32 s{sT2}, s{sKH}, 18')
            e(f's_add_u32 s{sWoff}, s{sWoff}, s{sT2}')
            e(f's_lshl_b32 s{sWl}, s{sJ}, 14')
            e(f's_lshl_b32 s{sT2}, s{sKH}, 13')
            e(f's_add_u32 s{sWl}, s{sWl}, s{sT2}')
            e(f's_add_u32 s{sWl}, s{sWl}, 10240')
            xoffj, woffj = (0, 0), (10240, 16384)
        else:
            e(f's_mul_i32 s{sXoff}, s{sB}, 92160')
            e(f's_mul_i32 s{sT2}, s{sKH}, {40*1152}')
            e(f's_add_u32 s{sXoff}, s{sXoff}, s{sT2}')
            e(f's_mul_i32 s{sXl}, s{sWv}, 5120')
            e(f's_lshl_b32 s{sWoff}, s{sH}, 8')
            e(f's_lshl_b32 s{sT2}, s{sWv}, 17')
            e(f's_add_u32 s{sWoff}, s{sWoff}, s{sT2}')
            e(f's_lshl_b32 s{sWl}, s{sWv}, 12')
            e(f's_add_u32 s{sWl}, s{sWl}, 20480')
            xoffj, woffj = (0, 10240), (20480, 0)
        e('s_waitcnt lgkmcnt(0)')
        early()
        emit_groups(e, self.q_dma(br, 0))
        emit_groups(e, self.q_dma(br, 1))
        late()
        srd(e, sO, 58, 59, O_BYTES)
        self.prologue_b()
        e(f's_mul_i32 s{sT2}, s{sJ}, {xoffj[1]}')
        e(f's_add_u32 s{sT2}, s{sT2}, {QBUF0 + xoffj[0]}')
        e(f'v_lshrrev_b32 v{t1}, 1, v{vN}')
        for s2 in range(2):
            e(f'v_add_u32 v{t0}, {4*s2}, v{vG}')
            e(f'v_xor_b32 v{t0}, v{t0}, v{t1}')
            e(f'v_lshlrev_b32 v{t0}, 4, v{t0}')
            e(f'v_lshl_add_u32 v{t0}, v{vN}, 7, v{t0}')
            e(f'v_add_u32 v{vXr+s2}, s{sT2}, v{t0}')
        e(f's_mul_i32 s{sT2}, s{sJ}, {woffj[1]}')
        e(f's_add_u32 s{sT2}, s{sT2}, {QBUF0 + woffj[0]}')
        e(f'v_bfe_u32 v{t1}, v{vL}, 2, 2')
        e(f'v_and_b32 v{t2}, 1, v{vG}')
        e(f'v_lshl_or_b32 v{t2}, v{t2}, 2, v{t1}')
        e(f'v_lshlrev_b32 v{t2}, 1, v{t2}')
        e(f'v_and_b32 v{t3}, 3, v{vL}')
        e(f'v_xor_b32 v{t2}, v{t2}, v{t3}')
        e(f'v_lshl_add_u32 v{t1}, v{vG}, 3, v{t1}')
        e(f'v_lshlrev_b32 v{t3}, 8, v{t1}')
        e(f'v_add_u32 v{t3}, s{sT2}, v{t3}')
        for tt in range(4):
            e(f's_lshl_b32 s{sT2}, s{sKH}, 3')
            e(f's_add_u32 s{sT2}, s{sT2}, {4 * (tt >> 1)}')
            e(f'v_xor_b32 v{t0}, s{sT2}, v{t2}')
            e(f'v_lshl_add_u32 v{vWr+tt}, v{t0}, 4, v{t3}')
            if tt & 1: e(f'v_add_u32 v{vWr+tt}, 8, v{vWr+tt}')

    def q_addr_copies(self):
        e = self.e
        for b in range(3):
            for k, r in enumerate((vXr, vXr + 1, vWr, vWr + 1, vWr + 2, vWr + 3)):
                if b == 0: e(f'v_mov_b32 v{vQA + k}, v{r}')
                else: e(f'v_add_u32 v{vQA + 6*b + k}, {b*QBUFSZ}, v{r}')

    def q_dma(self, br, c):
        qb = QBUF0 + (c % 3) * QBUFSZ
        tag = ('Q', c)
        G = []
        hyb = self.cfg.get('qrot', 1) == 2
        if hyb and c == 0:
            g = [(f's_mov_b32 s{sXc}, s{sXoff}', None), (f's_mov_b32 s{sWc}, s{sWoff}', None)]
            if br == 'A': g.append((f's_mov_b32 s{sX3c}, s65', None))
        else:
            g = [(f's_lshl_b32 s{sT2}, s{sCc}, 7', None), (f's_add_u32 s{sXc}, s{sXoff}, s{sT2}', None)]
            if br == 'A': g.append((f's_add_u32 s{sX3c}, s65, s{sT2}', None))
        if self.cfg.get('qsame'):
            g = [(f's_mov_b32 s{sXc}, 0', None), (f's_mov_b32 s{sX3c}, 0', None), (f's_mov_b32 s{sWc}, 0', None)]
        elif not (hyb and c == 0):
          g += [(f's_lshl_b32 s{sT2}, s{sCc}, 19', None), (f's_add_u32 s{sWc}, s{sWoff}, s{sT2}', None),
              (f's_add_u32 s{sCc}, s{sCc}, 1', None), (f's_cmp_eq_u32 s{sCc}, 9', None), (f's_cselect_b32 s{sCc}, {1 if hyb else 0}, s{sCc}', None)]
        G.append(g)
        def ld(voff, srdr, soff, off, fl, pre=()):
            G.append(list(pre) + [(f'buffer_load_dwordx4 v{voff}, s[{srdr}:{srdr+3}], s{soff} offen offset:{off}{fl} lds', tag)])
        m0 = lambda reg, imm: (f's_add_u32 m0, s{reg}, {qb + imm}', None)
        if br == 'A':
            ld(vXd, sX, sXc, 0, self.xfl, [m0(sXl, 0)])
            ld(vXd, sX, sT2, 0, self.xfl, [m0(sXl, 4096), (f's_add_u32 s{sT2}, s{sXc}, {4*9216}', None)])
            ld(vXd, sX, sX3c, 0, self.xfl, [m0(66, 0), ('s_nop 0', None)])
            for i in range(4):
                ld(vWd + i, sW, sWc, 1024*i, self.wfl, [m0(sWl, 0), ('s_nop 0', None)] if i == 0 else [])
            for i in range(4):
                ld(vWd + i, sW, sWc, 1024*i, self.wfl, [m0(sWl, 4096), (f's_add_u32 s{sWc}, s{sWc}, {4*32768}', None)] if i == 0 else [])
        else:
            for i in range(4):
                ld(vXd + i, sX, sXc, 1024*i, self.xfl, [m0(sXl, 0), ('s_nop 0', None)] if i == 0 else [])
            ld(vXd, sX, sXc, 0, self.xfl, [m0(sXl, 4096), (f's_add_u32 s{sXc}, s{sXc}, {4*9216}', None)])
            for i in range(4):
                ld(vWd + i, sW, sWc, 1024*i, self.wfl, [m0(sWl, 0), ('s_nop 0', None)] if i == 0 else [])
        return G

    def kv_dma(self, kind, par, tag):
        if kind == 'K': l, off, s, vo, tmp = sKl, sKoff, sK, [vKd, vKd + 1, vKd + 2, vKd + 3], sKt
        else: l, off, s, vo, tmp = sVl, sVoff, sV, [vVd, vVd + 1, vVd, vVd + 1], sVt
        G = []
        for half in range(2):
            for q in range(4):
                g = []
                if q == 0:
                    g.append((f's_add_u32 m0, s{l}, {par * 32768 + half * 4096}', None))
                    if half == 0: g.append((f's_add_u32 s{tmp}, s{off}, 4096', None))
                    else: g.append((f's_add_u32 s{off}, s{off}, 16384', None))
                so = off if half == 0 else tmp
                g.append((f'buffer_load_dwordx4 v{vo[q]}, s[{s}:{s+3}], s{so} offen offset:{q*1024}{self.kvfl} lds', tag))
                G.append(g)
        return G

    def q_reads(self, s2, c):
        G = []
        base = vQA + 6 * (c % 3)
        for tt in range(4):
            for sec in range(2):
                G.append([(f'ds_read_b64_tr_b16 {ar(aWF[s2] + 4*tt + 2*sec, 2)}, v{base+2+tt} offset:{s2*8192 + sec*1024}', ('q', s2))])
            if tt == 0:
                for rt in range(5):
                    G.append([(f'ds_read_b128 {ar(aXF[s2] + 4*rt, 4)}, v{base+s2} offset:{rt*2048}', ('q', s2))])
        return G

    def q_mfmas(self, s2, first):
        L = []
        for tt in range(4):
            for rt in range(5):
                acc = vr(Qacc(tt, rt), 4)
                cc = '0' if first else acc
                L.append(f'{MFMA} {acc}, {ar(aWF[s2] + 4*tt, 4)}, {ar(aXF[s2] + 4*rt, 4)}, {cc}')
        return L

    def pretouch(self, br):
        e = self.e
        n = self.name
        st = self.cfg.get('pretouch')
        t0 = vT + 8
        e(f's_cmp_lg_u32 s{sWv}, 0')
        e(f's_cbranch_scc1 L_{n}_npt{br}')
        e(f's_bfe_u32 s{sT2}, s2, 0x10002')
        e(f's_cmp_eq_u32 s{sT2}, 0')
        e(f's_cselect_b32 s92, s48, s100')
        e(f's_cselect_b32 s93, s49, s101')
        e(f's_mov_b32 s94, {4096*1152}')
        e(f's_mov_b32 s95, 0x00020000')
        e(f's_lshr_b32 s{sT2}, s2, 3')
        e(f's_mul_i32 s{sT2}, s{sT2}, {64*st}')
        e(f's_mov_b32 s{sT1}, {st}')
        e(f'v_mul_lo_u32 v{t0}, v{vL}, s{sT1}')
        e(f'buffer_load_dword v{t0+1}, v{t0}, s[92:95], s{sT2} offen', ('T', 0))
        e.vmq.pop()
        e(f'buffer_load_dword v{t0+2}, v{t0}, s[{sO}:{sO+3}], s{sT2} offen', ('T', 0))
        e.vmq.pop()
        e.label(f'L_{n}_npt{br}')

    def poison_groups(self):
        G = [[(f'v_mov_b32 v{252+k}, -1', None) for k in range(4)] + [(f'v_lshlrev_b32 v{vT+10}, 4, v{vL}', None)]]
        for rt in range(5):
            for u in range(2):
                g = []
                if u == 0: g.append((f's_add_u32 s3, s{sOoff}, {rt*131072}', None))
                g.append((f'buffer_store_dwordx4 v[252:255], v{vT+10}, s[{sO}:{sO+3}], s3 offen offset:{u*1024} sc1', ('P', 0)))
                G.append(g)
        return G

    def arrive2(self):
        e = self.e
        n = self.name
        e('s_barrier')
        e(f's_cmp_lg_u32 s{sWv}, 0')
        e(f's_cbranch_scc1 L_{n}_na2')
        e('v_mov_b32 v54, 0')
        e('v_mov_b32 v55, 1')
        e('s_mov_b64 exec, 1')
        e('buffer_atomic_add v55, v54, s[92:95], 0 offen sc1', 'sig')
        e.vmq.pop()
        e('s_mov_b64 exec, -1')
        e.label(f'L_{n}_na2')

    def poison(self):
        e = self.e
        for k in range(4): e(f'v_mov_b32 v{252+k}, -1')
        e(f'v_lshlrev_b32 v{vT+4}, 4, v{vL}')
        e(f's_mov_b32 s92, s90')
        e(f's_mov_b32 s93, s91')
        e(f's_mov_b32 s94, 256')
        e(f's_mov_b32 s95, 0x00020000')
        for rt in range(5):
            e(f's_add_u32 s{sT2}, s{sOoff}, {rt*131072}')
            for u in range(2):
                e(f'buffer_store_dwordx4 v[252:255], v{vT+4}, s[{sO}:{sO+3}], s{sT2} offen offset:{u*1024} sc1', ('P', 0))

    def arrive(self, br):
        e = self.e
        n = self.name
        e(f's_cmp_lg_u32 s{sWv}, 0')
        e(f's_cbranch_scc1 L_{n}_na{br}')
        e('v_mov_b32 v54, 0')
        e('v_mov_b32 v55, 1')
        e('s_mov_b64 exec, 1')
        e('buffer_atomic_add v55, v54, s[92:95], 0 offen sc0 sc1', 'sig')
        e.vmq.pop()
        e('s_mov_b64 exec, -1')
        e.label(f'L_{n}_na{br}')

    def arrive_check(self, br):
        e = self.e
        n = self.name
        e(f's_cmp_lg_u32 s{sWv}, 0')
        e(f's_cbranch_scc1 L_{n}_nc{br}')
        e(f'v_readfirstlane_b32 s{sT2}, v55')
        e(f's_cmp_lg_u32 s{sT2}, 255')
        e(f's_cbranch_scc1 L_{n}_nc{br}')
        e('s_mov_b64 exec, 1')
        e('v_mov_b32 v55, 1')
        e('buffer_store_dword v55, v54, s[92:95], 0 offen offset:128 sc1', 'go')
        e.vmq.pop()
        e('s_mov_b64 exec, -1')
        e.label(f'L_{n}_nc{br}')

    def flag_load(self):
        e = self.e
        e('v_mov_b32 v54, 0')
        e('buffer_load_dword v55, v54, s[92:95], 0 offen sc1', 'f2')

    def flag_check(self):
        e = self.e
        n = self.name
        e.wait_vm('f2')
        e(f's_mov_b32 s{sT1}, 0')
        e.label(f'L_{n}_fchk')
        e(f'v_readfirstlane_b32 s{sT0}, v55')
        e(f's_cmp_ge_u32 s{sT0}, 256')
        e(f's_cbranch_scc1 L_{n}_fok')
        e(f's_add_u32 s{sT1}, s{sT1}, 1')
        e(f's_cmp_lt_u32 s{sT1}, 0x20000')
        e(f's_cbranch_scc0 L_{n}_fok')
        e('s_sleep 8')
        e(f'v_mov_b32 v{vT}, 0')
        e(f'buffer_load_dword v55, v{vT}, s[92:95], 0 offen sc1', 'f2')
        e('s_waitcnt vmcnt(0)')
        e.vmq.pop()
        e(f's_branch L_{n}_fchk')
        e.label(f'L_{n}_fok')

    def q_head(self, br):
        e = self.e
        self.q_setup(br)
        self.stamp(1, 2)
        self.q_addr_copies()
        if self.cfg.get('pretouch'): self.pretouch(br)

    def q_phase(self, br, head=True):
        e = self.e
        if head: self.q_head(br)
        flow = self.cfg.get('flow')
        if flow:
            e(f's_mov_b32 s92, s90')
            e(f's_mov_b32 s93, s91')
            e(f's_mov_b32 s94, 256')
            e(f's_mov_b32 s95, 0x00020000')
        for c in range(9):
            e.wait_vm(('Q', c))
            e.wait_lg()
            e('s_barrier')
            if c == 4: self.cstamp(0, 4)
            if c == 5: self.cstamp(3, 4)
            self.stamp(2 + c, 2)
            G = []
            if c + 2 <= 8: G += self.q_dma(br, c + 2)
            if c == self.cfg.get('k0at', 6): G += self.kv_dma('K', 0, ('K', 0))
            if c == 7: G += self.kv_dma('K', 1, ('K', 1))
            if c == 8: G += self.kv_dma('V', 0, ('V', 0))
            if flow and c == self.cfg.get('pat', 8): G += self.poison_groups()
            R0 = self.q_reads(0, c)
            h = (len(G) + 1) // 2
            def mix(mf, R, D):
                n = len(mf)
                slots = [[] for _ in range(n)]
                for k, g in enumerate(R): slots[k].append(g)
                for k, g in enumerate(D): slots[min(n - 1, 1 + (k * (n - 2)) // max(len(D), 1))].append(g)
                for k in range(n):
                    e(mf[k])
                    for g in slots[k]:
                        for (tt, tag) in g: e(tt, tag)
            if c > 0: mix(self.q_mfmas(1, False), R0, G[:h])
            else:
                emit_groups(e, R0); emit_groups(e, G[:h])
            if c == 4: self.cstamp(1, 4)
            e.wait_lg(('q', 0))
            mix(self.q_mfmas(0, c == 0), self.q_reads(1, c), G[h:])
            if c == 4: self.cstamp(2, 4)
        e.wait_lg()
        if not self.cfg.get('qxov', 1):
            for t in self.q_mfmas(1, False): e(t)

    def q_exchange(self):
        e = self.e
        t0 = vT
        self.cstamp(0, 8)
        e('s_barrier')
        self.cstamp(1, 8)
        e(f's_mul_i32 s{sT2}, s{sWv}, 10240')
        e(f's_add_u32 s{sT2}, s{sT2}, {QIMG}')
        e(f'v_lshlrev_b32 v{t0}, 4, v{vL}')
        e(f'v_add_u32 v{vT+4}, s{sT2}, v{t0}')
        e(f's_xor_b32 s{sT1}, s{sWv}, 1')
        e(f's_mul_i32 s{sT1}, s{sT1}, 10240')
        e(f's_add_u32 s{sT1}, s{sT1}, {QIMG}')
        e(f'v_add_u32 v{vT+5}, s{sT1}, v{t0}')
        self.cstamp(2, 8)
        e(f'v_mov_b32 v{vT+8}, s{sC}')
        e(f'v_mov_b32 v{vT+9}, s{sC}')
        def finish(rt, u):
            b0, b1 = Qacc(2*u, rt), Qacc(2*u + 1, rt)
            L = []
            for b in (b0, b1):
                L.append(f'v_pk_mul_f32 {vr(b,2)}, {vr(b,2)}, {vr(vT+8,2)}')
                L.append(f'v_pk_mul_f32 {vr(b+2,2)}, {vr(b+2,2)}, {vr(vT+8,2)}')
            L += [f'v_cvt_pk_bf16_f32 v{b0}, v{b0}, v{b0+1}', f'v_cvt_pk_bf16_f32 v{b0+1}, v{b0+2}, v{b0+3}',
                  f'v_cvt_pk_bf16_f32 v{b0+2}, v{b1}, v{b1+1}', f'v_cvt_pk_bf16_f32 v{b0+3}, v{b1+2}, v{b1+3}']
            G = [[(t, None)] for t in L]
            G.append([(f'ds_write_b128 v{vT+4}, {vr(b0, 4)} offset:{(rt*2 + u)*1024}', 'qw')])
            G += [[(f'v_accvgpr_write_b32 a{Qf(rt, u)+k}, v{b0+k}', None)] for k in range(4)]
            return G
        pairs = [(rt, u) for u in range(2) for rt in range(5)]
        if self.cfg.get('qxov', 1):
            def mf(tt, rt):
                acc = vr(Qacc(tt, rt), 4)
                return f'{MFMA} {acc}, {ar(aWF[1] + 4*tt, 4)}, {ar(aXF[1] + 4*rt, 4)}, {acc}'
            pend = []
            for k, (rt, u) in enumerate(pairs):
                e(mf(2*u, rt))
                take = pend[:3]; pend = pend[3:]
                emit_groups(e, take)
                e(mf(2*u + 1, rt))
                take = pend[:3]; pend = pend[3:]
                emit_groups(e, take)
                if k >= 3: pend += finish(*pairs[k - 3])
            emit_groups(e, pend)
            for k in range(7, 10): emit_groups(e, finish(*pairs[k]))
        else:
            for (rt, u) in pairs: emit_groups(e, finish(rt, u))
        self.cstamp(3, 8)
        e.wait_lg()
        self.cstamp(4, 8)
        e('s_barrier')
        self.cstamp(5, 8)
        for rt in range(5):
            for u in range(2):
                e(f'ds_read_b128 {ar(Qf(rt, 2 + u), 4)}, v{vT+5} offset:{(rt*2 + u)*1024}', 'qr')
        e(f'v_mov_b32 v{vT}, 0x3f803f80')
        for k in range(4): e(f'v_accvgpr_write_b32 a{aOne+k}, v{vT}')
        e.wait_lg()
        self.cstamp(6, 8)
        e('s_barrier')
        self.cstamp(7, 8)
        emit_groups(e, self.kv_dma('V', 1, ('V', 1)))
        self.cstamp(8, 8)

    def rowmax_xlane(self, r, rt):
        mx, t = vT + rt, vT + 5
        r(f'v_mov_b32 v{t}, v{mx}')
        r(f'v_permlane16_swap_b32 v{mx}, v{t}')
        r(f'v_max_f32 v{mx}, v{mx}, v{t}')
        r(f'v_mov_b32 v{t}, v{mx}')
        r(f'v_permlane32_swap_b32 v{mx}, v{t}')
        r(f'v_max_f32 v{mx}, v{mx}, v{t}')

    def rare_block(self, lab, back):
        r = Emitter()
        r.label(lab)
        r('s_nop 7')
        f = vT + 6
        for rt in range(5):
            mx = vT + rt
            self.rowmax_xlane(r, rt)
            r(f'v_max_f32 v{mx}, 0, v{mx}')
            r(f'v_sub_f32 v{f}, 0, v{mx}')
            r(f'v_exp_f32 v{f}, v{f}')
            for k in range(4): r(f'v_sub_f32 v{NM(rt)+k}, v{NM(rt)+k}, v{mx}')
            for k in range(8): r(f'v_sub_f32 v{Sreg(rt,0)+k}, v{Sreg(rt,0)+k}, v{mx}')
            for k in range(4):
                r(f'v_accvgpr_read_b32 v{vT+8}, a{Lf(rt)+k}')
                r(f'v_mul_f32 v{vT+8}, v{vT+8}, v{f}')
                r(f'v_accvgpr_write_b32 a{Lf(rt)+k}, v{vT+8}')
            for ts in range(8):
                b = Oreg(ts, rt)
                r(f'v_pk_mul_f32 {vr(b,2)}, {vr(b,2)}, {vr(f,2)} op_sel_hi:[1,0]')
                r(f'v_pk_mul_f32 {vr(b+2,2)}, {vr(b+2,2)}, {vr(f,2)} op_sel_hi:[1,0]')
        r('s_nop 7')
        r(f's_branch {back}')
        r.fix_hazards()
        self.rare.append(r)

    def k_reads(self, it, par):
        e = self.e
        e.wait_vm(('K', it))
        for s in range(4):
            for kt in range(2):
                e(f'ds_read_b128 {ar(Kf(kt, s), 4)}, v{vKr+s} offset:{par*32768 + kt*4096}', 'k')

    def iteration(self, it, par, issue_next, next_k=True, first=False, send=False, xq=None, xp=None):
        e = self.e
        mx = [vT + i for i in range(5)]
        def maxops(rt):
            b = Sreg(rt, 0)
            return [[(f'v_max3_f32 v{mx[rt]}, v{b}, v{b+1}, v{b+2}', None)],
                    [(f'v_max3_f32 v{mx[rt]}, v{mx[rt]}, v{b+3}, v{b+4}', None)],
                    [(f'v_max3_f32 v{mx[rt]}, v{mx[rt]}, v{b+5}, v{b+6}', None)],
                    [(f'v_max_f32 v{mx[rt]}, v{mx[rt]}, v{b+7}', None)]]
        def softmax(rt):
            b = Sreg(rt, 0)
            L = []
            for k in range(4):
                L.append(f'v_exp_f32 v{b+2*k}, v{b+2*k}')
                L.append(f'v_exp_f32 v{b+2*k+1}, v{b+2*k+1}')
            for k in range(4): L.append(f'v_cvt_pk_bf16_f32 v{b+k}, v{b+2*k}, v{b+2*k+1}')
            return [[(t, None)] for t in L]
        def vreads():
            return [[(f'ds_read_b64_tr_b16 {ar(Vf(ts) + 2*sec, 2)}, v{vVr+ts} offset:{par*32768 + sec*4096}', 'v')] for ts in range(8) for sec in range(2)]
        dbg7 = self.cfg.get('stamps') == 7 and it == 2
        if dbg7: self.cstamp(0, 7)
        e.wait_lg()
        mb = self.cfg.get('mainbar', 1)
        if mb and issue_next:
            self.nbar = getattr(self, 'nbar', 0) + 1
            if mb == 1:
                e(f's_cmp_lg_u32 s{sBr}, 0')
                e(f's_cbranch_scc1 L_{self.name}_nb{self.nbar}')
                e('s_barrier')
                e.label(f'L_{self.name}_nb{self.nbar}')
            else:
                e('s_barrier')
        G = self.kv_dma('K', par, ('K', it + 2)) if issue_next else []
        for rt in range(5):
            mf = []
            for s in range(4):
                for kt in range(2):
                    acc = vr(Sreg(rt, kt), 4)
                    cc = acc if s else ('0' if first else vr(NM(rt), 4))
                    mf.append(f'{MFMA} {acc}, {ar(Kf(kt, s), 4)}, {ar(Qf(rt, s), 4)}, {cc}')
            extra = []
            if rt < 4 and G: extra += G[2*rt:2*rt+2]
            if rt >= 2: extra += maxops(rt - 2)
            if xq and rt in xq: extra = [xq[rt]] + extra
            if rt == 4:
                e.wait_vm(('V', it))
                R = vreads()
                extra = extra[:2] + R[:4] + extra[2:] + R[4:8]
                interleave(e, mf, extra, start=0)
                emit_groups(e, R[8:])
            else:
                interleave(e, mf, extra, start=1)
        if dbg7: self.cstamp(1, 7)
        emit_groups(e, maxops(3))
        emit_groups(e, maxops(4))
        if first:
            tt = [NM(rt) for rt in range(5)]
            for swap in ('v_permlane16_swap_b32', 'v_permlane32_swap_b32'):
                for rt in range(5): e(f'v_mov_b32 v{tt[rt]}, v{mx[rt]}')
                for rt in range(5): e(f'{swap} v{mx[rt]}, v{tt[rt]}')
                for rt in range(5): e(f'v_max_f32 v{mx[rt]}, v{mx[rt]}, v{tt[rt]}')
            for rt in range(5):
                for k in range(8): e(f'v_sub_f32 v{Sreg(rt,0)+k}, v{Sreg(rt,0)+k}, v{mx[rt]}')
                for k in range(4): e(f'v_sub_f32 v{NM(rt)+k}, 0, v{mx[rt]}')
        else:
            t = vT + 5
            e(f'v_max3_f32 v{t}, v{mx[0]}, v{mx[1]}, v{mx[2]}')
            e(f'v_max3_f32 v{t}, v{t}, v{mx[3]}, v{mx[4]}')
            e(f'v_cmp_lt_f32 vcc, s{sT}, v{t}')
            self.nrare += 1
            lab, back = f'L_{self.name}_rare{self.nrare}', f'L_{self.name}_back{self.nrare}'
            e(f's_cbranch_vccnz {lab}')
            e.label(back)
            self.rare_block(lab, back)
        if dbg7: self.cstamp(2, 7)
        emit_groups(e, softmax(0))
        e.wait_lg()
        if dbg7: self.cstamp(3, 7)
        G = self.kv_dma('V', par, ('V', it + 2)) if issue_next else []
        for rt in range(5):
            mf = []
            P = vr(Sreg(rt, 0), 4)
            for ts in range(8):
                acc = vr(Oreg(ts, rt), 4)
                mf.append(f'{MFMA} {acc}, {ar(Vf(ts), 4)}, {P}, {"0" if first else acc}')
            la = ar(Lf(rt), 4)
            mf.append(f'{MFMA} {la}, {ar(aOne, 4)}, {P}, {"0" if first else la}')
            snd = self.send_groups(rt - 1) if (send and rt >= 1) else []
            if xp and rt in xp: snd = [xp[rt]] + snd
            if rt < 4:
                sm = softmax(rt + 1)
                gg = G[2*rt:2*rt+2] if G else []
                extra = sm[:4] + gg[:1] + sm[4:8] + snd[:2] + gg[1:] + sm[8:] + snd[2:]
                interleave(e, mf, extra, start=0, end=self.cfg.get('pvend', 7))
            else:
                if dbg7: self.cstamp(4, 7)
                if next_k: self.k_reads(it + 1, par ^ 1)
                if dbg7: self.cstamp(5, 7)
                if snd: interleave(e, mf, snd, start=3)
                else:
                    for t in mf: e(t)

    def dbg7_end(self):
        self.cstamp(6, 7)

    def send_groups(self, rt):
        G = []
        for ts in range(4, 8):
            q = rt * 4 + (ts - 4)
            if q < 8: a, off = 53, q * 1024
            elif q < 16: a, off = 53, 32768 + (q - 8) * 1024
            else: a, off = 54, (q - 16) * 1024
            G.append([(f'ds_write_b128 v{a}, {vr(Oreg(ts, rt), 4)} offset:{off}', 'ow')])
        return G

    def main_loop(self):
        e = self.e
        self.k_reads(0, 0)
        self.iteration(0, 0, True, first=True)
        self.iteration(1, 1, True)
        if self.cfg.get('flow'):
            assert ('P', 0) not in e.vmq
            self.arrive2()
        self.stamp(3)
        q0 = [(k, i - 2) for (k, i) in e.vmq]
        l0 = list(e.lgq)
        e(f's_mov_b32 s{sLoop}, 6')
        e.label(f'L_{self.name}_loop')
        self.iteration(2, 0, True)
        self.dbg7_end()
        self.iteration(3, 1, True)
        q1 = [(k, i - 4) for (k, i) in e.vmq]
        assert q0 == q1, (q0, q1)
        assert l0 == e.lgq
        e(f's_sub_u32 s{sLoop}, s{sLoop}, 1')
        e(f's_cmp_lg_u32 s{sLoop}, 0')
        e(f's_cbranch_scc1 L_{self.name}_loop')
        if self.cfg.get('flow'): self.flag_load()
        if self.cfg.get('fused') and self.cfg.get('wwarm', 1) == 3: self.wo_warm()
        w5 = self.cfg.get('fused') and self.cfg.get('wwarm', 1) == 5
        if w5: self.wo_warm_setup()
        pos = self.cfg.get('wpos', [[None, {1: 0, 4: 1}], [{2: 2}, {1: 3, 4: 4}]])
        mk = lambda d: ({int(k): self.wo_warm_group(v) for k, v in d.items()} if (d and w5) else None)
        self.iteration(4, 0, False, xq=mk(pos[0][0]), xp=mk(pos[0][1]))
        if self.cfg.get('fused') and self.cfg.get('wwarm', 1) == 4: self.wo_warm()
        if self.cfg.get('epi2', 1):
            e(f'v_lshlrev_b32 v53, 4, v{vL}')
            e(f'v_add_u32 v53, s{sKl}, v53')
            e(f'v_add_u32 v54, {VS}, v53')
        self.iteration(5, 1, False, next_k=False, send=bool(self.cfg.get('epi2', 1)), xq=mk(pos[1][0]), xp=mk(pos[1][1]))

    def wo_warm(self):
        e = self.e
        q, r, t = vT + 7, vT + 8, vT + 11
        e(f's_bfe_u32 s{sT0}, s2, 0x10002')
        e(f's_cmp_eq_u32 s{sT0}, 0')
        e(f's_cselect_b32 s8, s48, s100')
        e(f's_cselect_b32 s9, s49, s101')
        e(f's_mov_b32 s10, {4096*1152}')
        e(f's_mov_b32 s11, 0x00020000')
        e(f's_bfe_u32 s{sT1}, s2, 0x10001')
        e(f's_lshl_b32 s{sT1}, s{sT1}, 9')
        e(f's_lshr_b32 s{sT0}, s2, 3')
        e(f's_lshl_b32 s{sT0}, s{sT0}, 2')
        e(f's_add_u32 s{sT0}, s{sT0}, s{sWv}')
        e(f's_mul_i32 s{sT0}, s{sT0}, 192')
        e(f's_mov_b32 s{sT2}, 52429')
        for i in range(3):
            e(f'v_add_u32 v{q}, s{sT0}, v{vL}')
            if i: e(f'v_add_u32 v{q}, {64*i}, v{q}')
            e(f'v_mul_lo_u32 v{r}, v{q}, s{sT2}')
            e(f'v_lshrrev_b32 v{r}, 18, v{r}')
            e(f'v_mul_u32_u24 v{t}, 5, v{r}')
            e(f'v_sub_u32 v{q}, v{q}, v{t}')
            e(f'v_mul_u32_u24 v{r}, 1152, v{r}')
            e(f'v_lshl_add_u32 v{q}, v{q}, 7, v{r}')
            e(f'buffer_load_dword v22, v{q}, s[8:11], s{sT1} offen', 'warm')

    def wo_warm_setup(self):
        e = self.e
        r, t = vT + 7, vT + 8
        e(f's_bfe_u32 s{sT0}, s2, 0x10002')
        e(f's_cmp_eq_u32 s{sT0}, 0')
        e(f's_cselect_b32 s8, s48, s100')
        e(f's_cselect_b32 s9, s49, s101')
        e(f's_mov_b32 s10, {4096*1152}')
        e(f's_mov_b32 s11, 0x00020000')
        e(f's_bfe_u32 s4, s2, 0x10001')
        e(f's_lshl_b32 s4, s4, 9')
        e(f's_lshr_b32 s{sT0}, s2, 3')
        e(f's_lshl_b32 s{sT0}, s{sT0}, 2')
        e(f's_add_u32 s{sT0}, s{sT0}, s{sWv}')
        e(f's_mul_i32 s{sT0}, s{sT0}, 160')
        e(f's_mov_b32 s{sT2}, 52429')
        for i, q in enumerate((22, 23, 55)):
            e(f'v_add_u32 v{q}, s{sT0}, v{vL}')
            if i: e(f'v_add_u32 v{q}, {64*i}, v{q}')
            e(f'v_mul_lo_u32 v{r}, v{q}, s{sT2}')
            e(f'v_lshrrev_b32 v{r}, 18, v{r}')
            e(f'v_mul_u32_u24 v{t}, 5, v{r}')
            e(f'v_sub_u32 v{q}, v{q}, v{t}')
            e(f'v_mul_u32_u24 v{r}, 1152, v{r}')
            e(f'v_lshl_add_u32 v{q}, v{q}, 7, v{r}')

    def wo_warm_group(self, j):
        q = (22, 23, 55)[j >> 1]
        lo, hi = ('-1', '0') if (j & 1) == 0 else ('0', '-1')
        return [(f's_mov_b32 exec_lo, {lo}', None), (f's_mov_b32 exec_hi, {hi}', None),
                (f'buffer_load_dword a250, v{q}, s[8:11], s4 offen', 'warm'), ('s_mov_b64 exec, -1', None)]

    def wo_warm_a(self):
        e = self.e
        n = self.name
        q, r, t = vT + 7, vT + 8, vT + 11
        e(f's_cmp_lg_u32 s{sBr}, 0')
        e(f's_cbranch_scc1 L_{n}_nowarma')
        e(f's_bfe_u32 s{sT0}, s2, 0x10002')
        e(f's_cmp_eq_u32 s{sT0}, 0')
        e(f's_cselect_b32 s8, s48, s100')
        e(f's_cselect_b32 s9, s49, s101')
        e(f's_mov_b32 s10, {4096*1152}')
        e(f's_mov_b32 s11, 0x00020000')
        e(f's_bfe_u32 s{sT1}, s2, 0x10001')
        e(f's_lshl_b32 s{sT1}, s{sT1}, 9')
        e(f's_lshr_b32 s{sT0}, s2, 3')
        e(f's_lshl_b32 s{sT0}, s{sT0}, 2')
        e(f's_add_u32 s{sT0}, s{sT0}, s{sWv}')
        e(f's_mul_i32 s{sT0}, s{sT0}, 320')
        e(f's_mov_b32 s{sT2}, 52429')
        for i in range(5):
            e(f'v_add_u32 v{q}, s{sT0}, v{vL}')
            if i: e(f'v_add_u32 v{q}, {64*i}, v{q}')
            e(f'v_mul_lo_u32 v{r}, v{q}, s{sT2}')
            e(f'v_lshrrev_b32 v{r}, 18, v{r}')
            e(f'v_mul_u32_u24 v{t}, 5, v{r}')
            e(f'v_sub_u32 v{q}, v{q}, v{t}')
            e(f'v_mul_u32_u24 v{r}, 1152, v{r}')
            e(f'v_lshl_add_u32 v{q}, v{q}, 7, v{r}')
            e(f'buffer_load_dword v22, v{q}, s[8:11], s{sT1} offen', 'warm')
            e.vmq.pop()
        e.label(f'L_{n}_nowarma')

    def wo_warm2(self):
        e = self.e
        n = self.name
        q, r, t = vT + 7, vT + 8, vT + 11
        e(f's_cmp_eq_u32 s{sWv}, 0')
        e(f's_cbranch_scc1 L_{n}_nowarm')
        e(f's_bfe_u32 s{sT0}, s2, 0x10002')
        e(f's_cmp_eq_u32 s{sT0}, 0')
        e(f's_cselect_b32 s8, s48, s100')
        e(f's_cselect_b32 s9, s49, s101')
        e(f's_mov_b32 s10, {4096*1152}')
        e(f's_mov_b32 s11, 0x00020000')
        e(f's_bfe_u32 s{sT1}, s2, 0x10001')
        e(f's_lshl_b32 s{sT1}, s{sT1}, 9')
        e(f's_lshr_b32 s{sT0}, s2, 3')
        e(f's_mul_i32 s{sT0}, s{sT0}, 3')
        e(f's_add_u32 s{sT0}, s{sT0}, s{sWv}')
        e(f's_sub_u32 s{sT0}, s{sT0}, 1')
        e(f's_lshl_b32 s{sT0}, s{sT0}, 8')
        e(f's_mov_b32 s{sT2}, 52429')
        for i in range(4):
            e(f'v_add_u32 v{q}, s{sT0}, v{vL}')
            if i: e(f'v_add_u32 v{q}, {64*i}, v{q}')
            e(f'v_mul_lo_u32 v{r}, v{q}, s{sT2}')
            e(f'v_lshrrev_b32 v{r}, 18, v{r}')
            e(f'v_mul_u32_u24 v{t}, 5, v{r}')
            e(f'v_sub_u32 v{q}, v{q}, v{t}')
            e(f'v_mul_u32_u24 v{r}, 1152, v{r}')
            e(f'v_lshl_add_u32 v{q}, v{q}, 7, v{r}')
            e(f'buffer_load_dword v22, v{q}, s[8:11], s{sT1} offen', 'warm')
        e('s_waitcnt vmcnt(4)')
        e(f's_branch L_{n}_warmdone')
        e.label(f'L_{n}_nowarm')
        e('s_waitcnt vmcnt(0)')
        e.label(f'L_{n}_warmdone')
        e.vmq = []

    def epilogue2(self):
        e = self.e
        t0 = vT
        self.cstamp(0, 6)
        emit_groups(e, self.send_groups(4))
        if self.cfg.get('fused') and self.cfg.get('wwarm', 1) == 6: self.wo_warm_a()
        if self.cfg.get('flow'): self.flag_check()
        if self.cfg.get('fused') and self.cfg.get('wwarm', 1) == 1:
            if self.cfg.get('t4'):
                import tail4; tail4.wo_warm(self)
            else: self.wo_warm()
        if self.cfg.get('t4') and self.cfg.get('t4early', 1):
            import tail4; tail4.early(self)
        vMx, vLx = vS + 30, vS + 35
        for rt in range(5):
            e(f'v_sub_f32 v{vMx+rt}, 0, v{NM(rt)}')
            e(f'v_accvgpr_read_b32 v{vLx+rt}, a{Lf(rt)}')
        aw, ap = vT + 2, vT + 3
        e(f's_mul_i32 s{sT0}, s{sWv}, 640')
        e(f's_add_u32 s{sT0}, s{sT0}, {STATS}')
        e(f'v_lshlrev_b32 v{t0}, 3, v{vN}')
        e(f'v_add_u32 v{aw}, s{sT0}, v{t0}')
        e(f's_xor_b32 s{sT1}, s{sWv}, 1')
        e(f's_mul_i32 s{sT2}, s{sT1}, 640')
        e(f's_add_u32 s{sT2}, s{sT2}, {STATS}')
        e(f'v_add_u32 v{ap}, s{sT2}, v{t0}')
        for rt in range(5):
            e(f'ds_write2_b32 v{aw}, v{vMx+rt}, v{vLx+rt} offset0:{rt*32} offset1:{rt*32+1}', 'sw')
        e(f's_lshl_b32 s{sT1}, s{sT1}, 13')
        e(f'v_lshlrev_b32 v{t0}, 4, v{vL}')
        e(f'v_add_u32 v23, s{sT1}, v{t0}')
        e(f'v_add_u32 v{vT+1}, {VS}, v23')
        pa, pb = 23, vT + 1
        e.wait_lg()
        self.cstamp(1, 6)
        e('s_barrier')
        self.cstamp(2, 6)
        for rt in range(5):
            e(f'ds_read_b64 {vr(vS + 2*rt, 2)}, v{ap} offset:{rt*128}', 'sr')
        def reads(rt):
            for ts in range(4):
                q = rt * 4 + ts
                if q < 8: a, off = pa, q * 1024
                elif q < 16: a, off = pa, 32768 + (q - 8) * 1024
                else: a, off = pb, (q - 16) * 1024
                e(f'ds_read_b128 {vr(Oreg(ts+4, rt),4)}, v{a} offset:{off}', ('or', rt))
        reads(0); reads(1)
        e.wait_lg('sr')
        Go, Gp = vS + 16, vS + 40 - 40 + 0
        Mv = [vS + 10 + rt for rt in range(5)]
        Fo = [vT + 4 + rt for rt in range(5)]
        for rt in range(5): e(f'v_max_f32 v{Mv[rt]}, v{vMx+rt}, v{vS + 2*rt}')
        for rt in range(5):
            e(f'v_sub_f32 v{Fo[rt]}, v{vMx+rt}, v{Mv[rt]}')
            e(f'v_sub_f32 v{vS + 2*rt}, v{vS + 2*rt}, v{Mv[rt]}')
        for rt in range(5):
            e(f'v_exp_f32 v{Fo[rt]}, v{Fo[rt]}')
            e(f'v_exp_f32 v{vS + 2*rt}, v{vS + 2*rt}')
        for rt in range(5): e(f'v_mul_f32 v{vS + 2*rt + 1}, v{vS + 2*rt + 1}, v{vS + 2*rt}')
        for rt in range(5): e(f'v_fma_f32 v{vS + 2*rt + 1}, v{vLx+rt}, v{Fo[rt]}, v{vS + 2*rt + 1}')
        for rt in range(5): e(f'v_rcp_f32 v{vS + 2*rt + 1}, v{vS + 2*rt + 1}')
        for rt in range(5):
            e(f'v_mul_f32 v{Go + 2*rt}, v{Fo[rt]}, v{vS + 2*rt + 1}')
            e(f'v_mul_f32 v{vS + 2*rt}, v{vS + 2*rt}, v{vS + 2*rt + 1}')
        for k in (3, 4, 5, 6): self.cstamp(k, 6)
        so = vT + 6
        e(f'v_lshlrev_b32 v{so}, 4, v{vL}')
        for rt in range(5):
            if rt + 2 < 5: reads(rt + 2)
            e.wait_lg(('or', rt))
            go, gp = Go + 2*rt, vS + 2*rt
            for ts in range(4):
                a, b = Oreg(ts, rt), Oreg(ts + 4, rt)
                e(f'v_pk_mul_f32 {vr(b,2)}, {vr(b,2)}, {vr(gp,2)} op_sel_hi:[1,0]')
                e(f'v_pk_mul_f32 {vr(b+2,2)}, {vr(b+2,2)}, {vr(gp,2)} op_sel_hi:[1,0]')
                e(f'v_pk_fma_f32 {vr(a,2)}, {vr(a,2)}, {vr(go,2)}, {vr(b,2)} op_sel_hi:[1,0,1]')
                e(f'v_pk_fma_f32 {vr(a+2,2)}, {vr(a+2,2)}, {vr(go,2)}, {vr(b+2,2)} op_sel_hi:[1,0,1]')
            for u in range(2):
                a, b = Oreg(2*u, rt), Oreg(2*u + 1, rt)
                e(f'v_cvt_pk_bf16_f32 v{a}, v{a}, v{a+1}')
                e(f'v_cvt_pk_bf16_f32 v{a+1}, v{a+2}, v{a+3}')
                e(f'v_cvt_pk_bf16_f32 v{a+2}, v{b}, v{b+1}')
                e(f'v_cvt_pk_bf16_f32 v{a+3}, v{b+2}, v{b+3}')
                e(f'buffer_store_dwordx4 {vr(a,4)}, v{so}, s[{sO}:{sO+3}], s{sOoff} offen offset:{u*1024}{self.ofl}', 'ost')
            if rt < 4:
                e(f's_add_u32 s{sOoff}, s{sOoff}, 131072')
        self.cstamp(7, 6)
        if self.cfg.get('stamps') and (not self.cfg.get('fused') or self.cfg.get('stamps') == 6) and not self.cfg.get('flow'): e.wait_vm('ost')
        self.cstamp(8, 6)

    def epilogue(self):
        if self.cfg.get('epi2', 1): return self.epilogue2()
        e = self.e
        t0, t1 = vT, vT + 1
        self.cstamp(0, 6)
        if self.cfg.get('flow'): self.flag_check()
        if self.cfg.get('fused') and self.cfg.get('wwarm', 1) == 1:
            if self.cfg.get('t4'):
                import tail4; tail4.wo_warm(self)
            else: self.wo_warm()
        if self.cfg.get('t4') and self.cfg.get('t4early', 1):
            import tail4; tail4.early(self)
        vMx, vLx = vS + 30, vS + 35
        for rt in range(5):
            e(f'v_sub_f32 v{vMx+rt}, 0, v{NM(rt)}')
            e(f'v_accvgpr_read_b32 v{vLx+rt}, a{Lf(rt)}')
        aw, ap = vT + 2, vT + 3
        e(f's_mul_i32 s{sT0}, s{sWv}, 640')
        e(f's_add_u32 s{sT0}, s{sT0}, {STATS}')
        e(f'v_lshlrev_b32 v{t0}, 3, v{vN}')
        e(f'v_add_u32 v{aw}, s{sT0}, v{t0}')
        e(f's_xor_b32 s{sT1}, s{sWv}, 1')
        e(f's_mul_i32 s{sT1}, s{sT1}, 640')
        e(f's_add_u32 s{sT1}, s{sT1}, {STATS}')
        e(f'v_add_u32 v{ap}, s{sT1}, v{t0}')
        for rt in range(5):
            e(f'ds_write2_b32 v{aw}, v{vMx+rt}, v{vLx+rt} offset0:{rt*32} offset1:{rt*32+1}', 'sw')
        e.wait_lg()
        self.cstamp(1, 6)
        e('s_barrier')
        self.cstamp(2, 6)
        for rt in range(5):
            e(f'ds_read_b64 {vr(vS + 2*rt, 2)}, v{ap} offset:{rt*128}', 'sr')
        e.wait_lg()
        G = vS + 16
        Mv = [vS + 10 + rt for rt in range(5)]
        Fo = [vT + 4 + rt for rt in range(5)]
        for rt in range(5): e(f'v_max_f32 v{Mv[rt]}, v{vMx+rt}, v{vS + 2*rt}')
        for rt in range(5):
            e(f'v_sub_f32 v{Fo[rt]}, v{vMx+rt}, v{Mv[rt]}')
            e(f'v_sub_f32 v{vS + 2*rt}, v{vS + 2*rt}, v{Mv[rt]}')
        for rt in range(5):
            e(f'v_exp_f32 v{Fo[rt]}, v{Fo[rt]}')
            e(f'v_exp_f32 v{vS + 2*rt}, v{vS + 2*rt}')
        for rt in range(5): e(f'v_mul_f32 v{vS + 2*rt + 1}, v{vS + 2*rt + 1}, v{vS + 2*rt}')
        for rt in range(5): e(f'v_fma_f32 v{vS + 2*rt + 1}, v{vLx+rt}, v{Fo[rt]}, v{vS + 2*rt + 1}')
        for rt in range(5): e(f'v_rcp_f32 v{vS + 2*rt + 1}, v{vS + 2*rt + 1}')
        for rt in range(5): e(f'v_mul_f32 v{G + 2*rt}, v{Fo[rt]}, v{vS + 2*rt + 1}')
        self.cstamp(3, 6)
        xa = vT + 9
        e(f's_mul_i32 s{sT0}, s{sWv}, 20480')
        e(f's_add_u32 s{sT0}, s{sT0}, {OX}')
        e(f'v_lshlrev_b32 v{t0}, 4, v{vL}')
        e(f'v_add_u32 v{xa}, s{sT0}, v{t0}')
        e(f's_xor_b32 s{sT1}, s{sWv}, 1')
        e(f's_mul_i32 s{sT1}, s{sT1}, 20480')
        e(f's_add_u32 s{sT1}, s{sT1}, {OX}')
        e(f'v_add_u32 v{xa+1}, s{sT1}, v{t0}')
        for ts in (4, 5, 6, 7):
            for rt in range(5):
                b = Oreg(ts, rt); g = G + 2*rt
                e(f'v_pk_mul_f32 {vr(b,2)}, {vr(b,2)}, {vr(g,2)} op_sel_hi:[1,0]')
                e(f'v_pk_mul_f32 {vr(b+2,2)}, {vr(b+2,2)}, {vr(g,2)} op_sel_hi:[1,0]')
                if ts >= 4:
                    e(f'ds_write_b128 v{xa}, {vr(b,4)} offset:{((ts-4)*5+rt)*1024}', 'ow')
        e.wait_lg()
        self.cstamp(4, 6)
        e('s_barrier')
        self.cstamp(5, 6)
        self.cstamp(6, 6)
        so = vT + 6
        e(f'v_lshlrev_b32 v{so}, 4, v{vL}')
        def reads(rt):
            for ts in range(4):
                e(f'ds_read_b128 {vr(Oreg(ts+4, rt),4)}, v{xa+1} offset:{(ts*5+rt)*1024}', ('or', rt))
        reads(0); reads(1)
        for rt in range(5):
            if rt + 2 < 5: reads(rt + 2)
            e.wait_lg(('or', rt))
            g = vS + 16 + 2*rt
            for ts in range(4):
                a, b = Oreg(ts, rt), Oreg(ts + 4, rt)
                e(f'v_pk_fma_f32 {vr(a,2)}, {vr(a,2)}, {vr(g,2)}, {vr(b,2)} op_sel_hi:[1,0,1]')
                e(f'v_pk_fma_f32 {vr(a+2,2)}, {vr(a+2,2)}, {vr(g,2)}, {vr(b+2,2)} op_sel_hi:[1,0,1]')
            for u in range(2):
                a, b = Oreg(2*u, rt), Oreg(2*u + 1, rt)
                e(f'v_cvt_pk_bf16_f32 v{a}, v{a}, v{a+1}')
                e(f'v_cvt_pk_bf16_f32 v{a+1}, v{a+2}, v{a+3}')
                e(f'v_cvt_pk_bf16_f32 v{a+2}, v{b}, v{b+1}')
                e(f'v_cvt_pk_bf16_f32 v{a+3}, v{b+2}, v{b+3}')
                e(f'buffer_store_dwordx4 {vr(a,4)}, v{so}, s[{sO}:{sO+3}], s{sOoff} offen offset:{u*1024}{self.ofl}', 'ost')
            if rt < 4:
                e(f's_add_u32 s{sOoff}, s{sOoff}, 131072')
        self.cstamp(7, 6)
        if self.cfg.get('fused') and self.cfg.get('wwarm', 1) == 2: self.wo_warm2()
        if self.cfg.get('stamps') and (not self.cfg.get('fused') or self.cfg.get('stamps') == 6) and not self.cfg.get('flow'): e.wait_vm('ost')
        self.cstamp(8, 6)

    def _epi_add(self, ts):
        e = self.e
        e.wait_lg(('or', ts))
        for rt in range(5):
            a, b = Oreg(ts, rt), Oreg(ts + 4, rt)
            g = vS + 16 + 2*rt
            e(f'v_pk_fma_f32 {vr(a,2)}, {vr(a,2)}, {vr(g,2)}, {vr(b,2)} op_sel_hi:[1,0,1]')
            e(f'v_pk_fma_f32 {vr(a+2,2)}, {vr(a+2,2)}, {vr(g,2)}, {vr(b+2,2)} op_sel_hi:[1,0,1]')

    def build(self):
        e = self.e
        n = self.name
        e.raw(f'.globl {n}\n.p2align 8\n.type {n},@function')
        e.label(n)
        self.stamp(0); self.stamp(0, 2); self.stamp(0, 3); self.cstamp(4); self.stamp(0, 5); self.cstamp(1, 5)
        self.prologue()
        e(f's_cmp_eq_u32 s{sBr}, 0')
        e(f's_cbranch_scc0 L_{n}_qB')
        saved = (list(e.vmq), list(e.lgq))
        if self.cfg.get('heads', 1):
            self.q_head('A')
            headA = (list(e.vmq), list(e.lgq))
            e(f's_branch L_{n}_loopA')
            e.label(f'L_{n}_qB')
            e.vmq, e.lgq = list(saved[0]), list(saved[1])
            self.q_head('B')
            headB = (list(e.vmq), list(e.lgq))
            self.q_phase('B', head=False)
            endB = (list(e.vmq), list(e.lgq))
            e(f's_branch L_{n}_qx')
            e.label(f'L_{n}_loopA')
            e.vmq, e.lgq = list(headA[0]), list(headA[1])
            self.q_phase('A', head=False)
            assert (e.vmq, e.lgq) == endB, (e.vmq, endB)
        else:
            self.q_phase('A')
            endA = (list(e.vmq), list(e.lgq))
            e(f's_branch L_{n}_qx')
            e.label(f'L_{n}_qB')
            e.vmq, e.lgq = list(saved[0]), list(saved[1])
            self.q_phase('B')
            assert (e.vmq, e.lgq) == endA, (e.vmq, endA)
        e.label(f'L_{n}_qx')
        self.stamp(1); self.stamp(11, 2); self.stamp(1, 3); self.cstamp(5)
        self.q_exchange()
        self.stamp(2); self.stamp(12, 2); self.stamp(2, 3); self.cstamp(6); self.stamp(2, 5)
        self.main_loop()
        self.stamp(4); self.stamp(3, 3); self.cstamp(7); self.stamp(3, 5)
        self.epilogue()
        self.stamp(5)
        if self.cfg.get('fused'):
            if self.cfg.get('t4'): from tail4 import fused_tail
            else: from tail import fused_tail
            fused_tail(self)
            self.stamp(9)
            if self.cfg.get('stamps') == 5:
                self.stamp(4, 5); self.cstamp(5, 5)
                e('s_waitcnt lgkmcnt(0)')
                e(f's_cmp_lg_u32 s2, {self.cfg.get("dbgwg", 0)}')
                e(f's_cbranch_scc1 L_{n}_end')
                e(f's_cmp_lg_u32 s{sWv}, 0')
                e(f's_cbranch_scc1 L_{n}_end')
                e('s_sub_u32 s78, s78, s70')
                e('s_sub_u32 s80, s80, s72')
                e('s_sub_u32 s76, s76, s70')
                e('s_sub_u32 s74, s74, s70')
                e('v_mov_b32 v4, s78'); e('v_mov_b32 v5, s80'); e('v_mov_b32 v6, s76'); e('v_mov_b32 v7, s74')
                e('v_mov_b32 v8, 48')
                e('s_mov_b64 exec, 1')
                e('buffer_store_dwordx4 v[4:7], v8, s[16:19], 0 offen')
                e('s_waitcnt vmcnt(0)')
                e.vmq = []
            else:
                self.write_stamps(10 if self.cfg.get('stamps') == 1 else 13)
        else:
            self.write_stamps(6 if self.cfg.get('stamps') == 1 else 13)
        e.label(f'L_{n}_end')
        e('s_endpgm')
        for r in self.rare:
            e.ins.extend(r.ins)
        e.label(f'L_{n}_rareend')
        e('s_endpgm')
        kd = f'''
.amdhsa_kernel {n}
  .amdhsa_next_free_vgpr 512
  .amdhsa_next_free_sgpr 102
  .amdhsa_accum_offset 256
  .amdhsa_group_segment_fixed_size 0
  .amdhsa_kernarg_size 104
  .amdhsa_user_sgpr_count 2
  .amdhsa_user_sgpr_kernarg_segment_ptr 1
  .amdhsa_system_sgpr_workgroup_id_x 1
.end_amdhsa_kernel
'''
        return kd
```

```python
from asmgen import *

X_BYTES = 8 * 80 * 1152
W_BYTES = 576 * 8192
KA_BYTES = 8 * 16 * 1024 * 256
KB_BYTES = 8 * 32 * 1024 * 256
O_BR = 40 * 128 * 1024
O_BYTES = 2 * O_BR

QBUF0, QBUFSZ = 34816, 43008
KS, VS = 0, 65536
QIMG = 122880
STATS = 131072
OX = 0

sX, sW, sK, sV, sO = 4, 8, 12, 16, 20
sWv, sJ, sKH, sBr, sC, sT = 24, 25, 26, 27, 28, 29
sKoff, sVoff, sKl, sVl = 30, 31, 32, 33
sXoff, sWoff, sOoff = 34, 35, 36
sT0, sT1, sT2 = 37, 38, 39
sP = 40
sLoop = 60
sXl, sWl = 61, 62
sKt, sVt = 96, 97
sB, sH = 63, 64
sCc, sXc, sWc, sX3c = 67, 68, 69, 3
vL, vN, vG = 1, 2, 3
vKd, vVd = 4, 8
vKr, vVr = 10, 14
vNM = 24
vXr, vWr = 36, 38
vT = 44
vXd, vWd = 56, 60
vQA = 64
vS = 56
vO = 96
aQ = 0
aK = 80
aV = 112
aL = 144
aOne = 164
aXF = [168, 204]
aWF = [188, 224]

def Sreg(rt, kt): return vS + rt * 8 + kt * 4
def Oreg(ts, rt): return vO + (ts * 5 + rt) * 4
def Qacc(tt, rt): return vO + (tt * 5 + rt) * 4
def Qf(rt, s): return aQ + (rt * 4 + s) * 4
def Kf(kt, s): return aK + (kt * 4 + s) * 4
def Vf(ts): return aV + ts * 4
def NM(rt): return vNM + rt * 4
def Lf(rt): return aL + rt * 4

MFMA = 'v_mfma_f32_16x16x32_bf16'

def srd(e, s, lo, hi, nbytes):
    e(f's_mov_b32 s{s}, s{lo}')
    e(f's_mov_b32 s{s+1}, s{hi}')
    e(f's_mov_b32 s{s+2}, {nbytes}')
    e(f's_mov_b32 s{s+3}, 0x00020000')

def interleave(e, prim, groups, start=0, every=None, end=None):
    n = len(prim); g = len(groups)
    end = n if end is None else end
    pos = {}
    if g:
        span = max(end - start, 1)
        for k in range(g):
            p = start + (k * span) // g if every is None else start + k * every
            pos.setdefault(min(p, n - 1), []).append(groups[k])
    for i, t in enumerate(prim):
        e(t)
        for grp in pos.get(i, []):
            for (tt, tag) in grp: e(tt, tag)
    if n == 0:
        for grp in groups:
            for (tt, tag) in grp: e(tt, tag)

def emit_groups(e, groups):
    for grp in groups:
        for (tt, tag) in grp: e(tt, tag)

class AttnGen:
    def __init__(self, e, cfg):
        self.e = e
        self.cfg = cfg
        self.kvfl = cfg.get('kv_flags', ' nt')
        self.xfl = cfg.get('x_flags', '')
        self.wfl = cfg.get('w_flags', ' nt')
        self.ofl = cfg.get('o_flags', ' sc1' if cfg.get('fused') else '')
        self.name = cfg.get('name', 'attn_kernel')
        self.rare = []
        self.nrare = 0

    def stamp(self, i, mode=1):
        if self.cfg.get('stamps') == mode:
            self.e(f's_memrealtime s[{70+2*i}:{71+2*i}]')
    def cstamp(self, i, mode=3):
        if self.cfg.get('stamps') == mode:
            self.e(f's_memtime s[{70+2*i}:{71+2*i}]')
    def write_stamps(self, n, kernel_idx=0):
        if not self.cfg.get('stamps'): return
        e = self.e
        e('s_waitcnt lgkmcnt(0)')
        e(f's_lshl_b32 s{sT0}, s2, 2')
        e(f's_add_u32 s{sT0}, s{sT0}, s{sWv}')
        e(f's_lshl_b32 s{sT0}, s{sT0}, 7')
        e(f's_add_u32 s{sT0}, s{sT0}, {0x1000000 + kernel_idx*0x100000}')
        e(f's_mov_b32 s{sO+2}, 0x2000000')
        e(f'v_mov_b32 v{vT}, 0')
        for i in range(n):
            e(f'v_mov_b32 v{vT+2}, s{70+2*i}')
            e(f'v_mov_b32 v{vT+3}, s{71+2*i}')
            e(f'buffer_store_dwordx2 {vr(vT+2,2)}, v{vT}, s[{sO}:{sO+3}], s{sT0} offen offset:{8*i}')
            e('s_waitcnt vmcnt(0)')
        e.vmq = []
    def prologue(self):
        e = self.e
        e(f's_cmp_ge_u32 s2, 256')
        e(f's_cbranch_scc1 L_{self.name}_end')
        e(f's_load_dwordx16 s[40:55], s[0:1], 0')
        e(f's_load_dwordx2 s[56:57], s[0:1], 64')
        e(f's_load_dwordx2 s[58:59], s[0:1], 96')
        e(f's_load_dwordx2 s[100:101], s[0:1], 72')
        e(f's_load_dwordx2 s[90:91], s[0:1], 88')
        t0, t1, t2, t3 = vT, vT + 1, vT + 2, vT + 3
        e(f'v_lshrrev_b32 v{t0}, 6, v0')
        e(f'v_and_b32 v{vL}, 63, v0')
        e(f'v_readfirstlane_b32 s{sWv}, v{t0}')
        e(f'v_and_b32 v{vN}, 15, v{vL}')
        e(f'v_lshrrev_b32 v{vG}, 4, v{vL}')
        if self.cfg.get('codepf'):
            n = self.name
            e(f's_lshr_b32 s{sT0}, s2, 3')
            e(f's_cmp_ge_u32 s{sT0}, 2')
            e(f's_cbranch_scc1 L_{n}_nopf')
            e(f's_lshl_b32 s{sT0}, s{sT0}, 2')
            e(f's_add_u32 s{sT0}, s{sT0}, s{sWv}')
            e(f's_lshl_b32 s{sT0}, s{sT0}, 13')
            e('s_getpc_b64 s[66:67]')
            e.label(f'L_{n}_pc')
            e(f'v_lshlrev_b32 v{t0}, 7, v{vL}')
            e(f'v_add_u32 v{t0}, s{sT0}, v{t0}')
            e(f'v_min_u32 v{t0}, L_{n}_rareend-L_{n}_pc-4, v{t0}')
            e(f'v_mov_b32 v{t1}, s67')
            e(f'v_add_co_u32 v{t2}, vcc, s66, v{t0}')
            e(f'v_addc_co_u32 v{t3}, vcc, 0, v{t1}, vcc')
            e(f'global_load_dword v{vT+8}, v[{t2}:{t3}], off', 'pf')
            e.vmq.pop()
            e.label(f'L_{n}_nopf')
        e(f's_lshr_b32 s{sJ}, s{sWv}, 1')
        e(f's_and_b32 s{sKH}, s{sWv}, 1')
        e(f's_and_b32 s{sT0}, s2, 7')
        e(f's_lshr_b32 s{sT1}, s2, 3')
        e(f's_lshr_b32 s{sBr}, s{sT1}, 4')
        e(f's_and_b32 s{sT1}, s{sT1}, 15')
        e(f's_mov_b32 s{sC}, 0x3e029407')
        import struct, math
        c = (128 ** -0.5) * math.log2(math.e)
        bits = struct.unpack('<I', struct.pack('<f', c))[0]
        e.ins[-1] = Inst(f's_mov_b32 s{sC}, {bits:#010x}')
        e(f's_mov_b32 s{sT}, 0x41000000')
        for i in range(4):
            q = i >> 1
            e(f'v_or_b32 v{t0}, {q << 2}, v{vG}')
            e(f'v_lshlrev_b32 v{t0}, 1, v{t0}')
            e(f'v_xor_b32 v{t0}, v{t0}, v{vN}')
            e(f'v_lshlrev_b32 v{t0}, 4, v{t0}')
            e(f'v_lshl_add_u32 v{vWd+i}, v{vG}, 13, v{t0}')
            if i: e(f'v_add_u32 v{vWd+i}, {(32768-1024)*i}, v{vWd+i}')
        e(f'v_lshrrev_b32 v{t1}, 3, v{vL}')
        e(f's_movk_i32 s{sT2}, 1152')
        e(f'v_mul_lo_u32 v{t1}, v{t1}, s{sT2}')
        e(f'v_and_b32 v{t2}, 7, v{vL}')
        for i in range(4):
            e(f's_add_u32 s{sT2}, s{sKH}, {i}')
            e(f's_and_b32 s{sT2}, s{sT2}, 1')
            e(f's_lshl_b32 s{sT2}, s{sT2}, 2')
            e(f'v_add_u32 v{t0}, s{sT2}, v{vG}')
            e(f'v_and_b32 v{t0}, 7, v{t0}')
            e(f'v_xor_b32 v{t0}, v{t0}, v{t2}')
            e(f'v_lshl_add_u32 v{vXd+i}, v{t0}, 4, v{t1}')
            if i: e(f'v_add_u32 v{vXd+i}, {8192*i}, v{vXd+i}')

    def prologue_b(self):
        e = self.e
        t0, t1, t2, t3 = vT, vT + 1, vT + 2, vT + 3
        for j in range(4):
            e(f'v_add_u32 v{t0}, {4*j}, v{vG}')
            e(f'v_xor_b32 v{t0}, v{t0}, v{vN}')
            e(f'v_lshlrev_b32 v{t0}, 4, v{t0}')
            e(f'v_lshl_add_u32 v{vKd+j}, v{vG}, 8, v{t0}')
        for p in range(2):
            e(f'v_add_u32 v{t0}, {4*p}, v{vG}')
            e(f'v_lshlrev_b32 v{t0}, 1, v{t0}')
            e(f'v_xor_b32 v{t0}, v{t0}, v{vN}')
            e(f'v_lshlrev_b32 v{t0}, 4, v{t0}')
            e(f'v_lshl_add_u32 v{vVd+p}, v{vG}, 8, v{t0}')
        e(f's_lshl_b32 s{sKl}, s{sWv}, 13')
        e(f's_add_u32 s{sVl}, s{sKl}, {VS}')
        for s in range(4):
            e(f's_lshl_b32 s{sT2}, s{sKH}, 1')
            e(f's_xor_b32 s{sT2}, s{sT2}, {s}')
            e(f's_lshl_b32 s{sT2}, s{sT2}, 2')
            e(f'v_add_u32 v{t0}, s{sT2}, v{vG}')
            e(f'v_xor_b32 v{t0}, v{t0}, v{vN}')
            e(f'v_lshlrev_b32 v{t0}, 4, v{t0}')
            e(f'v_lshl_add_u32 v{t0}, v{vN}, 8, v{t0}')
            e(f'v_add_u32 v{vKr+s}, s{sKl}, v{t0}')
        e(f'v_bfe_u32 v{t1}, v{vL}, 2, 2')
        e(f'v_lshl_add_u32 v{t1}, v{vG}, 2, v{t1}')
        e(f'v_and_b32 v{t2}, 7, v{t1}')
        e(f'v_lshlrev_b32 v{t2}, 1, v{t2}')
        e(f'v_bfe_u32 v{t3}, v{vL}, 1, 1')
        e(f'v_xor_b32 v{t2}, v{t2}, v{t3}')
        e(f'v_and_b32 v{t3}, 1, v{vL}')
        e(f'v_lshlrev_b32 v{t3}, 3, v{t3}')
        e(f'v_lshl_add_u32 v{t3}, v{t1}, 8, v{t3}')
        e(f'v_add_u32 v{t3}, s{sVl}, v{t3}')
        for ts in range(8):
            e(f's_lshl_b32 s{sT2}, s{sKH}, 2')
            e(f's_xor_b32 s{sT2}, s{sT2}, {ts}')
            e(f's_lshl_b32 s{sT2}, s{sT2}, 1')
            e(f'v_xor_b32 v{t0}, s{sT2}, v{t2}')
            e(f'v_lshl_add_u32 v{vVr+ts}, v{t0}, 4, v{t3}')

    def q_setup(self, br):
        e = self.e
        t0, t1, t2, t3 = vT, vT + 1, vT + 2, vT + 3
        rot = self.cfg.get('qrot', 1)
        if br == 'A':
            e(f's_lshr_b32 s{sCc}, s{sT1}, 1')
            e(f's_and_b32 s{sT2}, s{sT1}, 1')
            e(f's_lshl_b32 s{sT2}, s{sT2}, 2')
            e(f's_add_u32 s{sCc}, s{sCc}, s{sT2}')
            e(f's_sub_u32 s{sT2}, s{sCc}, 9')
            e(f's_cmp_ge_u32 s{sCc}, 9')
            e(f's_cselect_b32 s{sCc}, s{sT2}, s{sCc}')
        else:
            e(f's_lshr_b32 s{sCc}, s{sT1}, 2')
            e(f's_add_u32 s{sCc}, s{sCc}, s{sT1}')
            e(f's_and_b32 s{sCc}, s{sCc}, 3')
            e(f's_mul_i32 s{sCc}, s{sCc}, 5')
            e(f's_lshr_b32 s{sCc}, s{sCc}, 1')
        if rot == 2:
            if br == 'A':
                e(f's_lshr_b32 s{sCc}, s{sT1}, 1')
                e(f's_and_b32 s{sT2}, s{sT1}, 1')
                e(f's_lshl_b32 s{sT2}, s{sT2}, 2')
                e(f's_add_u32 s{sCc}, s{sCc}, s{sT2}')
                e(f's_and_b32 s{sCc}, s{sCc}, 7')
            else:
                e(f's_lshr_b32 s{sCc}, s{sT1}, 2')
                e(f's_add_u32 s{sCc}, s{sCc}, s{sT1}')
                e(f's_and_b32 s{sCc}, s{sCc}, 3')
                e(f's_lshl_b32 s{sCc}, s{sCc}, 1')
            e(f's_add_u32 s{sCc}, s{sCc}, 1')
        if not rot: e(f's_mov_b32 s{sCc}, 0')
        if br == 'A':
            e(f's_lshr_b32 s{sB}, s{sT1}, 1')
            e(f's_and_b32 s{sT1}, s{sT1}, 1')
            if self.cfg.get('hmap', 0) == 1:
                e(f's_lshl_b32 s{sT1}, s{sT1}, 3')
            else:
                e(f's_lshl_b32 s{sT0}, s{sT0}, 1')
            e(f's_add_u32 s{sT0}, s{sT0}, s{sT1}')
            e(f's_lshl_b32 s{sH}, s{sT0}, 1')
            e(f's_add_u32 s{sH}, s{sH}, s{sJ}')
            e(f's_lshl_b32 s{sT1}, s{sB}, 4')
            e(f's_add_u32 s{sT1}, s{sT1}, s{sT0}')
            late = lambda: (srd(e, sK, 42, 43, KA_BYTES), srd(e, sV, 44, 45, KA_BYTES))
            early = lambda: (srd(e, sX, 40, 41, X_BYTES), srd(e, sW, 46, 47, W_BYTES))
        else:
            e(f's_lshr_b32 s{sB}, s{sT1}, 2')
            e(f's_lshl_b32 s{sT2}, s{sJ}, 2')
            e(f's_add_u32 s{sB}, s{sB}, s{sT2}')
            e(f's_and_b32 s{sT1}, s{sT1}, 3')
            if self.cfg.get('hmap', 0) == 1:
                e(f's_lshl_b32 s{sT1}, s{sT1}, 3')
                e(f's_add_u32 s{sH}, s{sT0}, s{sT1}')
            else:
                e(f's_lshl_b32 s{sH}, s{sT0}, 2')
                e(f's_add_u32 s{sH}, s{sH}, s{sT1}')
            e(f's_lshl_b32 s{sT1}, s{sB}, 5')
            e(f's_add_u32 s{sT1}, s{sT1}, s{sH}')
            late = lambda: (srd(e, sK, 52, 53, KB_BYTES), srd(e, sV, 54, 55, KB_BYTES))
            early = lambda: (srd(e, sX, 50, 51, X_BYTES), srd(e, sW, 56, 57, W_BYTES))
        if self.cfg.get('kvsame'): e(f's_and_b32 s{sT1}, s2, 7')
        e(f's_lshl_b32 s{sKoff}, s{sT1}, 18')
        e(f's_lshl_b32 s{sT2}, s{sKH}, 13')
        e(f's_add_u32 s{sKoff}, s{sKoff}, s{sT2}')
        e(f's_mov_b32 s{sVoff}, s{sKoff}')
        e(f's_mul_i32 s{sOoff}, s{sB}, {5*128*1024}')
        e(f's_lshl_b32 s{sT2}, s{sH}, 12')
        e(f's_add_u32 s{sOoff}, s{sOoff}, s{sT2}')
        e(f's_lshl_b32 s{sT2}, s{sKH}, 11')
        e(f's_add_u32 s{sOoff}, s{sOoff}, s{sT2}')
        if br == 'B':
            e(f's_add_u32 s{sOoff}, s{sOoff}, {O_BR}')
        if br == 'A':
            e(f's_mul_i32 s{sXoff}, s{sB}, 92160')
            e(f's_mul_i32 s{sT2}, s{sWv}, 9216')
            e(f's_add_u32 s{sXoff}, s{sXoff}, s{sT2}')
            e(f's_lshl_b32 s{sXl}, s{sWv}, 10')
            e(f's_mul_i32 s65, s{sB}, 92160')
            e(f's_add_u32 s{sT2}, s{sKH}, 8')
            e(f's_lshl_b32 s66, s{sT2}, 10')
            e(f's_mul_i32 s{sT2}, s{sT2}, 9216')
            e(f's_add_u32 s65, s65, s{sT2}')
            e(f's_lshl_b32 s{sWoff}, s{sH}, 8')
            e(f's_lshl_b32 s{sT2}, s{sKH}, 18')
            e(f's_add_u32 s{sWoff}, s{sWoff}, s{sT2}')
            e(f's_lshl_b32 s{sWl}, s{sJ}, 14')
            e(f's_lshl_b32 s{sT2}, s{sKH}, 13')
            e(f's_add_u32 s{sWl}, s{sWl}, s{sT2}')
            e(f's_add_u32 s{sWl}, s{sWl}, 10240')
            xoffj, woffj = (0, 0), (10240, 16384)
        else:
            e(f's_mul_i32 s{sXoff}, s{sB}, 92160')
            e(f's_mul_i32 s{sT2}, s{sKH}, {40*1152}')
            e(f's_add_u32 s{sXoff}, s{sXoff}, s{sT2}')
            e(f's_mul_i32 s{sXl}, s{sWv}, 5120')
            e(f's_lshl_b32 s{sWoff}, s{sH}, 8')
            e(f's_lshl_b32 s{sT2}, s{sWv}, 17')
            e(f's_add_u32 s{sWoff}, s{sWoff}, s{sT2}')
            e(f's_lshl_b32 s{sWl}, s{sWv}, 12')
            e(f's_add_u32 s{sWl}, s{sWl}, 20480')
            xoffj, woffj = (0, 10240), (20480, 0)
        e('s_waitcnt lgkmcnt(0)')
        early()
        emit_groups(e, self.q_dma(br, 0))
        emit_groups(e, self.q_dma(br, 1))
        late()
        srd(e, sO, 58, 59, O_BYTES)
        self.prologue_b()
        e(f's_mul_i32 s{sT2}, s{sJ}, {xoffj[1]}')
        e(f's_add_u32 s{sT2}, s{sT2}, {QBUF0 + xoffj[0]}')
        e(f'v_lshrrev_b32 v{t1}, 1, v{vN}')
        for s2 in range(2):
            e(f'v_add_u32 v{t0}, {4*s2}, v{vG}')
            e(f'v_xor_b32 v{t0}, v{t0}, v{t1}')
            e(f'v_lshlrev_b32 v{t0}, 4, v{t0}')
            e(f'v_lshl_add_u32 v{t0}, v{vN}, 7, v{t0}')
            e(f'v_add_u32 v{vXr+s2}, s{sT2}, v{t0}')
        e(f's_mul_i32 s{sT2}, s{sJ}, {woffj[1]}')
        e(f's_add_u32 s{sT2}, s{sT2}, {QBUF0 + woffj[0]}')
        e(f'v_bfe_u32 v{t1}, v{vL}, 2, 2')
        e(f'v_and_b32 v{t2}, 1, v{vG}')
        e(f'v_lshl_or_b32 v{t2}, v{t2}, 2, v{t1}')
        e(f'v_lshlrev_b32 v{t2}, 1, v{t2}')
        e(f'v_and_b32 v{t3}, 3, v{vL}')
        e(f'v_xor_b32 v{t2}, v{t2}, v{t3}')
        e(f'v_lshl_add_u32 v{t1}, v{vG}, 3, v{t1}')
        e(f'v_lshlrev_b32 v{t3}, 8, v{t1}')
        e(f'v_add_u32 v{t3}, s{sT2}, v{t3}')
        for tt in range(4):
            e(f's_lshl_b32 s{sT2}, s{sKH}, 3')
            e(f's_add_u32 s{sT2}, s{sT2}, {4 * (tt >> 1)}')
            e(f'v_xor_b32 v{t0}, s{sT2}, v{t2}')
            e(f'v_lshl_add_u32 v{vWr+tt}, v{t0}, 4, v{t3}')
            if tt & 1: e(f'v_add_u32 v{vWr+tt}, 8, v{vWr+tt}')

    def q_addr_copies(self):
        e = self.e
        for b in range(3):
            for k, r in enumerate((vXr, vXr + 1, vWr, vWr + 1, vWr + 2, vWr + 3)):
                if b == 0: e(f'v_mov_b32 v{vQA + k}, v{r}')
                else: e(f'v_add_u32 v{vQA + 6*b + k}, {b*QBUFSZ}, v{r}')

    def q_dma(self, br, c):
        qb = QBUF0 + (c % 3) * QBUFSZ
        tag = ('Q', c)
        G = []
        hyb = self.cfg.get('qrot', 1) == 2
        if hyb and c == 0:
            g = [(f's_mov_b32 s{sXc}, s{sXoff}', None), (f's_mov_b32 s{sWc}, s{sWoff}', None)]
            if br == 'A': g.append((f's_mov_b32 s{sX3c}, s65', None))
        else:
            g = [(f's_lshl_b32 s{sT2}, s{sCc}, 7', None), (f's_add_u32 s{sXc}, s{sXoff}, s{sT2}', None)]
            if br == 'A': g.append((f's_add_u32 s{sX3c}, s65, s{sT2}', None))
        if self.cfg.get('qsame'):
            g = [(f's_mov_b32 s{sXc}, 0', None), (f's_mov_b32 s{sX3c}, 0', None), (f's_mov_b32 s{sWc}, 0', None)]
        elif not (hyb and c == 0):
          g += [(f's_lshl_b32 s{sT2}, s{sCc}, 19', None), (f's_add_u32 s{sWc}, s{sWoff}, s{sT2}', None),
              (f's_add_u32 s{sCc}, s{sCc}, 1', None), (f's_cmp_eq_u32 s{sCc}, 9', None), (f's_cselect_b32 s{sCc}, {1 if hyb else 0}, s{sCc}', None)]
        G.append(g)
        def ld(voff, srdr, soff, off, fl, pre=()):
            G.append(list(pre) + [(f'buffer_load_dwordx4 v{voff}, s[{srdr}:{srdr+3}], s{soff} offen offset:{off}{fl} lds', tag)])
        m0 = lambda reg, imm: (f's_add_u32 m0, s{reg}, {qb + imm}', None)
        if br == 'A':
            ld(vXd, sX, sXc, 0, self.xfl, [m0(sXl, 0)])
            ld(vXd, sX, sT2, 0, self.xfl, [m0(sXl, 4096), (f's_add_u32 s{sT2}, s{sXc}, {4*9216}', None)])
            ld(vXd, sX, sX3c, 0, self.xfl, [m0(66, 0), ('s_nop 0', None)])
            for i in range(4):
                ld(vWd + i, sW, sWc, 1024*i, self.wfl, [m0(sWl, 0), ('s_nop 0', None)] if i == 0 else [])
            for i in range(4):
                ld(vWd + i, sW, sWc, 1024*i, self.wfl, [m0(sWl, 4096), (f's_add_u32 s{sWc}, s{sWc}, {4*32768}', None)] if i == 0 else [])
        else:
            for i in range(4):
                ld(vXd + i, sX, sXc, 1024*i, self.xfl, [m0(sXl, 0), ('s_nop 0', None)] if i == 0 else [])
            ld(vXd, sX, sXc, 0, self.xfl, [m0(sXl, 4096), (f's_add_u32 s{sXc}, s{sXc}, {4*9216}', None)])
            for i in range(4):
                ld(vWd + i, sW, sWc, 1024*i, self.wfl, [m0(sWl, 0), ('s_nop 0', None)] if i == 0 else [])
        return G

    def kv_dma(self, kind, par, tag):
        if kind == 'K': l, off, s, vo, tmp = sKl, sKoff, sK, [vKd, vKd + 1, vKd + 2, vKd + 3], sKt
        else: l, off, s, vo, tmp = sVl, sVoff, sV, [vVd, vVd + 1, vVd, vVd + 1], sVt
        G = []
        for half in range(2):
            for q in range(4):
                g = []
                if q == 0:
                    g.append((f's_add_u32 m0, s{l}, {par * 32768 + half * 4096}', None))
                    if half == 0: g.append((f's_add_u32 s{tmp}, s{off}, 4096', None))
                    else: g.append((f's_add_u32 s{off}, s{off}, 16384', None))
                so = off if half == 0 else tmp
                g.append((f'buffer_load_dwordx4 v{vo[q]}, s[{s}:{s+3}], s{so} offen offset:{q*1024}{self.kvfl} lds', tag))
                G.append(g)
        return G

    def q_reads(self, s2, c):
        G = []
        base = vQA + 6 * (c % 3)
        for tt in range(4):
            for sec in range(2):
                G.append([(f'ds_read_b64_tr_b16 {ar(aWF[s2] + 4*tt + 2*sec, 2)}, v{base+2+tt} offset:{s2*8192 + sec*1024}', ('q', s2))])
            if tt == 0:
                for rt in range(5):
                    G.append([(f'ds_read_b128 {ar(aXF[s2] + 4*rt, 4)}, v{base+s2} offset:{rt*2048}', ('q', s2))])
        return G

    def q_mfmas(self, s2, first):
        L = []
        for tt in range(4):
            for rt in range(5):
                acc = vr(Qacc(tt, rt), 4)
                cc = '0' if first else acc
                L.append(f'{MFMA} {acc}, {ar(aWF[s2] + 4*tt, 4)}, {ar(aXF[s2] + 4*rt, 4)}, {cc}')
        return L

    def mall_warm(self, br):
        e = self.e
        t0 = vT + 8
        e(f's_cmp_lt_u32 s2, 128')
        e(f's_cselect_b32 s92, s48, s100')
        e(f's_cselect_b32 s93, s49, s101')
        e(f's_mov_b32 s94, {4096*1152}')
        e(f's_mov_b32 s95, 0x00020000')
        e(f's_and_b32 s{sT2}, s2, 127')
        e(f's_lshl_b32 s{sT2}, s{sT2}, 2')
        e(f's_add_u32 s{sT2}, s{sT2}, s{sWv}')
        e(f's_mul_i32 s{sT2}, s{sT2}, {72*128}')
        e(f'v_lshlrev_b32 v{t0}, 7, v{vL}')
        e(f'buffer_load_dword v{t0+1}, v{t0}, s[92:95], s{sT2} offen', ('M', 0))
        if self.cfg.get('mallwarm') == 2:
            e(f'v_add_u32 v{t0}, {64*128}, v{t0}')
            e(f'v_cmp_gt_u32 vcc, 8, v{vL}')
            e(f'v_mov_b32 v{t0+2}, 0x7ff00000')
            e(f'v_cndmask_b32 v{t0}, v{t0+2}, v{t0}, vcc')
            e(f'buffer_load_dword v{t0+1}, v{t0}, s[92:95], s{sT2} offen', ('M', 0))

    def pretouch(self, br):
        e = self.e
        n = self.name
        st = self.cfg.get('pretouch')
        t0 = vT + 8
        e(f's_cmp_lg_u32 s{sWv}, 0')
        e(f's_cbranch_scc1 L_{n}_npt{br}')
        e(f's_bfe_u32 s{sT2}, s2, 0x10002')
        e(f's_cmp_eq_u32 s{sT2}, 0')
        e(f's_cselect_b32 s92, s48, s100')
        e(f's_cselect_b32 s93, s49, s101')
        e(f's_mov_b32 s94, {4096*1152}')
        e(f's_mov_b32 s95, 0x00020000')
        e(f's_lshr_b32 s{sT2}, s2, 3')
        e(f's_mul_i32 s{sT2}, s{sT2}, {64*st}')
        e(f's_mov_b32 s{sT1}, {st}')
        e(f'v_mul_lo_u32 v{t0}, v{vL}, s{sT1}')
        e(f'buffer_load_dword v{t0+1}, v{t0}, s[92:95], s{sT2} offen', ('T', 0))
        e.vmq.pop()
        e(f'buffer_load_dword v{t0+2}, v{t0}, s[{sO}:{sO+3}], s{sT2} offen', ('T', 0))
        e.vmq.pop()
        e.label(f'L_{n}_npt{br}')

    def poison_groups(self):
        G = [[(f'v_mov_b32 v{252+k}, -1', None) for k in range(4)] + [(f'v_lshlrev_b32 v{vT+10}, 4, v{vL}', None)]]
        for rt in range(5):
            for u in range(2):
                g = []
                if u == 0: g.append((f's_add_u32 s3, s{sOoff}, {rt*131072}', None))
                g.append((f'buffer_store_dwordx4 v[252:255], v{vT+10}, s[{sO}:{sO+3}], s3 offen offset:{u*1024} sc1', ('P', 0)))
                G.append(g)
        return G

    def arrive2(self):
        e = self.e
        n = self.name
        e('s_barrier')
        e(f's_cmp_lg_u32 s{sWv}, 0')
        e(f's_cbranch_scc1 L_{n}_na2')
        e('v_mov_b32 v54, 0')
        e('v_mov_b32 v55, 1')
        e('s_mov_b64 exec, 1')
        e('buffer_atomic_add v55, v54, s[92:95], 0 offen sc1', 'sig')
        e.vmq.pop()
        e('s_mov_b64 exec, -1')
        e.label(f'L_{n}_na2')

    def poison(self):
        e = self.e
        for k in range(4): e(f'v_mov_b32 v{252+k}, -1')
        e(f'v_lshlrev_b32 v{vT+4}, 4, v{vL}')
        e(f's_mov_b32 s92, s90')
        e(f's_mov_b32 s93, s91')
        e(f's_mov_b32 s94, 256')
        e(f's_mov_b32 s95, 0x00020000')
        for rt in range(5):
            e(f's_add_u32 s{sT2}, s{sOoff}, {rt*131072}')
            for u in range(2):
                e(f'buffer_store_dwordx4 v[252:255], v{vT+4}, s[{sO}:{sO+3}], s{sT2} offen offset:{u*1024} sc1', ('P', 0))

    def arrive(self, br):
        e = self.e
        n = self.name
        e(f's_cmp_lg_u32 s{sWv}, 0')
        e(f's_cbranch_scc1 L_{n}_na{br}')
        e('v_mov_b32 v54, 0')
        e('v_mov_b32 v55, 1')
        e('s_mov_b64 exec, 1')
        e('buffer_atomic_add v55, v54, s[92:95], 0 offen sc0 sc1', 'sig')
        e.vmq.pop()
        e('s_mov_b64 exec, -1')
        e.label(f'L_{n}_na{br}')

    def arrive_check(self, br):
        e = self.e
        n = self.name
        e(f's_cmp_lg_u32 s{sWv}, 0')
        e(f's_cbranch_scc1 L_{n}_nc{br}')
        e(f'v_readfirstlane_b32 s{sT2}, v55')
        e(f's_cmp_lg_u32 s{sT2}, 255')
        e(f's_cbranch_scc1 L_{n}_nc{br}')
        e('s_mov_b64 exec, 1')
        e('v_mov_b32 v55, 1')
        e('buffer_store_dword v55, v54, s[92:95], 0 offen offset:128 sc1', 'go')
        e.vmq.pop()
        e('s_mov_b64 exec, -1')
        e.label(f'L_{n}_nc{br}')

    def flag_load(self):
        e = self.e
        e('v_mov_b32 v54, 0')
        e('buffer_load_dword v55, v54, s[92:95], 0 offen sc1', 'f2')

    def flag_check(self):
        e = self.e
        n = self.name
        e.wait_vm('f2')
        e(f's_mov_b32 s{sT1}, 0')
        e.label(f'L_{n}_fchk')
        e(f'v_readfirstlane_b32 s{sT0}, v55')
        e(f's_cmp_ge_u32 s{sT0}, 256')
        e(f's_cbranch_scc1 L_{n}_fok')
        e(f's_add_u32 s{sT1}, s{sT1}, 1')
        e(f's_cmp_lt_u32 s{sT1}, 0x20000')
        e(f's_cbranch_scc0 L_{n}_fok')
        e('s_sleep 8')
        e(f'v_mov_b32 v{vT}, 0')
        e(f'buffer_load_dword v55, v{vT}, s[92:95], 0 offen sc1', 'f2')
        e('s_waitcnt vmcnt(0)')
        e.vmq.pop()
        e(f's_branch L_{n}_fchk')
        e.label(f'L_{n}_fok')

    def q_head(self, br):
        e = self.e
        self.q_setup(br)
        self.stamp(1, 2)
        self.q_addr_copies()
        if self.cfg.get('pretouch'): self.pretouch(br)
        if self.cfg.get('mallwarm'): self.mall_warm(br)

    def q_phase(self, br, head=True):
        e = self.e
        if head: self.q_head(br)
        flow = self.cfg.get('flow')
        if flow:
            e(f's_mov_b32 s92, s90')
            e(f's_mov_b32 s93, s91')
            e(f's_mov_b32 s94, 256')
            e(f's_mov_b32 s95, 0x00020000')
        for c in range(9):
            e.wait_vm(('Q', c))
            e.wait_lg()
            e('s_barrier')
            if c == 4: self.cstamp(0, 4)
            if c == 5: self.cstamp(3, 4)
            self.stamp(2 + c, 2)
            G = []
            if c + 2 <= 8: G += self.q_dma(br, c + 2)
            if c == self.cfg.get('k0at', 6): G += self.kv_dma('K', 0, ('K', 0))
            if c == 7: G += self.kv_dma('K', 1, ('K', 1))
            if c == 8: G += self.kv_dma('V', 0, ('V', 0))
            if flow and c == self.cfg.get('pat', 8): G += self.poison_groups()
            R0 = self.q_reads(0, c)
            h = (len(G) + 1) // 2
            def mix(mf, R, D):
                n = len(mf)
                slots = [[] for _ in range(n)]
                for k, g in enumerate(R): slots[k].append(g)
                for k, g in enumerate(D): slots[min(n - 1, 1 + (k * (n - 2)) // max(len(D), 1))].append(g)
                for k in range(n):
                    e(mf[k])
                    for g in slots[k]:
                        for (tt, tag) in g: e(tt, tag)
            if c > 0: mix(self.q_mfmas(1, False), R0, G[:h])
            else:
                emit_groups(e, R0); emit_groups(e, G[:h])
            if c == 4: self.cstamp(1, 4)
            e.wait_lg(('q', 0))
            mix(self.q_mfmas(0, c == 0), self.q_reads(1, c), G[h:])
            if c == 4: self.cstamp(2, 4)
        e.wait_lg()
        if not self.cfg.get('qxov', 1):
            for t in self.q_mfmas(1, False): e(t)

    def q_exchange(self):
        e = self.e
        t0 = vT
        self.cstamp(0, 8)
        e('s_barrier')
        self.cstamp(1, 8)
        e(f's_mul_i32 s{sT2}, s{sWv}, 10240')
        e(f's_add_u32 s{sT2}, s{sT2}, {QIMG}')
        e(f'v_lshlrev_b32 v{t0}, 4, v{vL}')
        e(f'v_add_u32 v{vT+4}, s{sT2}, v{t0}')
        e(f's_xor_b32 s{sT1}, s{sWv}, 1')
        e(f's_mul_i32 s{sT1}, s{sT1}, 10240')
        e(f's_add_u32 s{sT1}, s{sT1}, {QIMG}')
        e(f'v_add_u32 v{vT+5}, s{sT1}, v{t0}')
        self.cstamp(2, 8)
        e(f'v_mov_b32 v{vT+8}, s{sC}')
        e(f'v_mov_b32 v{vT+9}, s{sC}')
        def finish(rt, u):
            b0, b1 = Qacc(2*u, rt), Qacc(2*u + 1, rt)
            L = []
            for b in (b0, b1):
                L.append(f'v_pk_mul_f32 {vr(b,2)}, {vr(b,2)}, {vr(vT+8,2)}')
                L.append(f'v_pk_mul_f32 {vr(b+2,2)}, {vr(b+2,2)}, {vr(vT+8,2)}')
            L += [f'v_cvt_pk_bf16_f32 v{b0}, v{b0}, v{b0+1}', f'v_cvt_pk_bf16_f32 v{b0+1}, v{b0+2}, v{b0+3}',
                  f'v_cvt_pk_bf16_f32 v{b0+2}, v{b1}, v{b1+1}', f'v_cvt_pk_bf16_f32 v{b0+3}, v{b1+2}, v{b1+3}']
            G = [[(t, None)] for t in L]
            G.append([(f'ds_write_b128 v{vT+4}, {vr(b0, 4)} offset:{(rt*2 + u)*1024}', 'qw')])
            G += [[(f'v_accvgpr_write_b32 a{Qf(rt, u)+k}, v{b0+k}', None)] for k in range(4)]
            return G
        pairs = [(rt, u) for u in range(2) for rt in range(5)]
        if self.cfg.get('qxov', 1):
            def mf(tt, rt):
                acc = vr(Qacc(tt, rt), 4)
                return f'{MFMA} {acc}, {ar(aWF[1] + 4*tt, 4)}, {ar(aXF[1] + 4*rt, 4)}, {acc}'
            pend = []
            for k, (rt, u) in enumerate(pairs):
                e(mf(2*u, rt))
                take = pend[:3]; pend = pend[3:]
                emit_groups(e, take)
                e(mf(2*u + 1, rt))
                take = pend[:3]; pend = pend[3:]
                emit_groups(e, take)
                if k >= 3: pend += finish(*pairs[k - 3])
            emit_groups(e, pend)
            for k in range(7, 10): emit_groups(e, finish(*pairs[k]))
        else:
            for (rt, u) in pairs: emit_groups(e, finish(rt, u))
        self.cstamp(3, 8)
        e.wait_lg()
        self.cstamp(4, 8)
        e('s_barrier')
        self.cstamp(5, 8)
        for rt in range(5):
            for u in range(2):
                e(f'ds_read_b128 {ar(Qf(rt, 2 + u), 4)}, v{vT+5} offset:{(rt*2 + u)*1024}', 'qr')
        e(f'v_mov_b32 v{vT}, 0x3f803f80')
        for k in range(4): e(f'v_accvgpr_write_b32 a{aOne+k}, v{vT}')
        e.wait_lg()
        self.cstamp(6, 8)
        e('s_barrier')
        self.cstamp(7, 8)
        emit_groups(e, self.kv_dma('V', 1, ('V', 1)))
        self.cstamp(8, 8)

    def rowmax_xlane(self, r, rt):
        mx, t = vT + rt, vT + 5
        r(f'v_mov_b32 v{t}, v{mx}')
        r(f'v_permlane16_swap_b32 v{mx}, v{t}')
        r(f'v_max_f32 v{mx}, v{mx}, v{t}')
        r(f'v_mov_b32 v{t}, v{mx}')
        r(f'v_permlane32_swap_b32 v{mx}, v{t}')
        r(f'v_max_f32 v{mx}, v{mx}, v{t}')

    def rare_block(self, lab, back):
        r = Emitter()
        r.label(lab)
        r('s_nop 7')
        f = vT + 6
        for rt in range(5):
            mx = vT + rt
            self.rowmax_xlane(r, rt)
            r(f'v_max_f32 v{mx}, 0, v{mx}')
            r(f'v_sub_f32 v{f}, 0, v{mx}')
            r(f'v_exp_f32 v{f}, v{f}')
            for k in range(4): r(f'v_sub_f32 v{NM(rt)+k}, v{NM(rt)+k}, v{mx}')
            for k in range(8): r(f'v_sub_f32 v{Sreg(rt,0)+k}, v{Sreg(rt,0)+k}, v{mx}')
            for k in range(4):
                r(f'v_accvgpr_read_b32 v{vT+8}, a{Lf(rt)+k}')
                r(f'v_mul_f32 v{vT+8}, v{vT+8}, v{f}')
                r(f'v_accvgpr_write_b32 a{Lf(rt)+k}, v{vT+8}')
            for ts in range(8):
                b = Oreg(ts, rt)
                r(f'v_pk_mul_f32 {vr(b,2)}, {vr(b,2)}, {vr(f,2)} op_sel_hi:[1,0]')
                r(f'v_pk_mul_f32 {vr(b+2,2)}, {vr(b+2,2)}, {vr(f,2)} op_sel_hi:[1,0]')
        r('s_nop 7')
        r(f's_branch {back}')
        r.fix_hazards()
        self.rare.append(r)

    def k_reads(self, it, par):
        e = self.e
        e.wait_vm(('K', it))
        for s in range(4):
            for kt in range(2):
                e(f'ds_read_b128 {ar(Kf(kt, s), 4)}, v{vKr+s} offset:{par*32768 + kt*4096}', 'k')

    def iteration(self, it, par, issue_next, next_k=True, first=False, send=False, xq=None, xp=None):
        e = self.e
        mx = [vT + i for i in range(5)]
        def maxops(rt):
            b = Sreg(rt, 0)
            return [[(f'v_max3_f32 v{mx[rt]}, v{b}, v{b+1}, v{b+2}', None)],
                    [(f'v_max3_f32 v{mx[rt]}, v{mx[rt]}, v{b+3}, v{b+4}', None)],
                    [(f'v_max3_f32 v{mx[rt]}, v{mx[rt]}, v{b+5}, v{b+6}', None)],
                    [(f'v_max_f32 v{mx[rt]}, v{mx[rt]}, v{b+7}', None)]]
        def softmax(rt):
            b = Sreg(rt, 0)
            L = []
            for k in range(4):
                L.append(f'v_exp_f32 v{b+2*k}, v{b+2*k}')
                L.append(f'v_exp_f32 v{b+2*k+1}, v{b+2*k+1}')
            for k in range(4): L.append(f'v_cvt_pk_bf16_f32 v{b+k}, v{b+2*k}, v{b+2*k+1}')
            return [[(t, None)] for t in L]
        def vreads():
            return [[(f'ds_read_b64_tr_b16 {ar(Vf(ts) + 2*sec, 2)}, v{vVr+ts} offset:{par*32768 + sec*4096}', 'v')] for ts in range(8) for sec in range(2)]
        dbg7 = self.cfg.get('stamps') == 7 and it == 2
        if dbg7: self.cstamp(0, 7)
        e.wait_lg()
        mb = self.cfg.get('mainbar', 1)
        if mb and issue_next:
            self.nbar = getattr(self, 'nbar', 0) + 1
            if mb == 1:
                e(f's_cmp_lg_u32 s{sBr}, 0')
                e(f's_cbranch_scc1 L_{self.name}_nb{self.nbar}')
                e('s_barrier')
                e.label(f'L_{self.name}_nb{self.nbar}')
            else:
                e('s_barrier')
        G = self.kv_dma('K', par, ('K', it + 2)) if issue_next else []
        for rt in range(5):
            mf = []
            for s in range(4):
                for kt in range(2):
                    acc = vr(Sreg(rt, kt), 4)
                    cc = acc if s else ('0' if first else vr(NM(rt), 4))
                    mf.append(f'{MFMA} {acc}, {ar(Kf(kt, s), 4)}, {ar(Qf(rt, s), 4)}, {cc}')
            extra = []
            if rt < 4 and G: extra += G[2*rt:2*rt+2]
            if rt >= 2: extra += maxops(rt - 2)
            if xq and rt in xq: extra = [xq[rt]] + extra
            if rt == 4:
                e.wait_vm(('V', it))
                R = vreads()
                extra = extra[:2] + R[:4] + extra[2:] + R[4:8]
                interleave(e, mf, extra, start=0)
                emit_groups(e, R[8:])
            else:
                interleave(e, mf, extra, start=1)
        if dbg7: self.cstamp(1, 7)
        emit_groups(e, maxops(3))
        emit_groups(e, maxops(4))
        if first:
            tt = [NM(rt) for rt in range(5)]
            for swap in ('v_permlane16_swap_b32', 'v_permlane32_swap_b32'):
                for rt in range(5): e(f'v_mov_b32 v{tt[rt]}, v{mx[rt]}')
                for rt in range(5): e(f'{swap} v{mx[rt]}, v{tt[rt]}')
                for rt in range(5): e(f'v_max_f32 v{mx[rt]}, v{mx[rt]}, v{tt[rt]}')
            for rt in range(5):
                for k in range(8): e(f'v_sub_f32 v{Sreg(rt,0)+k}, v{Sreg(rt,0)+k}, v{mx[rt]}')
                for k in range(4): e(f'v_sub_f32 v{NM(rt)+k}, 0, v{mx[rt]}')
        else:
            t = vT + 5
            e(f'v_max3_f32 v{t}, v{mx[0]}, v{mx[1]}, v{mx[2]}')
            e(f'v_max3_f32 v{t}, v{t}, v{mx[3]}, v{mx[4]}')
            e(f'v_cmp_lt_f32 vcc, s{sT}, v{t}')
            self.nrare += 1
            lab, back = f'L_{self.name}_rare{self.nrare}', f'L_{self.name}_back{self.nrare}'
            e(f's_cbranch_vccnz {lab}')
            e.label(back)
            self.rare_block(lab, back)
        if dbg7: self.cstamp(2, 7)
        emit_groups(e, softmax(0))
        e.wait_lg()
        if dbg7: self.cstamp(3, 7)
        G = self.kv_dma('V', par, ('V', it + 2)) if issue_next else []
        for rt in range(5):
            mf = []
            P = vr(Sreg(rt, 0), 4)
            for ts in range(8):
                acc = vr(Oreg(ts, rt), 4)
                mf.append(f'{MFMA} {acc}, {ar(Vf(ts), 4)}, {P}, {"0" if first else acc}')
            la = ar(Lf(rt), 4)
            mf.append(f'{MFMA} {la}, {ar(aOne, 4)}, {P}, {"0" if first else la}')
            snd = self.send_groups(rt - 1) if (send and rt >= 1) else []
            if xp and rt in xp: snd = [xp[rt]] + snd
            if rt < 4:
                sm = softmax(rt + 1)
                gg = G[2*rt:2*rt+2] if G else []
                extra = sm[:4] + gg[:1] + sm[4:8] + snd[:2] + gg[1:] + sm[8:] + snd[2:]
                interleave(e, mf, extra, start=0, end=self.cfg.get('pvend', 7))
            else:
                if dbg7: self.cstamp(4, 7)
                if next_k: self.k_reads(it + 1, par ^ 1)
                if dbg7: self.cstamp(5, 7)
                if snd: interleave(e, mf, snd, start=3)
                else:
                    for t in mf: e(t)

    def dbg7_end(self):
        self.cstamp(6, 7)

    def send_groups(self, rt):
        G = []
        for ts in range(4, 8):
            q = rt * 4 + (ts - 4)
            if q < 8: a, off = 53, q * 1024
            elif q < 16: a, off = 53, 32768 + (q - 8) * 1024
            else: a, off = 54, (q - 16) * 1024
            G.append([(f'ds_write_b128 v{a}, {vr(Oreg(ts, rt), 4)} offset:{off}', 'ow')])
        return G

    def main_loop(self):
        e = self.e
        self.k_reads(0, 0)
        self.iteration(0, 0, True, first=True)
        self.iteration(1, 1, True)
        if self.cfg.get('flow'):
            assert ('P', 0) not in e.vmq
            self.arrive2()
        self.stamp(3)
        q0 = [(k, i - 2) for (k, i) in e.vmq]
        l0 = list(e.lgq)
        e(f's_mov_b32 s{sLoop}, 6')
        e.label(f'L_{self.name}_loop')
        self.iteration(2, 0, True)
        self.dbg7_end()
        self.iteration(3, 1, True)
        q1 = [(k, i - 4) for (k, i) in e.vmq]
        assert q0 == q1, (q0, q1)
        assert l0 == e.lgq
        e(f's_sub_u32 s{sLoop}, s{sLoop}, 1')
        e(f's_cmp_lg_u32 s{sLoop}, 0')
        e(f's_cbranch_scc1 L_{self.name}_loop')
        if self.cfg.get('flow'): self.flag_load()
        if self.cfg.get('fused') and self.cfg.get('wwarm', 1) == 3: self.wo_warm()
        w5 = self.cfg.get('fused') and self.cfg.get('wwarm', 1) == 5
        if w5: self.wo_warm_setup()
        pos = self.cfg.get('wpos', [[None, {1: 0, 4: 1}], [{2: 2}, {1: 3, 4: 4}]])
        mk = lambda d: ({int(k): self.wo_warm_group(v) for k, v in d.items()} if (d and w5) else None)
        self.iteration(4, 0, False, xq=mk(pos[0][0]), xp=mk(pos[0][1]))
        if self.cfg.get('fused') and self.cfg.get('wwarm', 1) == 4: self.wo_warm()
        if self.cfg.get('epi2', 1):
            e(f'v_lshlrev_b32 v53, 4, v{vL}')
            e(f'v_add_u32 v53, s{sKl}, v53')
            e(f'v_add_u32 v54, {VS}, v53')
        self.iteration(5, 1, False, next_k=False, send=bool(self.cfg.get('epi2', 1)), xq=mk(pos[1][0]), xp=mk(pos[1][1]))

    def wo_warm(self):
        e = self.e
        q, r, t = vT + 7, vT + 8, vT + 11
        e(f's_bfe_u32 s{sT0}, s2, 0x10002')
        e(f's_cmp_eq_u32 s{sT0}, 0')
        e(f's_cselect_b32 s8, s48, s100')
        e(f's_cselect_b32 s9, s49, s101')
        e(f's_mov_b32 s10, {4096*1152}')
        e(f's_mov_b32 s11, 0x00020000')
        e(f's_bfe_u32 s{sT1}, s2, 0x10001')
        e(f's_lshl_b32 s{sT1}, s{sT1}, 9')
        e(f's_lshr_b32 s{sT0}, s2, 3')
        e(f's_lshl_b32 s{sT0}, s{sT0}, 2')
        e(f's_add_u32 s{sT0}, s{sT0}, s{sWv}')
        e(f's_mul_i32 s{sT0}, s{sT0}, 192')
        e(f's_mov_b32 s{sT2}, 52429')
        for i in range(3):
            e(f'v_add_u32 v{q}, s{sT0}, v{vL}')
            if i: e(f'v_add_u32 v{q}, {64*i}, v{q}')
            e(f'v_mul_lo_u32 v{r}, v{q}, s{sT2}')
            e(f'v_lshrrev_b32 v{r}, 18, v{r}')
            e(f'v_mul_u32_u24 v{t}, 5, v{r}')
            e(f'v_sub_u32 v{q}, v{q}, v{t}')
            e(f'v_mul_u32_u24 v{r}, 1152, v{r}')
            e(f'v_lshl_add_u32 v{q}, v{q}, 7, v{r}')
            e(f'buffer_load_dword v22, v{q}, s[8:11], s{sT1} offen', 'warm')

    def wo_warm_setup(self):
        e = self.e
        r, t = vT + 7, vT + 8
        e(f's_bfe_u32 s{sT0}, s2, 0x10002')
        e(f's_cmp_eq_u32 s{sT0}, 0')
        e(f's_cselect_b32 s8, s48, s100')
        e(f's_cselect_b32 s9, s49, s101')
        e(f's_mov_b32 s10, {4096*1152}')
        e(f's_mov_b32 s11, 0x00020000')
        e(f's_bfe_u32 s4, s2, 0x10001')
        e(f's_lshl_b32 s4, s4, 9')
        e(f's_lshr_b32 s{sT0}, s2, 3')
        e(f's_lshl_b32 s{sT0}, s{sT0}, 2')
        e(f's_add_u32 s{sT0}, s{sT0}, s{sWv}')
        e(f's_mul_i32 s{sT0}, s{sT0}, 160')
        e(f's_mov_b32 s{sT2}, 52429')
        for i, q in enumerate((22, 23, 55)):
            e(f'v_add_u32 v{q}, s{sT0}, v{vL}')
            if i: e(f'v_add_u32 v{q}, {64*i}, v{q}')
            e(f'v_mul_lo_u32 v{r}, v{q}, s{sT2}')
            e(f'v_lshrrev_b32 v{r}, 18, v{r}')
            e(f'v_mul_u32_u24 v{t}, 5, v{r}')
            e(f'v_sub_u32 v{q}, v{q}, v{t}')
            e(f'v_mul_u32_u24 v{r}, 1152, v{r}')
            e(f'v_lshl_add_u32 v{q}, v{q}, 7, v{r}')

    def wo_warm_group(self, j):
        q = (22, 23, 55)[j >> 1]
        lo, hi = ('-1', '0') if (j & 1) == 0 else ('0', '-1')
        return [(f's_mov_b32 exec_lo, {lo}', None), (f's_mov_b32 exec_hi, {hi}', None),
                (f'buffer_load_dword a250, v{q}, s[8:11], s4 offen', 'warm'), ('s_mov_b64 exec, -1', None)]

    def wo_warm_a(self):
        e = self.e
        n = self.name
        q, r, t = vT + 7, vT + 8, vT + 11
        e(f's_cmp_lg_u32 s{sBr}, 0')
        e(f's_cbranch_scc1 L_{n}_nowarma')
        e(f's_bfe_u32 s{sT0}, s2, 0x10002')
        e(f's_cmp_eq_u32 s{sT0}, 0')
        e(f's_cselect_b32 s8, s48, s100')
        e(f's_cselect_b32 s9, s49, s101')
        e(f's_mov_b32 s10, {4096*1152}')
        e(f's_mov_b32 s11, 0x00020000')
        e(f's_bfe_u32 s{sT1}, s2, 0x10001')
        e(f's_lshl_b32 s{sT1}, s{sT1}, 9')
        e(f's_lshr_b32 s{sT0}, s2, 3')
        e(f's_lshl_b32 s{sT0}, s{sT0}, 2')
        e(f's_add_u32 s{sT0}, s{sT0}, s{sWv}')
        e(f's_mul_i32 s{sT0}, s{sT0}, 320')
        e(f's_mov_b32 s{sT2}, 52429')
        for i in range(5):
            e(f'v_add_u32 v{q}, s{sT0}, v{vL}')
            if i: e(f'v_add_u32 v{q}, {64*i}, v{q}')
            e(f'v_mul_lo_u32 v{r}, v{q}, s{sT2}')
            e(f'v_lshrrev_b32 v{r}, 18, v{r}')
            e(f'v_mul_u32_u24 v{t}, 5, v{r}')
            e(f'v_sub_u32 v{q}, v{q}, v{t}')
            e(f'v_mul_u32_u24 v{r}, 1152, v{r}')
            e(f'v_lshl_add_u32 v{q}, v{q}, 7, v{r}')
            e(f'buffer_load_dword v22, v{q}, s[8:11], s{sT1} offen', 'warm')
            e.vmq.pop()
        e.label(f'L_{n}_nowarma')

    def wo_warm_half(self):
        e = self.e
        q, r, t = vT + 7, vT + 8, vT + 11
        e(f's_bfe_u32 s{sT0}, s2, 0x10002')
        e(f's_cmp_eq_u32 s{sT0}, 0')
        e(f's_cselect_b32 s8, s48, s100')
        e(f's_cselect_b32 s9, s49, s101')
        e(f's_mov_b32 s10, {4096*1152}')
        e(f's_mov_b32 s11, 0x00020000')
        e(f's_bfe_u32 s{sT1}, s2, 0x10001')
        e(f's_lshl_b32 s{sT1}, s{sT1}, 9')
        e(f's_lshr_b32 s{sT0}, s2, 3')
        e(f's_lshl_b32 s{sT0}, s{sT0}, 2')
        e(f's_add_u32 s{sT0}, s{sT0}, s{sWv}')
        e(f's_mul_i32 s{sT0}, s{sT0}, 80')
        e(f's_mov_b32 s{sT2}, 52429')
        for i in range(2):
            e(f'v_add_u32 v{q}, s{sT0}, v{vL}')
            if i: e(f'v_add_u32 v{q}, 64, v{q}')
            e(f'v_mul_lo_u32 v{r}, v{q}, s{sT2}')
            e(f'v_lshrrev_b32 v{r}, 18, v{r}')
            e(f'v_mul_u32_u24 v{t}, 5, v{r}')
            e(f'v_sub_u32 v{q}, v{q}, v{t}')
            e(f'v_and_b32 v{t}, 0x600, v{r}')
            e(f'v_add3_u32 v{r}, v{r}, v{t}, v{vT+10}') if False else None
            e(f'v_add_u32 v{r}, v{r}, v{t}')
            e(f'v_add_u32 v{r}, 512, v{r}')
            e(f'v_mul_u32_u24 v{r}, 1152, v{r}')
            e(f'v_lshl_add_u32 v{q}, v{q}, 7, v{r}')
            if i:
                e(f'v_cmp_gt_u32 vcc, 16, v{vL}')
                e(f'v_mov_b32 v{t}, 0x7ff00000')
                e(f'v_cndmask_b32 v{q}, v{t}, v{q}, vcc')
            e(f'buffer_load_dword v22, v{q}, s[8:11], s{sT1} offen', 'warm')

    def wo_warm2(self):
        e = self.e
        n = self.name
        q, r, t = vT + 7, vT + 8, vT + 11
        e(f's_cmp_eq_u32 s{sWv}, 0')
        e(f's_cbranch_scc1 L_{n}_nowarm')
        e(f's_bfe_u32 s{sT0}, s2, 0x10002')
        e(f's_cmp_eq_u32 s{sT0}, 0')
        e(f's_cselect_b32 s8, s48, s100')
        e(f's_cselect_b32 s9, s49, s101')
        e(f's_mov_b32 s10, {4096*1152}')
        e(f's_mov_b32 s11, 0x00020000')
        e(f's_bfe_u32 s{sT1}, s2, 0x10001')
        e(f's_lshl_b32 s{sT1}, s{sT1}, 9')
        e(f's_lshr_b32 s{sT0}, s2, 3')
        e(f's_mul_i32 s{sT0}, s{sT0}, 3')
        e(f's_add_u32 s{sT0}, s{sT0}, s{sWv}')
        e(f's_sub_u32 s{sT0}, s{sT0}, 1')
        e(f's_lshl_b32 s{sT0}, s{sT0}, 8')
        e(f's_mov_b32 s{sT2}, 52429')
        for i in range(4):
            e(f'v_add_u32 v{q}, s{sT0}, v{vL}')
            if i: e(f'v_add_u32 v{q}, {64*i}, v{q}')
            e(f'v_mul_lo_u32 v{r}, v{q}, s{sT2}')
            e(f'v_lshrrev_b32 v{r}, 18, v{r}')
            e(f'v_mul_u32_u24 v{t}, 5, v{r}')
            e(f'v_sub_u32 v{q}, v{q}, v{t}')
            e(f'v_mul_u32_u24 v{r}, 1152, v{r}')
            e(f'v_lshl_add_u32 v{q}, v{q}, 7, v{r}')
            e(f'buffer_load_dword v22, v{q}, s[8:11], s{sT1} offen', 'warm')
        e('s_waitcnt vmcnt(4)')
        e(f's_branch L_{n}_warmdone')
        e.label(f'L_{n}_nowarm')
        e('s_waitcnt vmcnt(0)')
        e.label(f'L_{n}_warmdone')
        e.vmq = []

    def epilogue2(self):
        e = self.e
        t0 = vT
        self.cstamp(0, 6)
        emit_groups(e, self.send_groups(4))
        if self.cfg.get('fused') and self.cfg.get('wwarm', 1) == 6: self.wo_warm_a()
        if self.cfg.get('fused') and self.cfg.get('wwarm', 1) == 8: self.wo_warm_half()
        if self.cfg.get('flow'): self.flag_check()
        if self.cfg.get('fused') and self.cfg.get('wwarm', 1) == 1:
            if self.cfg.get('t4'):
                import tail4; tail4.wo_warm(self)
            else: self.wo_warm()
        if self.cfg.get('t4') and self.cfg.get('t4early', 1):
            import tail4; tail4.early(self)
        vMx, vLx = vS + 30, vS + 35
        for rt in range(5):
            e(f'v_sub_f32 v{vMx+rt}, 0, v{NM(rt)}')
            e(f'v_accvgpr_read_b32 v{vLx+rt}, a{Lf(rt)}')
        aw, ap = vT + 2, vT + 3
        e(f's_mul_i32 s{sT0}, s{sWv}, 640')
        e(f's_add_u32 s{sT0}, s{sT0}, {STATS}')
        e(f'v_lshlrev_b32 v{t0}, 3, v{vN}')
        e(f'v_add_u32 v{aw}, s{sT0}, v{t0}')
        e(f's_xor_b32 s{sT1}, s{sWv}, 1')
        e(f's_mul_i32 s{sT2}, s{sT1}, 640')
        e(f's_add_u32 s{sT2}, s{sT2}, {STATS}')
        e(f'v_add_u32 v{ap}, s{sT2}, v{t0}')
        for rt in range(5):
            e(f'ds_write2_b32 v{aw}, v{vMx+rt}, v{vLx+rt} offset0:{rt*32} offset1:{rt*32+1}', 'sw')
        e(f's_lshl_b32 s{sT1}, s{sT1}, 13')
        e(f'v_lshlrev_b32 v{t0}, 4, v{vL}')
        e(f'v_add_u32 v23, s{sT1}, v{t0}')
        e(f'v_add_u32 v{vT+1}, {VS}, v23')
        pa, pb = 23, vT + 1
        e.wait_lg()
        self.cstamp(1, 6)
        e('s_barrier')
        self.cstamp(2, 6)
        for rt in range(5):
            e(f'ds_read_b64 {vr(vS + 2*rt, 2)}, v{ap} offset:{rt*128}', 'sr')
        def reads(rt):
            for ts in range(4):
                q = rt * 4 + ts
                if q < 8: a, off = pa, q * 1024
                elif q < 16: a, off = pa, 32768 + (q - 8) * 1024
                else: a, off = pb, (q - 16) * 1024
                e(f'ds_read_b128 {vr(Oreg(ts+4, rt),4)}, v{a} offset:{off}', ('or', rt))
        reads(0); reads(1)
        e.wait_lg('sr')
        Go, Gp = vS + 16, vS + 40 - 40 + 0
        Mv = [vS + 10 + rt for rt in range(5)]
        Fo = [vT + 4 + rt for rt in range(5)]
        for rt in range(5): e(f'v_max_f32 v{Mv[rt]}, v{vMx+rt}, v{vS + 2*rt}')
        for rt in range(5):
            e(f'v_sub_f32 v{Fo[rt]}, v{vMx+rt}, v{Mv[rt]}')
            e(f'v_sub_f32 v{vS + 2*rt}, v{vS + 2*rt}, v{Mv[rt]}')
        for rt in range(5):
            e(f'v_exp_f32 v{Fo[rt]}, v{Fo[rt]}')
            e(f'v_exp_f32 v{vS + 2*rt}, v{vS + 2*rt}')
        for rt in range(5): e(f'v_mul_f32 v{vS + 2*rt + 1}, v{vS + 2*rt + 1}, v{vS + 2*rt}')
        for rt in range(5): e(f'v_fma_f32 v{vS + 2*rt + 1}, v{vLx+rt}, v{Fo[rt]}, v{vS + 2*rt + 1}')
        for rt in range(5): e(f'v_rcp_f32 v{vS + 2*rt + 1}, v{vS + 2*rt + 1}')
        for rt in range(5):
            e(f'v_mul_f32 v{Go + 2*rt}, v{Fo[rt]}, v{vS + 2*rt + 1}')
            e(f'v_mul_f32 v{vS + 2*rt}, v{vS + 2*rt}, v{vS + 2*rt + 1}')
        for k in (3, 4, 5, 6): self.cstamp(k, 6)
        so = vT + 6
        e(f'v_lshlrev_b32 v{so}, 4, v{vL}')
        for rt in range(5):
            if rt + 2 < 5: reads(rt + 2)
            e.wait_lg(('or', rt))
            go, gp = Go + 2*rt, vS + 2*rt
            for ts in range(4):
                a, b = Oreg(ts, rt), Oreg(ts + 4, rt)
                e(f'v_pk_mul_f32 {vr(b,2)}, {vr(b,2)}, {vr(gp,2)} op_sel_hi:[1,0]')
                e(f'v_pk_mul_f32 {vr(b+2,2)}, {vr(b+2,2)}, {vr(gp,2)} op_sel_hi:[1,0]')
                e(f'v_pk_fma_f32 {vr(a,2)}, {vr(a,2)}, {vr(go,2)}, {vr(b,2)} op_sel_hi:[1,0,1]')
                e(f'v_pk_fma_f32 {vr(a+2,2)}, {vr(a+2,2)}, {vr(go,2)}, {vr(b+2,2)} op_sel_hi:[1,0,1]')
            for u in range(2):
                a, b = Oreg(2*u, rt), Oreg(2*u + 1, rt)
                e(f'v_cvt_pk_bf16_f32 v{a}, v{a}, v{a+1}')
                e(f'v_cvt_pk_bf16_f32 v{a+1}, v{a+2}, v{a+3}')
                e(f'v_cvt_pk_bf16_f32 v{a+2}, v{b}, v{b+1}')
                e(f'v_cvt_pk_bf16_f32 v{a+3}, v{b+2}, v{b+3}')
                e(f'buffer_store_dwordx4 {vr(a,4)}, v{so}, s[{sO}:{sO+3}], s{sOoff} offen offset:{u*1024}{self.ofl}', 'ost')
            if rt < 4:
                e(f's_add_u32 s{sOoff}, s{sOoff}, 131072')
        self.cstamp(7, 6)
        if self.cfg.get('stamps') and (not self.cfg.get('fused') or self.cfg.get('stamps') == 6) and not self.cfg.get('flow'): e.wait_vm('ost')
        self.cstamp(8, 6)

    def epilogue(self):
        if self.cfg.get('epi2', 1): return self.epilogue2()
        e = self.e
        t0, t1 = vT, vT + 1
        self.cstamp(0, 6)
        if self.cfg.get('flow'): self.flag_check()
        if self.cfg.get('fused') and self.cfg.get('wwarm', 1) == 1:
            if self.cfg.get('t4'):
                import tail4; tail4.wo_warm(self)
            else: self.wo_warm()
        if self.cfg.get('t4') and self.cfg.get('t4early', 1):
            import tail4; tail4.early(self)
        vMx, vLx = vS + 30, vS + 35
        for rt in range(5):
            e(f'v_sub_f32 v{vMx+rt}, 0, v{NM(rt)}')
            e(f'v_accvgpr_read_b32 v{vLx+rt}, a{Lf(rt)}')
        aw, ap = vT + 2, vT + 3
        e(f's_mul_i32 s{sT0}, s{sWv}, 640')
        e(f's_add_u32 s{sT0}, s{sT0}, {STATS}')
        e(f'v_lshlrev_b32 v{t0}, 3, v{vN}')
        e(f'v_add_u32 v{aw}, s{sT0}, v{t0}')
        e(f's_xor_b32 s{sT1}, s{sWv}, 1')
        e(f's_mul_i32 s{sT1}, s{sT1}, 640')
        e(f's_add_u32 s{sT1}, s{sT1}, {STATS}')
        e(f'v_add_u32 v{ap}, s{sT1}, v{t0}')
        for rt in range(5):
            e(f'ds_write2_b32 v{aw}, v{vMx+rt}, v{vLx+rt} offset0:{rt*32} offset1:{rt*32+1}', 'sw')
        e.wait_lg()
        self.cstamp(1, 6)
        e('s_barrier')
        self.cstamp(2, 6)
        for rt in range(5):
            e(f'ds_read_b64 {vr(vS + 2*rt, 2)}, v{ap} offset:{rt*128}', 'sr')
        e.wait_lg()
        G = vS + 16
        Mv = [vS + 10 + rt for rt in range(5)]
        Fo = [vT + 4 + rt for rt in range(5)]
        for rt in range(5): e(f'v_max_f32 v{Mv[rt]}, v{vMx+rt}, v{vS + 2*rt}')
        for rt in range(5):
            e(f'v_sub_f32 v{Fo[rt]}, v{vMx+rt}, v{Mv[rt]}')
            e(f'v_sub_f32 v{vS + 2*rt}, v{vS + 2*rt}, v{Mv[rt]}')
        for rt in range(5):
            e(f'v_exp_f32 v{Fo[rt]}, v{Fo[rt]}')
            e(f'v_exp_f32 v{vS + 2*rt}, v{vS + 2*rt}')
        for rt in range(5): e(f'v_mul_f32 v{vS + 2*rt + 1}, v{vS + 2*rt + 1}, v{vS + 2*rt}')
        for rt in range(5): e(f'v_fma_f32 v{vS + 2*rt + 1}, v{vLx+rt}, v{Fo[rt]}, v{vS + 2*rt + 1}')
        for rt in range(5): e(f'v_rcp_f32 v{vS + 2*rt + 1}, v{vS + 2*rt + 1}')
        for rt in range(5): e(f'v_mul_f32 v{G + 2*rt}, v{Fo[rt]}, v{vS + 2*rt + 1}')
        self.cstamp(3, 6)
        xa = vT + 9
        e(f's_mul_i32 s{sT0}, s{sWv}, 20480')
        e(f's_add_u32 s{sT0}, s{sT0}, {OX}')
        e(f'v_lshlrev_b32 v{t0}, 4, v{vL}')
        e(f'v_add_u32 v{xa}, s{sT0}, v{t0}')
        e(f's_xor_b32 s{sT1}, s{sWv}, 1')
        e(f's_mul_i32 s{sT1}, s{sT1}, 20480')
        e(f's_add_u32 s{sT1}, s{sT1}, {OX}')
        e(f'v_add_u32 v{xa+1}, s{sT1}, v{t0}')
        for ts in (4, 5, 6, 7):
            for rt in range(5):
                b = Oreg(ts, rt); g = G + 2*rt
                e(f'v_pk_mul_f32 {vr(b,2)}, {vr(b,2)}, {vr(g,2)} op_sel_hi:[1,0]')
                e(f'v_pk_mul_f32 {vr(b+2,2)}, {vr(b+2,2)}, {vr(g,2)} op_sel_hi:[1,0]')
                if ts >= 4:
                    e(f'ds_write_b128 v{xa}, {vr(b,4)} offset:{((ts-4)*5+rt)*1024}', 'ow')
        e.wait_lg()
        self.cstamp(4, 6)
        e('s_barrier')
        self.cstamp(5, 6)
        self.cstamp(6, 6)
        so = vT + 6
        e(f'v_lshlrev_b32 v{so}, 4, v{vL}')
        def reads(rt):
            for ts in range(4):
                e(f'ds_read_b128 {vr(Oreg(ts+4, rt),4)}, v{xa+1} offset:{(ts*5+rt)*1024}', ('or', rt))
        reads(0); reads(1)
        for rt in range(5):
            if rt + 2 < 5: reads(rt + 2)
            e.wait_lg(('or', rt))
            g = vS + 16 + 2*rt
            for ts in range(4):
                a, b = Oreg(ts, rt), Oreg(ts + 4, rt)
                e(f'v_pk_fma_f32 {vr(a,2)}, {vr(a,2)}, {vr(g,2)}, {vr(b,2)} op_sel_hi:[1,0,1]')
                e(f'v_pk_fma_f32 {vr(a+2,2)}, {vr(a+2,2)}, {vr(g,2)}, {vr(b+2,2)} op_sel_hi:[1,0,1]')
            for u in range(2):
                a, b = Oreg(2*u, rt), Oreg(2*u + 1, rt)
                e(f'v_cvt_pk_bf16_f32 v{a}, v{a}, v{a+1}')
                e(f'v_cvt_pk_bf16_f32 v{a+1}, v{a+2}, v{a+3}')
                e(f'v_cvt_pk_bf16_f32 v{a+2}, v{b}, v{b+1}')
                e(f'v_cvt_pk_bf16_f32 v{a+3}, v{b+2}, v{b+3}')
                e(f'buffer_store_dwordx4 {vr(a,4)}, v{so}, s[{sO}:{sO+3}], s{sOoff} offen offset:{u*1024}{self.ofl}', 'ost')
            if rt < 4:
                e(f's_add_u32 s{sOoff}, s{sOoff}, 131072')
        self.cstamp(7, 6)
        if self.cfg.get('fused') and self.cfg.get('wwarm', 1) == 2: self.wo_warm2()
        if self.cfg.get('stamps') and (not self.cfg.get('fused') or self.cfg.get('stamps') == 6) and not self.cfg.get('flow'): e.wait_vm('ost')
        self.cstamp(8, 6)

    def _epi_add(self, ts):
        e = self.e
        e.wait_lg(('or', ts))
        for rt in range(5):
            a, b = Oreg(ts, rt), Oreg(ts + 4, rt)
            g = vS + 16 + 2*rt
            e(f'v_pk_fma_f32 {vr(a,2)}, {vr(a,2)}, {vr(g,2)}, {vr(b,2)} op_sel_hi:[1,0,1]')
            e(f'v_pk_fma_f32 {vr(a+2,2)}, {vr(a+2,2)}, {vr(g,2)}, {vr(b+2,2)} op_sel_hi:[1,0,1]')

    def build(self):
        e = self.e
        n = self.name
        e.raw(f'.globl {n}\n.p2align 8\n.type {n},@function')
        e.label(n)
        self.stamp(0); self.stamp(0, 2); self.stamp(0, 3); self.cstamp(4); self.stamp(0, 5); self.cstamp(1, 5)
        self.prologue()
        e(f's_cmp_eq_u32 s{sBr}, 0')
        e(f's_cbranch_scc0 L_{n}_qB')
        saved = (list(e.vmq), list(e.lgq))
        if self.cfg.get('heads', 1):
            self.q_head('A')
            headA = (list(e.vmq), list(e.lgq))
            e(f's_branch L_{n}_loopA')
            e.label(f'L_{n}_qB')
            e.vmq, e.lgq = list(saved[0]), list(saved[1])
            self.q_head('B')
            headB = (list(e.vmq), list(e.lgq))
            self.q_phase('B', head=False)
            endB = (list(e.vmq), list(e.lgq))
            e(f's_branch L_{n}_qx')
            e.label(f'L_{n}_loopA')
            e.vmq, e.lgq = list(headA[0]), list(headA[1])
            self.q_phase('A', head=False)
            assert (e.vmq, e.lgq) == endB, (e.vmq, endB)
        else:
            self.q_phase('A')
            endA = (list(e.vmq), list(e.lgq))
            e(f's_branch L_{n}_qx')
            e.label(f'L_{n}_qB')
            e.vmq, e.lgq = list(saved[0]), list(saved[1])
            self.q_phase('B')
            assert (e.vmq, e.lgq) == endA, (e.vmq, endA)
        e.label(f'L_{n}_qx')
        self.stamp(1); self.stamp(11, 2); self.stamp(1, 3); self.cstamp(5)
        self.q_exchange()
        self.stamp(2); self.stamp(12, 2); self.stamp(2, 3); self.cstamp(6); self.stamp(2, 5)
        self.main_loop()
        self.stamp(4); self.stamp(3, 3); self.cstamp(7); self.stamp(3, 5)
        self.epilogue()
        self.stamp(5)
        if self.cfg.get('fused'):
            if self.cfg.get('t4'): from tail4 import fused_tail
            else: from tail import fused_tail
            fused_tail(self)
            self.stamp(9)
            if self.cfg.get('stamps') == 5:
                self.stamp(4, 5); self.cstamp(5, 5)
                e('s_waitcnt lgkmcnt(0)')
                e(f's_cmp_lg_u32 s2, {self.cfg.get("dbgwg", 0)}')
                e(f's_cbranch_scc1 L_{n}_end')
                e(f's_cmp_lg_u32 s{sWv}, 0')
                e(f's_cbranch_scc1 L_{n}_end')
                e('s_sub_u32 s78, s78, s70')
                e('s_sub_u32 s80, s80, s72')
                e('s_sub_u32 s76, s76, s70')
                e('s_sub_u32 s74, s74, s70')
                e('v_mov_b32 v4, s78'); e('v_mov_b32 v5, s80'); e('v_mov_b32 v6, s76'); e('v_mov_b32 v7, s74')
                e('v_mov_b32 v8, 48')
                e('s_mov_b64 exec, 1')
                e('buffer_store_dwordx4 v[4:7], v8, s[16:19], 0 offen')
                e('s_waitcnt vmcnt(0)')
                e.vmq = []
            else:
                self.write_stamps(10 if self.cfg.get('stamps') == 1 else 13)
        else:
            self.write_stamps(6 if self.cfg.get('stamps') == 1 else 13)
        e.label(f'L_{n}_end')
        e('s_endpgm')
        for r in self.rare:
            e.ins.extend(r.ins)
        e.label(f'L_{n}_rareend')
        e('s_endpgm')
        kd = f'''
.amdhsa_kernel {n}
  .amdhsa_next_free_vgpr 512
  .amdhsa_next_free_sgpr 102
  .amdhsa_accum_offset 256
  .amdhsa_group_segment_fixed_size 0
  .amdhsa_kernarg_size 104
  .amdhsa_user_sgpr_count 2
  .amdhsa_user_sgpr_kernarg_segment_ptr 1
  .amdhsa_system_sgpr_workgroup_id_x 1
.end_amdhsa_kernel
'''
        return kd
```

```python
from asmgen import *
import attn as A
from attn import srd, O_BR, O_BYTES, MFMA, interleave, emit_groups

WO_BYTES = 4096 * 1152
OUT_BYTES = 640 * 2304

def fused_tail(gen):
    e, cfg, n = gen.e, gen.cfg, gen.name
    ofl = cfg.get('o2_flags', ' sc1')
    wfl = cfg.get('wo_flags', '')
    sfl = cfg.get('out_flags', '')
    MT, NT = 3, 4
    RW = cfg.get('tail_rw', 8)
    RO = 4
    sWv, sBrA = A.sWv, A.sBr
    sBatt = A.sB
    sO, sW, sOut, sD = A.sO, 8, 12, 16
    sBr, sMt, sN0, sT0, sT1, sT2 = 4, 5, 6, 37, 38, 39
    sOoff, sWoff, sWl, sLoop = 7, 30, 31, 32
    sOm = 33
    sMg, sNg, sRot = 61, 62, 65
    sWo, sOo = 66, 67
    sRotO = 3
    sOk = 50
    retries = []
    vL, vN, vG, vT = A.vL, A.vN, A.vG, 4
    vWd, vOd, vWr = 10, 14, 16
    vAcc, vWF, vOF = 20, 68, 84
    RED = 0
    flow = cfg.get('flow')
    e('s_load_dwordx2 s[42:43], s[0:1], 72')
    e('s_load_dwordx4 s[44:47], s[0:1], 80')
    sIdle = 64
    e(f's_mov_b32 s{sIdle}, 0')
    e(f's_and_b32 s{sT0}, s2, 7')
    e(f's_lshr_b32 s{sT1}, s2, 3')
    e(f's_lshr_b32 s{sBr}, s{sT0}, 2')
    e(f's_and_b32 s{sOm}, s{sT0}, 1')
    e(f's_bfe_u32 s{sOm+1}, s{sT0}, 0x10001')
    e(f's_mul_i32 s{sOm}, s{sOm}, 7')
    e(f's_cmp_lt_u32 s{sT1}, 28')
    e(f's_cbranch_scc0 L_{n}_extra')
    e(f's_lshr_b32 s{sMg}, s{sT1}, 2')
    e(f's_add_u32 s{sMg}, s{sMg}, s{sOm}')
    e(f's_and_b32 s{sNg}, s{sT1}, 3')
    e(f's_mul_i32 s{sOm+1}, s{sOm+1}, 5')
    e(f's_add_u32 s{sNg}, s{sNg}, s{sOm+1}')
    e(f's_branch L_{n}_dec')
    e.label(f'L_{n}_extra')
    e(f's_sub_u32 s{sT1}, s{sT1}, 28')
    e(f's_lshl_b32 s{sOm+2}, s{sOm+1}, 2')
    e(f's_add_u32 s{sMg}, s{sT1}, s{sOm+2}')
    e(f's_cmp_ge_u32 s{sMg}, 7')
    e(f's_cselect_b32 s{sIdle}, 1, 0')
    e(f's_cselect_b32 s{sMg}, 0, s{sMg}')
    e(f's_add_u32 s{sMg}, s{sMg}, s{sOm}')
    e(f's_mov_b32 s{sNg}, 4')
    e.label(f'L_{n}_dec')
    e(f's_lshl_b32 s{sN0}, s{sNg}, 6')
    e(f's_mul_i32 s{sMt}, s{sMg}, 3')
    e(f's_add_u32 s{sRot}, s{sMg}, s{sNg}')
    e(f's_mul_i32 s{sT1}, s{sRot}, 37')
    e(f's_lshr_b32 s{sT1}, s{sT1}, 8')
    e(f's_mul_i32 s{sT1}, s{sT1}, 7')
    e(f's_sub_u32 s{sRot}, s{sRot}, s{sT1}')
    SEG = cfg.get('oseg', 8)
    e(f's_mul_i32 s{sRot}, s{sRot}, {(SEG*64 + 6)//7}')
    e(f's_lshr_b32 s{sRot}, s{sRot}, 6')
    if not cfg.get('orot', 1): e(f's_mov_b32 s{sRot}, 0')
    sCw, sCo = 70 - 0, 0
    sCw, sCo = 98, 99
    e(f's_mov_b32 s{sCw}, 0')
    e(f's_mov_b32 s{sCo}, 0')
    def kstep(cnt, dst, tmp):
        return [(f's_add_u32 s{dst}, s{cnt}, s{sRot}', None), (f's_and_b32 s{dst}, s{dst}, {SEG-1}', None),
                (f's_and_b32 s{tmp}, s{cnt}, {32-SEG}', None), (f's_or_b32 s{dst}, s{dst}, s{tmp}', None),
                (f's_lshl_b32 s{dst}, s{dst}, 10', None), (f's_add_u32 s{cnt}, s{cnt}, 1', None)]
    e(f's_movk_i32 s{sT1}, 1152')
    e(f'v_lshrrev_b32 v{vT}, 3, v{vL}')
    e(f'v_mul_lo_u32 v{vT}, v{vT}, s{sT1}')
    e(f'v_lshlrev_b32 v{vT+1}, 1, v{vG}')
    e(f'v_and_b32 v{vT+2}, 7, v{vL}')
    e(f'v_xor_b32 v{vT+1}, v{vT+1}, v{vT+2}')
    e(f'v_lshl_add_u32 v{vWd}, v{vT+1}, 4, v{vT}')
    for j in range(1, 4):
        e(f'v_add_u32 v{vWd+j}, {8192*j}, v{vWd}')
    e(f'v_lshlrev_b32 v{vOd}, 4, v{vL}')
    e(f's_mul_i32 s{sWl}, s{sWv}, {RW*4096}')
    e(f'v_bfe_u32 v{vT}, v{vL}, 2, 2')
    e(f'v_lshl_add_u32 v{vT}, v{vG}, 2, v{vT}')
    e(f'v_bfe_u32 v{vT+1}, v{vT}, 1, 2')
    e(f'v_lshlrev_b32 v{vT+1}, 1, v{vT+1}')
    e(f'v_bfe_u32 v{vT+2}, v{vL}, 1, 1')
    e(f'v_xor_b32 v{vT+1}, v{vT+1}, v{vT+2}')
    e(f'v_and_b32 v{vT+2}, 1, v{vL}')
    e(f'v_lshlrev_b32 v{vT+2}, 3, v{vT+2}')
    e(f'v_lshl_add_u32 v{vT+2}, v{vT}, 7, v{vT+2}')
    e(f'v_add_u32 v{vT+2}, s{sWl}, v{vT+2}')
    for j in range(NT):
        e(f's_xor_b32 s{sT0}, s{sWv}, {j}')
        e(f's_lshl_b32 s{sT0}, s{sT0}, 1')
        e(f'v_xor_b32 v{vT}, s{sT0}, v{vT+1}')
        e(f'v_lshl_add_u32 v{vWr+j}, v{vT}, 4, v{vT+2}')
    e('s_waitcnt lgkmcnt(0)')
    e.lgq = []
    e(f's_cmp_eq_u32 s{sBr}, 0')
    e(f's_cselect_b32 s40, s48, s42')
    e(f's_cselect_b32 s41, s49, s43')
    srd(e, sW, 40, 41, WO_BYTES)
    srd(e, sOut, 44, 45, OUT_BYTES)
    e(f's_mul_i32 s{sWoff}, s{sWv}, {32*32*1152}')
    e(f's_lshl_b32 s{sT0}, s{sN0}, 1')
    e(f's_add_u32 s{sWoff}, s{sWoff}, s{sT0}')
    e(f's_mul_i32 s{sOoff}, s{sBr}, {O_BR}')
    e(f's_lshl_b32 s{sT0}, s{sMt}, 17')
    e(f's_add_u32 s{sOoff}, s{sOoff}, s{sT0}')
    e(f's_lshl_b32 s{sT0}, s{sWv}, 15')
    e(f's_add_u32 s{sOoff}, s{sOoff}, s{sT0}')
    for mi in range(MT):
        e(f's_add_u32 s{sOm+mi}, s{sOoff}, {mi*131072}')

    def w_groups(slot, tag):
        G = [kstep(sCw, sWo, sT0) + [(f's_add_u32 m0, s{sWl}, {slot*4096}', None),
              (f's_mul_i32 s{sWo}, s{sWo}, 36', None),
              (f's_add_u32 s{sWo}, s{sWo}, s{sWoff}', None)]]
        for j in range(4):
            G.append([(f'buffer_load_dwordx4 v{vWd+j}, s[{sW}:{sW+3}], s{sWo} offen offset:{1024*j}{wfl} lds', tag)])
        return G
    def o_groups(slot, tag):
        g = kstep(sCo, sRotO, sT1) + [(f's_add_u32 s{sOo+mi}, s{sOm+mi}, s{sRotO}', None) for mi in range(MT)]
        if flow: g.append((f's_mov_b32 s{sOk+slot}, s{sRotO}', None))
        G = [g]
        for mi in range(MT):
            r = vOF + slot*12 + mi*4
            G.append([(f'buffer_load_dwordx4 {vr(r,4)}, v{vOd}, s[{sO}:{sO+3}], s{sOo+mi} offen{ofl}', tag)])
        return G

    if flow:
        e('s_barrier')
    else:
        srd(e, sD, 46, 47, 256)
        e.wait_vm('ost')
        e.vmq = []
        e('s_barrier')
        e(f's_cmp_lg_u32 s{sWv}, 0')
        e(f's_cbranch_scc1 L_{n}_nosig')
        e(f'v_mov_b32 v{vT}, 0')
        e(f'v_mov_b32 v{vT+1}, 1')
        e('s_mov_b64 exec, 1')
        e(f'buffer_atomic_add v{vT+1}, v{vT}, s[{sD}:{sD+3}], 0 offen sc0 sc1', 'sig')
        e('s_waitcnt vmcnt(0)')
        e(f'v_readfirstlane_b32 s{sT0}, v{vT+1}')
        e(f's_cmp_lg_u32 s{sT0}, 255')
        e(f's_cbranch_scc1 L_{n}_notlast')
        e(f'v_mov_b32 v{vT+1}, 1')
        e(f'buffer_store_dword v{vT+1}, v{vT}, s[{sD}:{sD+3}], 0 offen offset:128 sc1', 'go')
        e.label(f'L_{n}_notlast')
        e('s_mov_b64 exec, -1')
        e.vmq = []
        e.label(f'L_{n}_nosig')
    e(f's_cmp_lg_u32 s{sIdle}, 0')
    e(f's_cbranch_scc1 L_{n}_end')
    for t in range(RW): emit_groups(e, w_groups(t, ('w', t)))
    gen.stamp(6)
    if not flow:
        e(f's_cmp_lg_u32 s{sWv}, {cfg.get("pollw", 1)}')
        e(f's_cbranch_scc1 L_{n}_nopoll')
        e(f'v_mov_b32 v{vT}, 128')
        e(f's_mov_b32 s{sLoop}, 0')
        e.label(f'L_{n}_poll')
        e(f'buffer_load_dword v{vT+2}, v{vT}, s[{sD}:{sD+3}], 0 offen sc1')
        e('s_waitcnt vmcnt(0)')
        e(f'v_readfirstlane_b32 s{sT0}, v{vT+2}')
        e(f's_cmp_lg_u32 s{sT0}, 0')
        e(f's_cbranch_scc1 L_{n}_nopoll')
        e(f's_add_u32 s{sLoop}, s{sLoop}, 1')
        e(f's_cmp_lt_u32 s{sLoop}, 0x20000')
        e(f's_cbranch_scc0 L_{n}_nopoll')
        e(f's_sleep {cfg.get("psleep", 4)}')
        e(f's_branch L_{n}_poll')
        e.label(f'L_{n}_nopoll')
        e.vmq = [('w', t) for t in range(RW) for _ in range(4)]
        e('s_barrier')
    gen.stamp(7)
    for t in range(RO): emit_groups(e, o_groups(t, ('o', t)))

    vWF2 = [vWF, 140]
    def w_reads(t):
        ws, b = t % RW, vWF2[t & 1]
        return [[(f'ds_read_b64_tr_b16 {vr(b + nt*4 + 2*sec, 2)}, v{vWr+nt} offset:{ws*4096 + sec*2048}', 'wf')] for nt in range(NT) for sec in range(2)]
    def step(t, first, nxt_w, nxt_o, last=False):
        ws, os_ = t % RW, t % RO
        e.wait_lg()
        e.wait_vm([('o', t)] + ([] if last else [('w', t + 1)]))
        if flow:
            r0 = vOF + os_*12
            tv = vT
            e(f'v_max3_u32 v{tv}, v{r0}, v{r0+1}, v{r0+2}')
            for q in range(3, 11, 2): e(f'v_max3_u32 v{tv}, v{tv}, v{r0+q}, v{r0+q+1}')
            e(f'v_max_u32 v{tv}, v{tv}, v{r0+11}')
            e(f'v_cmp_eq_u32 vcc, -1, v{tv}')
            lab = f'L_{n}_rt{len(retries)}'
            e(f's_cbranch_vccnz {lab}')
            e.label(lab + 'b')
            r = Emitter()
            r.label(lab)
            r(f's_mov_b32 s{sLoop+0}, s{sLoop}') if False else None
            r('s_mov_b32 s54, 0')
            r.label(lab + 'l')
            r('s_sleep 2')
            for mi in range(MT):
                r(f's_add_u32 s55, s{sOm+mi}, s{sOk+os_}')
                r(f'buffer_load_dwordx4 {vr(r0 + mi*4, 4)}, v{vOd}, s[{sO}:{sO+3}], s55 offen{ofl}')
            r('s_waitcnt vmcnt(0)')
            r(f'v_max3_u32 v{tv}, v{r0}, v{r0+1}, v{r0+2}')
            for q in range(3, 11, 2): r(f'v_max3_u32 v{tv}, v{tv}, v{r0+q}, v{r0+q+1}')
            r(f'v_max_u32 v{tv}, v{tv}, v{r0+11}')
            r(f'v_cmp_eq_u32 vcc, -1, v{tv}')
            r(f's_cbranch_vccz {lab}b')
            r('s_add_u32 s54, s54, 1')
            r('s_cmp_lt_u32 s54, 0x4000')
            r(f's_cbranch_scc1 {lab}l')
            r(f's_branch {lab}b')
            r.fix_hazards()
            retries.append(r)
        b = vWF2[t & 1]
        mf = []
        for nt in range(NT):
            for mi in range(MT):
                acc = vr(vAcc + (nt*MT + mi)*4, 4)
                mf.append(f'{MFMA} {acc}, {vr(b + nt*4, 4)}, {vr(vOF + os_*12 + mi*4, 4)}, {"0" if first else acc}')
        R = [] if last else w_reads(t + 1)
        Gw = w_groups(ws, ('w', t + RW)) if nxt_w else []
        Go = o_groups(os_, ('o', t + RO)) if nxt_o else []
        interleave(e, mf[:4], R, start=0)
        interleave(e, mf[4:], Gw + Go[:1], start=0)
        emit_groups(e, Go[1:])

    e.wait_vm([('w', 0)])
    emit_groups(e, w_reads(0))
    if 32 % RW:
        for t in range(32): step(t, t == 0, t + RW < 32, t + RO < 32, last=(t == 31))
    else:
        for t in range(RW): step(t, t == 0, True, True)
        nmid = (32 - 2*RW) // RW
        if nmid > 0:
            q0 = [(k, i - RW) for (k, i) in e.vmq]
            l0 = list(e.lgq)
            e(f's_mov_b32 s{sLoop}, {nmid}')
            e.label(f'L_{n}_oloop')
            for t in range(RW, 2*RW): step(t, False, True, True)
            q1 = [(k, i - 2*RW) for (k, i) in e.vmq]
            assert q0 == q1, (q0, q1)
            assert l0 == e.lgq
            e(f's_sub_u32 s{sLoop}, s{sLoop}, 1')
            e(f's_cmp_lg_u32 s{sLoop}, 0')
            e(f's_cbranch_scc1 L_{n}_oloop')
        base = 2*RW if nmid > 0 else RW
        for t in range(base, base + RW): step(t, False, False, t + RO < base + RW, last=(t == base + RW - 1))
    gen.stamp(8)
    e(f'v_add_u32 v{vT}, s{sWl}, v{vOd}')
    for j in range(1, NT):
        for mi in range(MT):
            e(f'ds_write_b128 v{vT}, {vr(vAcc + (j*MT + mi)*4, 4)} offset:{((j-1)*MT + mi)*1024}', 'rw')
    for j in range(1, NT):
        e(f's_xor_b32 s{sT0}, s{sWv}, {j}')
        e(f's_mul_i32 s{sT0}, s{sT0}, {RW*4096}')
        e(f'v_add_u32 v{vT+3+j-1}, s{sT0}, v{vOd}')
    e.wait_lg()
    e('s_barrier')
    R = vOF
    for mi in range(MT):
        for j in range(1, NT):
            e(f'ds_read_b128 {vr(R + (mi*3 + j-1)*4, 4)}, v{vT+3+j-1} offset:{((j-1)*MT + mi)*1024}', ('r', mi))
    e(f's_lshl_b32 s{sT0}, s{sMt}, 4')
    e(f'v_add_u32 v{vT+1}, s{sT0}, v{vN}')
    e(f's_movk_i32 s{sT1}, 2304')
    e(f'v_mul_lo_u32 v{vT+1}, v{vT+1}, s{sT1}')
    e(f'v_lshl_add_u32 v{vT+1}, v{vG}, 3, v{vT+1}')
    e(f's_mul_i32 s{sT0}, s{sBr}, 1152')
    e(f's_lshl_b32 s{sT1}, s{sN0}, 1')
    e(f's_add_u32 s{sT0}, s{sT0}, s{sT1}')
    e(f's_lshl_b32 s{sT1}, s{sWv}, 5')
    e(f's_add_u32 s{sT0}, s{sT0}, s{sT1}')
    for mi in range(MT):
        e.wait_lg(('r', mi))
        a = vAcc + mi*4
        b = R + mi*12
        e(f'v_pk_add_f32 {vr(a,2)}, {vr(a,2)}, {vr(b,2)}')
        e(f'v_pk_add_f32 {vr(a+2,2)}, {vr(a+2,2)}, {vr(b+2,2)}')
        e(f'v_pk_add_f32 {vr(b+4,2)}, {vr(b+4,2)}, {vr(b+8,2)}')
        e(f'v_pk_add_f32 {vr(b+6,2)}, {vr(b+6,2)}, {vr(b+10,2)}')
        e(f'v_pk_add_f32 {vr(a,2)}, {vr(a,2)}, {vr(b+4,2)}')
        e(f'v_pk_add_f32 {vr(a+2,2)}, {vr(a+2,2)}, {vr(b+6,2)}')
        e(f'v_cvt_pk_bf16_f32 v{a}, v{a}, v{a+1}')
        e(f'v_cvt_pk_bf16_f32 v{a+1}, v{a+2}, v{a+3}')
        e(f'buffer_store_dwordx2 {vr(a,2)}, v{vT+1}, s[{sOut}:{sOut+3}], s{sT0} offen{sfl}', 'st')
        if mi < MT - 1:
            e(f's_add_u32 s{sT0}, s{sT0}, {16*2304}')
    if cfg.get('stamps'): e.wait_vm_all()
    gen.rare.extend(retries)
```

```python
from asmgen import *
import attn as A
from attn import srd, O_BR, O_BYTES, MFMA, interleave, emit_groups

WO_BYTES = 4096 * 1152
OUT_BYTES = 640 * 2304

def fused_tail(gen):
    e, cfg, n = gen.e, gen.cfg, gen.name
    ofl = cfg.get('o2_flags', ' sc1')
    wfl = cfg.get('wo_flags', '')
    sfl = cfg.get('out_flags', '')
    MT, NT = 3, 4
    RW = cfg.get('tail_rw', 8)
    RO = 4
    sWv, sBrA = A.sWv, A.sBr
    sBatt = A.sB
    sO, sW, sOut, sD = A.sO, 8, 12, 16
    sBr, sMt, sN0, sT0, sT1, sT2 = 4, 5, 6, 37, 38, 39
    sOoff, sWoff, sWl, sLoop = 7, 30, 31, 32
    sOm = 33
    sMg, sNg, sRot = 61, 62, 65
    sWo, sOo = 66, 67
    sRotO = 3
    sOk = 50
    retries = []
    vL, vN, vG, vT = A.vL, A.vN, A.vG, 4
    vWd, vOd, vWr = 10, 14, 16
    vAcc, vWF, vOF = 20, 68, 84
    RED = 0
    flow = cfg.get('flow')
    e('s_load_dwordx2 s[42:43], s[0:1], 72')
    e('s_load_dwordx4 s[44:47], s[0:1], 80')
    sIdle = 64
    e(f's_mov_b32 s{sIdle}, 0')
    e(f's_and_b32 s{sT0}, s2, 7')
    e(f's_lshr_b32 s{sT1}, s2, 3')
    e(f's_lshr_b32 s{sBr}, s{sT0}, 2')
    e(f's_and_b32 s{sOm}, s{sT0}, 1')
    e(f's_bfe_u32 s{sOm+1}, s{sT0}, 0x10001')
    e(f's_mul_i32 s{sOm}, s{sOm}, 7')
    e(f's_cmp_lt_u32 s{sT1}, 28')
    e(f's_cbranch_scc0 L_{n}_extra')
    e(f's_lshr_b32 s{sMg}, s{sT1}, 2')
    e(f's_add_u32 s{sMg}, s{sMg}, s{sOm}')
    e(f's_and_b32 s{sNg}, s{sT1}, 3')
    e(f's_mul_i32 s{sOm+1}, s{sOm+1}, 5')
    e(f's_add_u32 s{sNg}, s{sNg}, s{sOm+1}')
    e(f's_branch L_{n}_dec')
    e.label(f'L_{n}_extra')
    e(f's_sub_u32 s{sT1}, s{sT1}, 28')
    e(f's_lshl_b32 s{sOm+2}, s{sOm+1}, 2')
    e(f's_add_u32 s{sMg}, s{sT1}, s{sOm+2}')
    e(f's_cmp_ge_u32 s{sMg}, 7')
    e(f's_cselect_b32 s{sIdle}, 1, 0')
    e(f's_cselect_b32 s{sMg}, 0, s{sMg}')
    e(f's_add_u32 s{sMg}, s{sMg}, s{sOm}')
    e(f's_mov_b32 s{sNg}, 4')
    e.label(f'L_{n}_dec')
    e(f's_lshl_b32 s{sN0}, s{sNg}, 6')
    e(f's_mul_i32 s{sMt}, s{sMg}, 3')
    e(f's_add_u32 s{sRot}, s{sMg}, s{sNg}')
    e(f's_mul_i32 s{sT1}, s{sRot}, 37')
    e(f's_lshr_b32 s{sT1}, s{sT1}, 8')
    e(f's_mul_i32 s{sT1}, s{sT1}, 7')
    e(f's_sub_u32 s{sRot}, s{sRot}, s{sT1}')
    SEG = cfg.get('oseg', 8)
    e(f's_mul_i32 s{sRot}, s{sRot}, {(SEG*64 + 6)//7}')
    e(f's_lshr_b32 s{sRot}, s{sRot}, 6')
    if not cfg.get('orot', 1): e(f's_mov_b32 s{sRot}, 0')
    sCw, sCo = 70 - 0, 0
    sCw, sCo = 98, 99
    e(f's_mov_b32 s{sCw}, 0')
    e(f's_mov_b32 s{sCo}, 0')
    def kstep(cnt, dst, tmp):
        return [(f's_add_u32 s{dst}, s{cnt}, s{sRot}', None), (f's_and_b32 s{dst}, s{dst}, {SEG-1}', None),
                (f's_and_b32 s{tmp}, s{cnt}, {32-SEG}', None), (f's_or_b32 s{dst}, s{dst}, s{tmp}', None),
                (f's_lshl_b32 s{dst}, s{dst}, 10', None), (f's_add_u32 s{cnt}, s{cnt}, 1', None)]
    e(f's_movk_i32 s{sT1}, 1152')
    e(f'v_lshrrev_b32 v{vT}, 3, v{vL}')
    e(f'v_mul_lo_u32 v{vT}, v{vT}, s{sT1}')
    e(f'v_lshlrev_b32 v{vT+1}, 1, v{vG}')
    e(f'v_and_b32 v{vT+2}, 7, v{vL}')
    e(f'v_xor_b32 v{vT+1}, v{vT+1}, v{vT+2}')
    e(f'v_lshl_add_u32 v{vWd}, v{vT+1}, 4, v{vT}')
    for j in range(1, 4):
        e(f'v_add_u32 v{vWd+j}, {8192*j}, v{vWd}')
    e(f'v_lshlrev_b32 v{vOd}, 4, v{vL}')
    e(f's_mul_i32 s{sWl}, s{sWv}, {RW*4096}')
    e(f'v_bfe_u32 v{vT}, v{vL}, 2, 2')
    e(f'v_lshl_add_u32 v{vT}, v{vG}, 2, v{vT}')
    e(f'v_bfe_u32 v{vT+1}, v{vT}, 1, 2')
    e(f'v_lshlrev_b32 v{vT+1}, 1, v{vT+1}')
    e(f'v_bfe_u32 v{vT+2}, v{vL}, 1, 1')
    e(f'v_xor_b32 v{vT+1}, v{vT+1}, v{vT+2}')
    e(f'v_and_b32 v{vT+2}, 1, v{vL}')
    e(f'v_lshlrev_b32 v{vT+2}, 3, v{vT+2}')
    e(f'v_lshl_add_u32 v{vT+2}, v{vT}, 7, v{vT+2}')
    e(f'v_add_u32 v{vT+2}, s{sWl}, v{vT+2}')
    for j in range(NT):
        e(f's_xor_b32 s{sT0}, s{sWv}, {j}')
        e(f's_lshl_b32 s{sT0}, s{sT0}, 1')
        e(f'v_xor_b32 v{vT}, s{sT0}, v{vT+1}')
        e(f'v_lshl_add_u32 v{vWr+j}, v{vT}, 4, v{vT+2}')
    e('s_waitcnt lgkmcnt(0)')
    e.lgq = []
    e(f's_cmp_eq_u32 s{sBr}, 0')
    e(f's_cselect_b32 s40, s48, s42')
    e(f's_cselect_b32 s41, s49, s43')
    srd(e, sW, 40, 41, WO_BYTES)
    srd(e, sOut, 44, 45, OUT_BYTES)
    e(f's_mul_i32 s{sWoff}, s{sWv}, {32*32*1152}')
    e(f's_lshl_b32 s{sT0}, s{sN0}, 1')
    e(f's_add_u32 s{sWoff}, s{sWoff}, s{sT0}')
    e(f's_mul_i32 s{sOoff}, s{sBr}, {O_BR}')
    e(f's_lshl_b32 s{sT0}, s{sMt}, 17')
    e(f's_add_u32 s{sOoff}, s{sOoff}, s{sT0}')
    e(f's_lshl_b32 s{sT0}, s{sWv}, 15')
    e(f's_add_u32 s{sOoff}, s{sOoff}, s{sT0}')
    for mi in range(MT):
        e(f's_add_u32 s{sOm+mi}, s{sOoff}, {mi*131072}')

    def w_groups(slot, tag):
        G = [kstep(sCw, sWo, sT0) + [(f's_add_u32 m0, s{sWl}, {slot*4096}', None),
              (f's_mul_i32 s{sWo}, s{sWo}, 36', None),
              (f's_add_u32 s{sWo}, s{sWo}, s{sWoff}', None)]]
        for j in range(4):
            G.append([(f'buffer_load_dwordx4 v{vWd+j}, s[{sW}:{sW+3}], s{sWo} offen offset:{1024*j}{wfl} lds', tag)])
        return G
    def o_groups(slot, tag):
        g = kstep(sCo, sRotO, sT1) + [(f's_add_u32 s{sOo+mi}, s{sOm+mi}, s{sRotO}', None) for mi in range(MT)]
        if flow: g.append((f's_mov_b32 s{sOk+slot}, s{sRotO}', None))
        G = [g]
        for mi in range(MT):
            r = vOF + slot*12 + mi*4
            G.append([(f'buffer_load_dwordx4 {vr(r,4)}, v{vOd}, s[{sO}:{sO+3}], s{sOo+mi} offen{ofl}', tag)])
        return G

    if flow:
        e('s_barrier')
    else:
        twobar = cfg.get('twobar')
        srd(e, sD, 46, 47, 256)
        if twobar:
            stores = list(e.vmq)
            e('s_barrier')
            e(f's_cmp_eq_u32 s{sWv}, 0')
            e(f's_cbranch_scc1 L_{n}_sig')
            for t in range(RW): emit_groups(e, w_groups(t, ('w', t)))
            e.wait_vm('ost')
            e('s_barrier')
            e(f's_branch L_{n}_nosig')
            e.label(f'L_{n}_sig')
            e.vmq = list(stores)
            e.wait_vm_all()
            e('s_barrier')
        else:
            e.wait_vm('ost')
            e.vmq = []
            e('s_barrier')
            e(f's_cmp_lg_u32 s{sWv}, 0')
            e(f's_cbranch_scc1 L_{n}_nosig')
        e(f'v_mov_b32 v{vT}, 0')
        e(f'v_mov_b32 v{vT+1}, 1')
        e('s_mov_b64 exec, 1')
        e(f'buffer_atomic_add v{vT+1}, v{vT}, s[{sD}:{sD+3}], 0 offen sc0 sc1', 'sig')
        e('s_waitcnt vmcnt(0)')
        e(f'v_readfirstlane_b32 s{sT0}, v{vT+1}')
        e(f's_cmp_lg_u32 s{sT0}, 255')
        e(f's_cbranch_scc1 L_{n}_notlast')
        e(f'v_mov_b32 v{vT+1}, 1')
        e(f'buffer_store_dword v{vT+1}, v{vT}, s[{sD}:{sD+3}], 0 offen offset:128 sc1', 'go')
        e.label(f'L_{n}_notlast')
        e('s_mov_b64 exec, -1')
        e.vmq = []
        if twobar:
            for t in range(RW): emit_groups(e, w_groups(t, ('w', t)))
        e.label(f'L_{n}_nosig')
    if not flow and cfg.get('twobar'):
        e.vmq = [('w', t) for t in range(RW) for _ in range(4)]
        e(f's_cmp_eq_u32 s{sIdle}, 0')
        e(f's_cbranch_scc1 L_{n}_busy')
        e('s_waitcnt vmcnt(0)')
        e(f's_branch L_{n}_end')
        e.label(f'L_{n}_busy')
    else:
        e(f's_cmp_lg_u32 s{sIdle}, 0')
        e(f's_cbranch_scc1 L_{n}_end')
        for t in range(RW): emit_groups(e, w_groups(t, ('w', t)))
    gen.stamp(6)
    if not flow:
        e(f's_cmp_lg_u32 s{sWv}, {cfg.get("pollw", 1)}')
        e(f's_cbranch_scc1 L_{n}_nopoll')
        e(f'v_mov_b32 v{vT}, 128')
        e(f's_mov_b32 s{sLoop}, 0')
        e.label(f'L_{n}_poll')
        e(f'buffer_load_dword v{vT+2}, v{vT}, s[{sD}:{sD+3}], 0 offen sc1')
        e('s_waitcnt vmcnt(0)')
        e(f'v_readfirstlane_b32 s{sT0}, v{vT+2}')
        e(f's_cmp_lg_u32 s{sT0}, 0')
        e(f's_cbranch_scc1 L_{n}_nopoll')
        e(f's_add_u32 s{sLoop}, s{sLoop}, 1')
        e(f's_cmp_lt_u32 s{sLoop}, 0x20000')
        e(f's_cbranch_scc0 L_{n}_nopoll')
        e(f's_sleep {cfg.get("psleep", 4)}')
        e(f's_branch L_{n}_poll')
        e.label(f'L_{n}_nopoll')
        e.vmq = [('w', t) for t in range(RW) for _ in range(4)]
        e('s_barrier')
    gen.stamp(7)
    for t in range(RO): emit_groups(e, o_groups(t, ('o', t)))

    vWF2 = [vWF, 140]
    def w_reads(t):
        ws, b = t % RW, vWF2[t & 1]
        return [[(f'ds_read_b64_tr_b16 {vr(b + nt*4 + 2*sec, 2)}, v{vWr+nt} offset:{ws*4096 + sec*2048}', 'wf')] for nt in range(NT) for sec in range(2)]
    def step(t, first, nxt_w, nxt_o, last=False):
        ws, os_ = t % RW, t % RO
        e.wait_lg()
        e.wait_vm([('o', t)] + ([] if last else [('w', t + 1)]))
        if flow:
            r0 = vOF + os_*12
            tv = vT
            e(f'v_max3_u32 v{tv}, v{r0}, v{r0+1}, v{r0+2}')
            for q in range(3, 11, 2): e(f'v_max3_u32 v{tv}, v{tv}, v{r0+q}, v{r0+q+1}')
            e(f'v_max_u32 v{tv}, v{tv}, v{r0+11}')
            e(f'v_cmp_eq_u32 vcc, -1, v{tv}')
            lab = f'L_{n}_rt{len(retries)}'
            e(f's_cbranch_vccnz {lab}')
            e.label(lab + 'b')
            r = Emitter()
            r.label(lab)
            r(f's_mov_b32 s{sLoop+0}, s{sLoop}') if False else None
            r('s_mov_b32 s54, 0')
            r.label(lab + 'l')
            r('s_sleep 2')
            for mi in range(MT):
                r(f's_add_u32 s55, s{sOm+mi}, s{sOk+os_}')
                r(f'buffer_load_dwordx4 {vr(r0 + mi*4, 4)}, v{vOd}, s[{sO}:{sO+3}], s55 offen{ofl}')
            r('s_waitcnt vmcnt(0)')
            r(f'v_max3_u32 v{tv}, v{r0}, v{r0+1}, v{r0+2}')
            for q in range(3, 11, 2): r(f'v_max3_u32 v{tv}, v{tv}, v{r0+q}, v{r0+q+1}')
            r(f'v_max_u32 v{tv}, v{tv}, v{r0+11}')
            r(f'v_cmp_eq_u32 vcc, -1, v{tv}')
            r(f's_cbranch_vccz {lab}b')
            r('s_add_u32 s54, s54, 1')
            r('s_cmp_lt_u32 s54, 0x4000')
            r(f's_cbranch_scc1 {lab}l')
            r(f's_branch {lab}b')
            r.fix_hazards()
            retries.append(r)
        b = vWF2[t & 1]
        mf = []
        for nt in range(NT):
            for mi in range(MT):
                acc = vr(vAcc + (nt*MT + mi)*4, 4)
                mf.append(f'{MFMA} {acc}, {vr(b + nt*4, 4)}, {vr(vOF + os_*12 + mi*4, 4)}, {"0" if first else acc}')
        R = [] if last else w_reads(t + 1)
        Gw = w_groups(ws, ('w', t + RW)) if nxt_w else []
        Go = o_groups(os_, ('o', t + RO)) if nxt_o else []
        interleave(e, mf[:4], R, start=0)
        interleave(e, mf[4:], Gw + Go[:1], start=0)
        emit_groups(e, Go[1:])

    e.wait_vm([('w', 0)])
    emit_groups(e, w_reads(0))
    if 32 % RW:
        for t in range(32): step(t, t == 0, t + RW < 32, t + RO < 32, last=(t == 31))
    else:
        for t in range(RW): step(t, t == 0, True, True)
        nmid = (32 - 2*RW) // RW
        if nmid > 0:
            q0 = [(k, i - RW) for (k, i) in e.vmq]
            l0 = list(e.lgq)
            e(f's_mov_b32 s{sLoop}, {nmid}')
            e.label(f'L_{n}_oloop')
            for t in range(RW, 2*RW): step(t, False, True, True)
            q1 = [(k, i - 2*RW) for (k, i) in e.vmq]
            assert q0 == q1, (q0, q1)
            assert l0 == e.lgq
            e(f's_sub_u32 s{sLoop}, s{sLoop}, 1')
            e(f's_cmp_lg_u32 s{sLoop}, 0')
            e(f's_cbranch_scc1 L_{n}_oloop')
        base = 2*RW if nmid > 0 else RW
        for t in range(base, base + RW): step(t, False, False, t + RO < base + RW, last=(t == base + RW - 1))
    gen.stamp(8)
    e(f'v_add_u32 v{vT}, s{sWl}, v{vOd}')
    for j in range(1, NT):
        for mi in range(MT):
            e(f'ds_write_b128 v{vT}, {vr(vAcc + (j*MT + mi)*4, 4)} offset:{((j-1)*MT + mi)*1024}', 'rw')
    for j in range(1, NT):
        e(f's_xor_b32 s{sT0}, s{sWv}, {j}')
        e(f's_mul_i32 s{sT0}, s{sT0}, {RW*4096}')
        e(f'v_add_u32 v{vT+3+j-1}, s{sT0}, v{vOd}')
    e.wait_lg()
    e('s_barrier')
    R = vOF
    for mi in range(MT):
        for j in range(1, NT):
            e(f'ds_read_b128 {vr(R + (mi*3 + j-1)*4, 4)}, v{vT+3+j-1} offset:{((j-1)*MT + mi)*1024}', ('r', mi))
    e(f's_lshl_b32 s{sT0}, s{sMt}, 4')
    e(f'v_add_u32 v{vT+1}, s{sT0}, v{vN}')
    e(f's_movk_i32 s{sT1}, 2304')
    e(f'v_mul_lo_u32 v{vT+1}, v{vT+1}, s{sT1}')
    e(f'v_lshl_add_u32 v{vT+1}, v{vG}, 3, v{vT+1}')
    e(f's_mul_i32 s{sT0}, s{sBr}, 1152')
    e(f's_lshl_b32 s{sT1}, s{sN0}, 1')
    e(f's_add_u32 s{sT0}, s{sT0}, s{sT1}')
    e(f's_lshl_b32 s{sT1}, s{sWv}, 5')
    e(f's_add_u32 s{sT0}, s{sT0}, s{sT1}')
    for mi in range(MT):
        e.wait_lg(('r', mi))
        a = vAcc + mi*4
        b = R + mi*12
        e(f'v_pk_add_f32 {vr(a,2)}, {vr(a,2)}, {vr(b,2)}')
        e(f'v_pk_add_f32 {vr(a+2,2)}, {vr(a+2,2)}, {vr(b+2,2)}')
        e(f'v_pk_add_f32 {vr(b+4,2)}, {vr(b+4,2)}, {vr(b+8,2)}')
        e(f'v_pk_add_f32 {vr(b+6,2)}, {vr(b+6,2)}, {vr(b+10,2)}')
        e(f'v_pk_add_f32 {vr(a,2)}, {vr(a,2)}, {vr(b+4,2)}')
        e(f'v_pk_add_f32 {vr(a+2,2)}, {vr(a+2,2)}, {vr(b+6,2)}')
        e(f'v_cvt_pk_bf16_f32 v{a}, v{a}, v{a+1}')
        e(f'v_cvt_pk_bf16_f32 v{a+1}, v{a+2}, v{a+3}')
        e(f'buffer_store_dwordx2 {vr(a,2)}, v{vT+1}, s[{sOut}:{sOut+3}], s{sT0} offen{sfl}', 'st')
        if mi < MT - 1:
            e(f's_add_u32 s{sT0}, s{sT0}, {16*2304}')
    if cfg.get('stamps'): e.wait_vm_all()
    gen.rare.extend(retries)
```
